```python
import torch

def _softmax(x, axis=-1):
    return torch.softmax(x, dim=axis)
def _gelu(x):
    return torch.nn.functional.gelu(x, approximate="tanh")
def _silu(x):
    return torch.nn.functional.silu(x)
def _sigmoid(x):
    return torch.sigmoid(x)
def _layernorm(x, axis=-1, eps=1e-5):
    m = x.mean(dim=axis, keepdim=True)
    v = x.var(dim=axis, keepdim=True, unbiased=False)
    return (x - m) / torch.sqrt(v + eps)
def _scatter_add(tgt, idx, src, axis=0):
    return tgt.clone().index_add_(axis, idx, src)
def _segment_sum(src, seg, n):
    out = torch.zeros((n,) + src.shape[1:], dtype=src.dtype)
    return out.index_add_(0, seg, src)
def _pad(x, pw):
    flat = tuple(v for pair in reversed(pw) for v in pair)
    return torch.nn.functional.pad(x, flat)

kernel_name = 'concat_heads__linear_kernel_hedgehog__mha_block__prompt'

def setup_inputs():

    _w = (lambda a: (lambda t: t.to(torch.bfloat16) if t.is_floating_point() else t)(torch.as_tensor(a)))
    def _A_setup():
        B, S, D, H = 1, 2048, 1024, 32
        Dh = D // H
        return {
            "x": _w((lambda *s: torch.randn(*s, dtype=torch.bfloat16) * 0.4)(B, S, D)),
            "wqkv": _w((lambda *s: torch.randn(*s, dtype=torch.bfloat16) * 0.4)(D, 3 * D)),
            "w_phi": _w((lambda *s: torch.randn(*s, dtype=torch.bfloat16) * 0.4)(H, Dh, Dh) * (Dh ** -0.5)),
            "wo": _w((lambda *s: torch.randn(*s, dtype=torch.bfloat16) * 0.05)(D, D)),
        }
    _A_in = _A_setup()

    def _B_setup():
        B, S, D, H = 1, 2048, 1024, 32
        return {
            "x": _w((lambda *s: torch.randn(*s, dtype=torch.bfloat16) * 0.2)(B, S, D)),
            "wqkv": _w((lambda *s: torch.randn(*s, dtype=torch.bfloat16) * 0.2)(D, 3 * D)),
            "wo": _w((lambda *s: torch.randn(*s, dtype=torch.bfloat16) * 0.05)(D, D)),
        }
    _B_in = _B_setup()

    return {
        "A_x": _A_in["x"],
        "A_wqkv": _A_in["wqkv"],
        "A_w_phi": _A_in["w_phi"],
        "A_wo": _A_in["wo"],
        "B_x": _B_in["x"],
        "B_wqkv": _B_in["wqkv"],
        "B_wo": _B_in["wo"],
    }

def reference(A_x, A_wqkv, A_w_phi, A_wo, B_x, B_wqkv, B_wo):
    def _A_ref(x, wqkv, w_phi, wo):
        B, S, D = x.shape
        H = 32; Dh = D // H
        qkv = (lambda x, *d: x.permute(*d))((x @ wqkv).reshape(B, S, 3, H, Dh), 2, 0, 3, 1, 4)
        q, k, v = qkv[0], qkv[1], qkv[2]
        pq = torch.einsum("bhsd,hdf->bhsf", q, w_phi)
        pk = torch.einsum("bhsd,hdf->bhsf", k, w_phi)
        phi_q = torch.concatenate([_softmax(pq, axis=-1), _softmax(-pq, axis=-1)], axis=-1)
        phi_k = torch.concatenate([_softmax(pk, axis=-1), _softmax(-pk, axis=-1)], axis=-1)
        kv = torch.einsum("bhsf,bhsd->bhfd", phi_k, v)
        z  = torch.einsum("bhsf->bhf", phi_k)
        num = torch.einsum("bhqf,bhfd->bhqd", phi_q, kv)
        den = torch.einsum("bhqf,bhf->bhq", phi_q, z)[..., None] + 1e-6
        o = num / den
        return (lambda x, *d: x.permute(*d))(o, 0, 2, 1, 3).reshape(B, S, D) @ wo

    def _B_ref(x, wqkv, wo):
        B, S, D = x.shape
        H = 32
        Dh = D // H
        qkv = (lambda x, *d: x.permute(*d))((x @ wqkv).reshape(B, S, 3, H, Dh), 2, 0, 3, 1, 4)
        q, k, v = qkv[0], qkv[1], qkv[2]
        scores = torch.einsum("bhqd,bhkd->bhqk", q, k) * (Dh ** -0.5)
        p = _softmax(scores, axis=-1)
        o = torch.einsum("bhqk,bhkd->bhqd", p, v)
        return (lambda x, *d: x.permute(*d))(o, 0, 2, 1, 3).reshape(B, S, D) @ wo

    a = _A_ref(A_x, A_wqkv, A_w_phi, A_wo)
    b = _B_ref(B_x, B_wqkv, B_wo)
    return torch.concatenate([a, b], axis=-1)
```

```python
import re

REG = re.compile(r'^(-|\|)?(abs\()?([vsa])(?:(\d+)|\[(\d+):(\d+)\])\)?\|?$')

def regs_of(tok):
    tok = tok.strip()
    if tok in ("vcc",): return [("s", 106), ("s", 107)]
    if tok == "vcc_lo": return [("s", 106)]
    if tok == "exec": return [("s", 126), ("s", 127)]
    if tok == "m0": return [("s", 124)]
    m = REG.match(tok)
    if not m: return []
    f = m.group(3)
    if m.group(4) is not None: return [(f, int(m.group(4)))]
    return [(f, i) for i in range(int(m.group(5)), int(m.group(6)) + 1)]

def split_ops(s):
    out, depth, cur = [], 0, ""
    for ch in s:
        if ch in "[(": depth += 1
        if ch in "])": depth -= 1
        if ch == "," and depth == 0:
            out.append(cur.strip()); cur = ""
        else: cur += ch
    if cur.strip(): out.append(cur.strip())
    return out

TRANS = ("v_exp_f32", "v_log_f32", "v_rcp_f32", "v_rsq_f32", "v_sqrt_f32", "v_sin_f32", "v_cos_f32", "v_rcp_iflag_f32")

class Ins:
    __slots__ = ("text", "op", "dst", "src", "kind", "passes", "srcC", "srcAB", "states", "data")
    def __init__(self, text):
        self.text = text
        t = text.split(";")[0].strip()
        parts = t.split(None, 1)
        self.op = parts[0]
        ops = split_ops(parts[1]) if len(parts) > 1 else []
        ops = [o.split()[0] if o and not o.startswith("hwreg") else o for o in ops]
        op = self.op
        self.passes = 0; self.srcC = []; self.srcAB = []; self.data = []
        self.states = 1
        R = [regs_of(o) for o in ops]
        flat = lambda L: [x for l in L for x in l]
        if op == "s_nop":
            self.kind = "nop"; self.dst = []; self.src = []; self.states = int(ops[0], 0) + 1
        elif op.startswith("v_mfma") or op.startswith("v_smfmac"):
            self.kind = "mfma"
            self.passes = 8 if "32x32" in op else 4
            self.dst = R[0]
            self.srcAB = R[1] + R[2]
            if op.startswith("v_smfmac"):
                self.srcC = R[0]; self.srcAB += R[3]
            else:
                self.srcC = R[3]
            self.src = self.srcAB + self.srcC
        elif op.startswith("buffer_store") or op.startswith("global_store") or op.startswith("buffer_atomic") or op.startswith("global_atomic"):
            self.kind = "vmem"; self.dst = []; self.src = flat(R)
            self.data = R[0] if op.startswith("buffer") else R[1]
            if not ("x3" in op or "x4" in op): self.data = []
        elif op in ("buffer_inv", "buffer_wbl2"):
            self.kind = "vmem"; self.dst = []; self.src = []
        elif op.startswith("buffer_load") or op.startswith("global_load"):
            self.kind = "vmem"
            if " lds" in t or "_lds_" in op:
                self.dst = []; self.src = flat(R) + [("s", 124)]; self.kind = "dma"
            else:
                self.dst = R[0]; self.src = flat(R[1:])
        elif op.startswith("ds_write") or op.startswith("ds_add") or op.startswith("ds_max") or op.startswith("ds_or"):
            self.kind = "ds"; self.dst = []; self.src = flat(R)
        elif op.startswith("ds_"):
            self.kind = "ds"; self.dst = R[0]; self.src = flat(R[1:])
        elif op.startswith("v_"):
            self.kind = "valu"
            if op.startswith("v_cmp"):
                self.dst = R[0]; self.src = flat(R[1:])
                if op.startswith("v_cmpx"): self.dst = self.dst + [("s", 126), ("s", 127)]
            elif op.startswith("v_permlane") and "swap" in op:
                self.dst = R[0] + R[1]; self.src = R[0] + R[1]
            elif "_co_" in op:
                self.dst = R[0] + R[1]; self.src = flat(R[2:])
            else:
                self.dst = R[0]; self.src = flat(R[1:])
                if op.startswith("v_fmac") or op.startswith("v_dot2c") or op.startswith("v_writelane"): self.src += R[0]
                if op.startswith("v_cndmask") and len(ops) == 3: self.src += [("s", 106), ("s", 107)]
        elif op.startswith("s_"):
            self.kind = "salu"
            if op.startswith("s_cmp") or op.startswith("s_bitcmp") or op.startswith("s_cbranch") or op in ("s_branch", "s_barrier", "s_waitcnt", "s_endpgm", "s_setprio", "s_sleep", "s_bitcmp1_b32", "s_bitcmp0_b32"):
                self.dst = []; self.src = flat(R)
            else:
                self.dst = R[0] if R else []; self.src = flat(R[1:])
        else:
            raise ValueError("unknown instr " + text)

def need(prev, cur):
    n = 0
    pd = set(prev.dst); cs = set(cur.src); cd = set(cur.dst)
    if prev.kind == "valu":
        vd = {r for r in pd if r[0] in "va"}
        sd = {r for r in pd if r[0] == "s"}
        if cur.kind == "mfma" and vd & cs: n = max(n, 2)
        if cur.kind == "mfma" and ("s", 126) in sd: n = max(n, 4)
        if cur.kind == "valu":
            if cur.op.startswith("v_permlane") and vd & cs: n = max(n, 2)
            if ("dpp" in cur.text or "row_" in cur.text or "quad_perm" in cur.text) and vd & cs: n = max(n, 2)
            if (cur.op.startswith("v_readlane") or cur.op.startswith("v_readfirstlane")) and vd & cs: n = max(n, 1)
            if any(prev.op.startswith(x) for x in TRANS) and vd & cs: n = max(n, 1)
            if sd & cs: n = max(n, 4 if (cur.op.startswith("v_readlane") or cur.op.startswith("v_writelane")) else 2)
            if ("s", 126) in sd and (cur.op.startswith("v_read") or cur.op.startswith("v_permlane") or "dpp" in cur.text): n = max(n, 5)
        if cur.kind in ("vmem", "dma") and sd & cs: n = max(n, 5)
        if cur.kind == "salu" and sd & cs: n = max(n, 1)
    if prev.kind == "salu":
        if ("s", 124) in pd and cur.kind == "dma": n = max(n, 1)
    if prev.kind == "vmem" and prev.data:
        if set(prev.data) & cd: n = max(n, 2)
    if prev.kind == "mfma":
        big = {8: 12, 4: 8}[prev.passes]
        if cur.kind == "mfma":
            if pd & set(cur.srcAB): n = max(n, big)
            if pd & set(cur.srcC):
                same = (cur.srcC == prev.dst and cur.passes == prev.passes)
                n = max(n, 0 if same else {8: 10, 4: 6}[prev.passes])
            elif pd & cd:
                n = max(n, {8: 10, 4: 6}[prev.passes])
        else:
            if pd & (cs | cd): n = max(n, big)
            if cur.kind == "valu" and set(prev.srcC) & cd: n = max(n, {8: 7, 4: 3}[prev.passes])
    return n

class Asm:
    def __init__(self):
        self.lines = []
        self.hist = []
        self.nops = 0
    def raw(self, text):
        self.lines.append(text)
    def label(self, name, keep_hist=False):
        self.lines.append(name + ":")
        if not keep_hist: self.hist = []
    def clear(self): self.hist = []
    def __call__(self, text):
        for t in text.strip().split("\n"):
            t = t.strip()
            if not t or t.startswith(";"): continue
            if t.endswith(":"):
                self.label(t[:-1]); continue
            ins = Ins(t)
            dist = 0; req = 0
            for p in reversed(self.hist):
                r = need(p, ins) - dist
                req = max(req, r)
                dist += p.states
                if dist > 24: break
            if req > 0:
                self.nops += 1
                nn = Ins(f"s_nop {req-1}")
                self.lines.append(f"    s_nop {req-1}")
                self.hist.append(nn)
            self.lines.append("    " + t)
            self.hist.append(ins)
            if len(self.hist) > 40: self.hist = self.hist[-40:]
    def text(self): return "\n".join(self.lines) + "\n"

def check_loop(body_lines):
    a = Asm()
    ins = [l for l in body_lines if l.strip() and not l.strip().endswith(":") and not l.strip().startswith(";") and not l.strip().startswith(".")]
    for l in ins: a(l)
    n1 = a.nops
    for l in ins: a(l)
    return n1, a.nops - n1

def v(i, n=1): return f"v{i}" if n == 1 else f"v[{i}:{i+n-1}]"
def s(i, n=1): return f"s{i}" if n == 1 else f"s[{i}:{i+n-1}]"

def kdesc(name, vgpr, sgpr=96):
    acc = (vgpr + 3) // 4 * 4
    return f""".p2align 6
.amdhsa_kernel {name}
  .amdhsa_next_free_vgpr {vgpr}
  .amdhsa_next_free_sgpr {sgpr}
  .amdhsa_accum_offset {acc}
  .amdhsa_group_segment_fixed_size 0
  .amdhsa_kernarg_size 80
  .amdhsa_user_sgpr_count 2
  .amdhsa_user_sgpr_kernarg_segment_ptr 1
  .amdhsa_system_sgpr_workgroup_id_x 1
.end_amdhsa_kernel
"""
def khead(name):
    return f""".globl {name}
.p2align 8
.type {name},@function
{name}:
"""
```

```python
from asmlib import *
import math

QB_OFF = 0
KVB_OFF = 4 << 20
QA_OFF = 12 << 20
KVP_OFF = 16 << 20
ZP_OFF = 18 << 20
O_OFF = 20 << 20
WS_BYTES = 268435456

W_SLOT = 12288; NW = 5
X_BASE = W_SLOT * NW
X_SLOT = 32768; NX = 3
WPHI_LDS = X_BASE + NX * X_SLOT
LOG2E = 1.4426950408889634
def f2u(x):
    import struct
    return struct.unpack("<I", struct.pack("<f", x))[0]

ACCQ, ACCK, ACCV = 64, 128, 192
XS = [8, 24]; WS_ = [40, 52]

STAMP_OFF = 30 << 20
def stamp(a, opt, idx):
    if not opt.get("stamp"): return
    a(f"s_memtime s[{60+2*idx}:{61+2*idx}]")
    a(f"s_memrealtime s[{72+2*idx}:{73+2*idx}]")
    a("s_waitcnt lgkmcnt(0)")
def stamp_out(a, opt, nw=8):
    if not opt.get("stamp"): return
    a("s_waitcnt vmcnt(0)")
    stamp(a, opt, 5)
    a(f"""
    s_mul_i32 s29, s2, {nw}
    s_add_u32 s29, s29, s27
    s_lshl_b32 s29, s29, 6
    s_add_u32 s29, s29, {STAMP_OFF}
    v_mov_b32 v9, 0
    """)
    for i in range(6):
        a(f"v_mov_b32 v8, s{60+2*i}")
        a(f"buffer_store_dword v8, v9, s[16:19], s29 offen offset:{4*i}")
    for i in range(6):
        a(f"v_mov_b32 v8, s{72+2*i}")
        a(f"buffer_store_dword v8, v9, s[16:19], s29 offen offset:{24+4*i}")
    a("s_getreg_b32 s3, hwreg(HW_REG_XCC_ID)")
    a("v_mov_b32 v8, s3")
    a(f"buffer_store_dword v8, v9, s[16:19], s29 offen offset:48")

def gen_k1(name="k1_kernel", opt=None):
    opt = opt or {}
    a = Asm()
    a.raw(khead(name))
    a(f"""
    s_cmp_ge_u32 s2, 256
    s_cbranch_scc1 L_{name}_end
    s_and_b32 s3, s2, 7
    s_lshr_b32 s28, s2, 3
    """)
    if opt.get("only") == "xcd":
        a(f"s_cmp_ge_u32 s3, 4\ns_cbranch_scc1 L_{name}_end")
    if opt.get("only") == "half":
        a(f"s_cmp_ge_u32 s28, 16\ns_cbranch_scc1 L_{name}_end")
    if opt.get("only") == "q3":
        a(f"s_cmp_ge_u32 s28, 24\ns_cbranch_scc1 L_{name}_end")
    if opt.get("map", 0) == 0:
        a("""
        s_lshr_b32 s24, s3, 2
        s_and_b32 s25, s3, 1
        s_lshl_b32 s25, s25, 2
        s_and_b32 s29, s28, 3
        s_add_u32 s25, s25, s29
        s_lshr_b32 s26, s3, 1
        s_and_b32 s26, s26, 1
        s_lshl_b32 s26, s26, 3
        s_lshr_b32 s29, s28, 2
        s_add_u32 s26, s26, s29
        """)
    else:
        a("""
        s_and_b32 s24, s28, 1
        s_lshr_b32 s28, s28, 1
        s_and_b32 s25, s3, 1
        s_lshl_b32 s25, s25, 2
        s_and_b32 s29, s28, 3
        s_add_u32 s25, s25, s29
        s_lshr_b32 s26, s3, 1
        s_lshl_b32 s26, s26, 2
        s_lshr_b32 s29, s28, 2
        s_add_u32 s26, s26, s29
        """)
    a(f"""
    s_lshl_b32 s29, s24, 5
    s_load_dwordx4 s[4:7], s[0:1], s29
    s_load_dwordx2 s[32:33], s[0:1], 72
    s_load_dwordx2 s[34:35], s[0:1], 16
    v_lshrrev_b32 v1, 6, v0
    v_and_b32 v0, 63, v0
    v_readfirstlane_b32 s27, v1
    s_lshl_b32 s29, s25, 19
    s_waitcnt lgkmcnt(0)
    s_add_u32 s8, s4, s29
    s_addc_u32 s9, s5, 0
    s_mov_b32 s10, 0x80000
    s_mov_b32 s11, 0x20000
    s_mov_b32 s12, s6
    s_mov_b32 s13, s7
    s_mov_b32 s14, 0x600000
    s_mov_b32 s15, 0x20000
    s_mov_b32 s16, s32
    s_mov_b32 s17, s33
    s_mov_b32 s18, 0x10000000
    s_mov_b32 s19, 0x20000
    s_mov_b32 s20, s34
    s_mov_b32 s21, s35
    s_mov_b32 s22, 0x10000
    s_mov_b32 s23, 0x20000
    """)
    for i in range(6): stamp(a, opt, i)
    a(f"""
    s_cmp_ge_u32 s27, 4
    s_cbranch_scc1 L_{name}_loader
    """)
    gen_compute(a, name, opt)
    gen_loader(a, name, opt)
    a.label(f"L_{name}_fin")
    stamp(a, opt, 4)
    stamp_out(a, opt)
    a.label(f"L_{name}_end")
    a("s_endpgm")
    return a.text()

def reads(a_or_list, st, c1, sp):
    X = XS[st]; W = WS_[st]
    def wr(seg, b): return f"ds_read_b64_tr_b16 {v(W+4*seg+2*b,2)}, v7 offset:{seg*4096 + (16*sp+4*b)*128}"
    def xr(i): return f"ds_read_b128 {v(X+4*i,4)}, v6 offset:{i*4096}"
    return [wr(0,0), wr(0,1), xr(0), wr(1,0), wr(1,1), wr(2,0), wr(2,1), xr(1), xr(2), xr(3)]

def mfmas(st):
    X = XS[st]; W = WS_[st]
    out = []
    for i in range(4):
        out.append(f"v_mfma_f32_32x32x16_bf16 {v(ACCQ+16*i,16)}, {v(W,4)}, {v(X+4*i,4)}, {v(ACCQ+16*i,16)}")
        out.append(f"v_mfma_f32_32x32x16_bf16 {v(ACCK+16*i,16)}, {v(W+4,4)}, {v(X+4*i,4)}, {v(ACCK+16*i,16)}")
        out.append(f"v_mfma_f32_32x32x16_bf16 {v(ACCV+16*i,16)}, {v(X+4*i,4)}, {v(W+8,4)}, {v(ACCV+16*i,16)}")
    return out

def gen_compute(a, name, opt):
    a(f"""
    s_lshr_b32 s36, s27, 1          ; tw
    s_and_b32 s37, s27, 1           ; hd
    v_and_b32 v8, 31, v0            ; n
    v_lshrrev_b32 v9, 5, v0         ; h
    v_lshrrev_b32 v10, 1, v8
    v_and_b32 v10, 7, v10           ; f
    v_xor_b32 v10, v10, v9          ; h ^ f
    v_lshlrev_b32 v10, 4, v10
    s_lshl_b32 s29, s36, 14         ; tw*128*128
    v_lshlrev_b32 v11, 7, v8
    v_add_u32 v11, s29, v11
    v_add_u32 v1, v11, v10
    v_xor_b32 v2, 32, v1
    v_xor_b32 v3, 64, v1
    v_xor_b32 v4, 0x60, v1
    v_lshrrev_b32 v10, 2, v0
    v_and_b32 v10, 3, v10           ; r
    v_lshlrev_b32 v11, 3, v9        ; 8h
    v_add_u32 v11, v11, v10
    v_lshlrev_b32 v11, 7, v11       ; row*128
    v_lshrrev_b32 v10, 1, v10       ; r>>1
    v_xor_b32 v10, s37, v10
    v_lshlrev_b32 v10, 6, v10
    v_add_u32 v11, v11, v10
    v_lshrrev_b32 v10, 4, v0
    v_and_b32 v10, 1, v10
    v_lshlrev_b32 v10, 5, v10
    v_add_u32 v11, v11, v10
    v_and_b32 v10, 3, v0
    v_lshlrev_b32 v10, 3, v10
    v_add_u32 v5, v11, v10
    s_mov_b32 s30, {X_BASE}
    s_mov_b32 s31, 0
    v_add_u32 v6, s30, v1
    v_mov_b32 v7, v5
    s_mov_b32 s28, 16
    """)
    for r in range(64, 256): a(f"v_mov_b32 v{r}, 0")
    stamp(a, opt, 1)
    a("s_barrier")
    stamp(a, opt, 2)
    for r in reads(a, 0, 0, 0): a(r)
    a.raw(".p2align 6")
    a.label(f"L_{name}_loop", keep_hist=True)
    start = len(a.lines)
    nomfma = opt.get("nomfma", False)
    for c in range(4):
        st = c & 1
        M = mfmas(st)
        if opt.get("order") == "w":
            M = [M[3*i+j] for j in range(3) for i in range(4)]
        if nomfma: M = ["s_nop 0"] * 12
        if opt.get("fake16"):
            M2 = []
            import re as _re
            for q, m in enumerate(M):
                g = _re.match(r"v_mfma_f32_32x32x16_bf16 v\[(\d+):\d+\], (\S+), (\S+), ", m)
                d = int(g.group(1)) + 8 * (c & 1)
                M2.append(f"v_mfma_f32_16x16x32_bf16 {v(d,4)}, {g.group(2)}, {g.group(3)}, {v(d,4)}\nv_mfma_f32_16x16x32_bf16 {v(d+4,4)}, {g.group(3)}, {g.group(2)}, {v(d+4,4)}")
            M = M2
        c1 = (c + 1) & 3
        R = reads(a, st ^ 1, c1, c1 & 1)
        pre = []
        if c & 1:
            pre += [f"s_add_u32 s31, s31, {W_SLOT}", f"s_cmp_eq_u32 s31, {W_SLOT*NW}", "s_cselect_b32 s31, 0, s31"]
        if c == 3:
            pre += [f"s_add_u32 s30, s30, {X_SLOT}", f"s_cmp_eq_u32 s30, {X_BASE+X_SLOT*NX}", f"s_cselect_b32 s30, {X_BASE}, s30"]
        a("s_waitcnt lgkmcnt(0)" if opt.get("order") == "w" else "s_waitcnt lgkmcnt(3)")
        a(M[0])
        for p in pre[:3]: a(p)
        a(M[1])
        for p in pre[3:]: a(p)
        if c & 1: a("v_add_u32 v7, s31, v5")
        a(f"v_add_u32 v6, s30, v{1+c1}")
        a(M[2])
        a("s_waitcnt lgkmcnt(0)")
        if c & 1: a("s_barrier")
        sched = [2, 2, 2, 2, 1, 1, 0, 0, 0]
        k = 0
        for g in range(9):
            for _ in range(sched[g]):
                a(R[k]); k += 1
            if c == 3 and g == 7:
                a("s_sub_u32 s28, s28, 1")
                a("s_cmp_lg_u32 s28, 0")
            a(M[3 + g])
    a(f"s_cbranch_scc1 L_{name}_loop")
    body = a.lines[start:]
    n1, n2 = check_loop(body)
    assert n1 == 0 and n2 == 0, (n1, n2)
    a("s_waitcnt lgkmcnt(0)")
    a("s_nop 15")
    stamp(a, opt, 3)
    a(f"""
    s_lshl_b32 s38, s26, 1
    s_add_u32 s38, s38, s37          ; head
    s_lshl_b32 s39, s25, 3
    s_lshl_b32 s29, s36, 2
    s_add_u32 s39, s39, s29          ; tb0
    s_lshl_b32 s40, s38, 6
    s_add_u32 s40, s40, s39          ; h*64+tb0
    v_lshlrev_b32 v1, 4, v0          ; lane*16
    s_cmp_eq_u32 s24, 0
    s_cbranch_scc1 L_{name}_epiA
    """)
    epi_B(a, name, opt)
    a(f"s_branch L_{name}_fin")
    a.label(f"L_{name}_epiA")
    epi_A(a, name, opt)
    a(f"s_branch L_{name}_fin")

def cvt_inplace(a, base):
    for r in range(8):
        a(f"v_cvt_pk_bf16_f32 v{base+r}, v{base+2*r}, v{base+2*r+1}")

def epi_B(a, name, opt):
    sfl = opt.get("stflags", "")
    qs = LOG2E / math.sqrt(32.0)
    a(f"""
    s_lshl_b32 s41, s40, 11
    s_add_u32 s41, s41, {QB_OFF}
    s_add_u32 s42, s41, 4096
    s_lshl_b32 s43, s40, 12
    s_add_u32 s43, s43, {KVB_OFF}
    s_mov_b32 s44, {f2u(qs)}
    s_mov_b32 s45, {f2u(qs)}
    v_and_b32 v2, 0x33, v0
    v_and_b32 v3, 4, v0
    v_lshlrev_b32 v3, 1, v3
    v_or_b32 v2, v2, v3
    v_and_b32 v3, 8, v0
    v_lshrrev_b32 v3, 1, v3
    v_or_b32 v2, v2, v3
    v_lshlrev_b32 v2, 4, v2
    """)
    for i in range(4):
        Q = ACCQ + 16 * i; K = ACCK + 16 * i; V = ACCV + 16 * i
        cvt_inplace(a, K)
        a(f"buffer_store_dwordx4 {v(K,4)}, v2, s[16:19], s43 offen{sfl}")
        a(f"buffer_store_dwordx4 {v(K+4,4)}, v2, s[16:19], s43 offen offset:1024{sfl}")
        cvt_inplace(a, V)
        a(f"buffer_store_dwordx4 {v(V,4)}, v1, s[16:19], s43 offen offset:2048{sfl}")
        a(f"buffer_store_dwordx4 {v(V+4,4)}, v1, s[16:19], s43 offen offset:3072{sfl}")
        for r in range(0, 16, 2):
            a(f"v_pk_mul_f32 {v(Q+r,2)}, {v(Q+r,2)}, s[44:45]")
        cvt_inplace(a, Q)
        sq = "s41" if i < 2 else "s42"
        a(f"buffer_store_dwordx4 {v(Q,4)}, v1, s[16:19], {sq} offen offset:{(i&1)*2048}{sfl}")
        a(f"buffer_store_dwordx4 {v(Q+4,4)}, v1, s[16:19], {sq} offen offset:{(i&1)*2048+1024}{sfl}")
        if i < 3: a("s_add_u32 s43, s43, 4096")

def softmax_pm(a, P, EP, T):
    mx, mn, t0, t1 = T, T + 1, T + 2, T + 3
    a(f"v_max3_f32 v{mx}, v{P}, v{P+1}, v{P+2}")
    a(f"v_min3_f32 v{mn}, v{P}, v{P+1}, v{P+2}")
    for r in range(3, 15, 2):
        a(f"v_max3_f32 v{mx}, v{mx}, v{P+r}, v{P+r+1}")
        a(f"v_min3_f32 v{mn}, v{mn}, v{P+r}, v{P+r+1}")
    a(f"v_max_f32 v{mx}, v{mx}, v{P+15}")
    a(f"v_min_f32 v{mn}, v{mn}, v{P+15}")
    a(f"v_mov_b32 v{t0}, v{mx}")
    a(f"v_mov_b32 v{t1}, v{mn}")
    a(f"v_permlane32_swap_b32 v{mx}, v{t0}")
    a(f"v_permlane32_swap_b32 v{mn}, v{t1}")
    a(f"v_max_f32 v{mx}, v{mx}, v{t0}")
    a(f"v_min_f32 v{mn}, v{mn}, v{t1}")
    a(f"v_mul_f32 v{T+4}, s44, v{mx}")
    a(f"v_mul_f32 v{T+6}, s44, v{mn}")
    for r in range(0, 16, 2):
        a(f"v_pk_fma_f32 {v(EP+r,2)}, {v(P+r,2)}, s[44:45], {v(T+4,2)} op_sel_hi:[1,1,0] neg_lo:[0,0,1] neg_hi:[0,0,1]")
    for r in range(0, 16, 2):
        a(f"v_pk_fma_f32 {v(P+r,2)}, {v(P+r,2)}, s[44:45], {v(T+6,2)} op_sel_hi:[1,1,0] neg_lo:[1,0,0] neg_hi:[1,0,0]")
    for r in range(16): a(f"v_exp_f32 v{EP+r}, v{EP+r}")
    for r in range(16): a(f"v_exp_f32 v{P+r}, v{P+r}")
    sp, sm = T + 8, T + 10
    a(f"v_pk_add_f32 {v(sp,2)}, {v(EP,2)}, {v(EP+2,2)}")
    a(f"v_pk_add_f32 {v(sm,2)}, {v(P,2)}, {v(P+2,2)}")
    for r in range(4, 16, 2):
        a(f"v_pk_add_f32 {v(sp,2)}, {v(sp,2)}, {v(EP+r,2)}")
        a(f"v_pk_add_f32 {v(sm,2)}, {v(sm,2)}, {v(P+r,2)}")
    a(f"v_add_f32 v{sp}, v{sp}, v{sp+1}")
    a(f"v_add_f32 v{sm}, v{sm}, v{sm+1}")
    a(f"v_mov_b32 v{t0}, v{sp}")
    a(f"v_mov_b32 v{t1}, v{sm}")
    a(f"v_permlane32_swap_b32 v{sp}, v{t0}")
    a(f"v_permlane32_swap_b32 v{sm}, v{t1}")
    a(f"v_add_f32 v{sp}, v{sp}, v{t0}")
    a(f"v_add_f32 v{sm}, v{sm}, v{t1}")
    a(f"v_rcp_f32 v{sp}, v{sp}")
    a(f"v_rcp_f32 v{sm}, v{sm}")
    for r in range(0, 16, 2):
        a(f"v_pk_mul_f32 {v(EP+r,2)}, {v(EP+r,2)}, {v(sp,2)} op_sel_hi:[1,0]")
    for r in range(0, 16, 2):
        a(f"v_pk_mul_f32 {v(P+r,2)}, {v(P+r,2)}, {v(sm,2)} op_sel_hi:[1,0]")
    cvt_inplace(a, EP)
    cvt_inplace(a, P)

PH_STRIDE = 136
PH_BLK = 32 * PH_STRIDE

def epi_A(a, name, opt):
    sfl = opt.get("stflags", "")
    WP = 8
    SEL = 16
    T = 20
    PF = 32
    ZP_, ZM_ = 48, 52
    a(f"""
    s_lshl_b32 s41, s40, 11
    s_add_u32 s41, s41, {QA_OFF}
    s_add_u32 s42, s41, 4096
    s_mov_b32 s44, {f2u(LOG2E)}
    s_mov_b32 s45, {f2u(LOG2E)}
    v_lshrrev_b32 v2, 5, v0          ; h
    v_lshrrev_b32 v3, 2, v0
    v_and_b32 v3, 3, v3              ; r
    v_lshl_add_u32 v3, v2, 2, v3     ; 4h+r
    v_lshrrev_b32 v4, 4, v0
    v_and_b32 v4, 1, v4              ; nb
    v_lshlrev_b32 v4, 5, v4
    v_and_b32 v5, 3, v0
    v_lshl_add_u32 v4, v5, 3, v4     ; nb*32+cc*8
    v_lshl_add_u32 v5, v3, 6, v4
    s_lshl_b32 s29, s37, 11
    s_add_u32 s29, s29, {WPHI_LDS}
    v_add_u32 v5, s29, v5
    """)
    for u in range(2):
        for b in range(2):
            a(f"ds_read_b64_tr_b16 {v(WP+4*u+2*b,2)}, v5 offset:{(16*u+8*b)*64}")
    a(f"""
    s_mul_i32 s29, s27, {4*PH_BLK}
    v_and_b32 v6, 31, v0
    v_mul_u32_u24 v6, {PH_STRIDE}, v6
    v_lshl_add_u32 v6, v2, 3, v6
    v_add_u32 v6, s29, v6
    v_mul_u32_u24 v7, {PH_STRIDE}, v3
    v_add_u32 v7, v7, v4
    v_add_u32 v7, s29, v7
    v_lshrrev_b32 v2, 4, v0
    v_lshrrev_b32 v3, 3, v0
    v_xor_b32 v2, v2, v3
    v_and_b32 v2, 1, v2
    v_cmp_eq_u32 vcc, 0, v2
    v_mov_b32 v3, 0x3f803f80
    v_mov_b32 v2, 0
    v_cndmask_b32 v{SEL}, v2, v3, vcc
    v_mov_b32 v{SEL+1}, v{SEL}
    v_mov_b32 v{SEL+2}, v{SEL}
    v_mov_b32 v{SEL+3}, v{SEL}
    """)
    for i in range(4):
        Q = ACCQ + 16 * i
        cvt_inplace(a, Q)
        sq = "s41" if i < 2 else "s42"
        a(f"buffer_store_dwordx4 {v(Q,4)}, v1, s[16:19], {sq} offen offset:{(i&1)*2048}{sfl}")
        a(f"buffer_store_dwordx4 {v(Q+4,4)}, v1, s[16:19], {sq} offen offset:{(i&1)*2048+1024}{sfl}")
    for i in range(4): cvt_inplace(a, ACCK + 16 * i)
    a("s_waitcnt lgkmcnt(0)")
    for i in range(4):
        Q = ACCQ + 16 * i; K = ACCK + 16 * i
        a(f"v_mfma_f32_32x32x16_bf16 {v(Q,16)}, {v(WP,4)}, {v(K,4)}, 0")
        a(f"v_mfma_f32_32x32x16_bf16 {v(Q,16)}, {v(WP+4,4)}, {v(K+4,4)}, {v(Q,16)}")
    for i in range(4): cvt_inplace(a, ACCV + 16 * i)
    KVP_, KVM_ = ACCQ, ACCK
    def kv_block(i, first):
        V = ACCV + 16 * i
        a("s_waitcnt lgkmcnt(0)")
        for pm in range(2):
            D = KVP_ if pm == 0 else KVM_
            Z = ZP_ if pm == 0 else ZM_
            for u in range(2):
                F = PF + 8 * pm + 4 * u
                c = "0" if (first and u == 0) else v(D, 16)
                cz = "0" if (first and u == 0) else v(Z, 4)
                a(f"v_mfma_f32_32x32x16_bf16 {v(D,16)}, {v(F,4)}, {v(V+4*u,4)}, {c}")
                a(f"v_mfma_f32_16x16x32_bf16 {v(Z,4)}, {v(F,4)}, {v(SEL,4)}, {cz}")
    for i in range(4):
        P = ACCQ + 16 * i; EP = ACCK + 16 * i
        softmax_pm(a, P, EP, T)
        if i >= 1: kv_block(i - 1, i == 1)
        for pm in range(2):
            S = EP if pm == 0 else P
            for g in range(4):
                a(f"ds_write_b64 v6, {v(S+2*g,2)} offset:{i*PH_BLK + pm*64 + 16*g}")
        for pm in range(2):
            for u in range(2):
                for b in range(2):
                    a(f"ds_read_b64_tr_b16 {v(PF+8*pm+4*u+2*b,2)}, v7 offset:{i*PH_BLK + pm*64 + (16*u+8*b)*PH_STRIDE}")
    kv_block(3, False)
    XCH = 72 * 1024
    a(f"""
    s_mul_i32 s29, s27, 5120
    s_add_u32 s29, s29, {XCH}
    v_add_u32 v2, s29, v1
    s_xor_b32 s46, s27, 2
    s_mul_i32 s46, s46, 5120
    s_add_u32 s46, s46, {XCH}
    v_add_u32 v3, s46, v1
    s_lshl_b32 s47, s38, 3
    s_add_u32 s47, s47, s25          ; h*8+tt
    s_lshl_b32 s48, s47, 13
    s_lshl_b32 s29, s36, 12
    s_add_u32 s48, s48, s29
    s_add_u32 s48, s48, {KVP_OFF}
    s_lshl_b32 s49, s47, 8
    s_lshl_b32 s29, s36, 7
    s_add_u32 s49, s49, s29
    s_add_u32 s49, s49, {ZP_OFF}
    v_lshrrev_b32 v4, 3, v0
    v_and_b32 v4, 1, v4
    v_lshlrev_b32 v4, 6, v4
    v_lshrrev_b32 v5, 4, v0
    v_lshl_add_u32 v4, v5, 4, v4     ; z offset
    s_cmp_eq_u32 s36, 0
    s_cbranch_scc1 L_{name}_tw0
    """)
    for tw in (1, 0):
        if tw == 0: a.label(f"L_{name}_tw0")
        a("s_nop 15")
        keep, send = (KVP_, KVM_) if tw == 0 else (KVM_, KVP_)
        zk, zs = (ZP_, ZM_) if tw == 0 else (ZM_, ZP_)
        for g in range(4): a(f"ds_write_b128 v2, {v(send+4*g,4)} offset:{g*1024}")
        a(f"ds_write_b128 v2, {v(zs,4)} offset:4096")
        a("s_waitcnt lgkmcnt(0)")
        a("s_barrier")
        for g in range(4): a(f"ds_read_b128 {v(PF+4*g,4)}, v3 offset:{g*1024}")
        a(f"ds_read_b128 {v(T,4)}, v3 offset:4096")
        for g in range(4):
            a(f"s_waitcnt lgkmcnt({4-g})")
            a(f"v_pk_add_f32 {v(keep+4*g,2)}, {v(keep+4*g,2)}, {v(PF+4*g,2)}")
            a(f"v_pk_add_f32 {v(keep+4*g+2,2)}, {v(keep+4*g+2,2)}, {v(PF+4*g+2,2)}")
            a(f"buffer_store_dwordx4 {v(keep+4*g,4)}, v1, s[16:19], s48 offen offset:{g*1024}{sfl}")
        a("s_waitcnt lgkmcnt(0)")
        a(f"v_pk_add_f32 {v(zk,2)}, {v(zk,2)}, {v(T,2)}")
        a(f"v_pk_add_f32 {v(zk+2,2)}, {v(zk+2,2)}, {v(T+2,2)}")
        a(f"buffer_store_dwordx4 {v(zk,4)}, v4, s[16:19], s49 offen{sfl}")
        if tw == 1: a(f"s_branch L_{name}_fin")

def gen_loader(a, name, opt):
    lfl = opt.get("ldflags", "")
    a.label(f"L_{name}_loader")
    a(f"""
    s_sub_u32 s36, s27, 4            ; lw
    v_lshrrev_b32 v1, 3, v0          ; r
    v_and_b32 v2, 7, v0              ; p
    s_and_b32 s29, s36, 1
    s_lshl_b32 s29, s29, 2
    v_lshrrev_b32 v3, 1, v1
    v_add_u32 v4, s29, v3            ; f
    v_xor_b32 v4, v4, v2
    v_lshlrev_b32 v4, 4, v4
    s_lshl_b32 s29, s36, 3
    v_add_u32 v5, s29, v1            ; 8lw + r
    v_lshl_add_u32 v8, v5, 11, v4
    """)
    for n in range(1, 8): a(f"v_add_u32 v{8+n}, {n*65536}, v8")
    a(f"""
    v_and_b32 v3, 1, v3
    v_lshlrev_b32 v3, 2, v3
    v_xor_b32 v3, v3, v2
    v_lshlrev_b32 v3, 4, v3
    v_mul_u32_u24 v16, 6144, v5
    v_add_u32 v16, v16, v3
    s_lshl_b32 s29, s26, 7
    v_add_u32 v16, s29, v16
    v_add_u32 v17, 2048, v16
    v_add_u32 v18, 4096, v16
    v_lshlrev_b32 v19, 4, v0
    s_lshl_b32 s37, s36, 10          ; lw*1024
    s_add_u32 s30, s37, {X_BASE}
    s_mov_b32 s31, s37
    s_mov_b32 s38, 0                 ; X soffset
    s_mov_b32 s39, 0                 ; W soffset
    s_add_u32 s40, s37, {X_BASE + NX*X_SLOT}
    s_add_u32 s41, s37, {W_SLOT*NW}
    s_add_u32 s42, s37, {X_BASE}
    """)
    def GX():
        for n in range(8):
            a(f"s_add_u32 m0, s30, {n*4096}")
            a(f"buffer_load_dwordx4 v{8+n}, s[8:11], s38 offen lds{lfl}")
        a(f"""
        s_add_u32 s38, s38, 128
        s_add_u32 s30, s30, {X_SLOT}
        s_cmp_eq_u32 s30, s40
        s_cselect_b32 s30, s42, s30
        """)
    def GW():
        for sg in range(3):
            a(f"s_add_u32 m0, s31, {sg*4096}")
            a(f"buffer_load_dwordx4 v{16+sg}, s[12:15], s39 offen lds{lfl}")
        a(f"""
        s_add_u32 s39, s39, {32*6144}
        s_add_u32 s31, s31, {W_SLOT}
        s_cmp_eq_u32 s31, s41
        s_cselect_b32 s31, s37, s31
        """)
    GW(); GX(); GW(); GX(); GW(); GW(); GX(); GW()
    stamp(a, opt, 1)
    a("s_waitcnt vmcnt(28)")
    stamp(a, opt, 2)
    a("s_barrier")
    a("s_mov_b32 s28, 13")
    a.label(f"L_{name}_lloop")
    a("s_waitcnt vmcnt(25)")
    a("s_barrier")
    GW()
    a("s_waitcnt vmcnt(17)")
    a("s_barrier")
    GX(); GW()
    a("s_sub_u32 s28, s28, 1")
    a("s_cmp_lg_u32 s28, 0")
    a(f"s_cbranch_scc1 L_{name}_lloop")
    stamp(a, opt, 3)
    a("s_waitcnt vmcnt(25)")
    a("s_barrier")
    GW()
    a(f"""
    s_lshl_b32 s29, s26, 12
    s_add_u32 s29, s29, s37
    s_add_u32 m0, s37, {WPHI_LDS}
    s_nop 0
    buffer_load_dwordx4 v19, s[20:23], s29 offen lds
    """)
    a("s_waitcnt vmcnt(18)")
    a("s_barrier")
    a("s_waitcnt vmcnt(15)")
    a("s_barrier")
    a("s_waitcnt vmcnt(4)")
    a("s_barrier")
    a("s_waitcnt vmcnt(0)")
    a("s_barrier")
```

```python
from asmlib import *
from k1 import QB_OFF, KVB_OFF, QA_OFF, KVP_OFF, ZP_OFF, O_OFF, LOG2E, f2u, softmax_pm, cvt_inplace, stamp, stamp_out

SLOT = 32768
KVF = 131072
ZF = KVF + 4096
WPH = KVF + 5120
LDS_BYTES = WPH + 2048

QF, SELL, LACC = 8, 16, 20
KS = [24, 32]; VS = [40, 48]
NEGM = 64; SB = [80, 96]; OA = 112

def gen(opt):
    name = "k2_kernel"
    a = Asm()
    a.raw(khead(name))
    a(f"""
    s_cmp_ge_u32 s2, 256
    s_cbranch_scc1 L_{name}_end
    s_load_dwordx2 s[32:33], s[0:1], 72
    s_load_dwordx2 s[34:35], s[0:1], 16
    s_and_b32 s3, s2, 7
    s_lshl_b32 s24, s3, 2
    s_lshr_b32 s3, s2, 6
    s_add_u32 s24, s24, s3           ; head
    s_lshr_b32 s25, s2, 3
    s_and_b32 s25, s25, 7            ; qt
    v_lshrrev_b32 v1, 6, v0
    v_lshlrev_b32 v5, 4, v0          ; tid*16
    v_and_b32 v0, 63, v0
    v_readfirstlane_b32 s27, v1
    v_lshlrev_b32 v1, 4, v0          ; lane*16
    s_lshl_b32 s26, s25, 3
    s_add_u32 s26, s26, s27          ; tb
    s_waitcnt lgkmcnt(0)
    s_mov_b32 s16, s32
    s_mov_b32 s17, s33
    s_mov_b32 s18, 0x10000000
    s_mov_b32 s19, 0x20000
    s_mov_b32 s20, s34
    s_mov_b32 s21, s35
    s_mov_b32 s22, 0x10000
    s_mov_b32 s23, 0x20000
    """)
    for i in range(6): stamp(a, opt, i)
    P0 = 64
    ZP0 = 96
    QAF = 24
    a(f"""
    s_lshl_b32 s36, s24, 16
    s_add_u32 s36, s36, {KVP_OFF}
    """)
    for t in range(8):
        a(f"buffer_load_dwordx4 {v(P0+4*t,4)}, v5, s[16:19], s36 offen")
        if t < 7: a("s_add_u32 s36, s36, 8192")
    a(f"""
    v_and_b32 v6, 15, v0
    v_lshlrev_b32 v7, 4, v6
    s_lshl_b32 s36, s24, 11
    s_add_u32 s36, s36, {ZP_OFF}
    """)
    for t in range(8):
        a(f"buffer_load_dwordx4 {v(ZP0+4*t,4)}, v7, s[16:19], s36 offen offset:{t*256}")
    a(f"""
    s_and_b32 s37, s27, 1
    s_lshl_b32 s37, s37, 10
    s_lshl_b32 s36, s24, 11
    s_add_u32 s36, s36, s37
    s_add_u32 m0, s37, {WPH}
    s_lshl_b32 s38, s24, 6
    s_add_u32 s38, s38, s26          ; h*64+tb
    buffer_load_dwordx4 v1, s[20:23], s36 offen lds
    s_lshl_b32 s38, s38, 11
    s_add_u32 s39, s38, {QA_OFF}
    s_add_u32 s38, s38, {QB_OFF}
    buffer_load_dwordx4 {v(QAF,4)}, v1, s[16:19], s39 offen
    buffer_load_dwordx4 {v(QAF+4,4)}, v1, s[16:19], s39 offen offset:1024
    buffer_load_dwordx4 {v(QF,4)}, v1, s[16:19], s38 offen
    buffer_load_dwordx4 {v(QF+4,4)}, v1, s[16:19], s38 offen offset:1024
    s_lshl_b32 s40, s24, 18
    s_add_u32 s40, s40, {KVB_OFF}
    s_lshl_b32 s41, s27, 12          ; w*4096
    s_add_u32 s42, s40, s41
    s_mov_b32 s43, s41
    """)
    def dma_chunk():
        a("s_mov_b32 m0, s43")
        a("s_nop 0")
        for n in range(4):
            a(f"buffer_load_dwordx4 v1, s[16:19], s42 offen offset:{n*1024} lds")
        a(f"s_add_u32 s42, s42, {SLOT}")
        a(f"s_add_u32 s43, s43, {SLOT}")
        a(f"s_and_b32 s43, s43, {4*SLOT-1}")
    for c in range(3): dma_chunk()
    a(f"""
    s_mov_b32 s44, {f2u(LOG2E)}
    s_mov_b32 s45, {f2u(LOG2E)}
    s_lshr_b32 s36, s27, 1
    s_lshl_b32 s36, s36, 10
    s_and_b32 s37, s27, 1
    s_lshl_b32 s37, s37, 3
    s_add_u32 s36, s36, s37
    s_add_u32 s36, s36, {KVF}
    v_add_u32 v2, s36, v1
    v_lshrrev_b32 v3, 2, v6          ; t>>2 = pm*2+u
    v_lshlrev_b32 v3, 5, v3
    v_and_b32 v4, 1, v6
    v_lshl_add_u32 v3, v4, 4, v3
    v_and_b32 v4, 2, v6
    v_lshl_add_u32 v3, v4, 2, v3
    v_add_u32 v3, {ZF}, v3
    s_waitcnt vmcnt(25)
    """)
    for t in range(1, 8):
        a(f"v_pk_add_f32 {v(P0,2)}, {v(P0,2)}, {v(P0+4*t,2)}")
        a(f"v_pk_add_f32 {v(P0+2,2)}, {v(P0+2,2)}, {v(P0+4*t+2,2)}")
    a(f"v_cvt_pk_bf16_f32 v{P0}, v{P0}, v{P0+1}")
    a(f"v_cvt_pk_bf16_f32 v{P0+1}, v{P0+2}, v{P0+3}")
    a(f"ds_write_b64 v2, {v(P0,2)}")
    a("s_waitcnt vmcnt(17)")
    for t in range(1, 8):
        a(f"v_pk_add_f32 {v(ZP0,2)}, {v(ZP0,2)}, {v(ZP0+4*t,2)}")
        a(f"v_pk_add_f32 {v(ZP0+2,2)}, {v(ZP0+2,2)}, {v(ZP0+4*t+2,2)}")
    a(f"v_cvt_pk_bf16_f32 v{ZP0}, v{ZP0}, v{ZP0+1}")
    a(f"v_cvt_pk_bf16_f32 v{ZP0+1}, v{ZP0+2}, v{ZP0+3}")
    a(f"ds_write_b64 v3, {v(ZP0,2)}")
    a(f"""
    v_mov_b32 v{ZP0+2}, 0
    v_mov_b32 v{ZP0+3}, 0
    v_lshlrev_b32 v4, 3, v6
    v_add_u32 v4, {ZF+128}, v4
    ds_write_b64 v4, {v(ZP0+2,2)}
    v_lshrrev_b32 v2, 5, v0          ; h
    v_lshrrev_b32 v3, 2, v0
    v_and_b32 v3, 3, v3
    v_lshl_add_u32 v3, v2, 2, v3     ; 4h+r
    v_lshrrev_b32 v4, 4, v0
    v_and_b32 v4, 1, v4
    v_lshlrev_b32 v4, 5, v4
    v_and_b32 v5, 3, v0
    v_lshl_add_u32 v4, v5, 3, v4
    v_lshl_add_u32 v5, v3, 6, v4
    v_add_u32 v5, {WPH}, v5
    v_lshrrev_b32 v3, 2, v0
    v_lshrrev_b32 v4, 4, v0
    v_xor_b32 v3, v3, v4
    v_and_b32 v3, 1, v3
    v_cmp_eq_u32 vcc, 0, v3
    v_lshlrev_b32 v2, 4, v2
    v_add_u32 v2, {ZF}, v2
    v_mov_b32 v3, {ZF+128}
    v_cndmask_b32 v7, v3, v2, vcc
    v_add_u32 v6, {KVF}, v1
    s_waitcnt vmcnt(16) lgkmcnt(0)
    s_barrier
    """)
    WP = 32; KVR = 40; ZR = 96; PQ = 64; EP = 80; T = 112; NUM = 112; DEN = 56
    for u in range(2):
        for b in range(2):
            a(f"ds_read_b64_tr_b16 {v(WP+4*u+2*b,2)}, v5 offset:{(16*u+8*b)*64}")
    for f in range(4): a(f"ds_read_b128 {v(KVR+4*f,4)}, v6 offset:{f*1024}")
    for f in range(4): a(f"ds_read_b128 {v(ZR+4*f,4)}, v7 offset:{f*32}")
    a("s_waitcnt vmcnt(14) lgkmcnt(8)")
    a(f"v_mfma_f32_32x32x16_bf16 {v(PQ,16)}, {v(WP,4)}, {v(QAF,4)}, 0")
    a(f"v_mfma_f32_32x32x16_bf16 {v(PQ,16)}, {v(WP+4,4)}, {v(QAF+4,4)}, {v(PQ,16)}")
    softmax_pm(a, PQ, EP, T)
    a("s_waitcnt lgkmcnt(0)")
    for f in range(4):
        F = (EP if f < 2 else PQ) + 4 * (f & 1)
        a(f"v_mfma_f32_32x32x16_bf16 {v(NUM,16)}, {v(KVR+4*f,4)}, {v(F,4)}, {'0' if f == 0 else v(NUM,16)}")
        a(f"v_mfma_f32_16x16x32_bf16 {v(DEN,4)}, {v(ZR+4*f,4)}, {v(F,4)}, {'0' if f == 0 else v(DEN,4)}")
    a(f"""
    s_lshl_b32 s46, s26, 5
    s_add_u32 s46, s46, s24
    s_lshl_b32 s46, s46, 11
    s_add_u32 s46, s46, {O_OFF}       ; O_A dest
    s_add_u32 s47, s46, {4<<20}       ; O_B dest
    v_add_f32 v{DEN}, {f2u(1e-6)}, v{DEN}
    v_rcp_f32 v{DEN}, v{DEN}
    """)
    for r in range(0, 16, 2):
        a(f"v_pk_mul_f32 {v(NUM+r,2)}, {v(NUM+r,2)}, {v(DEN,2)} op_sel_hi:[1,0]")
    cvt_inplace(a, NUM)
    a(f"buffer_store_dwordx4 {v(NUM,4)}, v1, s[16:19], s46 offen")
    a(f"buffer_store_dwordx4 {v(NUM+4,4)}, v1, s[16:19], s46 offen offset:1024")
    stamp(a, opt, 1)
    a(f"""
    v_mov_b32 v4, 0xdddd
    v_and_b32 v2, 4, v0
    v_cmp_eq_u32 vcc, 0, v2
    v_mov_b32 v2, 0
    v_mov_b32 v3, 0x3f803f80
    v_cndmask_b32 v{SELL}, v2, v3, vcc
    v_cndmask_b32 v{SELL+2}, v3, v2, vcc
    v_mov_b32 v{SELL+1}, v{SELL}
    v_mov_b32 v{SELL+3}, v{SELL+2}
    v_mov_b32 v2, v1
    v_add_u32 v3, {SLOT}, v1
    s_waitcnt vmcnt(10)
    s_barrier
    """)
    stamp(a, opt, 2)
    def kread(st, addr, j): return [f"ds_read_b128 {v(KS[st]+4*u,4)}, {addr} offset:{j*4096+u*1024}" for u in range(2)]
    def vread(st, addr, j): return [f"ds_read_b128 {v(VS[st]+4*u,4)}, {addr} offset:{j*4096+2048+u*1024}" for u in range(2)]
    for r in kread(0, "v2", 0) + kread(1, "v2", 1) + vread(0, "v2", 0): a(r)
    for r in range(16): a(f"v_mov_b32 v{OA+r}, 0")
    for r in range(4): a(f"v_mov_b32 v{LACC+r}, 0")
    for r in range(8, 16): a(f"v_mov_b32 v{SB[1]+r}, 0")
    for r in range(4, 8): a(f"v_mov_b32 v{VS[1]+r}, 0")
    a("s_waitcnt lgkmcnt(4)")
    S0 = SB[0]
    a(f"v_mfma_f32_32x32x16_bf16 {v(S0,16)}, {v(KS[0],4)}, {v(QF,4)}, 0")
    a(f"v_mfma_f32_32x32x16_bf16 {v(S0,16)}, {v(KS[0]+4,4)}, {v(QF+4,4)}, {v(S0,16)}")
    def rowmax(S, dst, tmp, init=True):
        if init:
            a(f"v_max3_f32 v{dst}, v{S}, v{S+1}, v{S+2}")
            for r in range(3, 15, 2): a(f"v_max3_f32 v{dst}, v{dst}, v{S+r}, v{S+r+1}")
            a(f"v_max_f32 v{dst}, v{dst}, v{S+15}")
        else:
            for r in range(0, 16, 2): a(f"v_max3_f32 v{dst}, v{dst}, v{S+r}, v{S+r+1}")
    def finish_max(dst, tmp):
        a(f"v_mov_b32 v{tmp}, v{dst}")
        a(f"v_permlane32_swap_b32 v{dst}, v{tmp}")
        a(f"v_max_f32 v{dst}, v{dst}, v{tmp}")
        for r in range(16): a(f"v_sub_f32 v{NEGM+r}, 0, v{dst}")
    rowmax(S0, 5, 6); finish_max(5, 6)
    a(f"v_mfma_f32_32x32x16_bf16 {v(S0,16)}, {v(KS[0],4)}, {v(QF,4)}, {v(NEGM,16)}")
    a(f"v_mfma_f32_32x32x16_bf16 {v(S0,16)}, {v(KS[0]+4,4)}, {v(QF+4,4)}, {v(S0,16)}")
    a("s_mov_b32 s28, 0")
    a("s_nop 10")
    a.raw(".p2align 6")
    a.label(f"L_{name}_loop", keep_hist=True)
    start = len(a.lines)
    for j in range(8):
        p = j & 1
        A = SB[p]; B = SB[p ^ 1]
        E = lambda r: f"v_exp_f32 v{A+r}, v{A+r}"
        PV1 = f"v_smfmac_f32_32x32x32_bf16 {v(OA,16)}, {v(VS[p^1]+4,4)}, {v(B+8,8)}, v4"
        L1 = f"v_smfmac_f32_16x16x64_bf16 {v(LACC,4)}, {v(SELL,4)}, {v(B+8,8)}, v4"
        M1 = f"v_mfma_f32_32x32x16_bf16 {v(B,16)}, {v(KS[p^1],4)}, {v(QF,4)}, {v(NEGM,16)}"
        M2 = f"v_mfma_f32_32x32x16_bf16 {v(B,16)}, {v(KS[p^1]+4,4)}, {v(QF+4,4)}, {v(B,16)}"
        PV0 = f"v_smfmac_f32_32x32x32_bf16 {v(OA,16)}, {v(VS[p],4)}, {v(A,8)}, v4"
        L0 = f"v_smfmac_f32_16x16x64_bf16 {v(LACC,4)}, {v(SELL,4)}, {v(A,8)}, v4"
        KR = kread(p, "v2" if j + 2 < 8 else "v3", (j + 2) & 7)
        VR = vread(p ^ 1, "v2" if j + 1 < 8 else "v3", (j + 1) & 7)
        a(E(0)); a(E(1))
        if j == 6:
            a(f"""
            s_cmp_ge_u32 s28, 6
            s_cbranch_scc1 L_{name}_w0
            s_waitcnt vmcnt(4)
            s_branch L_{name}_w1
            """)
            a.label(f"L_{name}_w0", keep_hist=True)
            a("s_waitcnt vmcnt(0)")
            a.label(f"L_{name}_w1", keep_hist=True)
            a("s_barrier")
        a(PV1)
        if j == 6:
            a(f"s_cmp_ge_u32 s28, 5")
            a(f"s_cbranch_scc1 L_{name}_nodma")
            dma_chunk()
            a.label(f"L_{name}_nodma", keep_hist=True)
        a(E(2)); a(E(3)); a(E(4))
        a(L1)
        a(E(5)); a(E(6))
        a("s_waitcnt lgkmcnt(0)")
        a(M1)
        a(E(7)); a(E(8)); a(E(9))
        a(M2)
        a(KR[0]); a(E(10)); a(KR[1]); a(E(11)); a(VR[0]); a(E(12))
        a(PV0)
        a(VR[1]); a(E(13)); a(E(14)); a(E(15))
        if j == 7:
            a(f"""
            v_mov_b32 v2, v3
            v_add_u32 v3, {SLOT}, v3
            v_and_b32 v3, {4*SLOT-1}, v3
            s_add_u32 s28, s28, 1
            s_cmp_lt_u32 s28, 8
            """)
        a(L0)
    a(f"s_cbranch_scc1 L_{name}_loop")
    body = a.lines[start:]
    print("k2 loop nops (in-body, seam):", check_loop(body), "inserted so far", a.nops)
    a("s_nop 1")
    a(f"v_smfmac_f32_32x32x32_bf16 {v(OA,16)}, {v(VS[1]+4,4)}, {v(SB[1]+8,8)}, v4")
    a(f"v_smfmac_f32_16x16x64_bf16 {v(LACC,4)}, {v(SELL,4)}, {v(SB[1]+8,8)}, v4")
    a("s_waitcnt lgkmcnt(0)")
    stamp(a, opt, 3)
    a(f"""
    s_mov_b32 s36, 0x5d800000        ; 2^60
    v_cmp_nlt_f32 vcc, v{LACC}, s36
    s_cmp_lg_u64 vcc, 0
    s_cbranch_scc1 L_{name}_slow
    """)
    a.label(f"L_{name}_fin", keep_hist=True)
    a("s_nop 7")
    a(f"v_rcp_f32 v{LACC}, v{LACC}")
    for r in range(0, 16, 2):
        a(f"v_pk_mul_f32 {v(OA+r,2)}, {v(OA+r,2)}, {v(LACC,2)} op_sel_hi:[1,0]")
    cvt_inplace(a, OA)
    a(f"buffer_store_dwordx4 {v(OA,4)}, v1, s[16:19], s47 offen")
    a(f"buffer_store_dwordx4 {v(OA+4,4)}, v1, s[16:19], s47 offen offset:1024")
    stamp(a, opt, 4)
    stamp_out(a, opt)
    a("s_endpgm")
    a.label(f"L_{name}_slow")
    a(f"""
    s_mov_b32 s36, s40
    s_mov_b32 s28, 0
    v_mov_b32 v5, 0xff800000
    """)
    a.label(f"L_{name}_slow1")
    a(f"""
    buffer_load_dwordx4 {v(KS[0],4)}, v1, s[16:19], s36 offen
    buffer_load_dwordx4 {v(KS[0]+4,4)}, v1, s[16:19], s36 offen offset:1024
    s_waitcnt vmcnt(0)
    v_mfma_f32_32x32x16_bf16 {v(S0,16)}, {v(KS[0],4)}, {v(QF,4)}, 0
    v_mfma_f32_32x32x16_bf16 {v(S0,16)}, {v(KS[0]+4,4)}, {v(QF+4,4)}, {v(S0,16)}
    """)
    rowmax(S0, 5, 6, init=False)
    a(f"""
    s_add_u32 s36, s36, 4096
    s_add_u32 s28, s28, 1
    s_cmp_lt_u32 s28, 64
    s_cbranch_scc1 L_{name}_slow1
    """)
    finish_max(5, 6)
    for r in range(16): a(f"v_mov_b32 v{OA+r}, 0")
    for r in range(4): a(f"v_mov_b32 v{LACC+r}, 0")
    a("s_mov_b32 s36, s40\ns_mov_b32 s28, 0")
    a.label(f"L_{name}_slow2")
    a(f"""
    buffer_load_dwordx4 {v(KS[0],4)}, v1, s[16:19], s36 offen
    buffer_load_dwordx4 {v(KS[0]+4,4)}, v1, s[16:19], s36 offen offset:1024
    buffer_load_dwordx4 {v(VS[0],4)}, v1, s[16:19], s36 offen offset:2048
    buffer_load_dwordx4 {v(VS[0]+4,4)}, v1, s[16:19], s36 offen offset:3072
    s_waitcnt vmcnt(0)
    v_mfma_f32_32x32x16_bf16 {v(S0,16)}, {v(KS[0],4)}, {v(QF,4)}, {v(NEGM,16)}
    v_mfma_f32_32x32x16_bf16 {v(S0,16)}, {v(KS[0]+4,4)}, {v(QF+4,4)}, {v(S0,16)}
    """)
    for r in range(16): a(f"v_exp_f32 v{S0+r}, v{S0+r}")
    a(f"""
    v_smfmac_f32_32x32x32_bf16 {v(OA,16)}, {v(VS[0],4)}, {v(S0,8)}, v4
    v_smfmac_f32_16x16x64_bf16 {v(LACC,4)}, {v(SELL,4)}, {v(S0,8)}, v4
    v_smfmac_f32_32x32x32_bf16 {v(OA,16)}, {v(VS[0]+4,4)}, {v(S0+8,8)}, v4
    v_smfmac_f32_16x16x64_bf16 {v(LACC,4)}, {v(SELL,4)}, {v(S0+8,8)}, v4
    s_nop 15
    s_add_u32 s36, s36, 4096
    s_add_u32 s28, s28, 1
    s_cmp_lt_u32 s28, 64
    s_cbranch_scc1 L_{name}_slow2
    s_nop 15
    s_branch L_{name}_fin
    """)
    a.label(f"L_{name}_end")
    a("s_endpgm")
    return (f"; @launch kernel={name} grid=(256,1,1) block=(512,1,1) lds={LDS_BYTES}", a.text(), kdesc(name, 128))
```

```python
from asmlib import *
from k1 import O_OFF, stamp, stamp_out

SLOT = 32768; NS = 5
ACC = 64
OS = [8, 16]; WSR = [24, 32]

def gen(opt):
    name = "k3_kernel"
    a = Asm()
    a.raw(khead(name))
    a(f"""
    s_cmp_ge_u32 s2, 256
    s_cbranch_scc1 L_{name}_end
    s_and_b32 s3, s2, 7
    s_lshr_b32 s28, s2, 3
    s_lshr_b32 s24, s3, 2            ; branch
    s_and_b32 s25, s3, 3
    s_lshl_b32 s25, s25, 2
    s_and_b32 s29, s28, 3
    s_add_u32 s25, s25, s29
    s_lshr_b32 s26, s28, 2
    s_mul_i32 s29, s24, 24
    s_add_u32 s29, s29, 24
    s_load_dwordx2 s[4:5], s[0:1], s29
    s_load_dwordx2 s[32:33], s[0:1], 72
    s_load_dwordx2 s[34:35], s[0:1], 56
    v_lshrrev_b32 v1, 6, v0
    v_and_b32 v0, 63, v0
    v_readfirstlane_b32 s27, v1
    s_waitcnt lgkmcnt(0)
    s_mov_b32 s12, s4
    s_mov_b32 s13, s5
    s_mov_b32 s14, 0x200000
    s_mov_b32 s15, 0x20000
    s_mov_b32 s16, s32
    s_mov_b32 s17, s33
    s_mov_b32 s18, 0x10000000
    s_mov_b32 s19, 0x20000
    s_mov_b32 s20, s34
    s_mov_b32 s21, s35
    s_mov_b32 s22, 0x800000
    s_mov_b32 s23, 0x20000
    """)
    for i in range(6): stamp(a, opt, i)
    a(f"""
    s_cmp_ge_u32 s27, 4
    s_cbranch_scc1 L_{name}_loader
    s_lshr_b32 s36, s27, 1           ; tw
    s_and_b32 s37, s27, 1            ; cw
    v_lshlrev_b32 v1, 4, v0
    s_lshl_b32 s29, s36, 13
    v_add_u32 v1, s29, v1
    v_lshrrev_b32 v2, 5, v0          ; h
    v_lshrrev_b32 v3, 2, v0
    v_and_b32 v3, 3, v3              ; r
    v_lshl_add_u32 v4, v2, 2, v3     ; 4h+r
    v_lshlrev_b32 v4, 8, v4
    s_lshl_b32 s29, s37, 1
    v_xor_b32 v3, s29, v3            ; (2cw) ^ r
    v_lshl_add_u32 v4, v3, 6, v4
    v_lshrrev_b32 v5, 4, v0
    v_and_b32 v5, 1, v5
    v_lshl_add_u32 v4, v5, 5, v4
    v_and_b32 v5, 3, v0
    v_lshl_add_u32 v4, v5, 3, v4
    v_add_u32 v2, 16384, v4
    v_xor_b32 v3, 64, v2
    s_mov_b32 s30, 0
    v_mov_b32 v4, v1
    v_mov_b32 v5, v2
    v_mov_b32 v6, v3
    s_mov_b32 s28, 16
    """)
    for r in range(ACC, ACC + 64): a(f"v_mov_b32 v{r}, 0")
    def reads(st, c):
        O = OS[st]; W = WSR[st]
        o = [f"ds_read_b128 {v(O+4*i,4)}, v4 offset:{i*4096+c*1024}" for i in range(2)]
        w = [f"ds_read_b64_tr_b16 {v(W+4*cb+2*b,2)}, v{5+cb} offset:{(16*c+8*b)*256}" for cb in range(2) for b in range(2)]
        return [w[0], w[1], o[0], o[1], w[2], w[3]]
    def mf(st):
        O = OS[st]; W = WSR[st]
        return [f"v_mfma_f32_32x32x16_bf16 {v(ACC+16*(2*i+cb),16)}, {v(W+4*cb,4)}, {v(O+4*i,4)}, {v(ACC+16*(2*i+cb),16)}"
                for cb in range(2) for i in range(2)]
    stamp(a, opt, 1)
    a("s_barrier")
    stamp(a, opt, 2)
    for r in reads(0, 0): a(r)
    a.raw(".p2align 6")
    a.label(f"L_{name}_loop", keep_hist=True)
    start = len(a.lines)
    for c in range(4):
        st = c & 1
        M = mf(st); R = reads(st ^ 1, (c + 1) & 3)
        if c == 3:
            a(f"""
            s_add_u32 s30, s30, {SLOT}
            s_cmp_eq_u32 s30, {SLOT*NS}
            s_cselect_b32 s30, 0, s30
            v_add_u32 v4, s30, v1
            v_add_u32 v5, s30, v2
            v_add_u32 v6, s30, v3
            s_sub_u32 s28, s28, 1
            s_cmp_lg_u32 s28, 0
            """)
        a("s_waitcnt lgkmcnt(0)")
        if c == 3: a("s_barrier")
        a(R[0]); a(R[1])
        a(M[0])
        a(R[2]); a(R[3])
        a(M[1])
        a(R[4]); a(R[5])
        a(M[2])
        a(M[3])
    a(f"s_cbranch_scc1 L_{name}_loop")
    print("k3 loop nops:", check_loop(a.lines[start:]))
    a("s_waitcnt lgkmcnt(0)")
    stamp(a, opt, 3)
    a(f"""
    v_and_b32 v1, 31, v0
    v_lshlrev_b32 v1, 12, v1
    v_lshrrev_b32 v2, 5, v0
    v_lshl_add_u32 v1, v2, 4, v1     ; n*4096 + h*16
    s_lshl_b32 s38, s25, 7
    s_lshl_b32 s29, s36, 6
    s_add_u32 s38, s38, s29          ; token0
    s_lshl_b32 s38, s38, 12
    s_lshl_b32 s29, s24, 11
    s_add_u32 s38, s38, s29
    s_lshl_b32 s29, s26, 8
    s_add_u32 s38, s38, s29
    s_lshl_b32 s29, s37, 7
    s_add_u32 s38, s38, s29
    s_add_u32 s39, s38, {32*4096}
    s_nop 7
    """)
    for i in range(2):
        for cb in range(2):
            D = ACC + 16 * (2 * i + cb)
            for r in range(8): a(f"v_cvt_pk_bf16_f32 v{D+r}, v{D+2*r}, v{D+2*r+1}")
            for pr in range(2):
                a(f"v_permlane32_swap_b32 v{D+4*pr}, v{D+4*pr+2}")
                a(f"v_permlane32_swap_b32 v{D+4*pr+1}, v{D+4*pr+3}")
                a(f"buffer_store_dwordx4 {v(D+4*pr,4)}, v1, s[20:23], s{38+i} offen offset:{cb*64+pr*32}")
    a(f"s_branch L_{name}_fin")
    a.label(f"L_{name}_loader")
    a(f"""
    s_sub_u32 s36, s27, 4            ; lw
    v_lshlrev_b32 v1, 4, v0          ; lane*16
    v_lshrrev_b32 v2, 4, v0          ; r
    v_and_b32 v3, 15, v0             ; p
    v_lshlrev_b32 v4, 2, v2
    v_xor_b32 v3, v3, v4
    v_lshlrev_b32 v3, 4, v3
    v_lshl_add_u32 v8, v2, 11, v3
    s_lshl_b32 s29, s26, 8
    s_lshl_b32 s37, s36, 15
    s_add_u32 s29, s29, s37
    v_add_u32 v8, s29, v8
    v_add_u32 v9, 8192, v8
    v_add_u32 v10, 16384, v8
    v_add_u32 v11, 24576, v8
    s_lshl_b32 s38, s25, 2
    s_add_u32 s38, s38, s36          ; tb
    s_lshl_b32 s38, s38, 16          ; *32*2048
    s_lshl_b32 s29, s24, 22
    s_add_u32 s38, s38, s29
    s_add_u32 s38, s38, {O_OFF}      ; O soffset
    s_mov_b32 s39, 0                 ; W soffset
    s_lshl_b32 s37, s36, 12          ; lw*4096
    s_mov_b32 s30, s37
    s_add_u32 s40, s37, {SLOT*NS}
    """)
    def G():
        a("s_mov_b32 m0, s30")
        a("s_nop 0")
        for n in range(4): a(f"buffer_load_dwordx4 v1, s[16:19], s38 offen offset:{n*1024} lds")
        for n in range(4):
            a(f"s_add_u32 m0, s30, {16384+n*1024}")
            a(f"buffer_load_dwordx4 v{8+n}, s[12:15], s39 offen lds")
        a(f"""
        s_add_u32 s38, s38, 4096
        s_add_u32 s39, s39, {64*2048}
        s_add_u32 s30, s30, {SLOT}
        s_cmp_eq_u32 s30, s40
        s_cselect_b32 s30, s37, s30
        """)
    G(); G()
    stamp(a, opt, 1)
    a("s_waitcnt vmcnt(8)")
    stamp(a, opt, 2)
    a("s_barrier")
    G(); G(); G()
    a("s_mov_b32 s28, 11")
    a.label(f"L_{name}_lloop")
    a("s_waitcnt vmcnt(24)")
    a("s_barrier")
    G()
    a(f"""
    s_sub_u32 s28, s28, 1
    s_cmp_lg_u32 s28, 0
    s_cbranch_scc1 L_{name}_lloop
    """)
    stamp(a, opt, 3)
    for n in (24, 16, 8, 0):
        a(f"s_waitcnt vmcnt({n})")
        a("s_barrier")
    a.label(f"L_{name}_fin")
    stamp(a, opt, 4)
    stamp_out(a, opt)
    a.label(f"L_{name}_end")
    a("s_endpgm")
    return (f"; @launch kernel={name} grid=(256,1,1) block=(512,1,1) lds={SLOT*NS}", a.text(), kdesc(name, 128))
```

```python
import sys, importlib, json
sys.path.insert(0, "gen")
from asmlib import *
import k1
HEADER = open("concat_heads__linear_kernel_hedgehog__mha_block__prompt.s.ref").read().split("; Override launch")[0]

def build(out, opts=None, stages=(1, 2, 3)):
    opts = opts or {}
    launches = []; texts = []; descs = []
    if 1 in stages:
        launches.append("; @launch kernel=k1_kernel grid=(256,1,1) block=(512,1,1) lds=163840")
        texts.append(k1.gen_k1("k1_kernel", opts.get("k1", {})))
        descs.append(kdesc("k1_kernel", 256))
    if 2 in stages:
        import k2
        l, t, d = k2.gen(opts.get("k2", {}))
        launches.append(l); texts.append(t); descs.append(d)
    if 3 in stages:
        import k3
        l, t, d = k3.gen(opts.get("k3", {}))
        launches.append(l); texts.append(t); descs.append(d)
    s = HEADER + "\n".join(launches) + "\n"
    s += '.amdgcn_target "amdgcn-amd-amdhsa--gfx950"\n.text\n'
    s += "".join(texts)
    s += '.section .rodata,"a"\n' + "".join(descs)
    open(out, "w").write(s)

if __name__ == "__main__":
    out = sys.argv[1]
    opts = json.loads(sys.argv[2]) if len(sys.argv) > 2 else {}
    stages = tuple(int(c) for c in sys.argv[3]) if len(sys.argv) > 3 else (1, 2, 3)
    build(out, opts, stages)
```

```python
from asmlib import *
from k1 import QB_OFF, KVB_OFF, QA_OFF, KVP_OFF, ZP_OFF, O_OFF, LOG2E, f2u, softmax_pm, cvt_inplace, stamp, stamp_out

SLOT = 32768
KVF = 131072
ZF = KVF + 4096
WPH = KVF + 5120
LDS_BYTES = WPH + 2048

SELL = 8
LACC = [12, 16]
QF = [24, 32]
KS = [40, 48]; VS = [56, 64]
NEGM = [72, 88]; SB = [104, 120]; OA = [136, 152]
NV = 168

def gen(opt):
    name = "k2_kernel"
    a = Asm()
    a.raw(khead(name))
    a(f"""
    s_cmp_ge_u32 s2, 256
    s_cbranch_scc1 L_{name}_end
    s_load_dwordx2 s[32:33], s[0:1], 72
    s_load_dwordx2 s[34:35], s[0:1], 16
    s_and_b32 s3, s2, 7
    s_lshr_b32 s29, s3, 2
    s_mul_i32 s29, s29, 24
    s_add_u32 s29, s29, 24
    s_load_dwordx2 s[4:5], s[0:1], s29
    s_lshl_b32 s24, s3, 2
    s_lshr_b32 s3, s2, 6
    s_add_u32 s24, s24, s3           ; head
    s_lshr_b32 s25, s2, 3
    s_and_b32 s25, s25, 7            ; qt
    v_lshrrev_b32 v1, 6, v0
    v_and_b32 v0, 63, v0
    v_readfirstlane_b32 s27, v1
    v_lshlrev_b32 v1, 4, v0          ; lane*16
    s_lshr_b32 s30, s27, 2
    s_and_b32 s31, s27, 3
    s_lshl_b32 s26, s25, 3
    s_lshl_b32 s29, s31, 1
    s_add_u32 s26, s26, s29
    s_lshl_b32 s38, s24, 6
    s_add_u32 s38, s38, s26
    s_lshl_b32 s38, s38, 11          ; (h*64+tb0)*2048
    s_lshl_b32 s40, s24, 18
    s_add_u32 s40, s40, {KVB_OFF}
    s_lshl_b32 s46, s26, 5
    s_add_u32 s46, s46, s24
    s_lshl_b32 s46, s46, 11
    s_add_u32 s46, s46, {O_OFF}
    s_waitcnt lgkmcnt(0)
    s_mov_b32 s16, s32
    s_mov_b32 s17, s33
    s_mov_b32 s18, 0x10000000
    s_mov_b32 s19, 0x20000
    s_mov_b32 s20, s34
    s_mov_b32 s21, s35
    s_mov_b32 s22, 0x10000
    s_mov_b32 s23, 0x20000
    s_mov_b32 s12, s4
    s_mov_b32 s13, s5
    s_mov_b32 s14, 0x200000
    s_mov_b32 s15, 0x20000
    """)
    for i in range(6): stamp(a, opt, i)
    a(f"""
    s_cmp_eq_u32 s30, 2
    s_cbranch_scc1 L_{name}_helper
    s_add_u32 s38, s38, {QB_OFF}
    """)
    for b in range(2):
        for u in range(2):
            a(f"buffer_load_dwordx4 {v(QF[b]+4*u,4)}, v1, s[16:19], s38 offen offset:{b*2048+u*1024}")
    a(f"""
    v_mov_b32 v4, 0xdddd
    v_and_b32 v2, 4, v0
    v_cmp_eq_u32 vcc, 0, v2
    v_mov_b32 v2, 0
    v_mov_b32 v3, 0x3f803f80
    v_cndmask_b32 v{SELL}, v2, v3, vcc
    v_cndmask_b32 v{SELL+2}, v3, v2, vcc
    v_mov_b32 v{SELL+1}, v{SELL}
    v_mov_b32 v{SELL+3}, v{SELL+2}
    s_lshl_b32 s29, s30, 14
    v_add_u32 v2, s29, v1
    v_add_u32 v3, {SLOT}, v2
    s_lshl_b32 s29, s30, 16
    s_add_u32 s47, s46, s29
    s_add_u32 s47, s47, {4<<20}
    """)
    for b in range(2):
        for r in range(16): a(f"v_mov_b32 v{OA[b]+r}, 0")
        for r in range(4): a(f"v_mov_b32 v{LACC[b]+r}, 0")
    for r in range(4, 8): a(f"v_mov_b32 v{VS[1]+r}, 0")
    stamp(a, opt, 1)
    a("s_barrier")
    stamp(a, opt, 2)
    def kread(st, addr, j): return [f"ds_read_b128 {v(KS[st]+4*u,4)}, {addr} offset:{j*4096+u*1024}" for u in range(2)]
    def vread(st, addr, j): return [f"ds_read_b128 {v(VS[st]+4*u,4)}, {addr} offset:{j*4096+2048+u*1024}" for u in range(2)]
    for r in kread(1, "v1", 0) + kread(0, "v2", 0) + vread(0, "v2", 0): a(r)
    a("s_waitcnt vmcnt(0) lgkmcnt(4)")
    for b in range(2):
        a(f"v_mfma_f32_32x32x16_bf16 {v(SB[b],16)}, {v(KS[1],4)}, {v(QF[b],4)}, 0")
        a(f"v_mfma_f32_32x32x16_bf16 {v(SB[b],16)}, {v(KS[1]+4,4)}, {v(QF[b]+4,4)}, {v(SB[b],16)}")
    for r in kread(1, "v2", 1): a(r)
    def rowmax(S, dst, init=True):
        if init:
            a(f"v_max3_f32 v{dst}, v{S}, v{S+1}, v{S+2}")
            for r in range(3, 15, 2): a(f"v_max3_f32 v{dst}, v{dst}, v{S+r}, v{S+r+1}")
            a(f"v_max_f32 v{dst}, v{dst}, v{S+15}")
        else:
            for r in range(0, 16, 2): a(f"v_max3_f32 v{dst}, v{dst}, v{S+r}, v{S+r+1}")
    def finish_max(dst, tmp, NM):
        a(f"v_mov_b32 v{tmp}, v{dst}")
        a(f"v_permlane32_swap_b32 v{dst}, v{tmp}")
        a(f"v_max_f32 v{dst}, v{dst}, v{tmp}")
        for r in range(16): a(f"v_sub_f32 v{NM+r}, 0, v{dst}")
    rowmax(SB[0], 6); finish_max(6, 7, NEGM[0])
    a("s_waitcnt lgkmcnt(4)")
    a(f"v_mfma_f32_32x32x16_bf16 {v(SB[0],16)}, {v(KS[0],4)}, {v(QF[0],4)}, {v(NEGM[0],16)}")
    a(f"v_mfma_f32_32x32x16_bf16 {v(SB[0],16)}, {v(KS[0]+4,4)}, {v(QF[0]+4,4)}, {v(SB[0],16)}")
    rowmax(SB[1], 6); finish_max(6, 7, NEGM[1])
    for r in range(8, 16): a(f"v_mov_b32 v{SB[1]+r}, 0")
    a("s_mov_b32 s28, 0")
    if opt.get("prio"):
        a(f"s_cmp_{'ge' if opt['prio'] == 1 else 'lt'}_u32 s27, 4")
        a(f"s_cbranch_scc0 L_{name}_np")
        a("s_setprio 1")
        a.label(f"L_{name}_np", keep_hist=True)
    a.raw(".p2align 6")
    a.label(f"L_{name}_loop", keep_hist=True)
    start = len(a.lines)
    pat = opt.get("pat", "ePeeelewMeeeNrereeVeeeeeL")
    for n in range(8):
        j = n >> 1; b = n & 1
        A = SB[b]; B = SB[b ^ 1]
        jprev = j - 1 if b == 0 else j
        jnext = j if b == 0 else j + 1
        E = lambda r: f"v_exp_f32 v{A+r}, v{A+r}"
        PV1 = f"v_smfmac_f32_32x32x32_bf16 {v(OA[b^1],16)}, {v(VS[jprev&1]+4,4)}, {v(B+8,8)}, v4"
        L1 = f"v_smfmac_f32_16x16x64_bf16 {v(LACC[b^1],4)}, {v(SELL,4)}, {v(B+8,8)}, v4"
        M1 = f"v_mfma_f32_32x32x16_bf16 {v(B,16)}, {v(KS[jnext&1],4)}, {v(QF[b^1],4)}, {v(NEGM[b^1],16)}"
        M2 = f"v_mfma_f32_32x32x16_bf16 {v(B,16)}, {v(KS[jnext&1]+4,4)}, {v(QF[b^1]+4,4)}, {v(B,16)}"
        PV0 = f"v_smfmac_f32_32x32x32_bf16 {v(OA[b],16)}, {v(VS[j&1],4)}, {v(A,8)}, v4"
        L0 = f"v_smfmac_f32_16x16x64_bf16 {v(LACC[b],4)}, {v(SELL,4)}, {v(A,8)}, v4"
        if b == 0: R = vread((j + 1) & 1, "v2" if j + 1 < 4 else "v3", (j + 1) & 3)
        else: R = kread(j & 1, "v2" if j + 2 < 4 else "v3", (j + 2) & 3)
        e = rr = 0
        for ch in pat:
            if ch == "e": a(E(e)); e += 1
            elif ch == "P": a(PV1)
            elif ch == "l": a(L1)
            elif ch == "L":
                if n == 7:
                    a(f"""
                    v_mov_b32 v2, v3
                    v_add_u32 v3, {SLOT}, v3
                    v_and_b32 v3, {4*SLOT-1}, v3
                    s_add_u32 s28, s28, 1
                    s_cmp_lt_u32 s28, 8
                    """)
                a(L0)
            elif ch == "w": a("s_waitcnt lgkmcnt(2)")
            elif ch == "M": a(M1)
            elif ch == "N":
                a(M2)
                if n == 5: a("s_barrier")
            elif ch == "V": a(PV0)
            elif ch == "r": a(R[rr]); rr += 1
        assert e == 16 and rr == 2
    a(f"s_cbranch_scc1 L_{name}_loop")
    body = a.lines[start:]
    print("k2 loop nops (in-body, seam):", check_loop(body), "nop lines in body", sum("s_nop" in l for l in body))
    a("s_nop 1")
    a(f"v_smfmac_f32_32x32x32_bf16 {v(OA[1],16)}, {v(VS[1]+4,4)}, {v(SB[1]+8,8)}, v4")
    a(f"v_smfmac_f32_16x16x64_bf16 {v(LACC[1],4)}, {v(SELL,4)}, {v(SB[1]+8,8)}, v4")
    stamp(a, opt, 3)
    XCH = SLOT
    a(f"""
    s_mul_i32 s29, s27, 5120
    s_add_u32 s29, s29, {XCH}
    v_add_u32 v2, s29, v1
    s_xor_b32 s36, s27, 4
    s_mul_i32 s36, s36, 5120
    s_add_u32 s36, s36, {XCH}
    v_add_u32 v3, s36, v1
    s_cmp_eq_u32 s30, 0
    s_cbranch_scc1 L_{name}_g0
    """)
    O0 = OA[0]; O1 = OA[1]; L0r = LACC[0]
    for g4 in range(4): a(f"ds_write_b128 v2, {v(OA[0]+4*g4,4)} offset:{g4*1024}")
    a(f"ds_write_b32 v2, v{LACC[0]} offset:4096")
    for r in range(8): a(f"v_mov_b32 v{QF[0]+r}, v{QF[1]+r}")
    a("s_waitcnt lgkmcnt(0)")
    a("s_barrier")
    for g4 in range(4): a(f"ds_read_b128 {v(OA[0]+4*g4,4)}, v3 offset:{g4*1024}")
    a(f"ds_read_b32 v{LACC[0]}, v3 offset:4096")
    a(f"s_branch L_{name}_g1")
    a.label(f"L_{name}_g0")
    a("s_nop 4")
    for g4 in range(4): a(f"ds_write_b128 v2, {v(OA[1]+4*g4,4)} offset:{g4*1024}")
    a(f"ds_write_b32 v2, v{LACC[1]} offset:4096")
    a("s_waitcnt lgkmcnt(0)")
    a("s_barrier")
    for g4 in range(4): a(f"ds_read_b128 {v(OA[1]+4*g4,4)}, v3 offset:{g4*1024}")
    a(f"ds_read_b32 v{LACC[1]}, v3 offset:4096")
    a.label(f"L_{name}_g1")
    a("s_mov_b32 s36, 0x5d800000        ; 2^60")
    a("s_waitcnt lgkmcnt(0)")
    a(f"v_add_f32 v{L0r}, v{L0r}, v{LACC[1]}")
    for r in range(0, 16, 2): a(f"v_pk_add_f32 {v(O0+r,2)}, {v(O0+r,2)}, {v(O1+r,2)}")
    a(f"""
    v_cmp_nlt_f32 vcc, v{L0r}, s36
    s_cmp_lg_u64 vcc, 0
    s_cbranch_scc1 L_{name}_slow
    """)
    a.label(f"L_{name}_fin", keep_hist=True)
    a(f"v_rcp_f32 v{L0r}, v{L0r}")
    for r in range(0, 16, 2):
        a(f"v_pk_mul_f32 {v(O0+r,2)}, {v(O0+r,2)}, {v(L0r,2)} op_sel_hi:[1,0]")
    cvt_inplace(a, O0)
    a(f"buffer_store_dwordx4 {v(O0,4)}, v1, s[16:19], s47 offen")
    a(f"buffer_store_dwordx4 {v(O0+4,4)}, v1, s[16:19], s47 offen offset:1024")
    a.label(f"L_{name}_out")
    stamp(a, opt, 4)
    stamp_out(a, opt, nw=12)
    a("s_endpgm")

    S0 = SB[0]; Q0 = QF[0]; NM = NEGM[0]
    a.label(f"L_{name}_slow")
    a(f"""
    s_mov_b32 s36, s40
    s_mov_b32 s28, 0
    v_mov_b32 v6, 0xff800000
    """)
    a.label(f"L_{name}_slow1")
    a(f"""
    buffer_load_dwordx4 {v(KS[0],4)}, v1, s[16:19], s36 offen
    buffer_load_dwordx4 {v(KS[0]+4,4)}, v1, s[16:19], s36 offen offset:1024
    s_waitcnt vmcnt(0)
    v_mfma_f32_32x32x16_bf16 {v(S0,16)}, {v(KS[0],4)}, {v(Q0,4)}, 0
    v_mfma_f32_32x32x16_bf16 {v(S0,16)}, {v(KS[0]+4,4)}, {v(Q0+4,4)}, {v(S0,16)}
    """)
    rowmax(S0, 6, init=False)
    a(f"""
    s_add_u32 s36, s36, 4096
    s_add_u32 s28, s28, 1
    s_cmp_lt_u32 s28, 64
    s_cbranch_scc1 L_{name}_slow1
    """)
    finish_max(6, 7, NM)
    for r in range(16): a(f"v_mov_b32 v{O0+r}, 0")
    for r in range(4): a(f"v_mov_b32 v{L0r+r}, 0")
    a("s_mov_b32 s36, s40\ns_mov_b32 s28, 0")
    a.label(f"L_{name}_slow2")
    a(f"""
    buffer_load_dwordx4 {v(KS[0],4)}, v1, s[16:19], s36 offen
    buffer_load_dwordx4 {v(KS[0]+4,4)}, v1, s[16:19], s36 offen offset:1024
    buffer_load_dwordx4 {v(VS[0],4)}, v1, s[16:19], s36 offen offset:2048
    buffer_load_dwordx4 {v(VS[0]+4,4)}, v1, s[16:19], s36 offen offset:3072
    s_waitcnt vmcnt(0)
    v_mfma_f32_32x32x16_bf16 {v(S0,16)}, {v(KS[0],4)}, {v(Q0,4)}, {v(NM,16)}
    v_mfma_f32_32x32x16_bf16 {v(S0,16)}, {v(KS[0]+4,4)}, {v(Q0+4,4)}, {v(S0,16)}
    """)
    for r in range(16): a(f"v_exp_f32 v{S0+r}, v{S0+r}")
    a(f"""
    v_smfmac_f32_32x32x32_bf16 {v(O0,16)}, {v(VS[0],4)}, {v(S0,8)}, v4
    v_smfmac_f32_16x16x64_bf16 {v(L0r,4)}, {v(SELL,4)}, {v(S0,8)}, v4
    v_smfmac_f32_32x32x32_bf16 {v(O0,16)}, {v(VS[0]+4,4)}, {v(S0+8,8)}, v4
    v_smfmac_f32_16x16x64_bf16 {v(L0r,4)}, {v(SELL,4)}, {v(S0+8,8)}, v4
    s_nop 15
    s_add_u32 s36, s36, 4096
    s_add_u32 s28, s28, 1
    s_cmp_lt_u32 s28, 64
    s_cbranch_scc1 L_{name}_slow2
    s_nop 15
    s_branch L_{name}_fin
    """)

    a.label(f"L_{name}_helper")
    P0 = 8
    QAF = 72
    ZP0 = 88
    JUNK = 96
    a(f"""
    s_setprio {opt.get("hprio", 2)}
    s_lshl_b32 s41, s31, 13          ; hw*8192
    s_add_u32 s42, s40, s41
    s_mov_b32 s43, s41
    s_add_u32 s38, s38, {QA_OFF}
    s_mov_b32 s44, {f2u(LOG2E)}
    s_mov_b32 s45, {f2u(LOG2E)}
    """)
    def dma_chunk():
        for hf in range(2):
            a(f"s_add_u32 m0, s43, {hf*4096}")
            a(f"s_add_u32 s29, s42, {hf*4096}")
            for n in range(4):
                a(f"buffer_load_dwordx4 v1, s[16:19], s29 offen offset:{n*1024} lds")
        a(f"s_add_u32 s42, s42, {SLOT}")
        a(f"s_add_u32 s43, s43, {SLOT}")
        a(f"s_and_b32 s43, s43, {4*SLOT-1}")
    dma_chunk()
    stamp(a, opt, 1)
    a("s_waitcnt vmcnt(0)")
    a("s_barrier")
    stamp(a, opt, 2)
    dma_chunk(); dma_chunk()
    a("s_waitcnt vmcnt(8)")
    a("s_barrier")
    dma_chunk()
    a(f"""
    s_lshl_b32 s36, s24, 16
    s_add_u32 s36, s36, {KVP_OFF}
    s_lshl_b32 s29, s31, 11
    s_add_u32 s36, s36, s29
    """)
    for t in range(8):
        a(f"buffer_load_dwordx4 {v(P0+8*t,4)}, v1, s[16:19], s36 offen")
        a(f"buffer_load_dwordx4 {v(P0+8*t+4,4)}, v1, s[16:19], s36 offen offset:1024")
        if t < 7: a("s_add_u32 s36, s36, 8192")
    for q in range(4):
        a(f"buffer_load_dwordx4 {v(QAF+4*q,4)}, v1, s[16:19], s38 offen offset:{q*1024}")
    a(f"""
    s_and_b32 s37, s31, 1
    s_lshl_b32 s37, s37, 10
    s_lshl_b32 s36, s24, 11
    s_add_u32 s36, s36, s37
    s_add_u32 m0, s37, {WPH}
    v_lshlrev_b32 v6, 2, v0
    buffer_load_dwordx4 v1, s[20:23], s36 offen lds
    s_lshl_b32 s36, s24, 11
    s_add_u32 s36, s36, {ZP_OFF}
    """)
    for t in range(8):
        a(f"buffer_load_dword v{ZP0+t}, v6, s[16:19], s36 offen offset:{t*256}")
    a("s_waitcnt vmcnt(37)")
    a("s_barrier")
    dma_chunk()
    a("s_waitcnt vmcnt(8)")
    for t in range(1, 8):
        for r in range(0, 8, 2):
            a(f"v_pk_add_f32 {v(P0+r,2)}, {v(P0+r,2)}, {v(P0+8*t+r,2)}")
    for r in range(4): a(f"v_cvt_pk_bf16_f32 v{P0+r}, v{P0+2*r}, v{P0+2*r+1}")
    a(f"""
    s_lshl_b32 s36, s31, 10
    s_add_u32 s36, s36, {KVF}
    v_add_u32 v6, s36, v1
    ds_write_b128 v6, {v(P0,4)}
    """)
    for t in range(1, 8): a(f"v_add_f32 v{ZP0}, v{ZP0}, v{ZP0+t}")
    a(f"""
    v_cvt_pk_bf16_f32 v{ZP0}, v{ZP0}, v{ZP0}
    v_lshrrev_b32 v6, 4, v0
    v_lshlrev_b32 v6, 5, v6
    v_and_b32 v7, 4, v0
    v_lshl_add_u32 v6, v7, 2, v6
    v_and_b32 v7, 8, v0
    v_add_u32 v6, v6, v7
    v_and_b32 v7, 3, v0
    v_lshl_add_u32 v6, v7, 1, v6
    v_add_u32 v6, {ZF}, v6
    ds_write_b16 v6, v{ZP0}
    v_mov_b32 v7, 0
    ds_write_b16 v6, v7 offset:128
    v_lshrrev_b32 v5, 5, v0          ; h
    v_lshrrev_b32 v6, 2, v0
    v_and_b32 v6, 3, v6
    v_lshl_add_u32 v6, v5, 2, v6     ; 4h+r
    v_lshrrev_b32 v7, 4, v0
    v_and_b32 v7, 1, v7
    v_lshlrev_b32 v7, 5, v7
    v_lshl_add_u32 v6, v6, 6, v7
    v_and_b32 v7, 3, v0
    v_lshl_add_u32 v6, v7, 3, v6
    v_add_u32 v2, {WPH}, v6
    v_lshrrev_b32 v6, 2, v0
    v_lshrrev_b32 v7, 4, v0
    v_xor_b32 v6, v6, v7
    v_and_b32 v6, 1, v6
    v_cmp_eq_u32 vcc, 0, v6
    v_lshlrev_b32 v5, 4, v5
    v_add_u32 v5, {ZF}, v5
    v_mov_b32 v6, {ZF+128}
    v_cndmask_b32 v7, v6, v5, vcc
    v_add_u32 v6, {KVF}, v1
    s_waitcnt lgkmcnt(0)
    s_barrier
    """)
    WP = 8; KVR = 16; ZR = 32; PQ = 48; EP = 104; T = 120; NUM = 136; DEN = 64
    dma_chunk()
    for u in range(2):
        for b in range(2):
            a(f"ds_read_b64_tr_b16 {v(WP+4*u+2*b,2)}, v2 offset:{(16*u+8*b)*64}")
    for f in range(4): a(f"ds_read_b128 {v(KVR+4*f,4)}, v6 offset:{f*1024}")
    for f in range(4): a(f"ds_read_b128 {v(ZR+4*f,4)}, v7 offset:{f*32}")
    a("s_waitcnt lgkmcnt(0)")
    def oa_block(b):
        a(f"v_mfma_f32_32x32x16_bf16 {v(PQ,16)}, {v(WP,4)}, {v(QAF+8*b,4)}, 0")
        a(f"v_mfma_f32_32x32x16_bf16 {v(PQ,16)}, {v(WP+4,4)}, {v(QAF+8*b+4,4)}, {v(PQ,16)}")
        softmax_pm(a, PQ, EP, T)
        for f in range(4):
            F = (EP if f < 2 else PQ) + 4 * (f & 1)
            a(f"v_mfma_f32_32x32x16_bf16 {v(NUM,16)}, {v(KVR+4*f,4)}, {v(F,4)}, {'0' if f == 0 else v(NUM,16)}")
            a(f"v_mfma_f32_16x16x32_bf16 {v(DEN,4)}, {v(ZR+4*f,4)}, {v(F,4)}, {'0' if f == 0 else v(DEN,4)}")
        a(f"""
        v_add_f32 v{DEN}, {f2u(1e-6)}, v{DEN}
        v_rcp_f32 v{DEN}, v{DEN}
        """)
        for r in range(0, 16, 2):
            a(f"v_pk_mul_f32 {v(NUM+r,2)}, {v(NUM+r,2)}, {v(DEN,2)} op_sel_hi:[1,0]")
        cvt_inplace(a, NUM)
        a(f"buffer_store_dwordx4 {v(NUM,4)}, v1, s[16:19], s46 offen")
        a(f"buffer_store_dwordx4 {v(NUM+4,4)}, v1, s[16:19], s46 offen offset:1024")
        a(f"s_add_u32 s46, s46, 65536")
    oa_block(0)
    a("s_waitcnt vmcnt(10)")
    a("s_barrier")
    dma_chunk()
    oa_block(1)
    a("s_waitcnt vmcnt(10)")
    a("s_barrier")
    dma_chunk()
    npf = 0
    if not opt.get("nopref"):
        a(f"""
        s_lshr_b32 s36, s2, 3
        s_lshl_b32 s36, s36, 16
        s_lshl_b32 s37, s31, 14
        s_add_u32 s36, s36, s37
        v_lshlrev_b32 v6, 6, v0
        """)
        for q in range(4):
            a(f"buffer_load_dword v{JUNK+q}, v6, s[12:15], s36 offen")
            if q < 3: a("s_add_u32 s36, s36, 4096")
        npf = 4
    a(f"s_waitcnt vmcnt({8+npf})")
    a("s_barrier")
    a(f"s_waitcnt vmcnt({npf})")
    stamp(a, opt, 3)
    a("s_barrier")
    a(f"s_branch L_{name}_out")
    a.label(f"L_{name}_end")
    a("s_endpgm")
    return (f"; @launch kernel={name} grid=(256,1,1) block=(768,1,1) lds={LDS_BYTES}", a.text(), kdesc(name, NV))
```

```python
from asmlib import *
import math

QB_OFF = 0
KVB_OFF = 4 << 20
QA_OFF = 12 << 20
KVP_OFF = 16 << 20
ZP_OFF = 18 << 20
O_OFF = 20 << 20
WS_BYTES = 268435456

W_SLOT = 12288; NW = 5
X_BASE = W_SLOT * NW
X_SLOT = 32768; NX = 3
WPHI_LDS = X_BASE + NX * X_SLOT
LOG2E = 1.4426950408889634
def f2u(x):
    import struct
    return struct.unpack("<I", struct.pack("<f", x))[0]

ACCQ, ACCK, ACCV = 64, 128, 192
XS = [8, 24]; WS_ = [40, 52]

STAMP_OFF = 30 << 20
def stamp(a, opt, idx):
    if not opt.get("stamp"): return
    a(f"s_memtime s[{60+2*idx}:{61+2*idx}]")
    a(f"s_memrealtime s[{72+2*idx}:{73+2*idx}]")
    a("s_waitcnt lgkmcnt(0)")
def stamp_out(a, opt, nw=8):
    if not opt.get("stamp"): return
    a("s_waitcnt vmcnt(0)")
    stamp(a, opt, 5)
    a(f"""
    s_mul_i32 s29, s2, {nw}
    s_add_u32 s29, s29, s27
    s_lshl_b32 s29, s29, 6
    s_add_u32 s29, s29, {STAMP_OFF}
    v_mov_b32 v9, 0
    """)
    for i in range(6):
        a(f"v_mov_b32 v8, s{60+2*i}")
        a(f"buffer_store_dword v8, v9, s[16:19], s29 offen offset:{4*i}")
    for i in range(6):
        a(f"v_mov_b32 v8, s{72+2*i}")
        a(f"buffer_store_dword v8, v9, s[16:19], s29 offen offset:{24+4*i}")
    a("s_getreg_b32 s3, hwreg(HW_REG_XCC_ID)")
    a("v_mov_b32 v8, s3")
    a(f"buffer_store_dword v8, v9, s[16:19], s29 offen offset:48")

def gen_k1(name="k1_kernel", opt=None):
    opt = opt or {}
    a = Asm()
    a.raw(khead(name))
    a(f"""
    s_cmp_ge_u32 s2, 256
    s_cbranch_scc1 L_{name}_end
    s_and_b32 s3, s2, 7
    s_lshr_b32 s28, s2, 3
    """)
    if opt.get("only") == "xcd":
        a(f"s_cmp_ge_u32 s3, 4\ns_cbranch_scc1 L_{name}_end")
    if opt.get("only") == "half":
        a(f"s_cmp_ge_u32 s28, 16\ns_cbranch_scc1 L_{name}_end")
    if opt.get("only") == "q3":
        a(f"s_cmp_ge_u32 s28, 24\ns_cbranch_scc1 L_{name}_end")
    if opt.get("map", 0) == 2:
        a("""
        s_lshr_b32 s24, s3, 2
        s_and_b32 s25, s3, 1
        s_lshl_b32 s25, s25, 2
        s_lshr_b32 s29, s28, 3
        s_add_u32 s25, s25, s29
        s_lshr_b32 s26, s3, 1
        s_and_b32 s26, s26, 1
        s_lshl_b32 s26, s26, 3
        s_and_b32 s29, s28, 7
        s_add_u32 s26, s26, s29
        """)
    elif opt.get("map", 0) == 0:
        a("""
        s_lshr_b32 s24, s3, 2
        s_and_b32 s25, s3, 1
        s_lshl_b32 s25, s25, 2
        s_and_b32 s29, s28, 3
        s_add_u32 s25, s25, s29
        s_lshr_b32 s26, s3, 1
        s_and_b32 s26, s26, 1
        s_lshl_b32 s26, s26, 3
        s_lshr_b32 s29, s28, 2
        s_add_u32 s26, s26, s29
        """)
    else:
        a("""
        s_and_b32 s24, s28, 1
        s_lshr_b32 s28, s28, 1
        s_and_b32 s25, s3, 1
        s_lshl_b32 s25, s25, 2
        s_and_b32 s29, s28, 3
        s_add_u32 s25, s25, s29
        s_lshr_b32 s26, s3, 1
        s_lshl_b32 s26, s26, 2
        s_lshr_b32 s29, s28, 2
        s_add_u32 s26, s26, s29
        """)
    a(f"""
    s_lshl_b32 s29, s24, 5
    s_load_dwordx4 s[4:7], s[0:1], s29
    s_load_dwordx2 s[32:33], s[0:1], 72
    s_load_dwordx2 s[34:35], s[0:1], 16
    v_lshrrev_b32 v1, 6, v0
    v_and_b32 v0, 63, v0
    v_readfirstlane_b32 s27, v1
    s_lshl_b32 s29, s25, 19
    s_waitcnt lgkmcnt(0)
    s_add_u32 s8, s4, s29
    s_addc_u32 s9, s5, 0
    s_mov_b32 s10, 0x80000
    s_mov_b32 s11, 0x20000
    s_mov_b32 s12, s6
    s_mov_b32 s13, s7
    s_mov_b32 s14, 0x600000
    s_mov_b32 s15, 0x20000
    s_mov_b32 s16, s32
    s_mov_b32 s17, s33
    s_mov_b32 s18, 0x10000000
    s_mov_b32 s19, 0x20000
    s_mov_b32 s20, s34
    s_mov_b32 s21, s35
    s_mov_b32 s22, 0x10000
    s_mov_b32 s23, 0x20000
    """)
    for i in range(6): stamp(a, opt, i)
    a(f"""
    s_cmp_ge_u32 s27, 4
    s_cbranch_scc1 L_{name}_loader
    """)
    gen_compute(a, name, opt)
    gen_loader(a, name, opt)
    a.label(f"L_{name}_fin")
    stamp(a, opt, 4)
    stamp_out(a, opt)
    a.label(f"L_{name}_end")
    a("s_endpgm")
    return a.text()

def reads(a_or_list, st, c1, sp):
    X = XS[st]; W = WS_[st]
    def wr(seg, b): return f"ds_read_b64_tr_b16 {v(W+4*seg+2*b,2)}, v7 offset:{seg*4096 + (16*sp+4*b)*128}"
    def xr(i): return f"ds_read_b128 {v(X+4*i,4)}, v6 offset:{i*4096}"
    return [wr(0,0), wr(0,1), xr(0), wr(1,0), wr(1,1), wr(2,0), wr(2,1), xr(1), xr(2), xr(3)]

def mfmas(st):
    X = XS[st]; W = WS_[st]
    out = []
    for i in range(4):
        out.append(f"v_mfma_f32_32x32x16_bf16 {v(ACCQ+16*i,16)}, {v(W,4)}, {v(X+4*i,4)}, {v(ACCQ+16*i,16)}")
        out.append(f"v_mfma_f32_32x32x16_bf16 {v(ACCK+16*i,16)}, {v(W+4,4)}, {v(X+4*i,4)}, {v(ACCK+16*i,16)}")
        out.append(f"v_mfma_f32_32x32x16_bf16 {v(ACCV+16*i,16)}, {v(X+4*i,4)}, {v(W+8,4)}, {v(ACCV+16*i,16)}")
    return out

def gen_compute(a, name, opt):
    a(f"""
    s_lshr_b32 s36, s27, 1          ; tw
    s_and_b32 s37, s27, 1           ; hd
    v_and_b32 v8, 31, v0            ; n
    v_lshrrev_b32 v9, 5, v0         ; h
    v_lshrrev_b32 v10, 1, v8
    v_and_b32 v10, 7, v10           ; f
    v_xor_b32 v10, v10, v9          ; h ^ f
    v_lshlrev_b32 v10, 4, v10
    s_lshl_b32 s29, s36, 14         ; tw*128*128
    v_lshlrev_b32 v11, 7, v8
    v_add_u32 v11, s29, v11
    v_add_u32 v1, v11, v10
    v_xor_b32 v2, 32, v1
    v_xor_b32 v3, 64, v1
    v_xor_b32 v4, 0x60, v1
    v_lshrrev_b32 v10, 2, v0
    v_and_b32 v10, 3, v10           ; r
    v_lshlrev_b32 v11, 3, v9        ; 8h
    v_add_u32 v11, v11, v10
    v_lshlrev_b32 v11, 7, v11       ; row*128
    v_lshrrev_b32 v10, 1, v10       ; r>>1
    v_xor_b32 v10, s37, v10
    v_lshlrev_b32 v10, 6, v10
    v_add_u32 v11, v11, v10
    v_lshrrev_b32 v10, 4, v0
    v_and_b32 v10, 1, v10
    v_lshlrev_b32 v10, 5, v10
    v_add_u32 v11, v11, v10
    v_and_b32 v10, 3, v0
    v_lshlrev_b32 v10, 3, v10
    v_add_u32 v5, v11, v10
    s_mov_b32 s30, {X_BASE}
    s_mov_b32 s31, 0
    v_add_u32 v6, s30, v1
    v_mov_b32 v7, v5
    s_mov_b32 s28, 16
    """)
    pf = opt.get("pf", 0)
    def prefetch():
        a(f"""
        s_lshr_b32 s50, s2, 5
        s_lshl_b32 s50, s50, 16          ; 32 rows * 2048
        s_lshl_b32 s51, s27, 8
        s_add_u32 s50, s50, s51          ; + w*256
        v_lshlrev_b32 v10, 11, v8        ; n*2048
        v_lshl_add_u32 v10, v9, 7, v10   ; + h*128
        s_lshr_b32 s51, s2, 3
        s_and_b32 s51, s51, 3
        v_lshlrev_b32 v11, 2, v0
        v_add_u32 v11, s51, v11
        v_mul_u32_u24 v11, 6144, v11
        s_lshl_b32 s51, s26, 7
        s_mul_i32 s52, s27, {256*6144}
        s_add_u32 s51, s51, s52
        """)
        a("buffer_load_dword v0, v10, s[8:11], s50 offen")
        for sg in range(3):
            a(f"buffer_load_dword v0, v11, s[12:15], s51 offen")
            if sg < 2: a("s_add_u32 s51, s51, 2048")
        a("buffer_load_dword v0, v10, s[8:11], s50 offen offset:1024")
    if pf == 1: prefetch()
    for r in range(64, 256): a(f"v_mov_b32 v{r}, 0")
    if pf == 2: prefetch()
    stamp(a, opt, 1)
    a("s_barrier")
    stamp(a, opt, 2)
    for r in reads(a, 0, 0, 0): a(r)
    a.raw(".p2align 6")
    a.label(f"L_{name}_loop", keep_hist=True)
    start = len(a.lines)
    nomfma = opt.get("nomfma", False)
    for c in range(4):
        st = c & 1
        M = mfmas(st)
        if opt.get("order") == "w":
            M = [M[3*i+j] for j in range(3) for i in range(4)]
        if nomfma: M = ["s_nop 0"] * 12
        if opt.get("fake16"):
            M2 = []
            import re as _re
            for q, m in enumerate(M):
                g = _re.match(r"v_mfma_f32_32x32x16_bf16 v\[(\d+):\d+\], (\S+), (\S+), ", m)
                d = int(g.group(1)) + 8 * (c & 1)
                M2.append(f"v_mfma_f32_16x16x32_bf16 {v(d,4)}, {g.group(2)}, {g.group(3)}, {v(d,4)}\nv_mfma_f32_16x16x32_bf16 {v(d+4,4)}, {g.group(3)}, {g.group(2)}, {v(d+4,4)}")
            M = M2
        c1 = (c + 1) & 3
        R = reads(a, st ^ 1, c1, c1 & 1)
        pre = []
        if c & 1:
            pre += [f"s_add_u32 s31, s31, {W_SLOT}", f"s_cmp_eq_u32 s31, {W_SLOT*NW}", "s_cselect_b32 s31, 0, s31"]
        if c == 3:
            pre += [f"s_add_u32 s30, s30, {X_SLOT}", f"s_cmp_eq_u32 s30, {X_BASE+X_SLOT*NX}", f"s_cselect_b32 s30, {X_BASE}, s30"]
        a("s_waitcnt lgkmcnt(0)" if opt.get("order") == "w" else "s_waitcnt lgkmcnt(3)")
        a(M[0])
        for p in pre[:3]: a(p)
        a(M[1])
        for p in pre[3:]: a(p)
        if c & 1: a("v_add_u32 v7, s31, v5")
        a(f"v_add_u32 v6, s30, v{1+c1}")
        a(M[2])
        a("s_waitcnt lgkmcnt(0)")
        if c & 1: a("s_barrier")
        sched = [2, 2, 2, 2, 1, 1, 0, 0, 0]
        k = 0
        for g in range(9):
            for _ in range(sched[g]):
                a(R[k]); k += 1
            if c == 3 and g == 7:
                a("s_sub_u32 s28, s28, 1")
                a("s_cmp_lg_u32 s28, 0")
            a(M[3 + g])
    a(f"s_cbranch_scc1 L_{name}_loop")
    body = a.lines[start:]
    n1, n2 = check_loop(body)
    assert n1 == 0 and n2 == 0, (n1, n2)
    a("s_waitcnt lgkmcnt(0)")
    a("s_nop 15")
    stamp(a, opt, 3)
    if pf:
        a("s_waitcnt vmcnt(0)")
        a("v_mbcnt_lo_u32_b32 v0, -1, 0")
        a("v_mbcnt_hi_u32_b32 v0, -1, v0")
    a(f"""
    s_lshl_b32 s38, s26, 1
    s_add_u32 s38, s38, s37          ; head
    s_lshl_b32 s39, s25, 3
    s_lshl_b32 s29, s36, 2
    s_add_u32 s39, s39, s29          ; tb0
    s_lshl_b32 s40, s38, 6
    s_add_u32 s40, s40, s39          ; h*64+tb0
    v_lshlrev_b32 v1, 4, v0          ; lane*16
    s_cmp_eq_u32 s24, 0
    s_cbranch_scc1 L_{name}_epiA
    """)
    epi_B(a, name, opt)
    a(f"s_branch L_{name}_fin")
    a.label(f"L_{name}_epiA")
    epi_A(a, name, opt)
    a(f"s_branch L_{name}_fin")

def cvt_inplace(a, base):
    for r in range(8):
        a(f"v_cvt_pk_bf16_f32 v{base+r}, v{base+2*r}, v{base+2*r+1}")

def epi_B(a, name, opt):
    sfl = opt.get("stflags", "")
    qs = LOG2E / math.sqrt(32.0)
    a(f"""
    s_lshl_b32 s41, s40, 11
    s_add_u32 s41, s41, {QB_OFF}
    s_add_u32 s42, s41, 4096
    s_lshl_b32 s43, s40, 12
    s_add_u32 s43, s43, {KVB_OFF}
    s_mov_b32 s44, {f2u(qs)}
    s_mov_b32 s45, {f2u(qs)}
    v_and_b32 v2, 0x33, v0
    v_and_b32 v3, 4, v0
    v_lshlrev_b32 v3, 1, v3
    v_or_b32 v2, v2, v3
    v_and_b32 v3, 8, v0
    v_lshrrev_b32 v3, 1, v3
    v_or_b32 v2, v2, v3
    v_lshlrev_b32 v2, 4, v2
    """)
    for i in range(4):
        Q = ACCQ + 16 * i; K = ACCK + 16 * i; V = ACCV + 16 * i
        cvt_inplace(a, K)
        a(f"buffer_store_dwordx4 {v(K,4)}, v2, s[16:19], s43 offen{sfl}")
        a(f"buffer_store_dwordx4 {v(K+4,4)}, v2, s[16:19], s43 offen offset:1024{sfl}")
        cvt_inplace(a, V)
        a(f"buffer_store_dwordx4 {v(V,4)}, v1, s[16:19], s43 offen offset:2048{sfl}")
        a(f"buffer_store_dwordx4 {v(V+4,4)}, v1, s[16:19], s43 offen offset:3072{sfl}")
        for r in range(0, 16, 2):
            a(f"v_pk_mul_f32 {v(Q+r,2)}, {v(Q+r,2)}, s[44:45]")
        cvt_inplace(a, Q)
        sq = "s41" if i < 2 else "s42"
        a(f"buffer_store_dwordx4 {v(Q,4)}, v1, s[16:19], {sq} offen offset:{(i&1)*2048}{sfl}")
        a(f"buffer_store_dwordx4 {v(Q+4,4)}, v1, s[16:19], {sq} offen offset:{(i&1)*2048+1024}{sfl}")
        if i < 3: a("s_add_u32 s43, s43, 4096")

def softmax_pm(a, P, EP, T):
    mx, mn, t0, t1 = T, T + 1, T + 2, T + 3
    a(f"v_max3_f32 v{mx}, v{P}, v{P+1}, v{P+2}")
    a(f"v_min3_f32 v{mn}, v{P}, v{P+1}, v{P+2}")
    for r in range(3, 15, 2):
        a(f"v_max3_f32 v{mx}, v{mx}, v{P+r}, v{P+r+1}")
        a(f"v_min3_f32 v{mn}, v{mn}, v{P+r}, v{P+r+1}")
    a(f"v_max_f32 v{mx}, v{mx}, v{P+15}")
    a(f"v_min_f32 v{mn}, v{mn}, v{P+15}")
    a(f"v_mov_b32 v{t0}, v{mx}")
    a(f"v_mov_b32 v{t1}, v{mn}")
    a(f"v_permlane32_swap_b32 v{mx}, v{t0}")
    a(f"v_permlane32_swap_b32 v{mn}, v{t1}")
    a(f"v_max_f32 v{mx}, v{mx}, v{t0}")
    a(f"v_min_f32 v{mn}, v{mn}, v{t1}")
    a(f"v_mul_f32 v{T+4}, s44, v{mx}")
    a(f"v_mul_f32 v{T+6}, s44, v{mn}")
    for r in range(0, 16, 2):
        a(f"v_pk_fma_f32 {v(EP+r,2)}, {v(P+r,2)}, s[44:45], {v(T+4,2)} op_sel_hi:[1,1,0] neg_lo:[0,0,1] neg_hi:[0,0,1]")
    for r in range(0, 16, 2):
        a(f"v_pk_fma_f32 {v(P+r,2)}, {v(P+r,2)}, s[44:45], {v(T+6,2)} op_sel_hi:[1,1,0] neg_lo:[1,0,0] neg_hi:[1,0,0]")
    for r in range(16): a(f"v_exp_f32 v{EP+r}, v{EP+r}")
    for r in range(16): a(f"v_exp_f32 v{P+r}, v{P+r}")
    sp, sm = T + 8, T + 10
    a(f"v_pk_add_f32 {v(sp,2)}, {v(EP,2)}, {v(EP+2,2)}")
    a(f"v_pk_add_f32 {v(sm,2)}, {v(P,2)}, {v(P+2,2)}")
    for r in range(4, 16, 2):
        a(f"v_pk_add_f32 {v(sp,2)}, {v(sp,2)}, {v(EP+r,2)}")
        a(f"v_pk_add_f32 {v(sm,2)}, {v(sm,2)}, {v(P+r,2)}")
    a(f"v_add_f32 v{sp}, v{sp}, v{sp+1}")
    a(f"v_add_f32 v{sm}, v{sm}, v{sm+1}")
    a(f"v_mov_b32 v{t0}, v{sp}")
    a(f"v_mov_b32 v{t1}, v{sm}")
    a(f"v_permlane32_swap_b32 v{sp}, v{t0}")
    a(f"v_permlane32_swap_b32 v{sm}, v{t1}")
    a(f"v_add_f32 v{sp}, v{sp}, v{t0}")
    a(f"v_add_f32 v{sm}, v{sm}, v{t1}")
    a(f"v_rcp_f32 v{sp}, v{sp}")
    a(f"v_rcp_f32 v{sm}, v{sm}")
    for r in range(0, 16, 2):
        a(f"v_pk_mul_f32 {v(EP+r,2)}, {v(EP+r,2)}, {v(sp,2)} op_sel_hi:[1,0]")
    for r in range(0, 16, 2):
        a(f"v_pk_mul_f32 {v(P+r,2)}, {v(P+r,2)}, {v(sm,2)} op_sel_hi:[1,0]")
    cvt_inplace(a, EP)
    cvt_inplace(a, P)

PH_STRIDE = 136
PH_BLK = 32 * PH_STRIDE

def epi_A(a, name, opt):
    sfl = opt.get("stflags", "")
    WP = 8
    SEL = 16
    T = 20
    PF = 32
    ZP_, ZM_ = 48, 52
    a(f"""
    s_lshl_b32 s41, s40, 11
    s_add_u32 s41, s41, {QA_OFF}
    s_add_u32 s42, s41, 4096
    s_mov_b32 s44, {f2u(LOG2E)}
    s_mov_b32 s45, {f2u(LOG2E)}
    v_lshrrev_b32 v2, 5, v0          ; h
    v_lshrrev_b32 v3, 2, v0
    v_and_b32 v3, 3, v3              ; r
    v_lshl_add_u32 v3, v2, 2, v3     ; 4h+r
    v_lshrrev_b32 v4, 4, v0
    v_and_b32 v4, 1, v4              ; nb
    v_lshlrev_b32 v4, 5, v4
    v_and_b32 v5, 3, v0
    v_lshl_add_u32 v4, v5, 3, v4     ; nb*32+cc*8
    v_lshl_add_u32 v5, v3, 6, v4
    s_lshl_b32 s29, s37, 11
    s_add_u32 s29, s29, {WPHI_LDS}
    v_add_u32 v5, s29, v5
    """)
    for u in range(2):
        for b in range(2):
            a(f"ds_read_b64_tr_b16 {v(WP+4*u+2*b,2)}, v5 offset:{(16*u+8*b)*64}")
    a(f"""
    s_mul_i32 s29, s27, {4*PH_BLK}
    v_and_b32 v6, 31, v0
    v_mul_u32_u24 v6, {PH_STRIDE}, v6
    v_lshl_add_u32 v6, v2, 3, v6
    v_add_u32 v6, s29, v6
    v_mul_u32_u24 v7, {PH_STRIDE}, v3
    v_add_u32 v7, v7, v4
    v_add_u32 v7, s29, v7
    v_lshrrev_b32 v2, 4, v0
    v_lshrrev_b32 v3, 3, v0
    v_xor_b32 v2, v2, v3
    v_and_b32 v2, 1, v2
    v_cmp_eq_u32 vcc, 0, v2
    v_mov_b32 v3, 0x3f803f80
    v_mov_b32 v2, 0
    v_cndmask_b32 v{SEL}, v2, v3, vcc
    v_mov_b32 v{SEL+1}, v{SEL}
    v_mov_b32 v{SEL+2}, v{SEL}
    v_mov_b32 v{SEL+3}, v{SEL}
    """)
    for i in range(4):
        Q = ACCQ + 16 * i
        cvt_inplace(a, Q)
        sq = "s41" if i < 2 else "s42"
        a(f"buffer_store_dwordx4 {v(Q,4)}, v1, s[16:19], {sq} offen offset:{(i&1)*2048}{sfl}")
        a(f"buffer_store_dwordx4 {v(Q+4,4)}, v1, s[16:19], {sq} offen offset:{(i&1)*2048+1024}{sfl}")
    for i in range(4): cvt_inplace(a, ACCK + 16 * i)
    a("s_waitcnt lgkmcnt(0)")
    for i in range(4):
        Q = ACCQ + 16 * i; K = ACCK + 16 * i
        a(f"v_mfma_f32_32x32x16_bf16 {v(Q,16)}, {v(WP,4)}, {v(K,4)}, 0")
        a(f"v_mfma_f32_32x32x16_bf16 {v(Q,16)}, {v(WP+4,4)}, {v(K+4,4)}, {v(Q,16)}")
    for i in range(4): cvt_inplace(a, ACCV + 16 * i)
    KVP_, KVM_ = ACCQ, ACCK
    def kv_block(i, first):
        V = ACCV + 16 * i
        a("s_waitcnt lgkmcnt(0)")
        for pm in range(2):
            D = KVP_ if pm == 0 else KVM_
            Z = ZP_ if pm == 0 else ZM_
            for u in range(2):
                F = PF + 8 * pm + 4 * u
                c = "0" if (first and u == 0) else v(D, 16)
                cz = "0" if (first and u == 0) else v(Z, 4)
                a(f"v_mfma_f32_32x32x16_bf16 {v(D,16)}, {v(F,4)}, {v(V+4*u,4)}, {c}")
                a(f"v_mfma_f32_16x16x32_bf16 {v(Z,4)}, {v(F,4)}, {v(SEL,4)}, {cz}")
    for i in range(4):
        P = ACCQ + 16 * i; EP = ACCK + 16 * i
        softmax_pm(a, P, EP, T)
        if i >= 1: kv_block(i - 1, i == 1)
        for pm in range(2):
            S = EP if pm == 0 else P
            for g in range(4):
                a(f"ds_write_b64 v6, {v(S+2*g,2)} offset:{i*PH_BLK + pm*64 + 16*g}")
        for pm in range(2):
            for u in range(2):
                for b in range(2):
                    a(f"ds_read_b64_tr_b16 {v(PF+8*pm+4*u+2*b,2)}, v7 offset:{i*PH_BLK + pm*64 + (16*u+8*b)*PH_STRIDE}")
    kv_block(3, False)
    XCH = 72 * 1024
    a(f"""
    s_mul_i32 s29, s27, 5120
    s_add_u32 s29, s29, {XCH}
    v_add_u32 v2, s29, v1
    s_xor_b32 s46, s27, 2
    s_mul_i32 s46, s46, 5120
    s_add_u32 s46, s46, {XCH}
    v_add_u32 v3, s46, v1
    s_lshl_b32 s47, s38, 3
    s_add_u32 s47, s47, s25          ; h*8+tt
    s_lshl_b32 s48, s47, 13
    s_lshl_b32 s29, s36, 12
    s_add_u32 s48, s48, s29
    s_add_u32 s48, s48, {KVP_OFF}
    s_lshl_b32 s49, s47, 8
    s_lshl_b32 s29, s36, 7
    s_add_u32 s49, s49, s29
    s_add_u32 s49, s49, {ZP_OFF}
    v_lshrrev_b32 v4, 3, v0
    v_and_b32 v4, 1, v4
    v_lshlrev_b32 v4, 6, v4
    v_lshrrev_b32 v5, 4, v0
    v_lshl_add_u32 v4, v5, 4, v4     ; z offset
    s_cmp_eq_u32 s36, 0
    s_cbranch_scc1 L_{name}_tw0
    """)
    for tw in (1, 0):
        if tw == 0: a.label(f"L_{name}_tw0")
        a("s_nop 15")
        keep, send = (KVP_, KVM_) if tw == 0 else (KVM_, KVP_)
        zk, zs = (ZP_, ZM_) if tw == 0 else (ZM_, ZP_)
        for g in range(4): a(f"ds_write_b128 v2, {v(send+4*g,4)} offset:{g*1024}")
        a(f"ds_write_b128 v2, {v(zs,4)} offset:4096")
        a("s_waitcnt lgkmcnt(0)")
        a("s_barrier")
        for g in range(4): a(f"ds_read_b128 {v(PF+4*g,4)}, v3 offset:{g*1024}")
        a(f"ds_read_b128 {v(T,4)}, v3 offset:4096")
        for g in range(4):
            a(f"s_waitcnt lgkmcnt({4-g})")
            a(f"v_pk_add_f32 {v(keep+4*g,2)}, {v(keep+4*g,2)}, {v(PF+4*g,2)}")
            a(f"v_pk_add_f32 {v(keep+4*g+2,2)}, {v(keep+4*g+2,2)}, {v(PF+4*g+2,2)}")
            a(f"buffer_store_dwordx4 {v(keep+4*g,4)}, v1, s[16:19], s48 offen offset:{g*1024}{sfl}")
        a("s_waitcnt lgkmcnt(0)")
        a(f"v_pk_add_f32 {v(zk,2)}, {v(zk,2)}, {v(T,2)}")
        a(f"v_pk_add_f32 {v(zk+2,2)}, {v(zk+2,2)}, {v(T+2,2)}")
        a(f"buffer_store_dwordx4 {v(zk,4)}, v4, s[16:19], s49 offen{sfl}")
        if tw == 1: a(f"s_branch L_{name}_fin")

def gen_loader(a, name, opt):
    lfl = opt.get("ldflags", "")
    a.label(f"L_{name}_loader")
    a(f"""
    s_sub_u32 s36, s27, 4            ; lw
    v_lshrrev_b32 v1, 3, v0          ; r
    v_and_b32 v2, 7, v0              ; p
    s_and_b32 s29, s36, 1
    s_lshl_b32 s29, s29, 2
    v_lshrrev_b32 v3, 1, v1
    v_add_u32 v4, s29, v3            ; f
    v_xor_b32 v4, v4, v2
    v_lshlrev_b32 v4, 4, v4
    s_lshl_b32 s29, s36, 3
    v_add_u32 v5, s29, v1            ; 8lw + r
    v_lshl_add_u32 v8, v5, 11, v4
    """)
    if opt.get("xrot"):
        a("v_and_b32 v6, 15, v5")
        a("v_lshl_add_u32 v8, v6, 7, v8")
    for n in range(1, 8): a(f"v_add_u32 v{8+n}, {n*65536}, v8")
    a(f"""
    v_and_b32 v3, 1, v3
    v_lshlrev_b32 v3, 2, v3
    v_xor_b32 v3, v3, v2
    v_lshlrev_b32 v3, 4, v3
    v_mul_u32_u24 v16, 6144, v5
    v_add_u32 v16, v16, v3
    s_lshl_b32 s29, s26, 7
    v_add_u32 v16, s29, v16
    """)
    if opt.get("wrot"):
        a("v_and_b32 v6, 15, v5")
        a("v_lshl_add_u32 v16, v6, 7, v16")
    a(f"""
    v_add_u32 v17, 2048, v16
    v_add_u32 v18, 4096, v16
    v_lshlrev_b32 v19, 4, v0
    s_lshl_b32 s37, s36, 10          ; lw*1024
    s_add_u32 s30, s37, {X_BASE}
    s_mov_b32 s31, s37
    s_mov_b32 s38, 0                 ; X soffset
    s_mov_b32 s39, 0                 ; W soffset
    s_add_u32 s40, s37, {X_BASE + NX*X_SLOT}
    s_add_u32 s41, s37, {W_SLOT*NW}
    s_add_u32 s42, s37, {X_BASE}
    """)
    def GX():
        for n in range(8):
            a(f"s_add_u32 m0, s30, {n*4096}")
            a(f"buffer_load_dwordx4 v{8+n}, s[8:11], s38 offen{lfl} lds")
        a(f"""
        s_add_u32 s38, s38, 128
        s_add_u32 s30, s30, {X_SLOT}
        s_cmp_eq_u32 s30, s40
        s_cselect_b32 s30, s42, s30
        """)
    def GW():
        for sg in range(3):
            a(f"s_add_u32 m0, s31, {sg*4096}")
            a(f"buffer_load_dwordx4 v{16+sg}, s[12:15], s39 offen{lfl} lds")
        a(f"""
        s_add_u32 s39, s39, {32*6144}
        s_add_u32 s31, s31, {W_SLOT}
        s_cmp_eq_u32 s31, s41
        s_cselect_b32 s31, s37, s31
        """)
    def WB(n):
        a(f"s_waitcnt vmcnt({n})")
        a("s_barrier")
    if opt.get("ramp", 1):
        GW(); GX(); GW()
        stamp(a, opt, 1)
        a("s_waitcnt vmcnt(3)")
        stamp(a, opt, 2)
        a("s_barrier")
        GX(); GW(); WB(11)
        GW(); GX(); WB(11)
        GW(); GX(); WB(19)
        GW(); GW(); GW(); WB(17)
        GX(); GW(); WB(17)
        GW(); WB(17)
        GX(); GW()
        a("s_mov_b32 s28, 10")
    else:
        GW(); GX(); GW(); GX(); GW(); GW(); GX(); GW()
        stamp(a, opt, 1)
        a("s_waitcnt vmcnt(28)")
        stamp(a, opt, 2)
        a("s_barrier")
        a("s_mov_b32 s28, 13")
    a.label(f"L_{name}_lloop")
    a("s_waitcnt vmcnt(25)")
    a("s_barrier")
    GW()
    a("s_waitcnt vmcnt(17)")
    a("s_barrier")
    GX(); GW()
    a("s_sub_u32 s28, s28, 1")
    a("s_cmp_lg_u32 s28, 0")
    a(f"s_cbranch_scc1 L_{name}_lloop")
    stamp(a, opt, 3)
    a("s_waitcnt vmcnt(25)")
    a("s_barrier")
    GW()
    a(f"""
    s_lshl_b32 s29, s26, 12
    s_add_u32 s29, s29, s37
    s_add_u32 m0, s37, {WPHI_LDS}
    s_nop 0
    buffer_load_dwordx4 v19, s[20:23], s29 offen lds
    """)
    a("s_waitcnt vmcnt(18)")
    a("s_barrier")
    a("s_waitcnt vmcnt(15)")
    a("s_barrier")
    a("s_waitcnt vmcnt(4)")
    a("s_barrier")
    a("s_waitcnt vmcnt(0)")
    a("s_barrier")
```

```python
from asmlib import *
import math

QB_OFF = 0
KVB_OFF = 4 << 20
QA_OFF = 12 << 20
KVP_OFF = 16 << 20
ZP_OFF = 18 << 20
O_OFF = 20 << 20
WS_BYTES = 268435456

W_SLOT = 12288; NW = 5
X_BASE = W_SLOT * NW
X_SLOT = 32768; NX = 3
WPHI_LDS = X_BASE + NX * X_SLOT
LOG2E = 1.4426950408889634
def f2u(x):
    import struct
    return struct.unpack("<I", struct.pack("<f", x))[0]

ACCQ, ACCK, ACCV = 64, 128, 192
XS = [8, 24]; WS_ = [40, 52]

STAMP_OFF = 30 << 20
def stamp(a, opt, idx):
    if not opt.get("stamp"): return
    a(f"s_memtime s[{60+2*idx}:{61+2*idx}]")
    a(f"s_memrealtime s[{72+2*idx}:{73+2*idx}]")
    a("s_waitcnt lgkmcnt(0)")
def stamp_out(a, opt, nw=8):
    if not opt.get("stamp"): return
    a("s_waitcnt vmcnt(0)")
    stamp(a, opt, 5)
    a(f"""
    s_mul_i32 s29, s2, {nw}
    s_add_u32 s29, s29, s27
    s_lshl_b32 s29, s29, 6
    s_add_u32 s29, s29, {STAMP_OFF + (opt.get('stamp') - 1) * 262144}
    v_mov_b32 v9, 0
    """)
    for i in range(6):
        a(f"v_mov_b32 v8, s{60+2*i}")
        a(f"buffer_store_dword v8, v9, s[16:19], s29 offen offset:{4*i}")
    for i in range(6):
        a(f"v_mov_b32 v8, s{72+2*i}")
        a(f"buffer_store_dword v8, v9, s[16:19], s29 offen offset:{24+4*i}")
    a("s_getreg_b32 s3, hwreg(HW_REG_XCC_ID)")
    a("v_mov_b32 v8, s3")
    a(f"buffer_store_dword v8, v9, s[16:19], s29 offen offset:48")

def gen_k1(name="k1_kernel", opt=None):
    opt = opt or {}
    a = Asm()
    a.raw(khead(name))
    a(f"""
    s_cmp_ge_u32 s2, 256
    s_cbranch_scc1 L_{name}_end
    s_and_b32 s3, s2, 7
    s_lshr_b32 s28, s2, 3
    """)
    if opt.get("only") == "xcd":
        a(f"s_cmp_ge_u32 s3, 4\ns_cbranch_scc1 L_{name}_end")
    if opt.get("only") == "half":
        a(f"s_cmp_ge_u32 s28, 16\ns_cbranch_scc1 L_{name}_end")
    if opt.get("only") == "q3":
        a(f"s_cmp_ge_u32 s28, 24\ns_cbranch_scc1 L_{name}_end")
    if opt.get("map", 0) == 2:
        a("""
        s_lshr_b32 s24, s3, 2
        s_and_b32 s25, s3, 1
        s_lshl_b32 s25, s25, 2
        s_lshr_b32 s29, s28, 3
        s_add_u32 s25, s25, s29
        s_lshr_b32 s26, s3, 1
        s_and_b32 s26, s26, 1
        s_lshl_b32 s26, s26, 3
        s_and_b32 s29, s28, 7
        s_add_u32 s26, s26, s29
        """)
    elif opt.get("map", 0) == 0:
        a("""
        s_lshr_b32 s24, s3, 2
        s_and_b32 s25, s3, 1
        s_lshl_b32 s25, s25, 2
        s_and_b32 s29, s28, 3
        s_add_u32 s25, s25, s29
        s_lshr_b32 s26, s3, 1
        s_and_b32 s26, s26, 1
        s_lshl_b32 s26, s26, 3
        s_lshr_b32 s29, s28, 2
        s_add_u32 s26, s26, s29
        """)
    else:
        a("""
        s_and_b32 s24, s28, 1
        s_lshr_b32 s28, s28, 1
        s_and_b32 s25, s3, 1
        s_lshl_b32 s25, s25, 2
        s_and_b32 s29, s28, 3
        s_add_u32 s25, s25, s29
        s_lshr_b32 s26, s3, 1
        s_lshl_b32 s26, s26, 2
        s_lshr_b32 s29, s28, 2
        s_add_u32 s26, s26, s29
        """)
    a(f"""
    s_lshl_b32 s29, s24, 5
    s_load_dwordx4 s[4:7], s[0:1], s29
    s_load_dwordx2 s[32:33], s[0:1], 72
    s_load_dwordx2 s[34:35], s[0:1], 16
    v_lshrrev_b32 v1, 6, v0
    v_and_b32 v0, 63, v0
    v_readfirstlane_b32 s27, v1
    s_lshl_b32 s29, s25, 19
    s_waitcnt lgkmcnt(0)
    s_add_u32 s8, s4, s29
    s_addc_u32 s9, s5, 0
    s_mov_b32 s10, 0x80000
    s_mov_b32 s11, 0x20000
    s_mov_b32 s12, s6
    s_mov_b32 s13, s7
    s_mov_b32 s14, 0x600000
    s_mov_b32 s15, 0x20000
    s_mov_b32 s16, s32
    s_mov_b32 s17, s33
    s_mov_b32 s18, 0x10000000
    s_mov_b32 s19, 0x20000
    s_mov_b32 s20, s34
    s_mov_b32 s21, s35
    s_mov_b32 s22, 0x10000
    s_mov_b32 s23, 0x20000
    """)
    for i in range(6): stamp(a, opt, i)
    a(f"""
    s_cmp_ge_u32 s27, 4
    s_cbranch_scc1 L_{name}_loader
    """)
    gen_compute(a, name, opt)
    gen_loader(a, name, opt)
    a.label(f"L_{name}_fin")
    stamp(a, opt, 4)
    stamp_out(a, opt)
    a.label(f"L_{name}_end")
    a("s_endpgm")
    return a.text()

def reads(a_or_list, st, c1, sp):
    X = XS[st]; W = WS_[st]
    def wr(seg, b): return f"ds_read_b64_tr_b16 {v(W+4*seg+2*b,2)}, v7 offset:{seg*4096 + (16*sp+4*b)*128}"
    def xr(i): return f"ds_read_b128 {v(X+4*i,4)}, v6 offset:{i*4096}"
    return [wr(0,0), wr(0,1), xr(0), wr(1,0), wr(1,1), wr(2,0), wr(2,1), xr(1), xr(2), xr(3)]

def mfmas(st):
    X = XS[st]; W = WS_[st]
    out = []
    for i in range(4):
        out.append(f"v_mfma_f32_32x32x16_bf16 {v(ACCQ+16*i,16)}, {v(W,4)}, {v(X+4*i,4)}, {v(ACCQ+16*i,16)}")
        out.append(f"v_mfma_f32_32x32x16_bf16 {v(ACCK+16*i,16)}, {v(W+4,4)}, {v(X+4*i,4)}, {v(ACCK+16*i,16)}")
        out.append(f"v_mfma_f32_32x32x16_bf16 {v(ACCV+16*i,16)}, {v(X+4*i,4)}, {v(W+8,4)}, {v(ACCV+16*i,16)}")
    return out

def gen_compute(a, name, opt):
    a(f"""
    s_lshr_b32 s36, s27, 1          ; tw
    s_and_b32 s37, s27, 1           ; hd
    v_and_b32 v8, 31, v0            ; n
    v_lshrrev_b32 v9, 5, v0         ; h
    v_lshrrev_b32 v10, 1, v8
    v_and_b32 v10, 7, v10           ; f
    v_xor_b32 v10, v10, v9          ; h ^ f
    v_lshlrev_b32 v10, 4, v10
    s_lshl_b32 s29, s36, 14         ; tw*128*128
    v_lshlrev_b32 v11, 7, v8
    v_add_u32 v11, s29, v11
    v_add_u32 v1, v11, v10
    v_xor_b32 v2, 32, v1
    v_xor_b32 v3, 64, v1
    v_xor_b32 v4, 0x60, v1
    v_lshrrev_b32 v10, 2, v0
    v_and_b32 v10, 3, v10           ; r
    v_lshlrev_b32 v11, 3, v9        ; 8h
    v_add_u32 v11, v11, v10
    v_lshlrev_b32 v11, 7, v11       ; row*128
    v_lshrrev_b32 v10, 1, v10       ; r>>1
    v_xor_b32 v10, s37, v10
    v_lshlrev_b32 v10, 6, v10
    v_add_u32 v11, v11, v10
    v_lshrrev_b32 v10, 4, v0
    v_and_b32 v10, 1, v10
    v_lshlrev_b32 v10, 5, v10
    v_add_u32 v11, v11, v10
    v_and_b32 v10, 3, v0
    v_lshlrev_b32 v10, 3, v10
    v_add_u32 v5, v11, v10
    s_mov_b32 s30, {X_BASE}
    s_mov_b32 s31, 0
    v_add_u32 v6, s30, v1
    v_mov_b32 v7, v5
    s_mov_b32 s28, 16
    """)
    pf = opt.get("pf", 0)
    def prefetch():
        a(f"""
        s_lshr_b32 s50, s2, 5
        s_lshl_b32 s50, s50, 16          ; 32 rows * 2048
        s_lshl_b32 s51, s27, 8
        s_add_u32 s50, s50, s51          ; + w*256
        v_lshlrev_b32 v10, 11, v8        ; n*2048
        v_lshl_add_u32 v10, v9, 7, v10   ; + h*128
        s_lshr_b32 s51, s2, 3
        s_and_b32 s51, s51, 3
        v_lshlrev_b32 v11, 2, v0
        v_add_u32 v11, s51, v11
        v_mul_u32_u24 v11, 6144, v11
        s_lshl_b32 s51, s26, 7
        s_mul_i32 s52, s27, {256*6144}
        s_add_u32 s51, s51, s52
        """)
        a("buffer_load_dword v0, v10, s[8:11], s50 offen")
        for sg in range(3):
            a(f"buffer_load_dword v0, v11, s[12:15], s51 offen")
            if sg < 2: a("s_add_u32 s51, s51, 2048")
        a("buffer_load_dword v0, v10, s[8:11], s50 offen offset:1024")
    if pf == 1: prefetch()
    for r in range(64, 256): a(f"v_mov_b32 v{r}, 0")
    if pf == 2: prefetch()
    stamp(a, opt, 1)
    a("s_barrier")
    stamp(a, opt, 2)
    for r in reads(a, 0, 0, 0): a(r)
    a.raw(".p2align 6")
    a.label(f"L_{name}_loop", keep_hist=True)
    start = len(a.lines)
    nomfma = opt.get("nomfma", False)
    for c in range(4):
        st = c & 1
        M = mfmas(st)
        if opt.get("order") == "w":
            M = [M[3*i+j] for j in range(3) for i in range(4)]
        if nomfma: M = ["s_nop 0"] * 12
        if opt.get("fake16"):
            M2 = []
            import re as _re
            for q, m in enumerate(M):
                g = _re.match(r"v_mfma_f32_32x32x16_bf16 v\[(\d+):\d+\], (\S+), (\S+), ", m)
                d = int(g.group(1)) + 8 * (c & 1)
                M2.append(f"v_mfma_f32_16x16x32_bf16 {v(d,4)}, {g.group(2)}, {g.group(3)}, {v(d,4)}\nv_mfma_f32_16x16x32_bf16 {v(d+4,4)}, {g.group(3)}, {g.group(2)}, {v(d+4,4)}")
            M = M2
        c1 = (c + 1) & 3
        R = reads(a, st ^ 1, c1, c1 & 1)
        pre = []
        if c & 1:
            pre += [f"s_add_u32 s31, s31, {W_SLOT}", f"s_cmp_eq_u32 s31, {W_SLOT*NW}", "s_cselect_b32 s31, 0, s31"]
        if c == 3:
            pre += [f"s_add_u32 s30, s30, {X_SLOT}", f"s_cmp_eq_u32 s30, {X_BASE+X_SLOT*NX}", f"s_cselect_b32 s30, {X_BASE}, s30"]
        a("s_waitcnt lgkmcnt(0)" if opt.get("order") == "w" else "s_waitcnt lgkmcnt(3)")
        a(M[0])
        for p in pre[:3]: a(p)
        a(M[1])
        for p in pre[3:]: a(p)
        if c & 1: a("v_add_u32 v7, s31, v5")
        a(f"v_add_u32 v6, s30, v{1+c1}")
        a(M[2])
        a("s_waitcnt lgkmcnt(0)")
        if c & 1: a("s_barrier")
        sched = [2, 2, 2, 2, 1, 1, 0, 0, 0]
        k = 0
        for g in range(9):
            for _ in range(sched[g]):
                a(R[k]); k += 1
            if c == 3 and g == 7:
                a("s_sub_u32 s28, s28, 1")
                a("s_cmp_lg_u32 s28, 0")
            a(M[3 + g])
    a(f"s_cbranch_scc1 L_{name}_loop")
    body = a.lines[start:]
    n1, n2 = check_loop(body)
    assert n1 == 0 and n2 == 0, (n1, n2)
    a("s_waitcnt lgkmcnt(0)")
    a("s_nop 15")
    stamp(a, opt, 3)
    if pf:
        a("s_waitcnt vmcnt(0)")
        a("v_mbcnt_lo_u32_b32 v0, -1, 0")
        a("v_mbcnt_hi_u32_b32 v0, -1, v0")
    a(f"""
    s_lshl_b32 s38, s26, 1
    s_add_u32 s38, s38, s37          ; head
    s_lshl_b32 s39, s25, 3
    s_lshl_b32 s29, s36, 2
    s_add_u32 s39, s39, s29          ; tb0
    s_lshl_b32 s40, s38, 6
    s_add_u32 s40, s40, s39          ; h*64+tb0
    v_lshlrev_b32 v1, 4, v0          ; lane*16
    s_cmp_eq_u32 s24, 0
    s_cbranch_scc1 L_{name}_epiA
    """)
    epi_B(a, name, opt)
    a(f"s_branch L_{name}_fin")
    a.label(f"L_{name}_epiA")
    epi_A(a, name, opt)
    a(f"s_branch L_{name}_fin")

def cvt_inplace(a, base):
    for r in range(8):
        a(f"v_cvt_pk_bf16_f32 v{base+r}, v{base+2*r}, v{base+2*r+1}")

def epi_B(a, name, opt):
    sfl = opt.get("stflags", " sc0 sc1")
    qs = LOG2E / math.sqrt(32.0)
    a(f"""
    s_lshl_b32 s41, s40, 11
    s_add_u32 s41, s41, {QB_OFF}
    s_add_u32 s42, s41, 4096
    s_lshl_b32 s43, s40, 12
    s_add_u32 s43, s43, {KVB_OFF}
    s_mov_b32 s44, {f2u(qs)}
    s_mov_b32 s45, {f2u(qs)}
    v_and_b32 v2, 0x33, v0
    v_and_b32 v3, 4, v0
    v_lshlrev_b32 v3, 1, v3
    v_or_b32 v2, v2, v3
    v_and_b32 v3, 8, v0
    v_lshrrev_b32 v3, 1, v3
    v_or_b32 v2, v2, v3
    v_lshlrev_b32 v2, 4, v2
    """)
    for i in range(4):
        Q = ACCQ + 16 * i; K = ACCK + 16 * i; V = ACCV + 16 * i
        cvt_inplace(a, K)
        a(f"buffer_store_dwordx4 {v(K,4)}, v2, s[16:19], s43 offen{sfl}")
        a(f"buffer_store_dwordx4 {v(K+4,4)}, v2, s[16:19], s43 offen offset:1024{sfl}")
        cvt_inplace(a, V)
        a(f"buffer_store_dwordx4 {v(V,4)}, v1, s[16:19], s43 offen offset:2048{sfl}")
        a(f"buffer_store_dwordx4 {v(V+4,4)}, v1, s[16:19], s43 offen offset:3072{sfl}")
        for r in range(0, 16, 2):
            a(f"v_pk_mul_f32 {v(Q+r,2)}, {v(Q+r,2)}, s[44:45]")
        cvt_inplace(a, Q)
        sq = "s41" if i < 2 else "s42"
        a(f"buffer_store_dwordx4 {v(Q,4)}, v1, s[16:19], {sq} offen offset:{(i&1)*2048}{sfl}")
        a(f"buffer_store_dwordx4 {v(Q+4,4)}, v1, s[16:19], {sq} offen offset:{(i&1)*2048+1024}{sfl}")
        if i < 3: a("s_add_u32 s43, s43, 4096")

import re as _re
def unpack(a, t):
    m = _re.match(r"v_pk_(add|mul|fma)_f32 (.*)", t)
    if not m: return a(t)
    op = m.group(1); rest = m.group(2)
    mods = dict((k, [int(x) for x in val.split(",")]) for k, val in _re.findall(r"(op_sel_hi|neg_lo|neg_hi):\[([0-9,]+)\]", rest))
    rest = _re.sub(r"\s+(op_sel_hi|neg_lo|neg_hi):\[[0-9,]+\]", "", rest)
    ops = [o.strip() for o in split_ops(rest)]
    def half(o, hi):
        g = _re.match(r"([vs])\[(\d+):(\d+)\]", o)
        return f"{g.group(1)}{int(g.group(2)) + hi}"
    n = len(ops) - 1
    for hi in (0, 1):
        srcs = []
        for i in range(n):
            sel = hi if mods.get("op_sel_hi", [1] * n)[i] else 0
            neg = mods.get("neg_hi" if hi else "neg_lo", [0] * n)[i]
            srcs.append(("-" if neg else "") + half(ops[1 + i], sel))
        a(f"v_{op}_f32 {half(ops[0], hi)}, " + ", ".join(srcs))

def softmax_pm(a0, P, EP, T, pk=True):
    a = a0 if pk else (lambda t: unpack(a0, t))
    mx, mn, t0, t1 = T, T + 1, T + 2, T + 3
    a(f"v_max3_f32 v{mx}, v{P}, v{P+1}, v{P+2}")
    a(f"v_min3_f32 v{mn}, v{P}, v{P+1}, v{P+2}")
    for r in range(3, 15, 2):
        a(f"v_max3_f32 v{mx}, v{mx}, v{P+r}, v{P+r+1}")
        a(f"v_min3_f32 v{mn}, v{mn}, v{P+r}, v{P+r+1}")
    a(f"v_max_f32 v{mx}, v{mx}, v{P+15}")
    a(f"v_min_f32 v{mn}, v{mn}, v{P+15}")
    a(f"v_mov_b32 v{t0}, v{mx}")
    a(f"v_mov_b32 v{t1}, v{mn}")
    a(f"v_permlane32_swap_b32 v{mx}, v{t0}")
    a(f"v_permlane32_swap_b32 v{mn}, v{t1}")
    a(f"v_max_f32 v{mx}, v{mx}, v{t0}")
    a(f"v_min_f32 v{mn}, v{mn}, v{t1}")
    a(f"v_mul_f32 v{T+4}, s44, v{mx}")
    a(f"v_mul_f32 v{T+6}, s44, v{mn}")
    for r in range(0, 16, 2):
        a(f"v_pk_fma_f32 {v(EP+r,2)}, {v(P+r,2)}, s[44:45], {v(T+4,2)} op_sel_hi:[1,1,0] neg_lo:[0,0,1] neg_hi:[0,0,1]")
    for r in range(0, 16, 2):
        a(f"v_pk_fma_f32 {v(P+r,2)}, {v(P+r,2)}, s[44:45], {v(T+6,2)} op_sel_hi:[1,1,0] neg_lo:[1,0,0] neg_hi:[1,0,0]")
    for r in range(16): a(f"v_exp_f32 v{EP+r}, v{EP+r}")
    for r in range(16): a(f"v_exp_f32 v{P+r}, v{P+r}")
    sp, sm = T + 8, T + 10
    a(f"v_pk_add_f32 {v(sp,2)}, {v(EP,2)}, {v(EP+2,2)}")
    a(f"v_pk_add_f32 {v(sm,2)}, {v(P,2)}, {v(P+2,2)}")
    for r in range(4, 16, 2):
        a(f"v_pk_add_f32 {v(sp,2)}, {v(sp,2)}, {v(EP+r,2)}")
        a(f"v_pk_add_f32 {v(sm,2)}, {v(sm,2)}, {v(P+r,2)}")
    a(f"v_add_f32 v{sp}, v{sp}, v{sp+1}")
    a(f"v_add_f32 v{sm}, v{sm}, v{sm+1}")
    a(f"v_mov_b32 v{t0}, v{sp}")
    a(f"v_mov_b32 v{t1}, v{sm}")
    a(f"v_permlane32_swap_b32 v{sp}, v{t0}")
    a(f"v_permlane32_swap_b32 v{sm}, v{t1}")
    a(f"v_add_f32 v{sp}, v{sp}, v{t0}")
    a(f"v_add_f32 v{sm}, v{sm}, v{t1}")
    a(f"v_rcp_f32 v{sp}, v{sp}")
    a(f"v_rcp_f32 v{sm}, v{sm}")
    for r in range(0, 16, 2):
        a(f"v_pk_mul_f32 {v(EP+r,2)}, {v(EP+r,2)}, {v(sp,2)} op_sel_hi:[1,0]")
    for r in range(0, 16, 2):
        a(f"v_pk_mul_f32 {v(P+r,2)}, {v(P+r,2)}, {v(sm,2)} op_sel_hi:[1,0]")
    cvt_inplace(a0, EP)
    cvt_inplace(a0, P)

PH_STRIDE = 136
PH_BLK = 32 * PH_STRIDE

HND = 0
WP = 8; SEL = 16; TT = 20; PFS = [32, 48]; ZP_ = None

class Rec:
    def __init__(self): self.l = []
    def __call__(self, t):
        for x in t.strip().split("\n"):
            x = x.strip()
            if x and not x.startswith(";"): self.l.append(x)

def merge(a, main, side, start=0, every=3):
    k = 0
    for n, x in enumerate(main):
        a(x)
        if n >= start and (n - start) % every == every - 1 and k < len(side):
            a(side[k]); k += 1
            while k < len(side) and side[k - 1].startswith("s_waitcnt"):
                a(side[k]); k += 1
    for x in side[k:]: a(x)

def epiA_setup(a):
    a(f"""
    s_mov_b32 s44, {f2u(LOG2E)}
    s_mov_b32 s45, {f2u(LOG2E)}
    v_lshrrev_b32 v2, 5, v0          ; h
    v_bfe_u32 v3, v0, 2, 2           ; r
    v_lshl_add_u32 v3, v2, 2, v3     ; 4h+r
    v_bfe_u32 v4, v0, 4, 1           ; nb
    v_lshlrev_b32 v4, 5, v4
    v_and_b32 v7, 3, v0
    v_lshl_add_u32 v4, v7, 3, v4     ; nb*32+cc*8
    v_lshl_add_u32 v7, v3, 6, v4
    s_lshl_b32 s29, s37, 11
    s_add_u32 s29, s29, {WPHI_LDS}
    v_add_u32 v7, s29, v7
    """)
    for u in range(2):
        for b in range(2):
            a(f"ds_read_b64_tr_b16 {v(WP+4*u+2*b,2)}, v7 offset:{(16*u+8*b)*64}")
    a(f"""
    s_and_b32 s46, s27, 3
    s_mul_i32 s46, s46, {4*PH_BLK}
    s_add_u32 s46, s46, {PHI0}
    v_and_b32 v6, 31, v0
    v_mul_u32_u24 v6, {PH_STRIDE}, v6
    v_lshl_add_u32 v6, v2, 3, v6
    v_add_u32 v6, s46, v6
    v_mul_u32_u24 v7, {PH_STRIDE}, v3
    v_add3_u32 v7, v7, v4, s46
    """)

def pk_mfma(a, P, K):
    a(f"v_mfma_f32_32x32x16_bf16 {v(P,16)}, {v(WP,4)}, {v(K,4)}, 0")
    a(f"v_mfma_f32_32x32x16_bf16 {v(P,16)}, {v(WP+4,4)}, {v(K+4,4)}, {v(P,16)}")

def phi_write(a, blk, P, E):
    for pm in range(2):
        S = E if pm == 0 else P
        for g in range(4):
            a(f"ds_write_b64 v6, {v(S+2*g,2)} offset:{blk*PH_BLK + pm*64 + 16*g}")

KH = 0
VH = 24576
PHI0 = VH + 32768

def epi_A(a, name, opt):
    sfl = opt.get("stflags", " sc0 sc1")
    es = opt.get("estamp")
    a(f"""
    s_mul_i32 s29, s27, 6144
    v_add_u32 v5, s29, v1
    """)
    for i in (1, 2, 3):
        base = ACCK + 16 * i
        cvt_inplace(a, base)
        for u in range(2):
            a(f"ds_write_b128 v5, {v(base+4*u,4)} offset:{KH + (i-1)*2048 + u*1024}")
    a(f"""
    s_lshl_b32 s41, s40, 11
    s_add_u32 s41, s41, {QA_OFF}
    s_add_u32 s42, s41, 4096
    s_lshl_b32 s29, s27, 13
    v_add_u32 v5, s29, v1
    """)
    cvt_inplace(a, ACCK)
    a("s_waitcnt lgkmcnt(0)")
    a("s_barrier")
    if es == 1: stamp(a, opt, 1)
    epiA_setup(a)
    PP = ACCK + 16; EE = ACCK + 32
    KV = ACCK + 48; Z = ACCK + 8
    for i in range(4):
        V = ACCV + 16 * i
        cvt_inplace(a, V)
        if i == 0:
            a("s_waitcnt lgkmcnt(0)")
            pk_mfma(a, PP, ACCK)
        for u in range(2):
            a(f"ds_write_b128 v5, {v(V+4*u,4)} offset:{VH + i*2048 + u*1024}")
    for i in range(4):
        Q = ACCQ + 16 * i
        cvt_inplace(a, Q)
        sq = "s41" if i < 2 else "s42"
        a(f"buffer_store_dwordx4 {v(Q,4)}, v1, s[16:19], {sq} offen offset:{(i&1)*2048}{sfl}")
        a(f"buffer_store_dwordx4 {v(Q+4,4)}, v1, s[16:19], {sq} offen offset:{(i&1)*2048+1024}{sfl}")
    if es == 1: stamp(a, opt, 2)
    softmax_pm(a, PP, EE, TT)
    phi_write(a, 0, PP, EE)
    a(f"""
    v_lshrrev_b32 v2, 4, v0
    v_lshrrev_b32 v3, 3, v0
    v_xor_b32 v2, v2, v3
    v_and_b32 v2, 1, v2
    v_cmp_eq_u32 vcc, 0, v2
    v_mov_b32 v3, 0x3f803f80
    v_mov_b32 v2, 0
    v_cndmask_b32 v{SEL}, v2, v3, vcc
    v_mov_b32 v{SEL+1}, v{SEL}
    v_mov_b32 v{SEL+2}, v{SEL}
    v_mov_b32 v{SEL+3}, v{SEL}
    s_lshl_b32 s29, s36, 6
    v_add_u32 v7, s29, v7
    s_cmp_eq_u32 s36, 0
    s_mov_b32 s29, {2*4*PH_BLK}
    s_cselect_b32 s29, s29, {(-2*4*PH_BLK) & 0xffffffff}
    v_add_u32 v3, s29, v7
    v_xor_b32 v5, {2*8192}, v5       ; partner V
    s_lshl_b32 s47, s38, 3
    s_add_u32 s47, s47, s25          ; h*8+tt
    s_lshl_b32 s48, s47, 13
    s_lshl_b32 s29, s36, 12
    s_add_u32 s48, s48, s29
    s_add_u32 s48, s48, {KVP_OFF}
    s_lshl_b32 s49, s47, 8
    s_lshl_b32 s29, s36, 7
    s_add_u32 s49, s49, s29
    s_add_u32 s49, s49, {ZP_OFF}
    v_bfe_u32 v4, v0, 3, 1
    v_lshlrev_b32 v4, 6, v4
    v_lshrrev_b32 v2, 4, v0
    v_lshl_add_u32 v4, v2, 4, v4     ; z offset
    s_waitcnt lgkmcnt(0)
    """)
    if es == 2: stamp(a, opt, 1)
    a("s_barrier")
    if es == 2: stamp(a, opt, 2)
    def tr(blk, who, PF):
        for u in range(2):
            for b in range(2):
                a(f"ds_read_b64_tr_b16 {v(PF+4*u+2*b,2)}, {'v7' if who == 0 else 'v3'} offset:{blk*PH_BLK + (16*u+8*b)*PH_STRIDE}")
    first = [True]
    def kv(blk, who, PF):
        V = ACCV + 16 * blk + 8 * who
        for u in range(2):
            c = "0" if first[0] else v(KV, 16)
            cz = "0" if first[0] else v(Z, 4)
            first[0] = False
            a(f"v_mfma_f32_32x32x16_bf16 {v(KV,16)}, {v(PF+4*u,4)}, {v(V+4*u,4)}, {c}")
            a(f"v_mfma_f32_16x16x32_bf16 {v(Z,4)}, {v(PF+4*u,4)}, {v(SEL,4)}, {cz}")
    F = [32, 40, 48, 56]
    tr(0, 0, F[0]); tr(1, 0, F[1])
    for i in range(2):
        for u in range(2):
            a(f"ds_read_b128 {v(ACCV+16*i+8+4*u,4)}, v5 offset:{VH + i*2048 + u*1024}")
    a("s_waitcnt lgkmcnt(8)")
    kv(0, 0, F[0])
    tr(0, 1, F[2])
    a("s_waitcnt lgkmcnt(8)")
    kv(1, 0, F[1])
    tr(1, 1, F[3])
    a("s_waitcnt lgkmcnt(4)")
    kv(0, 1, F[2])
    for i in range(2, 4):
        for u in range(2):
            a(f"ds_read_b128 {v(ACCV+16*i+8+4*u,4)}, v5 offset:{VH + i*2048 + u*1024}")
    a("s_waitcnt lgkmcnt(4)")
    kv(1, 1, F[3])
    for blk in (2, 3):
        if es == 3 and blk == 3: stamp(a, opt, 1)
        a("s_barrier")
        if es == 3 and blk == 3: stamp(a, opt, 2)
        tr(blk, 0, F[0]); tr(blk, 1, F[1])
        a("s_waitcnt lgkmcnt(4)")
        kv(blk, 0, F[0])
        a("s_waitcnt lgkmcnt(0)")
        kv(blk, 1, F[1])
    for g in range(4):
        a(f"buffer_store_dwordx4 {v(KV+4*g,4)}, v1, s[16:19], s48 offen offset:{g*1024}{sfl}")
    a(f"buffer_store_dwordx4 {v(Z,4)}, v4, s[16:19], s49 offen{sfl}")

def helper_A(a, name, opt):
    a(f"""
    s_cmp_lg_u32 s24, 0
    s_cbranch_scc1 L_{name}_fin
    s_and_b32 s37, s27, 1            ; hd
    s_and_b32 s29, s27, 3
    s_mul_i32 s29, s29, 6144
    v_lshlrev_b32 v5, 4, v0
    v_add_u32 v5, s29, v5
    """)
    epiA_setup(a)
    a("s_barrier")
    if opt.get("hprio", 0): a(f"s_setprio {opt.get('hprio')}")
    a("s_barrier")
    K = 64; PP = [96, 112, 128]; EE = 144
    for q in range(6): a(f"ds_read_b128 {v(K+4*q,4)}, v5 offset:{KH + q*1024}")
    for i in range(3):
        a(f"s_waitcnt lgkmcnt({4-2*i})")
        pk_mfma(a, PP[i], K + 8 * i)
    if opt.get("hloop", 1):
        a("s_mov_b32 s28, 3")
        a("s_nop 7")
        a.label(f"L_{name}_hl")
        softmax_pm(a, PP[0], EE, TT)
        phi_write(a, 1, PP[0], EE)
        a(f"v_add_u32 v6, {PH_BLK}, v6")
        a("s_waitcnt lgkmcnt(0)")
        a("s_barrier")
        for r in range(0, 32, 2): a(f"v_pk_mov_b32 {v(PP[0]+r,2)}, {v(PP[1]+r,2)}, {v(PP[1]+r,2)} op_sel:[0,1]")
        a(f"""
        s_sub_u32 s28, s28, 1
        s_cmp_lg_u32 s28, 0
        s_cbranch_scc1 L_{name}_hl
        """)
    else:
        for i in range(3):
            softmax_pm(a, PP[i], EE, TT)
            phi_write(a, 1 + i, PP[i], EE)
            a("s_waitcnt lgkmcnt(0)")
            a("s_barrier")

def gen_loader(a, name, opt):
    lfl = opt.get("ldflags", "")
    a.label(f"L_{name}_loader")
    koff = opt.get("koff", 1)
    if koff == 0: a("s_mov_b32 s49, 0")
    elif opt.get("map", 0) in (0, 2):
        a("""
        s_lshr_b32 s49, s3, 1
        s_xor_b32 s49, s49, s3
        s_and_b32 s49, s49, 1
        s_lshl_b32 s49, s49, 3
        """)
        if koff == 2:
            a("""
            s_add_u32 s29, s25, s26
            s_and_b32 s29, s29, 1
            s_lshl_b32 s29, s29, 2
            s_add_u32 s49, s49, s29
            """)
    else:
        a("""
        s_lshr_b32 s49, s3, 1
        s_lshl_b32 s49, s49, 2
        s_lshl_b32 s29, s3, 3
        s_add_u32 s49, s49, s29
        s_and_b32 s49, s49, 15
        """)
    a(f"""
    s_sub_u32 s36, s27, 4            ; lw
    v_lshrrev_b32 v1, 3, v0          ; r
    v_and_b32 v2, 7, v0              ; p
    s_and_b32 s29, s36, 1
    s_lshl_b32 s29, s29, 2
    v_lshrrev_b32 v3, 1, v1
    v_add_u32 v4, s29, v3            ; f
    v_xor_b32 v4, v4, v2
    v_lshlrev_b32 v4, 4, v4
    s_lshl_b32 s29, s36, 3
    v_add_u32 v5, s29, v1            ; 8lw + r
    v_lshl_add_u32 v8, v5, 11, v4
    """)
    if opt.get("xrot"):
        a("v_and_b32 v6, 15, v5")
        a("v_lshl_add_u32 v8, v6, 7, v8")
    for n in range(1, 8): a(f"v_add_u32 v{8+n}, {n*65536}, v8")
    a(f"""
    v_and_b32 v3, 1, v3
    v_lshlrev_b32 v3, 2, v3
    v_xor_b32 v3, v3, v2
    v_lshlrev_b32 v3, 4, v3
    v_mul_u32_u24 v16, 6144, v5
    v_add_u32 v16, v16, v3
    s_lshl_b32 s29, s26, 7
    v_add_u32 v16, s29, v16
    """)
    if opt.get("wrot"):
        a("v_and_b32 v6, 15, v5")
        a("v_lshl_add_u32 v16, v6, 7, v16")
    a(f"""
    v_add_u32 v17, 2048, v16
    v_add_u32 v18, 4096, v16
    v_lshlrev_b32 v19, 4, v0
    s_lshl_b32 s37, s36, 10          ; lw*1024
    s_add_u32 s30, s37, {X_BASE}
    s_mov_b32 s31, s37
    s_lshl_b32 s38, s49, 7           ; X soffset
    s_mul_i32 s39, s49, {64*6144}    ; W soffset
    s_add_u32 s40, s37, {X_BASE + NX*X_SLOT}
    s_add_u32 s41, s37, {W_SLOT*NW}
    s_add_u32 s42, s37, {X_BASE}
    """)
    lpf = opt.get("lpf", 0)
    if lpf:
        a(f"""
        s_cmp_eq_u32 s36, 0
        s_cselect_b32 s56, s8, s12
        s_cselect_b32 s57, s9, s13
        s_cselect_b32 s58, s10, s14
        s_mov_b32 s59, 0x20000
        s_mov_b32 s54, 512
        s_cselect_b32 s54, s54, {256*6144}
        s_mov_b32 s53, s54                      ; block 1
        s_lshr_b32 s55, s2, 3
        s_and_b32 s55, s55, 3
        s_lshr_b32 s52, s2, 5                   ; cl
        v_and_b32 v20, 31, v0
        s_lshl_b32 s29, s52, 5
        v_add_u32 v20, s29, v20
        v_lshlrev_b32 v20, 11, v20
        v_lshrrev_b32 v21, 5, v0
        v_lshl_add_u32 v20, v21, 7, v20         ; X voffset
        v_lshlrev_b32 v21, 2, v0
        v_add_u32 v21, s55, v21
        v_mul_u32_u24 v21, 6144, v21
        s_lshl_b32 s29, s26, 7
        s_sub_u32 s51, s36, 1
        s_lshl_b32 s51, s51, 11
        s_add_u32 s29, s29, s51
        v_add_u32 v21, s29, v21                 ; W voffset
        v_mov_b32 v22, s36
        v_cmp_eq_u32 vcc, 0, v22
        s_add_u32 s55, s55, s52
        s_and_b32 s55, s55, 3                   ; phase
        v_cndmask_b32 v20, v21, v20, vcc
        s_mov_b32 s50, 0
        """)
    pfn = [0]
    def PF(cond=True):
        if not lpf: return
        pfn[0] += 1
        L = f"L_{name}_pf{pfn[0]}"
        if cond:
            a(f"""
            s_and_b32 s29, s50, 3
            s_add_u32 s50, s50, 1
            s_cmp_lg_u32 s29, {"s55" if lpf == 1 else "0"}
            s_cbranch_scc1 {L}
            s_cmp_gt_u32 s50, 8
            s_cbranch_scc1 {L}
            """)
        a("buffer_load_dword v22, v20, s[56:59], s53 offen")
        a(f"""
        s_cmp_lg_u32 s36, 0
        s_cbranch_scc1 {L}b
        buffer_load_dword v23, v20, s[56:59], s53 offen offset:256
        """)
        a.label(L + "b")
        a("s_add_u32 s53, s53, s54")
        a.label(L)
    def GX():
        for n in range(8):
            a(f"s_add_u32 m0, s30, {n*4096}")
            a(f"buffer_load_dwordx4 v{8+n}, s[8:11], s38 offen{lfl} lds")
        a(f"""
        s_add_u32 s38, s38, 128
        s_and_b32 s38, s38, 2047
        s_add_u32 s30, s30, {X_SLOT}
        s_cmp_eq_u32 s30, s40
        s_cselect_b32 s30, s42, s30
        """)
    def GW():
        for sg in range(3):
            a(f"s_add_u32 m0, s31, {sg*4096}")
            a(f"buffer_load_dwordx4 v{16+sg}, s[12:15], s39 offen{lfl} lds")
        a(f"""
        s_add_u32 s39, s39, {32*6144}
        s_cmp_eq_u32 s39, {1024*6144}
        s_cselect_b32 s39, 0, s39
        s_add_u32 s31, s31, {W_SLOT}
        s_cmp_eq_u32 s31, s41
        s_cselect_b32 s31, s37, s31
        """)
    def WB(n):
        a(f"s_waitcnt vmcnt({n})")
        a("s_barrier")
    if opt.get("ramp", 1):
        GW(); GX(); GW()
        stamp(a, opt, 1)
        a("s_waitcnt vmcnt(3)")
        stamp(a, opt, 2)
        a("s_barrier")
        GX(); GW(); PF(False); WB(11)
        GW(); GX(); WB(11)
        GW(); GX(); PF(); WB(19)
        GW(); GW(); GW(); WB(17)
        GX(); GW(); PF(); WB(17)
        GW(); WB(17)
        GX(); GW(); PF()
        a("s_mov_b32 s28, 10")
    else:
        GW(); GX(); GW(); GX(); GW(); GW(); GX(); GW()
        stamp(a, opt, 1)
        a("s_waitcnt vmcnt(28)")
        stamp(a, opt, 2)
        a("s_barrier")
        a("s_mov_b32 s28, 13")
    a.label(f"L_{name}_lloop")
    a("s_waitcnt vmcnt(25)")
    a("s_barrier")
    GW()
    a("s_waitcnt vmcnt(17)")
    a("s_barrier")
    GX(); GW(); PF()
    a("s_sub_u32 s28, s28, 1")
    a("s_cmp_lg_u32 s28, 0")
    a(f"s_cbranch_scc1 L_{name}_lloop")
    stamp(a, opt, 3)
    a("s_waitcnt vmcnt(25)")
    a("s_barrier")
    GW()
    a(f"""
    s_lshl_b32 s29, s26, 12
    s_add_u32 s29, s29, s37
    s_add_u32 m0, s37, {WPHI_LDS}
    s_nop 0
    buffer_load_dwordx4 v19, s[20:23], s29 offen lds
    """)
    a("s_waitcnt vmcnt(18)")
    a("s_barrier")
    a("s_waitcnt vmcnt(15)")
    a("s_barrier")
    a("s_waitcnt vmcnt(4)")
    a("s_barrier")
    a("s_waitcnt vmcnt(0)")
    a("s_barrier")
    helper_A(a, name, opt)
```

```python
from asmlib import *
from k1 import unpack, QB_OFF, KVB_OFF, QA_OFF, KVP_OFF, ZP_OFF, O_OFF, LOG2E, f2u, softmax_pm, cvt_inplace, stamp, stamp_out

SLOT = 32768
KVF = 131072
ZF = KVF + 4096
WPH = KVF + 5120
LDS_BYTES = WPH + 2048

SELL = 8
LACC = [12, 16]
QF = [24, 32]
KS = [40, 48]; VS = [56, 64]
NEGM = [72, 88]; SB = [104, 120]; OA = [136, 152]
NV = 168

def gen(opt):
    name = "k2_kernel"
    solo = opt.get("solo", 1)
    NT = 8 if solo else 4
    a = Asm()
    a.raw(khead(name))
    a(f"""
    s_cmp_ge_u32 s2, 256
    s_cbranch_scc1 L_{name}_end
    s_load_dwordx2 s[32:33], s[0:1], 72
    s_load_dwordx2 s[34:35], s[0:1], 16
    s_and_b32 s3, s2, 7
    s_lshr_b32 s29, s3, 2
    s_mul_i32 s29, s29, 24
    s_add_u32 s29, s29, 24
    s_load_dwordx2 s[4:5], s[0:1], s29
    s_lshl_b32 s24, s3, 2
    s_lshr_b32 s3, s2, 6
    s_add_u32 s24, s24, s3           ; head
    s_lshr_b32 s25, s2, 3
    s_and_b32 s25, s25, 7            ; qt
    v_lshrrev_b32 v1, 6, v0
    v_and_b32 v0, 63, v0
    v_readfirstlane_b32 s27, v1
    v_lshlrev_b32 v1, 4, v0          ; lane*16
    s_lshr_b32 s30, s27, 2
    s_and_b32 s31, s27, 3
    s_lshl_b32 s26, s25, 3
    s_lshl_b32 s29, s31, 1
    s_add_u32 s26, s26, s29
    s_lshl_b32 s38, s24, 6
    s_add_u32 s38, s38, s26
    s_lshl_b32 s38, s38, 11          ; (h*64+tb0)*2048
    s_lshl_b32 s40, s24, 18
    s_add_u32 s40, s40, {KVB_OFF}
    s_lshl_b32 s46, s26, 5
    s_add_u32 s46, s46, s24
    s_lshl_b32 s46, s46, 11
    s_add_u32 s46, s46, {O_OFF}
    s_waitcnt lgkmcnt(0)
    s_mov_b32 s16, s32
    s_mov_b32 s17, s33
    s_mov_b32 s18, 0x10000000
    s_mov_b32 s19, 0x20000
    s_mov_b32 s20, s34
    s_mov_b32 s21, s35
    s_mov_b32 s22, 0x10000
    s_mov_b32 s23, 0x20000
    s_mov_b32 s12, s4
    s_mov_b32 s13, s5
    s_mov_b32 s14, 0x200000
    s_mov_b32 s15, 0x20000
    """)
    for i in range(6): stamp(a, opt, i)
    a(f"""
    s_cmp_eq_u32 s30, {1 if solo else 2}
    s_cbranch_scc1 L_{name}_helper
    s_add_u32 s38, s38, {QB_OFF}
    """)
    for b in range(2):
        for u in range(2):
            a(f"buffer_load_dwordx4 {v(QF[b]+4*u,4)}, v1, s[16:19], s38 offen offset:{b*2048+u*1024}")
    a(f"""
    v_mov_b32 v4, 0xdddd
    v_and_b32 v2, 4, v0
    v_cmp_eq_u32 vcc, 0, v2
    v_mov_b32 v2, 0
    v_mov_b32 v3, 0x3f803f80
    v_cndmask_b32 v{SELL}, v2, v3, vcc
    v_cndmask_b32 v{SELL+2}, v3, v2, vcc
    v_mov_b32 v{SELL+1}, v{SELL}
    v_mov_b32 v{SELL+3}, v{SELL+2}
    s_lshl_b32 s29, s30, 14
    v_add_u32 v2, s29, v1
    v_add_u32 v3, {SLOT}, v2
    s_lshl_b32 s29, s30, 16
    s_add_u32 s47, s46, s29
    s_add_u32 s47, s47, {4<<20}
    """)
    for b in range(2):
        for r in range(16): a(f"v_mov_b32 v{OA[b]+r}, 0")
        for r in range(4): a(f"v_mov_b32 v{LACC[b]+r}, 0")
    for r in range(4, 8): a(f"v_mov_b32 v{VS[1]+r}, 0")
    stamp(a, opt, 1)
    a("s_barrier")
    stamp(a, opt, 2)
    def kread(st, addr, j): return [f"ds_read_b128 {v(KS[st]+4*u,4)}, {addr} offset:{j*4096+u*1024}" for u in range(2)]
    def vread(st, addr, j): return [f"ds_read_b128 {v(VS[st]+4*u,4)}, {addr} offset:{j*4096+2048+u*1024}" for u in range(2)]
    for r in kread(1, "v1", 0) + kread(0, "v2", 0) + vread(0, "v2", 0): a(r)
    a("s_waitcnt vmcnt(0) lgkmcnt(4)")
    for b in range(2):
        a(f"v_mfma_f32_32x32x16_bf16 {v(SB[b],16)}, {v(KS[1],4)}, {v(QF[b],4)}, 0")
        a(f"v_mfma_f32_32x32x16_bf16 {v(SB[b],16)}, {v(KS[1]+4,4)}, {v(QF[b]+4,4)}, {v(SB[b],16)}")
    for r in kread(1, "v2", 1): a(r)
    def rowmax(S, dst, init=True):
        if init:
            a(f"v_max3_f32 v{dst}, v{S}, v{S+1}, v{S+2}")
            for r in range(3, 15, 2): a(f"v_max3_f32 v{dst}, v{dst}, v{S+r}, v{S+r+1}")
            a(f"v_max_f32 v{dst}, v{dst}, v{S+15}")
        else:
            for r in range(0, 16, 2): a(f"v_max3_f32 v{dst}, v{dst}, v{S+r}, v{S+r+1}")
    def finish_max(dst, tmp, NM):
        a(f"v_mov_b32 v{tmp}, v{dst}")
        a(f"v_permlane32_swap_b32 v{dst}, v{tmp}")
        a(f"v_max_f32 v{dst}, v{dst}, v{tmp}")
        for r in range(16): a(f"v_sub_f32 v{NM+r}, 0, v{dst}")
    rowmax(SB[0], 6); finish_max(6, 7, NEGM[0])
    a("s_waitcnt lgkmcnt(4)")
    a(f"v_mfma_f32_32x32x16_bf16 {v(SB[0],16)}, {v(KS[0],4)}, {v(QF[0],4)}, {v(NEGM[0],16)}")
    a(f"v_mfma_f32_32x32x16_bf16 {v(SB[0],16)}, {v(KS[0]+4,4)}, {v(QF[0]+4,4)}, {v(SB[0],16)}")
    rowmax(SB[1], 6); finish_max(6, 7, NEGM[1])
    for r in range(8, 16): a(f"v_mov_b32 v{SB[1]+r}, 0")
    a("s_mov_b32 s28, 0")
    if opt.get("prio"):
        a(f"s_cmp_{'ge' if opt['prio'] == 1 else 'lt'}_u32 s27, 4")
        a(f"s_cbranch_scc0 L_{name}_np")
        a("s_setprio 1")
        a.label(f"L_{name}_np", keep_hist=True)
    a.raw(".p2align 6")
    a.label(f"L_{name}_loop", keep_hist=True)
    start = len(a.lines)
    pat = opt.get("pat", "ePeeelreMeeeNweeeVeeeeeLr")
    for n in range(2 * NT):
        j = n >> 1; b = n & 1
        A = SB[b]; B = SB[b ^ 1]
        jprev = j - 1 if b == 0 else j
        jnext = j if b == 0 else j + 1
        E = lambda r: f"v_exp_f32 v{A+r}, v{A+r}"
        PV1 = f"v_smfmac_f32_32x32x32_bf16 {v(OA[b^1],16)}, {v(VS[jprev&1]+4,4)}, {v(B+8,8)}, v4"
        L1 = f"v_smfmac_f32_16x16x64_bf16 {v(LACC[b^1],4)}, {v(SELL,4)}, {v(B+8,8)}, v4"
        M1 = f"v_mfma_f32_32x32x16_bf16 {v(B,16)}, {v(KS[jnext&1],4)}, {v(QF[b^1],4)}, {v(NEGM[b^1],16)}"
        M2 = f"v_mfma_f32_32x32x16_bf16 {v(B,16)}, {v(KS[jnext&1]+4,4)}, {v(QF[b^1]+4,4)}, {v(B,16)}"
        PV0 = f"v_smfmac_f32_32x32x32_bf16 {v(OA[b],16)}, {v(VS[j&1],4)}, {v(A,8)}, v4"
        L0 = f"v_smfmac_f32_16x16x64_bf16 {v(LACC[b],4)}, {v(SELL,4)}, {v(A,8)}, v4"
        if b == 0: R = vread((j + 1) & 1, "v2" if j + 1 < NT else "v3", (j + 1) % NT)
        else: R = kread(j & 1, "v2" if j + 2 < NT else "v3", (j + 2) % NT)
        e = rr = 0
        for ch in pat:
            if ch == "e": a(E(e)); e += 1
            elif ch == "P":
                a(PV1)
                if n == 2 * NT - 3: a("s_barrier")
            elif ch == "l": a(L1)
            elif ch == "L": a(L0)
            elif ch == "w": a("s_waitcnt lgkmcnt(1)" if b == 0 else "s_nop 0")
            elif ch == "M":
                a(M1)
                if n == 2 * NT - 1: a("v_mov_b32 v2, v3")
            elif ch == "N": a(M2)
            elif ch == "V":
                a(PV0)
                if n == 2 * NT - 1: a("s_add_u32 s28, s28, 1")
                if n == 0: a(f"v_add_u32 v3, {SLOT}, v2")
                if n == 1: a(f"v_and_b32 v3, {4*SLOT-1}, v3")
            elif ch == "r": a(R[rr]); rr += 1
        assert e == 16 and rr == 2
    a("s_cmp_lt_u32 s28, 8")
    a(f"s_cbranch_scc1 L_{name}_loop")
    body = a.lines[start:]
    print("k2 loop nops (in-body, seam):", check_loop(body), "nop lines in body", sum("s_nop" in l for l in body))
    a("s_nop 1")
    a(f"v_smfmac_f32_32x32x32_bf16 {v(OA[1],16)}, {v(VS[1]+4,4)}, {v(SB[1]+8,8)}, v4")
    a(f"v_smfmac_f32_16x16x64_bf16 {v(LACC[1],4)}, {v(SELL,4)}, {v(SB[1]+8,8)}, v4")
    stamp(a, opt, 3)
    O0 = OA[0]; O1 = OA[1]; L0r = LACC[0]
    if solo:
        a("s_mov_b32 s48, 0")
        a.label(f"L_{name}_blk")
        a("s_mov_b32 s36, 0x5d800000        ; 2^60")
        a(f"""
        v_cmp_nlt_f32 vcc, v{L0r}, s36
        s_cmp_lg_u64 vcc, 0
        s_cbranch_scc1 L_{name}_slow
        """)
    else:
        XCH = SLOT
        a(f"""
        s_mul_i32 s29, s27, 5120
        s_add_u32 s29, s29, {XCH}
        v_add_u32 v2, s29, v1
        s_xor_b32 s36, s27, 4
        s_mul_i32 s36, s36, 5120
        s_add_u32 s36, s36, {XCH}
        v_add_u32 v3, s36, v1
        s_cmp_eq_u32 s30, 0
        s_cbranch_scc1 L_{name}_g0
        """)
        O0 = OA[0]; O1 = OA[1]; L0r = LACC[0]
        for g4 in range(4): a(f"ds_write_b128 v2, {v(OA[0]+4*g4,4)} offset:{g4*1024}")
        a(f"ds_write_b32 v2, v{LACC[0]} offset:4096")
        for r in range(8): a(f"v_mov_b32 v{QF[0]+r}, v{QF[1]+r}")
        a("s_waitcnt lgkmcnt(0)")
        a("s_barrier")
        for g4 in range(4): a(f"ds_read_b128 {v(OA[0]+4*g4,4)}, v3 offset:{g4*1024}")
        a(f"ds_read_b32 v{LACC[0]}, v3 offset:4096")
        a(f"s_branch L_{name}_g1")
        a.label(f"L_{name}_g0")
        a("s_nop 4")
        for g4 in range(4): a(f"ds_write_b128 v2, {v(OA[1]+4*g4,4)} offset:{g4*1024}")
        a(f"ds_write_b32 v2, v{LACC[1]} offset:4096")
        a("s_waitcnt lgkmcnt(0)")
        a("s_barrier")
        for g4 in range(4): a(f"ds_read_b128 {v(OA[1]+4*g4,4)}, v3 offset:{g4*1024}")
        a(f"ds_read_b32 v{LACC[1]}, v3 offset:4096")
        a.label(f"L_{name}_g1")
        a("s_mov_b32 s36, 0x5d800000        ; 2^60")
        a("s_waitcnt lgkmcnt(0)")
        a(f"v_add_f32 v{L0r}, v{L0r}, v{LACC[1]}")
        for r in range(0, 16, 2): a(f"v_pk_add_f32 {v(O0+r,2)}, {v(O0+r,2)}, {v(O1+r,2)}")
        a(f"""
        v_cmp_nlt_f32 vcc, v{L0r}, s36
        s_cmp_lg_u64 vcc, 0
        s_cbranch_scc1 L_{name}_slow
        """)
    a.label(f"L_{name}_fin", keep_hist=True)
    a(f"v_rcp_f32 v{L0r}, v{L0r}")
    for r in range(0, 16, 2):
        a(f"v_pk_mul_f32 {v(O0+r,2)}, {v(O0+r,2)}, {v(L0r,2)} op_sel_hi:[1,0]")
    cvt_inplace(a, O0)
    a(f"buffer_store_dwordx4 {v(O0,4)}, v1, s[16:19], s47 offen")
    a(f"buffer_store_dwordx4 {v(O0+4,4)}, v1, s[16:19], s47 offen offset:1024")
    if solo:
        a(f"""
        s_cmp_lg_u32 s48, 0
        s_cbranch_scc1 L_{name}_out
        s_mov_b32 s48, 1
        s_add_u32 s47, s47, 65536
        """)
        for r in range(16): a(f"v_mov_b32 v{O0+r}, v{O1+r}")
        a(f"v_mov_b32 v{L0r}, v{LACC[1]}")
        for r in range(8): a(f"v_mov_b32 v{QF[0]+r}, v{QF[1]+r}")
        a(f"s_branch L_{name}_blk")
    a.label(f"L_{name}_out")
    stamp(a, opt, 4)
    stamp_out(a, opt, nw=8 if solo else 12)
    a("s_endpgm")

    S0 = SB[0]; Q0 = QF[0]; NM = NEGM[0]
    a.label(f"L_{name}_slow")
    a(f"""
    s_waitcnt lgkmcnt(0)
    s_mov_b32 s36, s40
    s_mov_b32 s28, 0
    v_mov_b32 v6, 0xff800000
    """)
    a.label(f"L_{name}_slow1")
    a(f"""
    buffer_load_dwordx4 {v(KS[0],4)}, v1, s[16:19], s36 offen
    buffer_load_dwordx4 {v(KS[0]+4,4)}, v1, s[16:19], s36 offen offset:1024
    s_waitcnt vmcnt(0)
    v_mfma_f32_32x32x16_bf16 {v(S0,16)}, {v(KS[0],4)}, {v(Q0,4)}, 0
    v_mfma_f32_32x32x16_bf16 {v(S0,16)}, {v(KS[0]+4,4)}, {v(Q0+4,4)}, {v(S0,16)}
    """)
    rowmax(S0, 6, init=False)
    a(f"""
    s_add_u32 s36, s36, 4096
    s_add_u32 s28, s28, 1
    s_cmp_lt_u32 s28, 64
    s_cbranch_scc1 L_{name}_slow1
    """)
    finish_max(6, 7, NM)
    for r in range(16): a(f"v_mov_b32 v{O0+r}, 0")
    for r in range(4): a(f"v_mov_b32 v{L0r+r}, 0")
    a("s_mov_b32 s36, s40\ns_mov_b32 s28, 0")
    a.label(f"L_{name}_slow2")
    a(f"""
    buffer_load_dwordx4 {v(KS[0],4)}, v1, s[16:19], s36 offen
    buffer_load_dwordx4 {v(KS[0]+4,4)}, v1, s[16:19], s36 offen offset:1024
    buffer_load_dwordx4 {v(VS[0],4)}, v1, s[16:19], s36 offen offset:2048
    buffer_load_dwordx4 {v(VS[0]+4,4)}, v1, s[16:19], s36 offen offset:3072
    s_waitcnt vmcnt(0)
    v_mfma_f32_32x32x16_bf16 {v(S0,16)}, {v(KS[0],4)}, {v(Q0,4)}, {v(NM,16)}
    v_mfma_f32_32x32x16_bf16 {v(S0,16)}, {v(KS[0]+4,4)}, {v(Q0+4,4)}, {v(S0,16)}
    """)
    for r in range(16): a(f"v_exp_f32 v{S0+r}, v{S0+r}")
    a(f"""
    v_smfmac_f32_32x32x32_bf16 {v(O0,16)}, {v(VS[0],4)}, {v(S0,8)}, v4
    v_smfmac_f32_16x16x64_bf16 {v(L0r,4)}, {v(SELL,4)}, {v(S0,8)}, v4
    v_smfmac_f32_32x32x32_bf16 {v(O0,16)}, {v(VS[0]+4,4)}, {v(S0+8,8)}, v4
    v_smfmac_f32_16x16x64_bf16 {v(L0r,4)}, {v(SELL,4)}, {v(S0+8,8)}, v4
    s_nop 15
    s_add_u32 s36, s36, 4096
    s_add_u32 s28, s28, 1
    s_cmp_lt_u32 s28, 64
    s_cbranch_scc1 L_{name}_slow2
    s_nop 15
    s_branch L_{name}_fin
    """)

    a.label(f"L_{name}_helper")
    hpk = opt.get("hpk", 1)
    ap = a if hpk else (lambda t: unpack(a, t))
    P0 = 8
    QAF = 72
    ZP0 = 88
    JUNK = 96
    a(f"""
    s_setprio {opt.get("hprio", 2)}
    s_lshl_b32 s41, s31, 13          ; hw*8192
    s_add_u32 s42, s40, s41
    s_mov_b32 s43, s41
    s_add_u32 s38, s38, {QA_OFF}
    s_mov_b32 s44, {f2u(LOG2E)}
    s_mov_b32 s45, {f2u(LOG2E)}
    """)
    def dma_chunk():
        for hf in range(2):
            a(f"s_add_u32 m0, s43, {hf*4096}")
            a(f"s_add_u32 s29, s42, {hf*4096}")
            for n in range(4):
                a(f"buffer_load_dwordx4 v1, s[16:19], s29 offen offset:{n*1024} lds")
        a(f"s_add_u32 s42, s42, {SLOT}")
        a(f"s_add_u32 s43, s43, {SLOT}")
        a(f"s_and_b32 s43, s43, {4*SLOT-1}")
    dma_chunk()
    stamp(a, opt, 1)
    a("s_waitcnt vmcnt(0)")
    a("s_barrier")
    stamp(a, opt, 2)
    dma_chunk(); dma_chunk()
    a("s_waitcnt vmcnt(8)")
    a("s_barrier")
    dma_chunk()
    a(f"""
    s_lshl_b32 s36, s24, 16
    s_add_u32 s36, s36, {KVP_OFF}
    s_lshl_b32 s29, s31, 11
    s_add_u32 s36, s36, s29
    """)
    for t in range(8):
        a(f"buffer_load_dwordx4 {v(P0+8*t,4)}, v1, s[16:19], s36 offen")
        a(f"buffer_load_dwordx4 {v(P0+8*t+4,4)}, v1, s[16:19], s36 offen offset:1024")
        if t < 7: a("s_add_u32 s36, s36, 8192")
    for q in range(4):
        a(f"buffer_load_dwordx4 {v(QAF+4*q,4)}, v1, s[16:19], s38 offen offset:{q*1024}")
    a(f"""
    s_and_b32 s37, s31, 1
    s_lshl_b32 s37, s37, 10
    s_lshl_b32 s36, s24, 11
    s_add_u32 s36, s36, s37
    s_add_u32 m0, s37, {WPH}
    v_lshlrev_b32 v6, 2, v0
    buffer_load_dwordx4 v1, s[20:23], s36 offen lds
    s_lshl_b32 s36, s24, 11
    s_add_u32 s36, s36, {ZP_OFF}
    """)
    for t in range(8):
        a(f"buffer_load_dword v{ZP0+t}, v6, s[16:19], s36 offen offset:{t*256}")
    a("s_waitcnt vmcnt(37)")
    a("s_barrier")
    dma_chunk()
    a("s_waitcnt vmcnt(8)")
    for t in range(1, 8):
        for r in range(0, 8, 2):
            ap(f"v_pk_add_f32 {v(P0+r,2)}, {v(P0+r,2)}, {v(P0+8*t+r,2)}")
    for r in range(4): a(f"v_cvt_pk_bf16_f32 v{P0+r}, v{P0+2*r}, v{P0+2*r+1}")
    a(f"""
    s_lshl_b32 s36, s31, 10
    s_add_u32 s36, s36, {KVF}
    v_add_u32 v6, s36, v1
    ds_write_b128 v6, {v(P0,4)}
    """)
    for t in range(1, 8): a(f"v_add_f32 v{ZP0}, v{ZP0}, v{ZP0+t}")
    a(f"""
    v_cvt_pk_bf16_f32 v{ZP0}, v{ZP0}, v{ZP0}
    v_lshrrev_b32 v6, 4, v0
    v_lshlrev_b32 v6, 5, v6
    v_and_b32 v7, 4, v0
    v_lshl_add_u32 v6, v7, 2, v6
    v_and_b32 v7, 8, v0
    v_add_u32 v6, v6, v7
    v_and_b32 v7, 3, v0
    v_lshl_add_u32 v6, v7, 1, v6
    v_add_u32 v6, {ZF}, v6
    ds_write_b16 v6, v{ZP0}
    v_mov_b32 v7, 0
    ds_write_b16 v6, v7 offset:128
    v_lshrrev_b32 v5, 5, v0          ; h
    v_lshrrev_b32 v6, 2, v0
    v_and_b32 v6, 3, v6
    v_lshl_add_u32 v6, v5, 2, v6     ; 4h+r
    v_lshrrev_b32 v7, 4, v0
    v_and_b32 v7, 1, v7
    v_lshlrev_b32 v7, 5, v7
    v_lshl_add_u32 v6, v6, 6, v7
    v_and_b32 v7, 3, v0
    v_lshl_add_u32 v6, v7, 3, v6
    v_add_u32 v2, {WPH}, v6
    v_lshrrev_b32 v6, 2, v0
    v_lshrrev_b32 v7, 4, v0
    v_xor_b32 v6, v6, v7
    v_and_b32 v6, 1, v6
    v_cmp_eq_u32 vcc, 0, v6
    v_lshlrev_b32 v5, 4, v5
    v_add_u32 v5, {ZF}, v5
    v_mov_b32 v6, {ZF+128}
    v_cndmask_b32 v7, v6, v5, vcc
    v_add_u32 v6, {KVF}, v1
    s_waitcnt lgkmcnt(0)
    s_barrier
    """)
    WP = 8; KVR = 16; ZR = 32; PQ = 48; EP = 104; T = 120; NUM = 136; DEN = 64
    dma_chunk()
    for u in range(2):
        for b in range(2):
            a(f"ds_read_b64_tr_b16 {v(WP+4*u+2*b,2)}, v2 offset:{(16*u+8*b)*64}")
    for f in range(4): a(f"ds_read_b128 {v(KVR+4*f,4)}, v6 offset:{f*1024}")
    for f in range(4): a(f"ds_read_b128 {v(ZR+4*f,4)}, v7 offset:{f*32}")
    a("s_waitcnt lgkmcnt(0)")
    def oa_block(b):
        a(f"v_mfma_f32_32x32x16_bf16 {v(PQ,16)}, {v(WP,4)}, {v(QAF+8*b,4)}, 0")
        a(f"v_mfma_f32_32x32x16_bf16 {v(PQ,16)}, {v(WP+4,4)}, {v(QAF+8*b+4,4)}, {v(PQ,16)}")
        softmax_pm(a, PQ, EP, T, pk=hpk)
        for f in range(4):
            F = (EP if f < 2 else PQ) + 4 * (f & 1)
            a(f"v_mfma_f32_32x32x16_bf16 {v(NUM,16)}, {v(KVR+4*f,4)}, {v(F,4)}, {'0' if f == 0 else v(NUM,16)}")
            a(f"v_mfma_f32_16x16x32_bf16 {v(DEN,4)}, {v(ZR+4*f,4)}, {v(F,4)}, {'0' if f == 0 else v(DEN,4)}")
        a(f"""
        v_add_f32 v{DEN}, {f2u(1e-6)}, v{DEN}
        v_rcp_f32 v{DEN}, v{DEN}
        """)
        for r in range(0, 16, 2):
            ap(f"v_pk_mul_f32 {v(NUM+r,2)}, {v(NUM+r,2)}, {v(DEN,2)} op_sel_hi:[1,0]")
        cvt_inplace(a, NUM)
        a(f"buffer_store_dwordx4 {v(NUM,4)}, v1, s[16:19], s46 offen")
        a(f"buffer_store_dwordx4 {v(NUM+4,4)}, v1, s[16:19], s46 offen offset:1024")
        a(f"s_add_u32 s46, s46, 65536")
    oa_block(0)
    a("s_waitcnt vmcnt(10)")
    a("s_barrier")
    dma_chunk()
    oa_block(1)
    a("s_waitcnt vmcnt(10)")
    a("s_barrier")
    dma_chunk()
    npf = 0
    if not opt.get("nopref"):
        a(f"""
        s_lshr_b32 s36, s2, 3
        s_lshl_b32 s36, s36, 16
        s_lshl_b32 s37, s31, 14
        s_add_u32 s36, s36, s37
        v_lshlrev_b32 v6, 6, v0
        """)
        for q in range(4):
            a(f"buffer_load_dword v{JUNK+q}, v6, s[12:15], s36 offen")
            if q < 3: a("s_add_u32 s36, s36, 4096")
        npf = 4
    a(f"s_waitcnt vmcnt({8+npf})")
    a("s_barrier")
    a(f"s_waitcnt vmcnt({npf})")
    stamp(a, opt, 3)
    a("s_barrier")
    a(f"s_branch L_{name}_out")
    a.label(f"L_{name}_end")
    a("s_endpgm")
    return (f"; @launch kernel={name} grid=(256,1,1) block=({512 if solo else 768},1,1) lds={LDS_BYTES}", a.text(), kdesc(name, NV))
```

```python
from asmlib import *
from k1 import O_OFF, stamp, stamp_out

SLOT = 32768; NS = 5
ACC = 72
OS = [8, 16, 24, 32]; WSR = [40, 48, 56, 64]

def gen(opt):
    name = "k3_kernel"
    a = Asm()
    a.raw(khead(name))
    a(f"""
    s_cmp_ge_u32 s2, 256
    s_cbranch_scc1 L_{name}_end
    s_and_b32 s3, s2, 7
    s_lshr_b32 s28, s2, 3
    s_lshr_b32 s24, s3, 2            ; branch
    s_and_b32 s25, s3, 3
    s_lshl_b32 s25, s25, 2
    s_and_b32 s29, s28, 3
    s_add_u32 s25, s25, s29
    s_lshr_b32 s26, s28, 2
    s_mul_i32 s29, s24, 24
    s_add_u32 s29, s29, 24
    s_load_dwordx2 s[4:5], s[0:1], s29
    s_load_dwordx2 s[32:33], s[0:1], 72
    s_load_dwordx2 s[34:35], s[0:1], 56
    v_lshrrev_b32 v1, 6, v0
    v_and_b32 v0, 63, v0
    v_readfirstlane_b32 s27, v1
    s_waitcnt lgkmcnt(0)
    s_mov_b32 s12, s4
    s_mov_b32 s13, s5
    s_mov_b32 s14, 0x200000
    s_mov_b32 s15, 0x20000
    s_mov_b32 s16, s32
    s_mov_b32 s17, s33
    s_mov_b32 s18, 0x10000000
    s_mov_b32 s19, 0x20000
    s_mov_b32 s20, s34
    s_mov_b32 s21, s35
    s_mov_b32 s22, 0x800000
    s_mov_b32 s23, 0x20000
    """)
    for i in range(6): stamp(a, opt, i)
    a(f"""
    s_cmp_ge_u32 s27, 4
    s_cbranch_scc1 L_{name}_loader
    s_lshr_b32 s36, s27, 1           ; tw
    s_and_b32 s37, s27, 1            ; cw
    v_lshlrev_b32 v1, 4, v0
    s_lshl_b32 s29, s36, 13
    v_add_u32 v1, s29, v1
    v_lshrrev_b32 v2, 5, v0          ; h
    v_lshrrev_b32 v3, 2, v0
    v_and_b32 v3, 3, v3              ; r
    v_lshl_add_u32 v4, v2, 2, v3     ; 4h+r
    v_lshlrev_b32 v4, 8, v4
    s_lshl_b32 s29, s37, 1
    v_xor_b32 v3, s29, v3            ; (2cw) ^ r
    v_lshl_add_u32 v4, v3, 6, v4
    v_lshrrev_b32 v5, 4, v0
    v_and_b32 v5, 1, v5
    v_lshl_add_u32 v4, v5, 5, v4
    v_and_b32 v5, 3, v0
    v_lshl_add_u32 v4, v5, 3, v4
    v_add_u32 v2, 16384, v4
    v_xor_b32 v3, 64, v2
    s_mov_b32 s30, 0
    v_mov_b32 v4, v1
    v_mov_b32 v5, v2
    v_mov_b32 v6, v3
    s_mov_b32 s28, 16
    """)
    for r in range(ACC, ACC + 64): a(f"v_mov_b32 v{r}, 0")
    def reads(st, c):
        O = OS[st]; W = WSR[st]
        o = [f"ds_read_b128 {v(O+4*i,4)}, v4 offset:{i*4096+c*1024}" for i in range(2)]
        w = [f"ds_read_b64_tr_b16 {v(W+4*cb+2*b,2)}, v{5+cb} offset:{(16*c+8*b)*256}" for cb in range(2) for b in range(2)]
        return [w[0], w[1], o[0], o[1], w[2], w[3]]
    def mf(st):
        O = OS[st]; W = WSR[st]
        return [f"v_mfma_f32_32x32x16_bf16 {v(ACC+16*(2*i+cb),16)}, {v(W+4*cb,4)}, {v(O+4*i,4)}, {v(ACC+16*(2*i+cb),16)}"
                for cb in range(2) for i in range(2)]
    stamp(a, opt, 1)
    a("s_barrier")
    stamp(a, opt, 2)
    for r in reads(0, 0) + reads(1, 1): a(r)
    a.raw(".p2align 6")
    a.label(f"L_{name}_loop", keep_hist=True)
    start = len(a.lines)
    for c in range(4):
        M = mf(c); R = reads((c + 2) & 3, (c + 2) & 3)
        if opt.get("noreads") == 1: R = ["s_nop 0"] * 6
        if opt.get("noreads") == 2: R = [r if "tr_b16" in r else "s_nop 0" for r in R]
        if opt.get("nomfma"): M = ["s_nop 0"] * 4
        a("s_waitcnt lgkmcnt(6)")
        a(M[0])
        if c == 2: a("s_barrier")
        a(R[0]); a(R[1])
        a(M[1])
        a(R[2]); a(R[3])
        a(M[2])
        a(R[4]); a(R[5])
        if c == 1:
            a(f"""
            s_add_u32 s30, s30, {SLOT}
            s_cmp_eq_u32 s30, {SLOT*NS}
            s_cselect_b32 s30, 0, s30
            """)
        a(M[3])
        if c == 1:
            a("""
            v_add_u32 v4, s30, v1
            v_add_u32 v5, s30, v2
            v_add_u32 v6, s30, v3
            """)
        if c == 3:
            a("s_sub_u32 s28, s28, 1")
            a("s_cmp_lg_u32 s28, 0")
    a(f"s_cbranch_scc1 L_{name}_loop")
    print("k3 loop nops:", check_loop(a.lines[start:]))
    a("s_waitcnt lgkmcnt(0)")
    stamp(a, opt, 3)
    a(f"""
    s_lshl_b32 s38, s25, 7
    s_lshl_b32 s29, s36, 6
    s_add_u32 s38, s38, s29          ; token0
    s_lshl_b32 s38, s38, 12
    s_lshl_b32 s29, s24, 11
    s_add_u32 s38, s38, s29
    s_lshl_b32 s29, s26, 8
    s_add_u32 s38, s38, s29
    s_lshl_b32 s29, s37, 7
    s_add_u32 s38, s38, s29
    """)
    if opt.get("epi", 1) == 0:
        a(f"""
        v_and_b32 v1, 31, v0
        v_lshlrev_b32 v1, 12, v1
        v_lshrrev_b32 v2, 5, v0
        v_lshl_add_u32 v1, v2, 4, v1     ; n*4096 + h*16
        s_add_u32 s39, s38, {32*4096}
        s_nop 7
        """)
        for i in range(2):
            for cb in range(2):
                D = ACC + 16 * (2 * i + cb)
                for r in range(8): a(f"v_cvt_pk_bf16_f32 v{D+r}, v{D+2*r}, v{D+2*r+1}")
                for pr in range(2):
                    a(f"v_permlane32_swap_b32 v{D+4*pr}, v{D+4*pr+2}")
                    a(f"v_permlane32_swap_b32 v{D+4*pr+1}, v{D+4*pr+3}")
                    a(f"buffer_store_dwordx4 {v(D+4*pr,4)}, v1, s[20:23], s{38+i} offen offset:{cb*64+pr*32}")
    else:
        RS = 144
        a(f"""
        s_mul_i32 s29, s27, {64*RS}
        s_add_u32 s29, s29, {2*SLOT}
        v_and_b32 v1, 31, v0
        v_mul_u32_u24 v1, {RS}, v1
        v_lshrrev_b32 v2, 5, v0
        v_lshl_add_u32 v1, v2, 3, v1
        v_add_u32 v1, s29, v1
        v_lshrrev_b32 v2, 3, v0
        v_and_b32 v3, 7, v0
        v_mul_u32_u24 v4, {RS}, v2
        v_lshl_add_u32 v4, v3, 4, v4
        v_add_u32 v4, s29, v4
        v_lshlrev_b32 v2, 12, v2
        v_lshl_add_u32 v2, v3, 4, v2
        """)
        for i in range(2):
            for cb in range(2):
                D = ACC + 16 * (2 * i + cb)
                for r in range(8): a(f"v_cvt_pk_bf16_f32 v{D+r}, v{D+2*r}, v{D+2*r+1}")
                for g in range(4):
                    a(f"ds_write_b64 v1, {v(D+2*g,2)} offset:{i*32*RS + cb*64 + g*16}")
            for q in range(4):
                a(f"ds_read_b128 {v(8+16*i+4*q,4)}, v4 offset:{(i*32+q*8)*RS}")
        for i in range(2):
            for q in range(4):
                a(f"s_waitcnt lgkmcnt({(3-q) + (12 if i == 0 else 0)})")
                a(f"buffer_store_dwordx4 {v(8+16*i+4*q,4)}, v2, s[20:23], s38 offen")
                a(f"s_add_u32 s38, s38, {8*4096}")
    a(f"s_branch L_{name}_fin")
    a.label(f"L_{name}_loader")
    a(f"""
    s_sub_u32 s36, s27, 4            ; lw
    v_lshlrev_b32 v1, 4, v0          ; lane*16
    v_lshrrev_b32 v2, 4, v0          ; r
    v_and_b32 v3, 15, v0             ; p
    v_lshlrev_b32 v4, 2, v2
    v_xor_b32 v3, v3, v4
    v_lshlrev_b32 v3, 4, v3
    v_lshl_add_u32 v8, v2, 11, v3
    s_lshl_b32 s29, s26, 8
    s_lshl_b32 s37, s36, 15
    s_add_u32 s29, s29, s37
    v_add_u32 v8, s29, v8
    v_add_u32 v9, 8192, v8
    v_add_u32 v10, 16384, v8
    v_add_u32 v11, 24576, v8
    s_lshl_b32 s38, s25, 2
    s_add_u32 s38, s38, s36          ; tb
    s_lshl_b32 s38, s38, 16          ; *32*2048
    s_lshl_b32 s29, s24, 22
    s_add_u32 s38, s38, s29
    s_add_u32 s41, s38, {O_OFF}      ; O base
    s_lshl_b32 s42, s26, {opt.get("ksh", 2)}
    s_and_b32 s42, s42, {15 if opt.get("koff", 0) else 0}
    s_lshl_b32 s37, s36, 12          ; lw*4096
    s_mov_b32 s30, s37
    s_add_u32 s40, s37, {SLOT*NS}
    """)
    def G():
        a("s_lshl_b32 s38, s42, 12")
        a("s_add_u32 s38, s38, s41")
        a("s_mov_b32 m0, s30")
        a("s_lshl_b32 s39, s42, 17")
        for n in range(4): a(f"buffer_load_dwordx4 v1, s[16:19], s38 offen offset:{n*1024} lds")
        for n in range(4):
            a(f"s_add_u32 m0, s30, {16384+n*1024}")
            a(f"buffer_load_dwordx4 v{8+n}, s[12:15], s39 offen lds")
        a(f"""
        s_add_u32 s42, s42, 1
        s_and_b32 s42, s42, 15
        s_add_u32 s30, s30, {SLOT}
        s_cmp_eq_u32 s30, s40
        s_cselect_b32 s30, s37, s30
        """)
    G(); G()
    stamp(a, opt, 1)
    a("s_waitcnt vmcnt(8)")
    stamp(a, opt, 2)
    a("s_barrier")
    G()
    a("s_waitcnt vmcnt(8)")
    a("s_barrier")
    G(); G()
    a("s_mov_b32 s28, 11")
    a.label(f"L_{name}_lloop")
    a("s_waitcnt vmcnt(16)")
    a("s_barrier")
    G()
    a(f"""
    s_sub_u32 s28, s28, 1
    s_cmp_lg_u32 s28, 0
    s_cbranch_scc1 L_{name}_lloop
    """)
    stamp(a, opt, 3)
    for n in (16, 8, 0):
        a(f"s_waitcnt vmcnt({n})")
        a("s_barrier")
    a.label(f"L_{name}_fin")
    stamp(a, opt, 4)
    stamp_out(a, opt)
    a.label(f"L_{name}_end")
    a("s_endpgm")
    return (f"; @launch kernel={name} grid=(256,1,1) block=(512,1,1) lds={SLOT*NS}", a.text(), kdesc(name, 136))
```

```python
from asmlib import *
import math, sys
import k1
from k1 import (QB_OFF, KVB_OFF, QA_OFF, KVP_OFF, ZP_OFF, O_OFF, LOG2E, f2u, softmax_pm, cvt_inplace,
                W_SLOT, NW, X_BASE, X_SLOT, NX, WPHI_LDS, ACCQ, ACCK, ACCV, reads as p1_reads, mfmas as p1_mfmas,
                epi_A, epi_B, epiA_setup, pk_mfma, phi_write, KH, TT, PH_BLK)

NAME = "concat_heads__linear_kernel_hedgehog__mha_block__prompt_kernel"
FLG = 29 << 20
F1B, F1A, F2B, F2A = FLG, FLG + 2048, FLG + 4096, FLG + 5120
STAMP_OFF = 30 << 20
VSNAP, VFA, VPOL = 250, 251, 252
SC = " sc0 sc1"

def stamp(a, opt, idx):
    if not opt.get("stamp"): return
    a(f"s_memrealtime s[{60+2*idx}:{61+2*idx}]")
    a("s_waitcnt lgkmcnt(0)")
def stamp_out(a, opt):
    if not opt.get("stamp"): return
    a("s_waitcnt vmcnt(0)")
    stamp(a, opt, 11)
    a(f"""
    s_lshl_b32 s29, s2, 3
    s_add_u32 s29, s29, s27
    s_lshl_b32 s29, s29, 6
    s_add_u32 s29, s29, {STAMP_OFF}
    v_mov_b32 v9, 0
    """)
    for i in range(12):
        a(f"v_mov_b32 v8, s{60+2*i}")
        a(f"buffer_store_dword v8, v9, s[16:19], s29 offen offset:{4*i}")

_uid = [0]
def only_w4(a):
    _uid[0] += 1
    L = f"L_w4_{_uid[0]}"
    a(f"s_cmp_lg_u32 s27, 4\ns_cbranch_scc1 {L}")
    return L
def poll(a, lo, n):
    L = only_w4(a)
    mask = ((1 << n) - 1) << lo
    a(f"""
    s_mov_b32 s88, {mask & 0xffffffff}
    s_mov_b32 s89, {mask >> 32}
    s_mov_b32 s90, 0x400000
    s_mov_b64 exec, s[88:89]
    """)
    a.label(L + "p")
    a(f"""
    buffer_load_dword v{VPOL}, v{VFA}, s[16:19], 0 offen sc0 sc1
    s_waitcnt vmcnt(0)
    v_cmp_eq_u32 vcc, v{VPOL}, v{VSNAP}
    s_sub_u32 s90, s90, 1
    s_cbranch_scc1 {L}d
    s_cbranch_vccz {L}d
    s_sleep 1
    s_branch {L}p
    """)
    a.label(L + "d")
    a("s_mov_b64 exec, -1")
    a.label(L)
def publish(a, lane):
    L = only_w4(a)
    a(f"""
    v_add_u32 v{VPOL}, 1, v{VSNAP}
    s_mov_b32 exec_lo, 0
    s_mov_b32 exec_hi, {1 << (lane - 32)}
    buffer_store_dword v{VPOL}, v{VFA}, s[16:19], 0 offen sc0 sc1
    s_mov_b64 exec, -1
    """)
    a.label(L)

def p1_compute(a, opt):
    a(f"""
    s_lshr_b32 s36, s27, 1          ; tw
    s_and_b32 s37, s27, 1           ; hd
    v_and_b32 v8, 31, v0            ; n
    v_lshrrev_b32 v9, 5, v0         ; h
    v_bfe_u32 v10, v8, 1, 3         ; f
    v_xor_b32 v10, v10, v9
    v_lshlrev_b32 v10, 4, v10
    s_lshl_b32 s29, s36, 14
    v_lshlrev_b32 v11, 7, v8
    v_add3_u32 v1, v11, v10, s29
    v_xor_b32 v2, 32, v1
    v_xor_b32 v3, 64, v1
    v_xor_b32 v4, 0x60, v1
    v_bfe_u32 v10, v0, 2, 2         ; r
    v_lshl_add_u32 v11, v9, 3, v10
    v_lshlrev_b32 v11, 7, v11
    v_lshrrev_b32 v10, 1, v10
    v_xor_b32 v10, s37, v10
    v_lshl_add_u32 v11, v10, 6, v11
    v_bfe_u32 v10, v0, 4, 1
    v_lshl_add_u32 v11, v10, 5, v11
    v_and_b32 v10, 3, v0
    v_lshl_add_u32 v5, v10, 3, v11
    s_mov_b32 s30, {X_BASE}
    s_mov_b32 s31, 0
    v_add_u32 v6, s30, v1
    v_mov_b32 v7, v5
    s_mov_b32 s28, 16
    """)
    for r in range(64, 256): a(f"v_mov_b32 v{r}, 0")
    a("s_barrier")
    stamp(a, opt, 1)
    for r in p1_reads(a, 0, 0, 0): a(r)
    a.raw(".p2align 6")
    a.label("L_p1_loop", keep_hist=True)
    start = len(a.lines)
    for c in range(4):
        st = c & 1
        M = p1_mfmas(st)
        c1 = (c + 1) & 3
        R = p1_reads(a, st ^ 1, c1, c1 & 1)
        pre = []
        if c & 1:
            pre += [f"s_add_u32 s31, s31, {W_SLOT}", f"s_cmp_eq_u32 s31, {W_SLOT*NW}", "s_cselect_b32 s31, 0, s31"]
        if c == 3:
            pre += [f"s_add_u32 s30, s30, {X_SLOT}", f"s_cmp_eq_u32 s30, {X_BASE+X_SLOT*NX}", f"s_cselect_b32 s30, {X_BASE}, s30"]
        a("s_waitcnt lgkmcnt(3)")
        a(M[0])
        for p in pre[:3]: a(p)
        a(M[1])
        for p in pre[3:]: a(p)
        if c & 1: a("v_add_u32 v7, s31, v5")
        a(f"v_add_u32 v6, s30, v{1+c1}")
        a(M[2])
        a("s_waitcnt lgkmcnt(0)")
        if c & 1: a("s_barrier")
        sched = [2, 2, 2, 2, 1, 1, 0, 0, 0]
        k = 0
        for g in range(9):
            for _ in range(sched[g]):
                a(R[k]); k += 1
            if c == 3 and g == 7:
                a("s_sub_u32 s28, s28, 1")
                a("s_cmp_lg_u32 s28, 0")
            a(M[3 + g])
    a("s_cbranch_scc1 L_p1_loop")
    assert check_loop(a.lines[start:]) == (0, 0)
    a("s_waitcnt lgkmcnt(0)")
    stamp(a, opt, 2)
    a(f"""
    s_lshl_b32 s38, s26, 1
    s_add_u32 s38, s38, s37          ; head
    s_lshl_b32 s39, s25, 3
    s_lshl_b32 s29, s36, 2
    s_add_u32 s39, s39, s29          ; tb0
    s_lshl_b32 s40, s38, 6
    s_add_u32 s40, s40, s39          ; h*64+tb0
    v_lshlrev_b32 v1, 4, v0
    s_nop 3
    s_cmp_eq_u32 s24, 0
    s_cbranch_scc1 L_p1_epiA
    """)
    epi_B(a, "p1", {})
    a("s_branch L_p1_done")
    a.label("L_p1_epiA")
    epi_A(a, "p1", {})
    a.label("L_p1_done")

def p1_helper(a, opt):
    a(f"""
    s_lshr_b32 s49, s3, 1
    s_xor_b32 s49, s49, s3
    s_and_b32 s49, s49, 1
    s_lshl_b32 s49, s49, 3
    s_sub_u32 s36, s27, 4            ; lw
    v_lshrrev_b32 v1, 3, v0          ; r
    v_and_b32 v2, 7, v0              ; p
    v_lshrrev_b32 v3, 1, v1
    s_lshl_b32 s29, s36, 3
    v_add_u32 v5, s29, v1            ; 8lw + r
    v_and_b32 v6, 1, v3
    v_lshlrev_b32 v6, 2, v6
    v_xor_b32 v6, v6, v2
    v_lshlrev_b32 v6, 4, v6
    v_mul_u32_u24 v16, 6144, v5
    s_lshl_b32 s29, s26, 7
    v_add3_u32 v16, v16, v6, s29
    v_add_u32 v17, 2048, v16
    v_add_u32 v18, 4096, v16
    s_lshl_b32 s37, s36, 10          ; lw*1024
    s_add_u32 s30, s37, {X_BASE}
    s_mov_b32 s31, s37
    s_lshl_b32 s38, s49, 7           ; X soffset
    s_mul_i32 s39, s49, {64*6144}    ; W soffset
    s_add_u32 s40, s37, {X_BASE + NX*X_SLOT}
    s_add_u32 s41, s37, {W_SLOT*NW}
    s_add_u32 s42, s37, {X_BASE}
    """)
    def GX():
        for n in range(8):
            a(f"s_add_u32 m0, s30, {n*4096}")
            a(f"buffer_load_dwordx4 v{8+n}, s[8:11], s38 offen lds")
        a(f"""
        s_add_u32 s38, s38, 128
        s_and_b32 s38, s38, 2047
        s_add_u32 s30, s30, {X_SLOT}
        s_cmp_eq_u32 s30, s40
        s_cselect_b32 s30, s42, s30
        """)
    def GW():
        for sg in range(3):
            a(f"s_add_u32 m0, s31, {sg*4096}")
            a(f"buffer_load_dwordx4 v{16+sg}, s[12:15], s39 offen lds")
        a(f"""
        s_add_u32 s39, s39, {32*6144}
        s_cmp_eq_u32 s39, {1024*6144}
        s_cselect_b32 s39, 0, s39
        s_add_u32 s31, s31, {W_SLOT}
        s_cmp_eq_u32 s31, s41
        s_cselect_b32 s31, s37, s31
        """)
    def WB(n):
        a(f"s_waitcnt vmcnt({n})")
        a("s_barrier")
    GW()
    a(f"""
    s_and_b32 s29, s36, 1
    s_lshl_b32 s29, s29, 2
    v_add_u32 v4, s29, v3            ; f
    v_xor_b32 v4, v4, v2
    v_lshlrev_b32 v4, 4, v4
    v_lshl_add_u32 v8, v5, 11, v4
    """)
    for n in range(1, 8): a(f"v_add_u32 v{8+n}, {n*65536}, v8")
    GX(); GW()
    a(f"""
    v_lshlrev_b32 v19, 4, v0
    s_lshl_b32 s43, s3, 1
    s_lshr_b32 s29, s2, 7
    s_add_u32 s43, s43, s29
    s_lshl_b32 s43, s43, 7
    s_add_u32 s43, s43, {F1B}
    v_and_b32 v20, 7, v0
    v_lshlrev_b32 v20, 2, v20
    v_and_b32 v21, 8, v0
    v_lshl_add_u32 v20, v21, 8, v20
    v_add_u32 v20, s43, v20          ; lanes 0..15
    s_and_b32 s43, s3, 3
    s_lshl_b32 s43, s43, 1
    s_bfe_u32 s29, s2, 0x10004
    s_add_u32 s43, s43, s29
    s_lshl_b32 s43, s43, 7
    s_lshl_b32 s29, s24, 10
    s_sub_u32 s43, s43, s29
    s_add_u32 s43, s43, {F2A - 64}
    v_lshl_add_u32 v21, v0, 2, s43   ; lanes 16..47
    v_cmp_gt_u32 vcc, 16, v0
    s_lshl_b32 s43, s26, 7
    s_lshl_b32 s29, s25, 2
    s_add_u32 s43, s43, s29
    v_cndmask_b32 v20, v21, v20, vcc
    s_lshl_b32 s29, s24, 11
    s_sub_u32 s43, s43, s29
    s_add_u32 s43, s43, {F1A}
    v_mov_b32 v21, s43
    v_cmp_gt_u32 vcc, 48, v0
    s_bfe_u32 s43, s2, 0x30003
    s_lshl_b32 s43, s43, 7
    v_cndmask_b32 v20, v21, v20, vcc
    s_lshl_b32 s29, s3, 4
    s_add_u32 s43, s43, s29
    s_lshr_b32 s29, s2, 6
    s_lshl_b32 s29, s29, 2
    s_add_u32 s43, s43, s29
    s_add_u32 s43, s43, {F2B}        ; own F2B
    v_mov_b32 v21, s43
    v_cmp_ne_u32 vcc, 49, v0
    s_add_u32 s43, s43, 1024
    s_nop 0
    v_cndmask_b32 v20, v21, v20, vcc
    v_mov_b32 v21, s43
    v_cmp_ne_u32 vcc, 50, v0
    s_nop 1
    v_cndmask_b32 v{VFA}, v21, v20, vcc
    """)
    a("s_waitcnt vmcnt(3)")
    a("s_barrier")
    L = only_w4(a)
    a(f"buffer_load_dword v{VSNAP}, v{VFA}, s[16:19], 0 offen sc0 sc1")
    a.label(L)
    GX(); GW(); WB(11)
    GW(); GX(); WB(11)
    L = only_w4(a)
    a(f"""
    v_mov_b32 v20, 1
    v_mov_b32 v21, 0
    s_mov_b64 exec, 1
    buffer_atomic_add v20, v21, s[84:87], 0 offen sc1
    s_mov_b64 exec, -1
    """)
    a.label(L)
    GW(); GX(); WB(19)
    GW(); GW(); GW(); WB(17)
    GX(); GW(); WB(17)
    GW(); WB(17)
    GX(); GW()
    a("s_mov_b32 s28, 10")
    a.label("L_p1_lloop")
    WB(25); GW(); WB(17); GX(); GW()
    a(f"""
    s_sub_u32 s28, s28, 1
    s_cmp_lg_u32 s28, 0
    s_cbranch_scc1 L_p1_lloop
    """)
    WB(25)
    GW()
    a(f"""
    s_lshl_b32 s29, s26, 12
    s_add_u32 s29, s29, s37
    s_add_u32 m0, s37, {WPHI_LDS}
    s_nop 0
    buffer_load_dwordx4 v19, s[20:23], s29 offen lds
    """)
    WB(18); WB(15); WB(4); WB(0)
    L = only_w4(a)
    a("s_mov_b32 s90, 0x400000\nv_mov_b32 v21, 0")
    a.label(L + "p")
    a(f"""
    buffer_load_dword v20, v21, s[84:87], 0 offen sc0 sc1
    s_waitcnt vmcnt(0)
    v_cmp_gt_u32 vcc, 256, v20
    s_sub_u32 s90, s90, 1
    s_cbranch_scc1 {L}
    s_cbranch_vccz {L}
    s_sleep 1
    s_branch {L}p
    """)
    a.label(L)
    a(f"""
    s_cmp_lg_u32 s24, 0
    s_cbranch_scc1 L_p1_hB
    s_and_b32 s37, s27, 1            ; hd
    s_and_b32 s29, s27, 3
    s_mul_i32 s29, s29, 6144
    v_lshlrev_b32 v5, 4, v0
    v_add_u32 v5, s29, v5
    """)
    epiA_setup(a)
    a("s_barrier")
    a("s_barrier")
    K = 64; PP = [96, 112, 128]; EE = 144
    for q in range(6): a(f"ds_read_b128 {v(K+4*q,4)}, v5 offset:{KH + q*1024}")
    for i in range(3):
        a(f"s_waitcnt lgkmcnt({4-2*i})")
        pk_mfma(a, PP[i], K + 8 * i)
    for i in range(3):
        softmax_pm(a, PP[i], EE, TT)
        phi_write(a, 1 + i, PP[i], EE)
        a("s_waitcnt lgkmcnt(0)")
        if i < 2: a("s_barrier")
    a.label("L_p1_hB")
    a("s_barrier")

SLOT = 32768
KVF = 131072; ZF = KVF + 4096; WPH = KVF + 5120
SELL = 8; LACC = [12, 16]; QF = [24, 32]; KS = [40, 48]; VS = [56, 64]
NEGM = [72, 88]; SB = [104, 120]; OA = [136, 152]

def p2_ids(a):
    a(f"""
    s_lshl_b32 s24, s3, 2
    s_lshr_b32 s29, s2, 6
    s_add_u32 s24, s24, s29          ; head
    s_bfe_u32 s25, s2, 0x30003       ; qt
    s_and_b32 s31, s27, 3
    s_lshl_b32 s26, s25, 3
    s_lshl_b32 s29, s31, 1
    s_add_u32 s26, s26, s29
    s_lshl_b32 s38, s24, 6
    s_add_u32 s38, s38, s26
    s_lshl_b32 s38, s38, 11          ; (h*64+tb0)*2048
    s_lshl_b32 s40, s24, 18
    s_add_u32 s40, s40, {KVB_OFF}
    s_lshl_b32 s46, s26, 5
    s_add_u32 s46, s46, s24
    s_lshl_b32 s46, s46, 11
    s_add_u32 s46, s46, {O_OFF}
    v_lshlrev_b32 v1, 4, v0
    """)

def p2_compute(a, opt):
    lf = opt.get("lf", " sc1")
    NT = 8
    a("s_waitcnt vmcnt(0)")
    stamp(a, opt, 3)
    a("s_barrier")
    p2_ids(a)
    a(f"""
    s_add_u32 s38, s38, {QB_OFF}
    v_mov_b32 v4, 0xdddd
    v_and_b32 v2, 4, v0
    v_cmp_eq_u32 vcc, 0, v2
    v_mov_b32 v2, 0
    v_mov_b32 v3, 0x3f803f80
    v_cndmask_b32 v{SELL}, v2, v3, vcc
    v_cndmask_b32 v{SELL+2}, v3, v2, vcc
    v_mov_b32 v{SELL+1}, v{SELL}
    v_mov_b32 v{SELL+3}, v{SELL+2}
    v_mov_b32 v2, v1
    s_add_u32 s47, s46, {4<<20}
    """)
    for b in range(2):
        for r in range(16): a(f"v_mov_b32 v{OA[b]+r}, 0")
        for r in range(4): a(f"v_mov_b32 v{LACC[b]+r}, 0")
    for r in range(4, 8): a(f"v_mov_b32 v{VS[1]+r}, 0")
    a("s_barrier")
    stamp(a, opt, 4)
    for b in range(2):
        for u in range(2):
            a(f"buffer_load_dwordx4 {v(QF[b]+4*u,4)}, v1, s[16:19], s38 offen offset:{b*2048+u*1024}{lf}")
    a("s_barrier")
    stamp(a, opt, 5)
    def kread(st, addr, j): return [f"ds_read_b128 {v(KS[st]+4*u,4)}, {addr} offset:{j*4096+u*1024}" for u in range(2)]
    def vread(st, addr, j): return [f"ds_read_b128 {v(VS[st]+4*u,4)}, {addr} offset:{j*4096+2048+u*1024}" for u in range(2)]
    for r in kread(0, "v2", 0) + vread(0, "v2", 0) + kread(1, "v2", 1): a(r)
    a("s_waitcnt vmcnt(0) lgkmcnt(4)")
    for b in range(2):
        a(f"v_mfma_f32_32x32x16_bf16 {v(SB[b],16)}, {v(KS[0],4)}, {v(QF[b],4)}, 0")
        a(f"v_mfma_f32_32x32x16_bf16 {v(SB[b],16)}, {v(KS[0]+4,4)}, {v(QF[b]+4,4)}, {v(SB[b],16)}")
    def rowmax(S, dst, init=True):
        if init:
            a(f"v_max3_f32 v{dst}, v{S}, v{S+1}, v{S+2}")
            for r in range(3, 15, 2): a(f"v_max3_f32 v{dst}, v{dst}, v{S+r}, v{S+r+1}")
            a(f"v_max_f32 v{dst}, v{dst}, v{S+15}")
        else:
            for r in range(0, 16, 2): a(f"v_max3_f32 v{dst}, v{dst}, v{S+r}, v{S+r+1}")
    def finish_max(dst, tmp, NM):
        a(f"v_mov_b32 v{tmp}, v{dst}")
        a(f"v_permlane32_swap_b32 v{dst}, v{tmp}")
        a(f"v_max_f32 v{dst}, v{dst}, v{tmp}")
        for r in range(16): a(f"v_sub_f32 v{NM+r}, 0, v{dst}")
    rowmax(SB[0], 6); finish_max(6, 7, NEGM[0])
    a(f"v_mfma_f32_32x32x16_bf16 {v(SB[0],16)}, {v(KS[0],4)}, {v(QF[0],4)}, {v(NEGM[0],16)}")
    a(f"v_mfma_f32_32x32x16_bf16 {v(SB[0],16)}, {v(KS[0]+4,4)}, {v(QF[0]+4,4)}, {v(SB[0],16)}")
    rowmax(SB[1], 6); finish_max(6, 7, NEGM[1])
    for r in range(8, 16): a(f"v_mov_b32 v{SB[1]+r}, 0")
    a("s_mov_b32 s28, 0")
    a.raw(".p2align 6")
    a.label("L_p2_loop", keep_hist=True)
    start = len(a.lines)
    pat = "ePeeelreMeeeNweeeVeeeeeLr"
    for n in range(2 * NT):
        j = n >> 1; b = n & 1
        A = SB[b]; B = SB[b ^ 1]
        jprev = j - 1 if b == 0 else j
        jnext = j if b == 0 else j + 1
        if b == 0: R = vread((j + 1) & 1, "v2" if j + 1 < NT else "v3", (j + 1) % NT)
        else: R = kread(j & 1, "v2" if j + 2 < NT else "v3", (j + 2) % NT)
        e = rr = 0
        for ch in pat:
            if ch == "e": a(f"v_exp_f32 v{A+e}, v{A+e}"); e += 1
            elif ch == "P":
                a(f"v_smfmac_f32_32x32x32_bf16 {v(OA[b^1],16)}, {v(VS[jprev&1]+4,4)}, {v(B+8,8)}, v4")
                if n == 2 * NT - 3: a("s_barrier")
            elif ch == "l": a(f"v_smfmac_f32_16x16x64_bf16 {v(LACC[b^1],4)}, {v(SELL,4)}, {v(B+8,8)}, v4")
            elif ch == "L": a(f"v_smfmac_f32_16x16x64_bf16 {v(LACC[b],4)}, {v(SELL,4)}, {v(A,8)}, v4")
            elif ch == "w": a("s_waitcnt lgkmcnt(1)" if b == 0 else "s_nop 0")
            elif ch == "M":
                a(f"v_mfma_f32_32x32x16_bf16 {v(B,16)}, {v(KS[jnext&1],4)}, {v(QF[b^1],4)}, {v(NEGM[b^1],16)}")
                if n == 2 * NT - 1: a("v_mov_b32 v2, v3")
            elif ch == "N": a(f"v_mfma_f32_32x32x16_bf16 {v(B,16)}, {v(KS[jnext&1]+4,4)}, {v(QF[b^1]+4,4)}, {v(B,16)}")
            elif ch == "V":
                a(f"v_smfmac_f32_32x32x32_bf16 {v(OA[b],16)}, {v(VS[j&1],4)}, {v(A,8)}, v4")
                if n == 2 * NT - 1: a("s_add_u32 s28, s28, 1")
                if n == 0: a(f"v_add_u32 v3, {SLOT}, v2")
                if n == 1: a(f"v_and_b32 v3, {4*SLOT-1}, v3")
            elif ch == "r": a(R[rr]); rr += 1
    a("s_cmp_lt_u32 s28, 8")
    a("s_cbranch_scc1 L_p2_loop")
    assert check_loop(a.lines[start:]) == (0, 0)
    a("s_nop 1")
    a(f"v_smfmac_f32_32x32x32_bf16 {v(OA[1],16)}, {v(VS[1]+4,4)}, {v(SB[1]+8,8)}, v4")
    a(f"v_smfmac_f32_16x16x64_bf16 {v(LACC[1],4)}, {v(SELL,4)}, {v(SB[1]+8,8)}, v4")
    stamp(a, opt, 6)
    O0 = OA[0]; O1 = OA[1]; L0r = LACC[0]
    a("s_mov_b32 s48, 0")
    a.label("L_p2_blk")
    a(f"""
    s_mov_b32 s36, 0x5d800000        ; 2^60
    v_cmp_nlt_f32 vcc, v{L0r}, s36
    s_cmp_lg_u64 vcc, 0
    s_cbranch_scc1 L_p2_slow
    """)
    a.label("L_p2_fin", keep_hist=True)
    a(f"v_rcp_f32 v{L0r}, v{L0r}")
    for r in range(0, 16, 2):
        a(f"v_pk_mul_f32 {v(O0+r,2)}, {v(O0+r,2)}, {v(L0r,2)} op_sel_hi:[1,0]")
    cvt_inplace(a, O0)
    a(f"buffer_store_dwordx4 {v(O0,4)}, v1, s[16:19], s47 offen{SC}")
    a(f"buffer_store_dwordx4 {v(O0+4,4)}, v1, s[16:19], s47 offen offset:1024{SC}")
    a(f"""
    s_cmp_lg_u32 s48, 0
    s_cbranch_scc1 L_p2_out
    s_mov_b32 s48, 1
    s_add_u32 s47, s47, 65536
    """)
    for r in range(16): a(f"v_mov_b32 v{O0+r}, v{O1+r}")
    a(f"v_mov_b32 v{L0r}, v{LACC[1]}")
    for r in range(8): a(f"v_mov_b32 v{QF[0]+r}, v{QF[1]+r}")
    a("s_branch L_p2_blk")
    S0 = SB[0]; Q0 = QF[0]; NM = NEGM[0]
    a.label("L_p2_slow")
    a(f"""
    s_waitcnt lgkmcnt(0)
    s_mov_b32 s36, s40
    s_mov_b32 s28, 0
    v_mov_b32 v6, 0xff800000
    """)
    a.label("L_p2_slow1")
    a(f"""
    buffer_load_dwordx4 {v(KS[0],4)}, v1, s[16:19], s36 offen{lf}
    buffer_load_dwordx4 {v(KS[0]+4,4)}, v1, s[16:19], s36 offen offset:1024{lf}
    s_waitcnt vmcnt(0)
    v_mfma_f32_32x32x16_bf16 {v(S0,16)}, {v(KS[0],4)}, {v(Q0,4)}, 0
    v_mfma_f32_32x32x16_bf16 {v(S0,16)}, {v(KS[0]+4,4)}, {v(Q0+4,4)}, {v(S0,16)}
    """)
    rowmax(S0, 6, init=False)
    a(f"""
    s_add_u32 s36, s36, 4096
    s_add_u32 s28, s28, 1
    s_cmp_lt_u32 s28, 64
    s_cbranch_scc1 L_p2_slow1
    """)
    finish_max(6, 7, NM)
    for r in range(16): a(f"v_mov_b32 v{O0+r}, 0")
    for r in range(4): a(f"v_mov_b32 v{L0r+r}, 0")
    a("s_mov_b32 s36, s40\ns_mov_b32 s28, 0")
    a.label("L_p2_slow2")
    a(f"""
    buffer_load_dwordx4 {v(KS[0],4)}, v1, s[16:19], s36 offen{lf}
    buffer_load_dwordx4 {v(KS[0]+4,4)}, v1, s[16:19], s36 offen offset:1024{lf}
    buffer_load_dwordx4 {v(VS[0],4)}, v1, s[16:19], s36 offen offset:2048{lf}
    buffer_load_dwordx4 {v(VS[0]+4,4)}, v1, s[16:19], s36 offen offset:3072{lf}
    s_waitcnt vmcnt(0)
    v_mfma_f32_32x32x16_bf16 {v(S0,16)}, {v(KS[0],4)}, {v(Q0,4)}, {v(NM,16)}
    v_mfma_f32_32x32x16_bf16 {v(S0,16)}, {v(KS[0]+4,4)}, {v(Q0+4,4)}, {v(S0,16)}
    """)
    for r in range(16): a(f"v_exp_f32 v{S0+r}, v{S0+r}")
    a(f"""
    v_smfmac_f32_32x32x32_bf16 {v(O0,16)}, {v(VS[0],4)}, {v(S0,8)}, v4
    v_smfmac_f32_16x16x64_bf16 {v(L0r,4)}, {v(SELL,4)}, {v(S0,8)}, v4
    v_smfmac_f32_32x32x32_bf16 {v(O0,16)}, {v(VS[0]+4,4)}, {v(S0+8,8)}, v4
    v_smfmac_f32_16x16x64_bf16 {v(L0r,4)}, {v(SELL,4)}, {v(S0+8,8)}, v4
    s_nop 15
    s_add_u32 s36, s36, 4096
    s_add_u32 s28, s28, 1
    s_cmp_lt_u32 s28, 64
    s_cbranch_scc1 L_p2_slow2
    s_nop 15
    s_branch L_p2_fin
    """)
    a.label("L_p2_out")

def p2_helper(a, opt):
    lf = opt.get("lf", " sc1")
    P0 = 8; QAF = 72; ZP0 = 88; JUNK = 96
    p2_ids(a)
    a(f"""
    s_lshl_b32 s41, s31, 13
    s_add_u32 s42, s40, s41
    s_mov_b32 s43, s41
    s_add_u32 s38, s38, {QA_OFF}
    s_mov_b32 s44, {f2u(LOG2E)}
    s_mov_b32 s45, {f2u(LOG2E)}
    s_lshr_b32 s50, s2, 3
    s_lshl_b32 s50, s50, 16
    s_lshl_b32 s37, s31, 14
    s_add_u32 s50, s50, s37
    v_lshlrev_b32 v3, 7, v0
    """)
    a("s_barrier")
    stamp(a, opt, 3)
    publish(a, 48)
    poll(a, 0, 8)
    if opt.get("inv"): a("buffer_inv sc1\ns_waitcnt vmcnt(0)")
    stamp(a, opt, 4)
    a("s_barrier")
    a("s_setprio 2")
    def dma_chunk():
        for hf in range(2):
            a(f"s_add_u32 m0, s43, {hf*4096}")
            a(f"s_add_u32 s29, s42, {hf*4096}")
            for n in range(4):
                a(f"buffer_load_dwordx4 v1, s[16:19], s29 offen offset:{n*1024}{lf} lds")
        a(f"s_add_u32 s42, s42, {SLOT}")
        a(f"s_add_u32 s43, s43, {SLOT}")
        a(f"s_and_b32 s43, s43, {4*SLOT-1}")
    def PF():
        a(f"buffer_load_dword v{JUNK}, v3, s[52:55], s50 offen")
        a(f"s_add_u32 s50, s50, 8192")
    dma_chunk()
    a("s_waitcnt vmcnt(0)")
    a("s_barrier")
    dma_chunk(); dma_chunk()
    a("s_waitcnt vmcnt(8)")
    a("s_barrier")
    poll(a, 8, 8)
    dma_chunk(); PF()
    a("s_waitcnt vmcnt(9)")
    a("s_barrier")
    dma_chunk()
    a(f"""
    s_lshl_b32 s36, s24, 16
    s_add_u32 s36, s36, {KVP_OFF}
    s_lshl_b32 s29, s31, 11
    s_add_u32 s36, s36, s29
    """)
    for t in range(8):
        a(f"buffer_load_dwordx4 {v(P0+8*t,4)}, v1, s[16:19], s36 offen{lf}")
        a(f"buffer_load_dwordx4 {v(P0+8*t+4,4)}, v1, s[16:19], s36 offen offset:1024{lf}")
        if t < 7: a("s_add_u32 s36, s36, 8192")
    for q in range(4):
        a(f"buffer_load_dwordx4 {v(QAF+4*q,4)}, v1, s[16:19], s38 offen offset:{q*1024}{lf}")
    a(f"""
    s_and_b32 s37, s31, 1
    s_lshl_b32 s37, s37, 10
    s_lshl_b32 s36, s24, 11
    s_add_u32 s36, s36, s37
    s_add_u32 m0, s37, {WPH}
    v_lshlrev_b32 v6, 2, v0
    buffer_load_dwordx4 v1, s[20:23], s36 offen lds
    s_lshl_b32 s36, s24, 11
    s_add_u32 s36, s36, {ZP_OFF}
    """)
    for t in range(8):
        a(f"buffer_load_dword v{ZP0+t}, v6, s[16:19], s36 offen offset:{t*256}{lf}")
    a("s_waitcnt vmcnt(38)")
    a("s_barrier")
    dma_chunk(); PF()
    a("s_waitcnt vmcnt(9)")
    for t in range(1, 8):
        for r in range(0, 8, 2):
            a(f"v_pk_add_f32 {v(P0+r,2)}, {v(P0+r,2)}, {v(P0+8*t+r,2)}")
    for r in range(4): a(f"v_cvt_pk_bf16_f32 v{P0+r}, v{P0+2*r}, v{P0+2*r+1}")
    a(f"""
    s_lshl_b32 s36, s31, 10
    s_add_u32 s36, s36, {KVF}
    v_add_u32 v6, s36, v1
    ds_write_b128 v6, {v(P0,4)}
    """)
    for t in range(1, 8): a(f"v_add_f32 v{ZP0}, v{ZP0}, v{ZP0+t}")
    a(f"""
    v_cvt_pk_bf16_f32 v{ZP0}, v{ZP0}, v{ZP0}
    v_lshrrev_b32 v6, 4, v0
    v_lshlrev_b32 v6, 5, v6
    v_and_b32 v7, 4, v0
    v_lshl_add_u32 v6, v7, 2, v6
    v_and_b32 v7, 8, v0
    v_add_u32 v6, v6, v7
    v_and_b32 v7, 3, v0
    v_lshl_add_u32 v6, v7, 1, v6
    v_add_u32 v6, {ZF}, v6
    ds_write_b16 v6, v{ZP0}
    v_mov_b32 v7, 0
    ds_write_b16 v6, v7 offset:128
    v_lshrrev_b32 v5, 5, v0          ; h
    v_bfe_u32 v6, v0, 2, 2
    v_lshl_add_u32 v6, v5, 2, v6     ; 4h+r
    v_bfe_u32 v7, v0, 4, 1
    v_lshlrev_b32 v7, 5, v7
    v_lshl_add_u32 v6, v6, 6, v7
    v_and_b32 v7, 3, v0
    v_lshl_add_u32 v6, v7, 3, v6
    v_add_u32 v2, {WPH}, v6
    v_lshrrev_b32 v6, 2, v0
    v_lshrrev_b32 v7, 4, v0
    v_xor_b32 v6, v6, v7
    v_and_b32 v6, 1, v6
    v_cmp_eq_u32 vcc, 0, v6
    v_lshlrev_b32 v5, 4, v5
    v_add_u32 v5, {ZF}, v5
    v_mov_b32 v6, {ZF+128}
    v_cndmask_b32 v7, v6, v5, vcc
    v_add_u32 v6, {KVF}, v1
    s_waitcnt lgkmcnt(0)
    s_barrier
    """)
    WP = 8; KVR = 16; ZR = 32; PQ = 48; EP = 104; T = 120; NUM = 136; DEN = 64
    dma_chunk()
    for u in range(2):
        for b in range(2):
            a(f"ds_read_b64_tr_b16 {v(WP+4*u+2*b,2)}, v2 offset:{(16*u+8*b)*64}")
    for f in range(4): a(f"ds_read_b128 {v(KVR+4*f,4)}, v6 offset:{f*1024}")
    for f in range(4): a(f"ds_read_b128 {v(ZR+4*f,4)}, v7 offset:{f*32}")
    a("s_waitcnt lgkmcnt(0)")
    def oa_block(b):
        a(f"v_mfma_f32_32x32x16_bf16 {v(PQ,16)}, {v(WP,4)}, {v(QAF+8*b,4)}, 0")
        a(f"v_mfma_f32_32x32x16_bf16 {v(PQ,16)}, {v(WP+4,4)}, {v(QAF+8*b+4,4)}, {v(PQ,16)}")
        softmax_pm(a, PQ, EP, T)
        for f in range(4):
            F = (EP if f < 2 else PQ) + 4 * (f & 1)
            a(f"v_mfma_f32_32x32x16_bf16 {v(NUM,16)}, {v(KVR+4*f,4)}, {v(F,4)}, {'0' if f == 0 else v(NUM,16)}")
            a(f"v_mfma_f32_16x16x32_bf16 {v(DEN,4)}, {v(ZR+4*f,4)}, {v(F,4)}, {'0' if f == 0 else v(DEN,4)}")
        a(f"""
        v_add_f32 v{DEN}, {f2u(1e-6)}, v{DEN}
        v_rcp_f32 v{DEN}, v{DEN}
        """)
        for r in range(0, 16, 2):
            a(f"v_pk_mul_f32 {v(NUM+r,2)}, {v(NUM+r,2)}, {v(DEN,2)} op_sel_hi:[1,0]")
        cvt_inplace(a, NUM)
        a(f"buffer_store_dwordx4 {v(NUM,4)}, v1, s[16:19], s46 offen{SC}")
        a(f"buffer_store_dwordx4 {v(NUM+4,4)}, v1, s[16:19], s46 offen offset:1024{SC}")
        a(f"s_add_u32 s46, s46, 65536")
    oa_block(0)
    a("s_waitcnt vmcnt(11)")
    a("s_barrier")
    dma_chunk()
    oa_block(1)
    a("s_waitcnt vmcnt(12)")
    a("s_barrier")
    a("s_waitcnt vmcnt(0)")
    a("s_barrier")
    publish(a, 50)
    a("s_setprio 0")

NS = 5
ACC3 = 72
OS = [8, 16, 24, 32]; WSR = [40, 48, 56, 64]
def p3_ids(a):
    a(f"""
    s_lshr_b32 s24, s3, 2            ; branch
    s_and_b32 s25, s3, 3
    s_lshl_b32 s25, s25, 2
    s_bfe_u32 s29, s2, 0x20003
    s_add_u32 s25, s25, s29
    s_lshr_b32 s26, s2, 5
    """)

def p3_compute(a, opt):
    a("s_waitcnt vmcnt(0) lgkmcnt(0)")
    stamp(a, opt, 7)
    a("s_barrier")
    p3_ids(a)
    a(f"""
    s_lshr_b32 s36, s27, 1           ; tw
    s_and_b32 s37, s27, 1            ; cw
    v_lshlrev_b32 v1, 4, v0
    s_lshl_b32 s29, s36, 13
    v_add_u32 v1, s29, v1
    v_lshrrev_b32 v2, 5, v0          ; h
    v_bfe_u32 v3, v0, 2, 2           ; r
    v_lshl_add_u32 v4, v2, 2, v3
    v_lshlrev_b32 v4, 8, v4
    s_lshl_b32 s29, s37, 1
    v_xor_b32 v3, s29, v3
    v_lshl_add_u32 v4, v3, 6, v4
    v_bfe_u32 v5, v0, 4, 1
    v_lshl_add_u32 v4, v5, 5, v4
    v_and_b32 v5, 3, v0
    v_lshl_add_u32 v4, v5, 3, v4
    v_add_u32 v2, 16384, v4
    v_xor_b32 v3, 64, v2
    s_mov_b32 s30, 0
    v_mov_b32 v4, v1
    v_mov_b32 v5, v2
    v_mov_b32 v6, v3
    s_mov_b32 s28, 16
    """)
    for r in range(ACC3, ACC3 + 64): a(f"v_mov_b32 v{r}, 0")
    def reads(st, c):
        O = OS[st]; W = WSR[st]
        o = [f"ds_read_b128 {v(O+4*i,4)}, v4 offset:{i*4096+c*1024}" for i in range(2)]
        w = [f"ds_read_b64_tr_b16 {v(W+4*cb+2*b,2)}, v{5+cb} offset:{(16*c+8*b)*256}" for cb in range(2) for b in range(2)]
        return [w[0], w[1], o[0], o[1], w[2], w[3]]
    def mf(st):
        O = OS[st]; W = WSR[st]
        return [f"v_mfma_f32_32x32x16_bf16 {v(ACC3+16*(2*i+cb),16)}, {v(W+4*cb,4)}, {v(O+4*i,4)}, {v(ACC3+16*(2*i+cb),16)}"
                for cb in range(2) for i in range(2)]
    a("s_barrier")
    stamp(a, opt, 8)
    a("s_barrier")
    stamp(a, opt, 9)
    for r in reads(0, 0) + reads(1, 1): a(r)
    a.raw(".p2align 6")
    a.label("L_p3_loop", keep_hist=True)
    start = len(a.lines)
    for c in range(4):
        M = mf(c); R = reads((c + 2) & 3, (c + 2) & 3)
        a("s_waitcnt lgkmcnt(6)")
        a(M[0])
        if c == 2: a("s_barrier")
        a(R[0]); a(R[1])
        a(M[1])
        a(R[2]); a(R[3])
        a(M[2])
        a(R[4]); a(R[5])
        if c == 1:
            a(f"""
            s_add_u32 s30, s30, {SLOT}
            s_cmp_eq_u32 s30, {SLOT*NS}
            s_cselect_b32 s30, 0, s30
            """)
        a(M[3])
        if c == 1:
            a("""
            v_add_u32 v4, s30, v1
            v_add_u32 v5, s30, v2
            v_add_u32 v6, s30, v3
            """)
        if c == 3:
            a("s_sub_u32 s28, s28, 1")
            a("s_cmp_lg_u32 s28, 0")
    a("s_cbranch_scc1 L_p3_loop")
    assert check_loop(a.lines[start:]) == (0, 0)
    a("s_waitcnt lgkmcnt(0)")
    stamp(a, opt, 10)
    RS = 144
    a(f"""
    s_lshl_b32 s38, s25, 7
    s_lshl_b32 s29, s36, 6
    s_add_u32 s38, s38, s29          ; token0
    s_lshl_b32 s38, s38, 12
    s_lshl_b32 s29, s24, 11
    s_add_u32 s38, s38, s29
    s_lshl_b32 s29, s26, 8
    s_add_u32 s38, s38, s29
    s_lshl_b32 s29, s37, 7
    s_add_u32 s38, s38, s29
    s_mul_i32 s29, s27, {64*RS}
    s_add_u32 s29, s29, {2*SLOT}
    v_and_b32 v1, 31, v0
    v_mul_u32_u24 v1, {RS}, v1
    v_lshrrev_b32 v2, 5, v0
    v_lshl_add_u32 v1, v2, 3, v1
    v_add_u32 v1, s29, v1
    v_lshrrev_b32 v2, 3, v0
    v_and_b32 v3, 7, v0
    v_mul_u32_u24 v4, {RS}, v2
    v_lshl_add_u32 v4, v3, 4, v4
    v_add_u32 v4, s29, v4
    v_lshlrev_b32 v2, 12, v2
    v_lshl_add_u32 v2, v3, 4, v2
    """)
    for i in range(2):
        for cb in range(2):
            D = ACC3 + 16 * (2 * i + cb)
            for r in range(8): a(f"v_cvt_pk_bf16_f32 v{D+r}, v{D+2*r}, v{D+2*r+1}")
            for g in range(4):
                a(f"ds_write_b64 v1, {v(D+2*g,2)} offset:{i*32*RS + cb*64 + g*16}")
        for q in range(4):
            a(f"ds_read_b128 {v(8+16*i+4*q,4)}, v4 offset:{(i*32+q*8)*RS}")
    for i in range(2):
        for q in range(4):
            a(f"s_waitcnt lgkmcnt({(3-q) + (12 if i == 0 else 0)})")
            a(f"buffer_store_dwordx4 {v(8+16*i+4*q,4)}, v2, s[56:59], s38 offen{SC}")
            a(f"s_add_u32 s38, s38, {8*4096}")

def p3_helper(a, opt):
    lf = opt.get("lf", " sc1")
    p3_ids(a)
    a(f"""
    s_sub_u32 s36, s27, 4            ; lw
    v_lshlrev_b32 v1, 4, v0
    v_lshrrev_b32 v2, 4, v0          ; r
    v_and_b32 v3, 15, v0             ; p
    v_lshlrev_b32 v4, 2, v2
    v_xor_b32 v3, v3, v4
    v_lshlrev_b32 v3, 4, v3
    v_lshl_add_u32 v8, v2, 11, v3
    s_lshl_b32 s29, s26, 8
    s_lshl_b32 s37, s36, 15
    s_add_u32 s29, s29, s37
    v_add_u32 v8, s29, v8
    v_add_u32 v9, 8192, v8
    v_add_u32 v10, 16384, v8
    v_add_u32 v11, 24576, v8
    s_lshl_b32 s38, s25, 2
    s_add_u32 s38, s38, s36          ; tb
    s_lshl_b32 s38, s38, 16
    s_lshl_b32 s29, s24, 22
    s_add_u32 s38, s38, s29
    s_add_u32 s38, s38, {O_OFF}      ; O soffset
    s_lshl_b32 s37, s36, 12          ; lw*4096
    s_add_u32 s40, s37, {SLOT*NS}
    """)
    def GWs(t):
        a(f"s_mov_b32 s39, {t*64*2048}")
        for n in range(4):
            a(f"s_add_u32 m0, s37, {t*SLOT+16384+n*1024}")
            a(f"buffer_load_dwordx4 v{8+n}, s[52:55], s39 offen lds")
    def GOs(t):
        a(f"s_add_u32 m0, s37, {t*SLOT}")
        a("s_nop 0")
        for n in range(4): a(f"buffer_load_dwordx4 v1, s[16:19], s38 offen offset:{n*1024}{lf} lds")
        a("s_add_u32 s38, s38, 4096")
    def G():
        a("s_mov_b32 m0, s30")
        a("s_nop 0")
        for n in range(4): a(f"buffer_load_dwordx4 v1, s[16:19], s38 offen offset:{n*1024}{lf} lds")
        for n in range(4):
            a(f"s_add_u32 m0, s30, {16384+n*1024}")
            a(f"buffer_load_dwordx4 v{8+n}, s[52:55], s39 offen lds")
        a(f"""
        s_add_u32 s38, s38, 4096
        s_add_u32 s39, s39, {64*2048}
        s_add_u32 s30, s30, {SLOT}
        s_cmp_eq_u32 s30, s40
        s_cselect_b32 s30, s37, s30
        """)
    GWs(4)
    a("s_barrier")
    GWs(0); GWs(1); GWs(2)
    a("s_barrier")
    stamp(a, opt, 7)
    publish(a, 49)
    GWs(3)
    poll(a, 16, 32)
    if opt.get("inv"): a("buffer_inv sc1\ns_waitcnt vmcnt(0)")
    stamp(a, opt, 8)
    a("s_barrier")
    GOs(0); GOs(1)
    a("s_waitcnt vmcnt(4)")
    a("s_barrier")
    GOs(2)
    a("s_waitcnt vmcnt(4)")
    a("s_barrier")
    GOs(3); GOs(4)
    a(f"s_mov_b32 s39, {5*64*2048}\ns_mov_b32 s30, s37")
    a("s_waitcnt vmcnt(8)")
    a("s_barrier")
    G()
    a("s_waitcnt vmcnt(12)")
    a("s_barrier")
    G()
    a("s_mov_b32 s28, 9")
    a.label("L_p3_lloop")
    a("s_waitcnt vmcnt(16)")
    a("s_barrier")
    G()
    a(f"""
    s_sub_u32 s28, s28, 1
    s_cmp_lg_u32 s28, 0
    s_cbranch_scc1 L_p3_lloop
    """)
    for n in (16, 8, 0):
        a(f"s_waitcnt vmcnt({n})")
        a("s_barrier")

def gen(opt):
    a = Asm()
    a.raw(khead(NAME))
    a(f"""
    s_cmp_ge_u32 s2, 256
    s_cbranch_scc1 L_end
    s_and_b32 s3, s2, 7
    s_lshr_b32 s24, s3, 2            ; branch
    s_lshl_b32 s29, s24, 5
    s_load_dwordx4 s[4:7], s[0:1], s29
    s_load_dwordx2 s[32:33], s[0:1], 72
    s_load_dwordx2 s[34:35], s[0:1], 16
    s_mul_i32 s29, s24, 24
    s_add_u32 s29, s29, 24
    s_load_dwordx2 s[52:53], s[0:1], s29
    s_load_dwordx4 s[44:47], s[0:1], 56
    s_and_b32 s25, s3, 1
    s_lshl_b32 s25, s25, 2
    s_bfe_u32 s29, s2, 0x20003
    s_add_u32 s25, s25, s29          ; tt
    s_bfe_u32 s26, s3, 0x10001
    s_lshl_b32 s26, s26, 3
    s_lshr_b32 s29, s2, 5
    s_add_u32 s26, s26, s29          ; ct
    v_lshrrev_b32 v1, 6, v0
    v_and_b32 v0, 63, v0
    v_readfirstlane_b32 s27, v1
    s_lshl_b32 s29, s25, 19
    s_mov_b32 s10, 0x80000
    s_mov_b32 s11, 0x20000
    s_mov_b32 s14, 0x600000
    s_mov_b32 s15, 0x20000
    s_mov_b32 s18, 0x10000000
    s_mov_b32 s19, 0x20000
    s_mov_b32 s22, 0x10000
    s_mov_b32 s23, 0x20000
    s_mov_b32 s54, 0x200000
    s_mov_b32 s55, 0x20000
    s_mov_b32 s58, 0x800000
    s_mov_b32 s59, 0x20000
    s_mov_b32 s86, 256
    s_mov_b32 s87, 0x20000
    s_waitcnt lgkmcnt(0)
    s_add_u32 s8, s4, s29
    s_addc_u32 s9, s5, 0
    s_mov_b32 s12, s6
    s_mov_b32 s13, s7
    s_mov_b32 s16, s32
    s_mov_b32 s17, s33
    s_mov_b32 s20, s34
    s_mov_b32 s21, s35
    s_mov_b32 s56, s44
    s_mov_b32 s57, s45
    s_mov_b32 s84, s46
    s_mov_b32 s85, s47
    """)
    for i in range(12): stamp(a, opt, i)
    a("s_cmp_lt_u32 s27, 4\ns_cbranch_scc1 L_compute")
    p1_helper(a, opt)
    p2_helper(a, opt)
    p3_helper(a, opt)
    a("s_branch L_fin")
    a.label("L_compute")
    p1_compute(a, opt)
    p2_compute(a, opt)
    p3_compute(a, opt)
    a.label("L_fin")
    stamp_out(a, opt)
    a.label("L_end")
    a("s_endpgm")
    return a.text()

if __name__ == "__main__":
    import json, subprocess
    out = sys.argv[1]
    opt = json.loads(sys.argv[2]) if len(sys.argv) > 2 else {}
    HEADER = open("concat_heads__linear_kernel_hedgehog__mha_block__prompt.s.ref").read().split("; Override launch")[0]
    launch = f"; @launch kernel={NAME} grid=(256,1,1) block=(512,1,1) lds=163840" if opt.get("list", 1) else "; @launch grid=(256,1,1) block=(512,1,1) lds=163840"
    s = HEADER + launch + '\n.amdgcn_target "amdgcn-amd-amdhsa--gfx950"\n.text\n' + gen(opt) + '.section .rodata,"a"\n' + kdesc(NAME, 256, 96)
    open(out, "w").write(s)
    r = subprocess.run(["clang", "-x", "assembler", "-target", "amdgcn-amd-amdhsa", "-mcpu=gfx950", "-c", out, "-o", "_b.o"], capture_output=True, text=True)
    if r.returncode != 0:
        print(r.stderr[:1500]); raise SystemExit(1)
```

```python
from asmlib import *
import math, sys
import k1
from k1 import (QB_OFF, KVB_OFF, QA_OFF, KVP_OFF, ZP_OFF, O_OFF, LOG2E, f2u, softmax_pm, cvt_inplace,
                W_SLOT, NW, X_BASE, X_SLOT, NX, WPHI_LDS, ACCQ, ACCK, ACCV, reads as p1_reads, mfmas as p1_mfmas,
                epi_A, epi_B, epiA_setup, pk_mfma, phi_write, KH, TT, PH_BLK)

NAME = "concat_heads__linear_kernel_hedgehog__mha_block__prompt_kernel"
FLG = 29 << 20
F1B, F1A, F2B, F2A = FLG, FLG + 2048, FLG + 4096, FLG + 5120
STAMP_OFF = 30 << 20
VSNAP, VFA, VPOL = 250, 251, 252
SC = " sc0 sc1"

def stamp(a, opt, idx):
    if not opt.get("stamp"): return
    a(f"s_memrealtime s[{60+2*idx}:{61+2*idx}]")
    a("s_waitcnt lgkmcnt(0)")
def stamp_out(a, opt):
    if not opt.get("stamp"): return
    a("s_waitcnt vmcnt(0)")
    stamp(a, opt, 11)
    if opt.get("stamp") == 2:
        a("s_cmp_lg_u32 s27, 0\ns_cbranch_scc1 L_end\nv_mov_b32 v9, 0\ns_mov_b64 exec, 1")
        for i in range(1, 12):
            a(f"s_sub_u32 s29, s{60+2*i}, s60")
            a("v_mov_b32 v8, s29")
            a(f"buffer_atomic_umax v8, v9, s[84:87], 0 offen offset:{4*i} sc1")
        a("s_not_b32 s29, s60\nv_mov_b32 v8, s29\nbuffer_atomic_umax v8, v9, s[84:87], 0 offen offset:48 sc1")
        a("v_mov_b32 v8, s82\nbuffer_atomic_umax v8, v9, s[84:87], 0 offen offset:52 sc1")
        a("v_mov_b32 v8, s60\nbuffer_atomic_umax v8, v9, s[84:87], 0 offen offset:56 sc1")
        return
    a(f"""
    s_lshl_b32 s29, s2, 3
    s_add_u32 s29, s29, s27
    s_lshl_b32 s29, s29, 6
    s_add_u32 s29, s29, {STAMP_OFF}
    v_mov_b32 v9, 0
    """)
    for i in range(12):
        a(f"v_mov_b32 v8, s{60+2*i}")
        a(f"buffer_store_dword v8, v9, s[16:19], s29 offen offset:{4*i}")

_uid = [0]
def only_w4(a):
    _uid[0] += 1
    L = f"L_w4_{_uid[0]}"
    a(f"s_cmp_lg_u32 s27, 4\ns_cbranch_scc1 {L}")
    return L
def poll(a, lo, n):
    L = only_w4(a)
    mask = ((1 << n) - 1) << lo
    a(f"""
    s_mov_b32 s88, {mask & 0xffffffff}
    s_mov_b32 s89, {mask >> 32}
    s_mov_b32 s90, 0x400000
    s_mov_b64 exec, s[88:89]
    """)
    a.label(L + "p")
    a(f"""
    buffer_load_dword v{VPOL}, v{VFA}, s[16:19], 0 offen sc0 sc1
    s_waitcnt vmcnt(0)
    v_cmp_eq_u32 vcc, v{VPOL}, v{VSNAP}
    s_sub_u32 s90, s90, 1
    s_cbranch_scc1 {L}d
    s_cbranch_vccz {L}d
    s_sleep 1
    s_branch {L}p
    """)
    a.label(L + "d")
    a("s_mov_b64 exec, -1")
    a.label(L)
def publish(a, lane):
    L = only_w4(a)
    a(f"""
    v_add_u32 v{VPOL}, 1, v{VSNAP}
    s_mov_b32 exec_lo, 0
    s_mov_b32 exec_hi, {1 << (lane - 32)}
    buffer_store_dword v{VPOL}, v{VFA}, s[16:19], 0 offen sc0 sc1
    s_mov_b64 exec, -1
    """)
    a.label(L)

def p1_compute(a, opt):
    a(f"""
    s_lshr_b32 s36, s27, 1          ; tw
    s_and_b32 s37, s27, 1           ; hd
    v_and_b32 v8, 31, v0            ; n
    v_lshrrev_b32 v9, 5, v0         ; h
    v_bfe_u32 v10, v8, 1, 3         ; f
    v_xor_b32 v10, v10, v9
    v_lshlrev_b32 v10, 4, v10
    s_lshl_b32 s29, s36, 14
    v_lshlrev_b32 v11, 7, v8
    v_add3_u32 v1, v11, v10, s29
    v_xor_b32 v2, 32, v1
    v_xor_b32 v3, 64, v1
    v_xor_b32 v4, 0x60, v1
    v_bfe_u32 v10, v0, 2, 2         ; r
    v_lshl_add_u32 v11, v9, 3, v10
    v_lshlrev_b32 v11, 7, v11
    v_lshrrev_b32 v10, 1, v10
    v_xor_b32 v10, s37, v10
    v_lshl_add_u32 v11, v10, 6, v11
    v_bfe_u32 v10, v0, 4, 1
    v_lshl_add_u32 v11, v10, 5, v11
    v_and_b32 v10, 3, v0
    v_lshl_add_u32 v5, v10, 3, v11
    s_mov_b32 s30, {X_BASE}
    s_mov_b32 s31, 0
    v_add_u32 v6, s30, v1
    v_mov_b32 v7, v5
    s_mov_b32 s28, 16
    """)
    for r in range(64, 256): a(f"v_mov_b32 v{r}, 0")
    a("s_barrier")
    stamp(a, opt, 1)
    for r in p1_reads(a, 0, 0, 0): a(r)
    a.raw(".p2align 6")
    a.label("L_p1_loop", keep_hist=True)
    start = len(a.lines)
    for c in range(4):
        st = c & 1
        M = p1_mfmas(st)
        c1 = (c + 1) & 3
        R = p1_reads(a, st ^ 1, c1, c1 & 1)
        pre = []
        if c & 1:
            pre += [f"s_add_u32 s31, s31, {W_SLOT}", f"s_cmp_eq_u32 s31, {W_SLOT*NW}", "s_cselect_b32 s31, 0, s31"]
        if c == 3:
            pre += [f"s_add_u32 s30, s30, {X_SLOT}", f"s_cmp_eq_u32 s30, {X_BASE+X_SLOT*NX}", f"s_cselect_b32 s30, {X_BASE}, s30"]
        a("s_waitcnt lgkmcnt(3)")
        a(M[0])
        for p in pre[:3]: a(p)
        a(M[1])
        for p in pre[3:]: a(p)
        if c & 1: a("v_add_u32 v7, s31, v5")
        a(f"v_add_u32 v6, s30, v{1+c1}")
        a(M[2])
        a("s_waitcnt lgkmcnt(0)")
        if c & 1: a("s_barrier")
        sched = [2, 2, 2, 2, 1, 1, 0, 0, 0]
        k = 0
        for g in range(9):
            for _ in range(sched[g]):
                a(R[k]); k += 1
            if c == 3 and g == 7:
                a("s_sub_u32 s28, s28, 1")
                a("s_cmp_lg_u32 s28, 0")
            a(M[3 + g])
    a("s_cbranch_scc1 L_p1_loop")
    assert check_loop(a.lines[start:]) == (0, 0)
    a("s_waitcnt lgkmcnt(0)")
    stamp(a, opt, 2)
    a(f"""
    s_lshl_b32 s38, s26, 1
    s_add_u32 s38, s38, s37          ; head
    s_lshl_b32 s39, s25, 3
    s_lshl_b32 s29, s36, 2
    s_add_u32 s39, s39, s29          ; tb0
    s_lshl_b32 s40, s38, 6
    s_add_u32 s40, s40, s39          ; h*64+tb0
    v_lshlrev_b32 v1, 4, v0
    s_nop 3
    s_cmp_eq_u32 s24, 0
    s_cbranch_scc1 L_p1_epiA
    """)
    epi_B(a, "p1", {})
    a("s_branch L_p1_done")
    a.label("L_p1_epiA")
    epi_A(a, "p1", {})
    a.label("L_p1_done")

def p1_helper(a, opt):
    a(f"""
    s_lshr_b32 s49, s3, 1
    s_xor_b32 s49, s49, s3
    s_and_b32 s49, s49, 1
    s_lshl_b32 s49, s49, 3
    s_sub_u32 s36, s27, 4            ; lw
    v_lshrrev_b32 v1, 3, v0          ; r
    v_and_b32 v2, 7, v0              ; p
    v_lshrrev_b32 v3, 1, v1
    s_lshl_b32 s29, s36, 3
    v_add_u32 v5, s29, v1            ; 8lw + r
    v_and_b32 v6, 1, v3
    v_lshlrev_b32 v6, 2, v6
    v_xor_b32 v6, v6, v2
    v_lshlrev_b32 v6, 4, v6
    v_mul_u32_u24 v16, 6144, v5
    s_lshl_b32 s29, s26, 7
    v_add3_u32 v16, v16, v6, s29
    v_add_u32 v17, 2048, v16
    v_add_u32 v18, 4096, v16
    s_lshl_b32 s37, s36, 10          ; lw*1024
    s_add_u32 s30, s37, {X_BASE}
    s_mov_b32 s31, s37
    s_lshl_b32 s38, s49, 7           ; X soffset
    s_mul_i32 s39, s49, {64*6144}    ; W soffset
    s_add_u32 s40, s37, {X_BASE + NX*X_SLOT}
    s_add_u32 s41, s37, {W_SLOT*NW}
    s_add_u32 s42, s37, {X_BASE}
    """)
    def GX():
        for n in range(8):
            a(f"s_add_u32 m0, s30, {n*4096}")
            a(f"buffer_load_dwordx4 v{8+n}, s[8:11], s38 offen lds")
        a(f"""
        s_add_u32 s38, s38, 128
        s_and_b32 s38, s38, 2047
        s_add_u32 s30, s30, {X_SLOT}
        s_cmp_eq_u32 s30, s40
        s_cselect_b32 s30, s42, s30
        """)
    def GW():
        for sg in range(3):
            a(f"s_add_u32 m0, s31, {sg*4096}")
            a(f"buffer_load_dwordx4 v{16+sg}, s[12:15], s39 offen lds")
        a(f"""
        s_add_u32 s39, s39, {32*6144}
        s_cmp_eq_u32 s39, {1024*6144}
        s_cselect_b32 s39, 0, s39
        s_add_u32 s31, s31, {W_SLOT}
        s_cmp_eq_u32 s31, s41
        s_cselect_b32 s31, s37, s31
        """)
    def WB(n):
        a(f"s_waitcnt vmcnt({n})")
        a("s_barrier")
    GW()
    a(f"""
    s_and_b32 s29, s36, 1
    s_lshl_b32 s29, s29, 2
    v_add_u32 v4, s29, v3            ; f
    v_xor_b32 v4, v4, v2
    v_lshlrev_b32 v4, 4, v4
    v_lshl_add_u32 v8, v5, 11, v4
    """)
    for n in range(1, 8): a(f"v_add_u32 v{8+n}, {n*65536}, v8")
    GX(); GW()
    a(f"""
    v_lshlrev_b32 v19, 4, v0
    s_lshl_b32 s43, s3, 1
    s_lshr_b32 s29, s2, 7
    s_add_u32 s43, s43, s29
    s_lshl_b32 s43, s43, 7
    s_add_u32 s43, s43, {F1B}
    v_and_b32 v20, 7, v0
    v_lshlrev_b32 v20, 2, v20
    v_and_b32 v21, 8, v0
    v_lshl_add_u32 v20, v21, 8, v20
    v_add_u32 v20, s43, v20          ; lanes 0..15
    s_and_b32 s43, s3, 3
    s_lshl_b32 s43, s43, 1
    s_bfe_u32 s29, s2, 0x10004
    s_add_u32 s43, s43, s29
    s_lshl_b32 s43, s43, 7
    s_lshl_b32 s29, s24, 10
    s_sub_u32 s43, s43, s29
    s_add_u32 s43, s43, {F2A - 64}
    v_lshl_add_u32 v21, v0, 2, s43   ; lanes 16..47
    v_cmp_gt_u32 vcc, 16, v0
    s_lshl_b32 s43, s26, 7
    s_lshl_b32 s29, s25, 2
    s_add_u32 s43, s43, s29
    v_cndmask_b32 v20, v21, v20, vcc
    s_lshl_b32 s29, s24, 11
    s_sub_u32 s43, s43, s29
    s_add_u32 s43, s43, {F1A}
    v_mov_b32 v21, s43
    v_cmp_gt_u32 vcc, 48, v0
    s_bfe_u32 s43, s2, 0x30003
    s_lshl_b32 s43, s43, 7
    v_cndmask_b32 v20, v21, v20, vcc
    s_lshl_b32 s29, s3, 4
    s_add_u32 s43, s43, s29
    s_lshr_b32 s29, s2, 6
    s_lshl_b32 s29, s29, 2
    s_add_u32 s43, s43, s29
    s_add_u32 s43, s43, {F2B}        ; own F2B
    v_mov_b32 v21, s43
    v_cmp_ne_u32 vcc, 49, v0
    s_add_u32 s43, s43, 1024
    s_nop 0
    v_cndmask_b32 v20, v21, v20, vcc
    v_mov_b32 v21, s43
    v_cmp_ne_u32 vcc, 50, v0
    s_nop 1
    v_cndmask_b32 v{VFA}, v21, v20, vcc
    """)
    a("s_waitcnt vmcnt(3)")
    a("s_barrier")
    L = only_w4(a)
    a(f"buffer_load_dword v{VSNAP}, v{VFA}, s[16:19], 0 offen sc0 sc1")
    a.label(L)
    GX(); GW(); WB(11)
    GW(); GX(); WB(11)
    L = only_w4(a)
    a(f"""
    v_mov_b32 v20, 1
    v_mov_b32 v21, 0
    s_mov_b64 exec, 1
    buffer_atomic_add v20, v21, s[84:87], 0 offen sc1
    s_mov_b64 exec, -1
    """)
    a.label(L)
    GW(); GX(); WB(19)
    GW(); GW(); GW(); WB(17)
    GX(); GW(); WB(17)
    GW(); WB(17)
    GX(); GW()
    a("s_mov_b32 s28, 10")
    a.label("L_p1_lloop")
    WB(25); GW(); WB(17); GX(); GW()
    a(f"""
    s_sub_u32 s28, s28, 1
    s_cmp_lg_u32 s28, 0
    s_cbranch_scc1 L_p1_lloop
    """)
    WB(25)
    GW()
    a(f"""
    s_lshl_b32 s29, s26, 12
    s_add_u32 s29, s29, s37
    s_add_u32 m0, s37, {WPHI_LDS}
    s_nop 0
    buffer_load_dwordx4 v19, s[20:23], s29 offen lds
    """)
    WB(18); WB(15); WB(4); WB(0)
    L = only_w4(a)
    a("s_mov_b32 s90, 0x400000\nv_mov_b32 v21, 0")
    a.label(L + "p")
    a(f"""
    buffer_load_dword v20, v21, s[84:87], 0 offen sc0 sc1
    s_waitcnt vmcnt(0)
    v_cmp_gt_u32 vcc, 256, v20
    s_sub_u32 s90, s90, 1
    s_cbranch_scc1 {L}
    s_cbranch_vccz {L}
    s_sleep 1
    s_branch {L}p
    """)
    a.label(L)
    a(f"""
    s_cmp_lg_u32 s24, 0
    s_cbranch_scc1 L_p1_hB
    s_and_b32 s37, s27, 1            ; hd
    s_and_b32 s29, s27, 3
    s_mul_i32 s29, s29, 6144
    v_lshlrev_b32 v5, 4, v0
    v_add_u32 v5, s29, v5
    """)
    epiA_setup(a)
    a("s_barrier")
    a("s_barrier")
    K = 64; PP = [96, 112, 128]; EE = 144
    for q in range(6): a(f"ds_read_b128 {v(K+4*q,4)}, v5 offset:{KH + q*1024}")
    for i in range(3):
        a(f"s_waitcnt lgkmcnt({4-2*i})")
        pk_mfma(a, PP[i], K + 8 * i)
    for i in range(3):
        softmax_pm(a, PP[i], EE, TT)
        phi_write(a, 1 + i, PP[i], EE)
        a("s_waitcnt lgkmcnt(0)")
        if i < 2: a("s_barrier")
    a.label("L_p1_hB")
    a("s_barrier")

SLOT = 32768
KVF = 131072; ZF = KVF + 4096; WPH = KVF + 5120
SELL = 8; LACC = [12, 16]; QF = [24, 32]; KS = [40, 48]; VS = [56, 64]
NEGM = [72, 88]; SB = [104, 120]; OA = [136, 152]

def p2_ids(a):
    a(f"""
    s_lshl_b32 s24, s3, 2
    s_lshr_b32 s29, s2, 6
    s_add_u32 s24, s24, s29          ; head
    s_bfe_u32 s25, s2, 0x30003       ; qt
    s_and_b32 s31, s27, 3
    s_lshl_b32 s26, s25, 3
    s_lshl_b32 s29, s31, 1
    s_add_u32 s26, s26, s29
    s_lshl_b32 s38, s24, 6
    s_add_u32 s38, s38, s26
    s_lshl_b32 s38, s38, 11          ; (h*64+tb0)*2048
    s_lshl_b32 s40, s24, 18
    s_add_u32 s40, s40, {KVB_OFF}
    s_lshl_b32 s46, s26, 5
    s_add_u32 s46, s46, s24
    s_lshl_b32 s46, s46, 11
    s_add_u32 s46, s46, {O_OFF}
    v_lshlrev_b32 v1, 4, v0
    """)

def p2_compute(a, opt):
    lf = opt.get("lf", " sc1")
    NT = 8
    a("s_waitcnt vmcnt(0)")
    stamp(a, opt, 3)
    a("s_barrier")
    p2_ids(a)
    a(f"""
    s_add_u32 s38, s38, {QB_OFF}
    v_mov_b32 v4, 0xdddd
    v_and_b32 v2, 4, v0
    v_cmp_eq_u32 vcc, 0, v2
    v_mov_b32 v2, 0
    v_mov_b32 v3, 0x3f803f80
    v_cndmask_b32 v{SELL}, v2, v3, vcc
    v_cndmask_b32 v{SELL+2}, v3, v2, vcc
    v_mov_b32 v{SELL+1}, v{SELL}
    v_mov_b32 v{SELL+3}, v{SELL+2}
    v_mov_b32 v2, v1
    s_add_u32 s47, s46, {4<<20}
    """)
    for b in range(2):
        for r in range(16): a(f"v_mov_b32 v{OA[b]+r}, 0")
        for r in range(4): a(f"v_mov_b32 v{LACC[b]+r}, 0")
    for r in range(4, 8): a(f"v_mov_b32 v{VS[1]+r}, 0")
    a("s_barrier")
    stamp(a, opt, 4)
    for b in range(2):
        for u in range(2):
            a(f"buffer_load_dwordx4 {v(QF[b]+4*u,4)}, v1, s[16:19], s38 offen offset:{b*2048+u*1024}{lf}")
    a("s_barrier")
    stamp(a, opt, 5)
    def kread(st, addr, j): return [f"ds_read_b128 {v(KS[st]+4*u,4)}, {addr} offset:{j*4096+u*1024}" for u in range(2)]
    def vread(st, addr, j): return [f"ds_read_b128 {v(VS[st]+4*u,4)}, {addr} offset:{j*4096+2048+u*1024}" for u in range(2)]
    for r in kread(0, "v2", 0) + vread(0, "v2", 0) + kread(1, "v2", 1): a(r)
    a("s_waitcnt vmcnt(0) lgkmcnt(4)")
    for b in range(2):
        a(f"v_mfma_f32_32x32x16_bf16 {v(SB[b],16)}, {v(KS[0],4)}, {v(QF[b],4)}, 0")
        a(f"v_mfma_f32_32x32x16_bf16 {v(SB[b],16)}, {v(KS[0]+4,4)}, {v(QF[b]+4,4)}, {v(SB[b],16)}")
    def rowmax(S, dst, init=True):
        if init:
            a(f"v_max3_f32 v{dst}, v{S}, v{S+1}, v{S+2}")
            for r in range(3, 15, 2): a(f"v_max3_f32 v{dst}, v{dst}, v{S+r}, v{S+r+1}")
            a(f"v_max_f32 v{dst}, v{dst}, v{S+15}")
        else:
            for r in range(0, 16, 2): a(f"v_max3_f32 v{dst}, v{dst}, v{S+r}, v{S+r+1}")
    def finish_max(dst, tmp, NM):
        a(f"v_mov_b32 v{tmp}, v{dst}")
        a(f"v_permlane32_swap_b32 v{dst}, v{tmp}")
        a(f"v_max_f32 v{dst}, v{dst}, v{tmp}")
        for r in range(16): a(f"v_sub_f32 v{NM+r}, 0, v{dst}")
    rowmax(SB[0], 6); finish_max(6, 7, NEGM[0])
    a(f"v_mfma_f32_32x32x16_bf16 {v(SB[0],16)}, {v(KS[0],4)}, {v(QF[0],4)}, {v(NEGM[0],16)}")
    a(f"v_mfma_f32_32x32x16_bf16 {v(SB[0],16)}, {v(KS[0]+4,4)}, {v(QF[0]+4,4)}, {v(SB[0],16)}")
    rowmax(SB[1], 6); finish_max(6, 7, NEGM[1])
    for r in range(8, 16): a(f"v_mov_b32 v{SB[1]+r}, 0")
    a("s_mov_b32 s28, 0")
    a.raw(".p2align 6")
    a.label("L_p2_loop", keep_hist=True)
    start = len(a.lines)
    pat = "ePeeelreMeeeNweeeVeeeeeLr"
    for n in range(2 * NT):
        j = n >> 1; b = n & 1
        A = SB[b]; B = SB[b ^ 1]
        jprev = j - 1 if b == 0 else j
        jnext = j if b == 0 else j + 1
        if b == 0: R = vread((j + 1) & 1, "v2" if j + 1 < NT else "v3", (j + 1) % NT)
        else: R = kread(j & 1, "v2" if j + 2 < NT else "v3", (j + 2) % NT)
        e = rr = 0
        for ch in pat:
            if ch == "e": a(f"v_exp_f32 v{A+e}, v{A+e}"); e += 1
            elif ch == "P":
                a(f"v_smfmac_f32_32x32x32_bf16 {v(OA[b^1],16)}, {v(VS[jprev&1]+4,4)}, {v(B+8,8)}, v4")
                if n == 2 * NT - 3: a("s_barrier")
            elif ch == "l": a(f"v_smfmac_f32_16x16x64_bf16 {v(LACC[b^1],4)}, {v(SELL,4)}, {v(B+8,8)}, v4")
            elif ch == "L": a(f"v_smfmac_f32_16x16x64_bf16 {v(LACC[b],4)}, {v(SELL,4)}, {v(A,8)}, v4")
            elif ch == "w": a("s_waitcnt lgkmcnt(1)" if b == 0 else "s_nop 0")
            elif ch == "M":
                a(f"v_mfma_f32_32x32x16_bf16 {v(B,16)}, {v(KS[jnext&1],4)}, {v(QF[b^1],4)}, {v(NEGM[b^1],16)}")
                if n == 2 * NT - 1: a("v_mov_b32 v2, v3")
            elif ch == "N": a(f"v_mfma_f32_32x32x16_bf16 {v(B,16)}, {v(KS[jnext&1]+4,4)}, {v(QF[b^1]+4,4)}, {v(B,16)}")
            elif ch == "V":
                a(f"v_smfmac_f32_32x32x32_bf16 {v(OA[b],16)}, {v(VS[j&1],4)}, {v(A,8)}, v4")
                if n == 2 * NT - 1: a("s_add_u32 s28, s28, 1")
                if n == 0: a(f"v_add_u32 v3, {SLOT}, v2")
                if n == 1: a(f"v_and_b32 v3, {4*SLOT-1}, v3")
            elif ch == "r": a(R[rr]); rr += 1
    a("s_cmp_lt_u32 s28, 8")
    a("s_cbranch_scc1 L_p2_loop")
    assert check_loop(a.lines[start:]) == (0, 0)
    a("s_nop 1")
    a(f"v_smfmac_f32_32x32x32_bf16 {v(OA[1],16)}, {v(VS[1]+4,4)}, {v(SB[1]+8,8)}, v4")
    a(f"v_smfmac_f32_16x16x64_bf16 {v(LACC[1],4)}, {v(SELL,4)}, {v(SB[1]+8,8)}, v4")
    stamp(a, opt, 6)
    O0 = OA[0]; O1 = OA[1]; L0r = LACC[0]
    a("s_mov_b32 s48, 0")
    a.label("L_p2_blk")
    a(f"""
    s_mov_b32 s36, 0x5d800000        ; 2^60
    v_cmp_nlt_f32 vcc, v{L0r}, s36
    s_cmp_lg_u64 vcc, 0
    s_cbranch_scc1 L_p2_slow
    """)
    a.label("L_p2_fin", keep_hist=True)
    a(f"v_rcp_f32 v{L0r}, v{L0r}")
    for r in range(0, 16, 2):
        a(f"v_pk_mul_f32 {v(O0+r,2)}, {v(O0+r,2)}, {v(L0r,2)} op_sel_hi:[1,0]")
    cvt_inplace(a, O0)
    a(f"buffer_store_dwordx4 {v(O0,4)}, v1, s[16:19], s47 offen{SC}")
    a(f"buffer_store_dwordx4 {v(O0+4,4)}, v1, s[16:19], s47 offen offset:1024{SC}")
    a(f"""
    s_cmp_lg_u32 s48, 0
    s_cbranch_scc1 L_p2_out
    s_mov_b32 s48, 1
    s_add_u32 s47, s47, 65536
    """)
    for r in range(16): a(f"v_mov_b32 v{O0+r}, v{O1+r}")
    a(f"v_mov_b32 v{L0r}, v{LACC[1]}")
    for r in range(8): a(f"v_mov_b32 v{QF[0]+r}, v{QF[1]+r}")
    a("s_branch L_p2_blk")
    S0 = SB[0]; Q0 = QF[0]; NM = NEGM[0]
    a.label("L_p2_slow")
    a(f"""
    s_waitcnt lgkmcnt(0)
    s_mov_b32 s36, s40
    s_mov_b32 s28, 0
    v_mov_b32 v6, 0xff800000
    """)
    a.label("L_p2_slow1")
    a(f"""
    buffer_load_dwordx4 {v(KS[0],4)}, v1, s[16:19], s36 offen{lf}
    buffer_load_dwordx4 {v(KS[0]+4,4)}, v1, s[16:19], s36 offen offset:1024{lf}
    s_waitcnt vmcnt(0)
    v_mfma_f32_32x32x16_bf16 {v(S0,16)}, {v(KS[0],4)}, {v(Q0,4)}, 0
    v_mfma_f32_32x32x16_bf16 {v(S0,16)}, {v(KS[0]+4,4)}, {v(Q0+4,4)}, {v(S0,16)}
    """)
    rowmax(S0, 6, init=False)
    a(f"""
    s_add_u32 s36, s36, 4096
    s_add_u32 s28, s28, 1
    s_cmp_lt_u32 s28, 64
    s_cbranch_scc1 L_p2_slow1
    """)
    finish_max(6, 7, NM)
    for r in range(16): a(f"v_mov_b32 v{O0+r}, 0")
    for r in range(4): a(f"v_mov_b32 v{L0r+r}, 0")
    a("s_mov_b32 s36, s40\ns_mov_b32 s28, 0")
    a.label("L_p2_slow2")
    a(f"""
    buffer_load_dwordx4 {v(KS[0],4)}, v1, s[16:19], s36 offen{lf}
    buffer_load_dwordx4 {v(KS[0]+4,4)}, v1, s[16:19], s36 offen offset:1024{lf}
    buffer_load_dwordx4 {v(VS[0],4)}, v1, s[16:19], s36 offen offset:2048{lf}
    buffer_load_dwordx4 {v(VS[0]+4,4)}, v1, s[16:19], s36 offen offset:3072{lf}
    s_waitcnt vmcnt(0)
    v_mfma_f32_32x32x16_bf16 {v(S0,16)}, {v(KS[0],4)}, {v(Q0,4)}, {v(NM,16)}
    v_mfma_f32_32x32x16_bf16 {v(S0,16)}, {v(KS[0]+4,4)}, {v(Q0+4,4)}, {v(S0,16)}
    """)
    for r in range(16): a(f"v_exp_f32 v{S0+r}, v{S0+r}")
    a(f"""
    v_smfmac_f32_32x32x32_bf16 {v(O0,16)}, {v(VS[0],4)}, {v(S0,8)}, v4
    v_smfmac_f32_16x16x64_bf16 {v(L0r,4)}, {v(SELL,4)}, {v(S0,8)}, v4
    v_smfmac_f32_32x32x32_bf16 {v(O0,16)}, {v(VS[0]+4,4)}, {v(S0+8,8)}, v4
    v_smfmac_f32_16x16x64_bf16 {v(L0r,4)}, {v(SELL,4)}, {v(S0+8,8)}, v4
    s_nop 15
    s_add_u32 s36, s36, 4096
    s_add_u32 s28, s28, 1
    s_cmp_lt_u32 s28, 64
    s_cbranch_scc1 L_p2_slow2
    s_nop 15
    s_branch L_p2_fin
    """)
    a.label("L_p2_out")

def p2_helper(a, opt):
    lf = opt.get("lf", " sc1")
    P0 = 8; QAF = 72; ZP0 = 88; JUNK = 96
    p2_ids(a)
    a(f"""
    s_lshl_b32 s41, s31, 13
    s_add_u32 s42, s40, s41
    s_mov_b32 s43, s41
    s_add_u32 s38, s38, {QA_OFF}
    s_mov_b32 s44, {f2u(LOG2E)}
    s_mov_b32 s45, {f2u(LOG2E)}
    s_lshr_b32 s50, s2, 3
    s_lshl_b32 s50, s50, 16
    s_lshl_b32 s37, s31, 14
    s_add_u32 s50, s50, s37
    v_lshlrev_b32 v3, 7, v0
    """)
    a("s_barrier")
    stamp(a, opt, 3)
    publish(a, 48)
    poll(a, 0, 8)
    if opt.get("inv"): a("buffer_inv sc1\ns_waitcnt vmcnt(0)")
    stamp(a, opt, 4)
    a("s_barrier")
    a("s_setprio 2")
    def dma_chunk():
        for hf in range(2):
            a(f"s_add_u32 m0, s43, {hf*4096}")
            a(f"s_add_u32 s29, s42, {hf*4096}")
            for n in range(4):
                a(f"buffer_load_dwordx4 v1, s[16:19], s29 offen offset:{n*1024}{lf} lds")
        a(f"s_add_u32 s42, s42, {SLOT}")
        a(f"s_add_u32 s43, s43, {SLOT}")
        a(f"s_and_b32 s43, s43, {4*SLOT-1}")
    def PF():
        a(f"buffer_load_dword v{JUNK}, v3, s[52:55], s50 offen")
        a(f"s_add_u32 s50, s50, 8192")
    dma_chunk()
    a("s_waitcnt vmcnt(0)")
    a("s_barrier")
    dma_chunk(); dma_chunk()
    a("s_waitcnt vmcnt(8)")
    a("s_barrier")
    poll(a, 8, 8)
    dma_chunk(); PF()
    a("s_waitcnt vmcnt(9)")
    a("s_barrier")
    dma_chunk()
    a(f"""
    s_lshl_b32 s36, s24, 16
    s_add_u32 s36, s36, {KVP_OFF}
    s_lshl_b32 s29, s31, 11
    s_add_u32 s36, s36, s29
    """)
    for t in range(8):
        a(f"buffer_load_dwordx4 {v(P0+8*t,4)}, v1, s[16:19], s36 offen{lf}")
        a(f"buffer_load_dwordx4 {v(P0+8*t+4,4)}, v1, s[16:19], s36 offen offset:1024{lf}")
        if t < 7: a("s_add_u32 s36, s36, 8192")
    for q in range(4):
        a(f"buffer_load_dwordx4 {v(QAF+4*q,4)}, v1, s[16:19], s38 offen offset:{q*1024}{lf}")
    a(f"""
    s_and_b32 s37, s31, 1
    s_lshl_b32 s37, s37, 10
    s_lshl_b32 s36, s24, 11
    s_add_u32 s36, s36, s37
    s_add_u32 m0, s37, {WPH}
    v_lshlrev_b32 v6, 2, v0
    buffer_load_dwordx4 v1, s[20:23], s36 offen lds
    s_lshl_b32 s36, s24, 11
    s_add_u32 s36, s36, {ZP_OFF}
    """)
    for t in range(8):
        a(f"buffer_load_dword v{ZP0+t}, v6, s[16:19], s36 offen offset:{t*256}{lf}")
    a("s_waitcnt vmcnt(38)")
    a("s_barrier")
    dma_chunk(); PF()
    a("s_waitcnt vmcnt(9)")
    for t in range(1, 8):
        for r in range(0, 8, 2):
            a(f"v_pk_add_f32 {v(P0+r,2)}, {v(P0+r,2)}, {v(P0+8*t+r,2)}")
    for r in range(4): a(f"v_cvt_pk_bf16_f32 v{P0+r}, v{P0+2*r}, v{P0+2*r+1}")
    a(f"""
    s_lshl_b32 s36, s31, 10
    s_add_u32 s36, s36, {KVF}
    v_add_u32 v6, s36, v1
    ds_write_b128 v6, {v(P0,4)}
    """)
    for t in range(1, 8): a(f"v_add_f32 v{ZP0}, v{ZP0}, v{ZP0+t}")
    a(f"""
    v_cvt_pk_bf16_f32 v{ZP0}, v{ZP0}, v{ZP0}
    v_lshrrev_b32 v6, 4, v0
    v_lshlrev_b32 v6, 5, v6
    v_and_b32 v7, 4, v0
    v_lshl_add_u32 v6, v7, 2, v6
    v_and_b32 v7, 8, v0
    v_add_u32 v6, v6, v7
    v_and_b32 v7, 3, v0
    v_lshl_add_u32 v6, v7, 1, v6
    v_add_u32 v6, {ZF}, v6
    ds_write_b16 v6, v{ZP0}
    v_mov_b32 v7, 0
    ds_write_b16 v6, v7 offset:128
    v_lshrrev_b32 v5, 5, v0          ; h
    v_bfe_u32 v6, v0, 2, 2
    v_lshl_add_u32 v6, v5, 2, v6     ; 4h+r
    v_bfe_u32 v7, v0, 4, 1
    v_lshlrev_b32 v7, 5, v7
    v_lshl_add_u32 v6, v6, 6, v7
    v_and_b32 v7, 3, v0
    v_lshl_add_u32 v6, v7, 3, v6
    v_add_u32 v2, {WPH}, v6
    v_lshrrev_b32 v6, 2, v0
    v_lshrrev_b32 v7, 4, v0
    v_xor_b32 v6, v6, v7
    v_and_b32 v6, 1, v6
    v_cmp_eq_u32 vcc, 0, v6
    v_lshlrev_b32 v5, 4, v5
    v_add_u32 v5, {ZF}, v5
    v_mov_b32 v6, {ZF+128}
    v_cndmask_b32 v7, v6, v5, vcc
    v_add_u32 v6, {KVF}, v1
    s_waitcnt lgkmcnt(0)
    s_barrier
    """)
    WP = 8; KVR = 16; ZR = 32; PQ = 48; EP = 104; T = 120; NUM = 136; DEN = 64
    dma_chunk()
    for u in range(2):
        for b in range(2):
            a(f"ds_read_b64_tr_b16 {v(WP+4*u+2*b,2)}, v2 offset:{(16*u+8*b)*64}")
    for f in range(4): a(f"ds_read_b128 {v(KVR+4*f,4)}, v6 offset:{f*1024}")
    for f in range(4): a(f"ds_read_b128 {v(ZR+4*f,4)}, v7 offset:{f*32}")
    a("s_waitcnt lgkmcnt(0)")
    def oa_block(b):
        a(f"v_mfma_f32_32x32x16_bf16 {v(PQ,16)}, {v(WP,4)}, {v(QAF+8*b,4)}, 0")
        a(f"v_mfma_f32_32x32x16_bf16 {v(PQ,16)}, {v(WP+4,4)}, {v(QAF+8*b+4,4)}, {v(PQ,16)}")
        softmax_pm(a, PQ, EP, T)
        for f in range(4):
            F = (EP if f < 2 else PQ) + 4 * (f & 1)
            a(f"v_mfma_f32_32x32x16_bf16 {v(NUM,16)}, {v(KVR+4*f,4)}, {v(F,4)}, {'0' if f == 0 else v(NUM,16)}")
            a(f"v_mfma_f32_16x16x32_bf16 {v(DEN,4)}, {v(ZR+4*f,4)}, {v(F,4)}, {'0' if f == 0 else v(DEN,4)}")
        a(f"""
        v_add_f32 v{DEN}, {f2u(1e-6)}, v{DEN}
        v_rcp_f32 v{DEN}, v{DEN}
        """)
        for r in range(0, 16, 2):
            a(f"v_pk_mul_f32 {v(NUM+r,2)}, {v(NUM+r,2)}, {v(DEN,2)} op_sel_hi:[1,0]")
        cvt_inplace(a, NUM)
        a(f"buffer_store_dwordx4 {v(NUM,4)}, v1, s[16:19], s46 offen{SC}")
        a(f"buffer_store_dwordx4 {v(NUM+4,4)}, v1, s[16:19], s46 offen offset:1024{SC}")
        a(f"s_add_u32 s46, s46, 65536")
    oa_block(0)
    a("s_waitcnt vmcnt(11)")
    a("s_barrier")
    dma_chunk()
    oa_block(1)
    a("s_waitcnt vmcnt(12)")
    a("s_barrier")
    a("s_waitcnt vmcnt(0)")
    a("s_barrier")
    publish(a, 50)
    a("s_setprio 0")

NS = 5
ACC3 = 72
OS = [8, 16, 24, 32]; WSR = [40, 48, 56, 64]
def p3_ids(a):
    a(f"""
    s_lshr_b32 s24, s3, 2            ; branch
    s_and_b32 s25, s3, 3
    s_lshl_b32 s25, s25, 2
    s_bfe_u32 s29, s2, 0x20003
    s_add_u32 s25, s25, s29
    s_lshr_b32 s26, s2, 5
    """)

def p3_compute(a, opt):
    a("s_waitcnt vmcnt(0) lgkmcnt(0)")
    stamp(a, opt, 7)
    a("s_barrier")
    p3_ids(a)
    a(f"""
    s_lshr_b32 s36, s27, 1           ; tw
    s_and_b32 s37, s27, 1            ; cw
    v_lshlrev_b32 v1, 4, v0
    s_lshl_b32 s29, s36, 13
    v_add_u32 v1, s29, v1
    v_lshrrev_b32 v2, 5, v0          ; h
    v_bfe_u32 v3, v0, 2, 2           ; r
    v_lshl_add_u32 v4, v2, 2, v3
    v_lshlrev_b32 v4, 8, v4
    s_lshl_b32 s29, s37, 1
    v_xor_b32 v3, s29, v3
    v_lshl_add_u32 v4, v3, 6, v4
    v_bfe_u32 v5, v0, 4, 1
    v_lshl_add_u32 v4, v5, 5, v4
    v_and_b32 v5, 3, v0
    v_lshl_add_u32 v4, v5, 3, v4
    v_add_u32 v2, 16384, v4
    v_xor_b32 v3, 64, v2
    s_mov_b32 s30, 0
    v_mov_b32 v4, v1
    v_mov_b32 v5, v2
    v_mov_b32 v6, v3
    s_mov_b32 s28, 16
    """)
    for r in range(ACC3, ACC3 + 64): a(f"v_mov_b32 v{r}, 0")
    def reads(st, c):
        O = OS[st]; W = WSR[st]
        o = [f"ds_read_b128 {v(O+4*i,4)}, v4 offset:{i*4096+c*1024}" for i in range(2)]
        w = [f"ds_read_b64_tr_b16 {v(W+4*cb+2*b,2)}, v{5+cb} offset:{(16*c+8*b)*256}" for cb in range(2) for b in range(2)]
        return [w[0], w[1], o[0], o[1], w[2], w[3]]
    def mf(st):
        O = OS[st]; W = WSR[st]
        return [f"v_mfma_f32_32x32x16_bf16 {v(ACC3+16*(2*i+cb),16)}, {v(W+4*cb,4)}, {v(O+4*i,4)}, {v(ACC3+16*(2*i+cb),16)}"
                for cb in range(2) for i in range(2)]
    a("s_barrier")
    stamp(a, opt, 8)
    a("s_barrier")
    stamp(a, opt, 9)
    for r in reads(0, 0) + reads(1, 1): a(r)
    a.raw(".p2align 6")
    a.label("L_p3_loop", keep_hist=True)
    start = len(a.lines)
    for c in range(4):
        M = mf(c); R = reads((c + 2) & 3, (c + 2) & 3)
        a("s_waitcnt lgkmcnt(6)")
        a(M[0])
        if c == 2: a("s_barrier")
        a(R[0]); a(R[1])
        a(M[1])
        a(R[2]); a(R[3])
        a(M[2])
        a(R[4]); a(R[5])
        if c == 1:
            a(f"""
            s_add_u32 s30, s30, {SLOT}
            s_cmp_eq_u32 s30, {SLOT*NS}
            s_cselect_b32 s30, 0, s30
            """)
        a(M[3])
        if c == 1:
            a("""
            v_add_u32 v4, s30, v1
            v_add_u32 v5, s30, v2
            v_add_u32 v6, s30, v3
            """)
        if c == 3:
            a("s_sub_u32 s28, s28, 1")
            a("s_cmp_lg_u32 s28, 0")
    a("s_cbranch_scc1 L_p3_loop")
    assert check_loop(a.lines[start:]) == (0, 0)
    a("s_waitcnt lgkmcnt(0)")
    stamp(a, opt, 10)
    RS = 144
    a(f"""
    s_lshl_b32 s38, s25, 7
    s_lshl_b32 s29, s36, 6
    s_add_u32 s38, s38, s29          ; token0
    s_lshl_b32 s38, s38, 12
    s_lshl_b32 s29, s24, 11
    s_add_u32 s38, s38, s29
    s_lshl_b32 s29, s26, 8
    s_add_u32 s38, s38, s29
    s_lshl_b32 s29, s37, 7
    s_add_u32 s38, s38, s29
    s_mul_i32 s29, s27, {64*RS}
    s_add_u32 s29, s29, {2*SLOT}
    v_and_b32 v1, 31, v0
    v_mul_u32_u24 v1, {RS}, v1
    v_lshrrev_b32 v2, 5, v0
    v_lshl_add_u32 v1, v2, 3, v1
    v_add_u32 v1, s29, v1
    v_lshrrev_b32 v2, 3, v0
    v_and_b32 v3, 7, v0
    v_mul_u32_u24 v4, {RS}, v2
    v_lshl_add_u32 v4, v3, 4, v4
    v_add_u32 v4, s29, v4
    v_lshlrev_b32 v2, 12, v2
    v_lshl_add_u32 v2, v3, 4, v2
    """)
    for i in range(2):
        for cb in range(2):
            D = ACC3 + 16 * (2 * i + cb)
            for r in range(8): a(f"v_cvt_pk_bf16_f32 v{D+r}, v{D+2*r}, v{D+2*r+1}")
            for g in range(4):
                a(f"ds_write_b64 v1, {v(D+2*g,2)} offset:{i*32*RS + cb*64 + g*16}")
        for q in range(4):
            a(f"ds_read_b128 {v(8+16*i+4*q,4)}, v4 offset:{(i*32+q*8)*RS}")
    for i in range(2):
        for q in range(4):
            a(f"s_waitcnt lgkmcnt({(3-q) + (12 if i == 0 else 0)})")
            a(f"buffer_store_dwordx4 {v(8+16*i+4*q,4)}, v2, s[56:59], s38 offen{SC}")
            a(f"s_add_u32 s38, s38, {8*4096}")

def p3_helper(a, opt):
    lf = opt.get("lf", " sc1")
    p3_ids(a)
    a(f"""
    s_sub_u32 s36, s27, 4            ; lw
    v_lshlrev_b32 v1, 4, v0
    v_lshrrev_b32 v2, 4, v0          ; r
    v_and_b32 v3, 15, v0             ; p
    v_lshlrev_b32 v4, 2, v2
    v_xor_b32 v3, v3, v4
    v_lshlrev_b32 v3, 4, v3
    v_lshl_add_u32 v8, v2, 11, v3
    s_lshl_b32 s29, s26, 8
    s_lshl_b32 s37, s36, 15
    s_add_u32 s29, s29, s37
    v_add_u32 v8, s29, v8
    v_add_u32 v9, 8192, v8
    v_add_u32 v10, 16384, v8
    v_add_u32 v11, 24576, v8
    s_lshl_b32 s38, s25, 2
    s_add_u32 s38, s38, s36          ; tb
    s_lshl_b32 s38, s38, 16
    s_lshl_b32 s29, s24, 22
    s_add_u32 s38, s38, s29
    s_add_u32 s38, s38, {O_OFF}      ; O soffset
    s_lshl_b32 s37, s36, 12          ; lw*4096
    s_add_u32 s40, s37, {SLOT*NS}
    """)
    def GWs(t):
        a(f"s_mov_b32 s39, {t*64*2048}")
        for n in range(4):
            a(f"s_add_u32 m0, s37, {t*SLOT+16384+n*1024}")
            a(f"buffer_load_dwordx4 v{8+n}, s[52:55], s39 offen lds")
    def GOs(t):
        a(f"s_add_u32 m0, s37, {t*SLOT}")
        a("s_nop 0")
        for n in range(4): a(f"buffer_load_dwordx4 v1, s[16:19], s38 offen offset:{n*1024}{lf} lds")
        a("s_add_u32 s38, s38, 4096")
    def G():
        a("s_mov_b32 m0, s30")
        a("s_nop 0")
        for n in range(4): a(f"buffer_load_dwordx4 v1, s[16:19], s38 offen offset:{n*1024}{lf} lds")
        for n in range(4):
            a(f"s_add_u32 m0, s30, {16384+n*1024}")
            a(f"buffer_load_dwordx4 v{8+n}, s[52:55], s39 offen lds")
        a(f"""
        s_add_u32 s38, s38, 4096
        s_add_u32 s39, s39, {64*2048}
        s_add_u32 s30, s30, {SLOT}
        s_cmp_eq_u32 s30, s40
        s_cselect_b32 s30, s37, s30
        """)
    GWs(4)
    a("s_barrier")
    GWs(0); GWs(1); GWs(2)
    a("s_barrier")
    stamp(a, opt, 7)
    publish(a, 49)
    GWs(3)
    poll(a, 16, 32)
    if opt.get("inv"): a("buffer_inv sc1\ns_waitcnt vmcnt(0)")
    stamp(a, opt, 8)
    a("s_barrier")
    GOs(0); GOs(1)
    a("s_waitcnt vmcnt(4)")
    a("s_barrier")
    GOs(2)
    a("s_waitcnt vmcnt(4)")
    a("s_barrier")
    GOs(3); GOs(4)
    a(f"s_mov_b32 s39, {5*64*2048}\ns_mov_b32 s30, s37")
    a("s_waitcnt vmcnt(8)")
    a("s_barrier")
    G()
    a("s_waitcnt vmcnt(12)")
    a("s_barrier")
    G()
    a("s_mov_b32 s28, 9")
    a.label("L_p3_lloop")
    a("s_waitcnt vmcnt(16)")
    a("s_barrier")
    G()
    a(f"""
    s_sub_u32 s28, s28, 1
    s_cmp_lg_u32 s28, 0
    s_cbranch_scc1 L_p3_lloop
    """)
    for n in (16, 8, 0):
        a(f"s_waitcnt vmcnt({n})")
        a("s_barrier")

def gen(opt):
    a = Asm()
    a.raw(khead(NAME))
    a(f"""
    s_cmp_ge_u32 s2, 256
    s_cbranch_scc1 L_end
    s_and_b32 s3, s2, 7
    s_lshr_b32 s24, s3, 2            ; branch
    s_lshl_b32 s29, s24, 5
    s_load_dwordx4 s[4:7], s[0:1], s29
    s_load_dwordx2 s[32:33], s[0:1], 72
    s_load_dwordx2 s[34:35], s[0:1], 16
    s_mul_i32 s29, s24, 24
    s_add_u32 s29, s29, 24
    s_load_dwordx2 s[52:53], s[0:1], s29
    s_load_dwordx4 s[44:47], s[0:1], 56
    s_and_b32 s25, s3, 1
    s_lshl_b32 s25, s25, 2
    s_bfe_u32 s29, s2, 0x20003
    s_add_u32 s25, s25, s29          ; tt
    s_bfe_u32 s26, s3, 0x10001
    s_lshl_b32 s26, s26, 3
    s_lshr_b32 s29, s2, 5
    s_add_u32 s26, s26, s29          ; ct
    v_lshrrev_b32 v1, 6, v0
    v_and_b32 v0, 63, v0
    v_readfirstlane_b32 s27, v1
    s_lshl_b32 s29, s25, 19
    s_mov_b32 s10, 0x80000
    s_mov_b32 s11, 0x20000
    s_mov_b32 s14, 0x600000
    s_mov_b32 s15, 0x20000
    s_mov_b32 s18, 0x10000000
    s_mov_b32 s19, 0x20000
    s_mov_b32 s22, 0x10000
    s_mov_b32 s23, 0x20000
    s_mov_b32 s54, 0x200000
    s_mov_b32 s55, 0x20000
    s_mov_b32 s58, 0x800000
    s_mov_b32 s59, 0x20000
    s_mov_b32 s86, 256
    s_mov_b32 s87, 0x20000
    s_waitcnt lgkmcnt(0)
    s_add_u32 s8, s4, s29
    s_addc_u32 s9, s5, 0
    s_mov_b32 s12, s6
    s_mov_b32 s13, s7
    s_mov_b32 s16, s32
    s_mov_b32 s17, s33
    s_mov_b32 s20, s34
    s_mov_b32 s21, s35
    s_mov_b32 s56, s44
    s_mov_b32 s57, s45
    s_mov_b32 s84, s46
    s_mov_b32 s85, s47
    """)
    for i in range(12): stamp(a, opt, i)
    a("s_cmp_lt_u32 s27, 4\ns_cbranch_scc1 L_compute")
    p1_helper(a, opt)
    p2_helper(a, opt)
    p3_helper(a, opt)
    a("s_branch L_fin")
    a.label("L_compute")
    p1_compute(a, opt)
    p2_compute(a, opt)
    p3_compute(a, opt)
    a.label("L_fin")
    stamp_out(a, opt)
    a.label("L_end")
    a("s_endpgm")
    return a.text()

if __name__ == "__main__":
    import json, subprocess
    out = sys.argv[1]
    opt = json.loads(sys.argv[2]) if len(sys.argv) > 2 else {}
    HEADER = open("concat_heads__linear_kernel_hedgehog__mha_block__prompt.s.ref").read().split("; Override launch")[0]
    launch = f"; @launch kernel={NAME} grid=(256,1,1) block=(512,1,1) lds=163840" if opt.get("list", 1) else "; @launch grid=(256,1,1) block=(512,1,1) lds=163840"
    s = HEADER + launch + '\n.amdgcn_target "amdgcn-amd-amdhsa--gfx950"\n.text\n' + gen(opt) + '.section .rodata,"a"\n' + kdesc(NAME, 256, 96)
    open(out, "w").write(s)
    r = subprocess.run(["clang", "-x", "assembler", "-target", "amdgcn-amd-amdhsa", "-mcpu=gfx950", "-c", out, "-o", "_b.o"], capture_output=True, text=True)
    if r.returncode != 0:
        print(r.stderr[:1500]); raise SystemExit(1)
```

```python
from asmlib import *
import math

QB_OFF = 0
KVB_OFF = 4 << 20
QA_OFF = 12 << 20
KVP_OFF = 16 << 20
ZP_OFF = 18 << 20
O_OFF = 20 << 20
WS_BYTES = 268435456

W_SLOT = 12288; NW = 5
X_BASE = W_SLOT * NW
X_SLOT = 32768; NX = 3
WPHI_LDS = X_BASE + NX * X_SLOT
LOG2E = 1.4426950408889634
def f2u(x):
    import struct
    return struct.unpack("<I", struct.pack("<f", x))[0]

ACCQ, ACCK, ACCV = 64, 128, 192
XS = [8, 24]; WS_ = [40, 52]

STAMP_OFF = 30 << 20
def stamp(a, opt, idx):
    if not opt.get("stamp"): return
    a(f"s_memtime s[{60+2*idx}:{61+2*idx}]")
    a(f"s_memrealtime s[{72+2*idx}:{73+2*idx}]")
    a("s_waitcnt lgkmcnt(0)")
def stamp_out(a, opt, nw=8):
    if not opt.get("stamp"): return
    a("s_waitcnt vmcnt(0)")
    stamp(a, opt, 5)
    a(f"""
    s_mul_i32 s29, s2, {nw}
    s_add_u32 s29, s29, s27
    s_lshl_b32 s29, s29, 6
    s_add_u32 s29, s29, {STAMP_OFF + (opt.get('stamp') - 1) * 262144}
    v_mov_b32 v9, 0
    """)
    for i in range(6):
        a(f"v_mov_b32 v8, s{60+2*i}")
        a(f"buffer_store_dword v8, v9, s[16:19], s29 offen offset:{4*i}")
    for i in range(6):
        a(f"v_mov_b32 v8, s{72+2*i}")
        a(f"buffer_store_dword v8, v9, s[16:19], s29 offen offset:{24+4*i}")
    a("s_getreg_b32 s3, hwreg(HW_REG_XCC_ID)")
    a("v_mov_b32 v8, s3")
    a(f"buffer_store_dword v8, v9, s[16:19], s29 offen offset:48")

def gen_k1(name="k1_kernel", opt=None):
    opt = opt or {}
    a = Asm()
    a.raw(khead(name))
    a(f"""
    s_cmp_ge_u32 s2, 256
    s_cbranch_scc1 L_{name}_end
    s_and_b32 s3, s2, 7
    s_lshr_b32 s28, s2, 3
    """)
    if opt.get("only") == "xcd":
        a(f"s_cmp_ge_u32 s3, 4\ns_cbranch_scc1 L_{name}_end")
    if opt.get("only") == "half":
        a(f"s_cmp_ge_u32 s28, 16\ns_cbranch_scc1 L_{name}_end")
    if opt.get("only") == "q3":
        a(f"s_cmp_ge_u32 s28, 24\ns_cbranch_scc1 L_{name}_end")
    if opt.get("map", 0) == 2:
        a("""
        s_lshr_b32 s24, s3, 2
        s_and_b32 s25, s3, 1
        s_lshl_b32 s25, s25, 2
        s_lshr_b32 s29, s28, 3
        s_add_u32 s25, s25, s29
        s_lshr_b32 s26, s3, 1
        s_and_b32 s26, s26, 1
        s_lshl_b32 s26, s26, 3
        s_and_b32 s29, s28, 7
        s_add_u32 s26, s26, s29
        """)
    elif opt.get("map", 0) == 0:
        a("""
        s_lshr_b32 s24, s3, 2
        s_and_b32 s25, s3, 1
        s_lshl_b32 s25, s25, 2
        s_and_b32 s29, s28, 3
        s_add_u32 s25, s25, s29
        s_lshr_b32 s26, s3, 1
        s_and_b32 s26, s26, 1
        s_lshl_b32 s26, s26, 3
        s_lshr_b32 s29, s28, 2
        s_add_u32 s26, s26, s29
        """)
    else:
        a("""
        s_and_b32 s24, s28, 1
        s_lshr_b32 s28, s28, 1
        s_and_b32 s25, s3, 1
        s_lshl_b32 s25, s25, 2
        s_and_b32 s29, s28, 3
        s_add_u32 s25, s25, s29
        s_lshr_b32 s26, s3, 1
        s_lshl_b32 s26, s26, 2
        s_lshr_b32 s29, s28, 2
        s_add_u32 s26, s26, s29
        """)
    a(f"""
    s_lshl_b32 s29, s24, 5
    s_load_dwordx4 s[4:7], s[0:1], s29
    s_load_dwordx2 s[32:33], s[0:1], 72
    s_load_dwordx2 s[34:35], s[0:1], 16
    v_lshrrev_b32 v1, 6, v0
    v_and_b32 v0, 63, v0
    v_readfirstlane_b32 s27, v1
    s_lshl_b32 s29, s25, 19
    s_waitcnt lgkmcnt(0)
    s_add_u32 s8, s4, s29
    s_addc_u32 s9, s5, 0
    s_mov_b32 s10, 0x80000
    s_mov_b32 s11, 0x20000
    s_mov_b32 s12, s6
    s_mov_b32 s13, s7
    s_mov_b32 s14, 0x600000
    s_mov_b32 s15, 0x20000
    s_mov_b32 s16, s32
    s_mov_b32 s17, s33
    s_mov_b32 s18, 0x10000000
    s_mov_b32 s19, 0x20000
    s_mov_b32 s20, s34
    s_mov_b32 s21, s35
    s_mov_b32 s22, 0x10000
    s_mov_b32 s23, 0x20000
    """)
    for i in range(6): stamp(a, opt, i)
    a(f"""
    s_cmp_ge_u32 s27, 4
    s_cbranch_scc1 L_{name}_loader
    """)
    gen_compute(a, name, opt)
    gen_loader(a, name, opt)
    a.label(f"L_{name}_fin")
    stamp(a, opt, 4)
    stamp_out(a, opt)
    a.label(f"L_{name}_end")
    a("s_endpgm")
    return a.text()

def reads(a_or_list, st, c1, sp):
    X = XS[st]; W = WS_[st]
    def wr(seg, b): return f"ds_read_b64_tr_b16 {v(W+4*seg+2*b,2)}, v7 offset:{seg*4096 + (16*sp+4*b)*128}"
    def xr(i): return f"ds_read_b128 {v(X+4*i,4)}, v6 offset:{i*4096}"
    return [wr(0,0), wr(0,1), xr(0), wr(1,0), wr(1,1), wr(2,0), wr(2,1), xr(1), xr(2), xr(3)]

def mfmas(st):
    X = XS[st]; W = WS_[st]
    out = []
    for i in range(4):
        out.append(f"v_mfma_f32_32x32x16_bf16 {v(ACCQ+16*i,16)}, {v(W,4)}, {v(X+4*i,4)}, {v(ACCQ+16*i,16)}")
        out.append(f"v_mfma_f32_32x32x16_bf16 {v(ACCK+16*i,16)}, {v(W+4,4)}, {v(X+4*i,4)}, {v(ACCK+16*i,16)}")
        out.append(f"v_mfma_f32_32x32x16_bf16 {v(ACCV+16*i,16)}, {v(X+4*i,4)}, {v(W+8,4)}, {v(ACCV+16*i,16)}")
    return out

def gen_compute(a, name, opt):
    a(f"""
    s_lshr_b32 s36, s27, 1          ; tw
    s_and_b32 s37, s27, 1           ; hd
    v_and_b32 v8, 31, v0            ; n
    v_lshrrev_b32 v9, 5, v0         ; h
    v_lshrrev_b32 v10, 1, v8
    v_and_b32 v10, 7, v10           ; f
    v_xor_b32 v10, v10, v9          ; h ^ f
    v_lshlrev_b32 v10, 4, v10
    s_lshl_b32 s29, s36, 14         ; tw*128*128
    v_lshlrev_b32 v11, 7, v8
    v_add_u32 v11, s29, v11
    v_add_u32 v1, v11, v10
    v_xor_b32 v2, 32, v1
    v_xor_b32 v3, 64, v1
    v_xor_b32 v4, 0x60, v1
    v_lshrrev_b32 v10, 2, v0
    v_and_b32 v10, 3, v10           ; r
    v_lshlrev_b32 v11, 3, v9        ; 8h
    v_add_u32 v11, v11, v10
    v_lshlrev_b32 v11, 7, v11       ; row*128
    v_lshrrev_b32 v10, 1, v10       ; r>>1
    v_xor_b32 v10, s37, v10
    v_lshlrev_b32 v10, 6, v10
    v_add_u32 v11, v11, v10
    v_lshrrev_b32 v10, 4, v0
    v_and_b32 v10, 1, v10
    v_lshlrev_b32 v10, 5, v10
    v_add_u32 v11, v11, v10
    v_and_b32 v10, 3, v0
    v_lshlrev_b32 v10, 3, v10
    v_add_u32 v5, v11, v10
    s_mov_b32 s30, {X_BASE}
    s_mov_b32 s31, 0
    v_add_u32 v6, s30, v1
    v_mov_b32 v7, v5
    s_mov_b32 s28, 16
    """)
    pf = opt.get("pf", 0)
    def prefetch():
        a(f"""
        s_lshr_b32 s50, s2, 5
        s_lshl_b32 s50, s50, 16          ; 32 rows * 2048
        s_lshl_b32 s51, s27, 8
        s_add_u32 s50, s50, s51          ; + w*256
        v_lshlrev_b32 v10, 11, v8        ; n*2048
        v_lshl_add_u32 v10, v9, 7, v10   ; + h*128
        s_lshr_b32 s51, s2, 3
        s_and_b32 s51, s51, 3
        v_lshlrev_b32 v11, 2, v0
        v_add_u32 v11, s51, v11
        v_mul_u32_u24 v11, 6144, v11
        s_lshl_b32 s51, s26, 7
        s_mul_i32 s52, s27, {256*6144}
        s_add_u32 s51, s51, s52
        """)
        a("buffer_load_dword v0, v10, s[8:11], s50 offen")
        for sg in range(3):
            a(f"buffer_load_dword v0, v11, s[12:15], s51 offen")
            if sg < 2: a("s_add_u32 s51, s51, 2048")
        a("buffer_load_dword v0, v10, s[8:11], s50 offen offset:1024")
    if pf == 1: prefetch()
    for r in range(64, 256): a(f"v_mov_b32 v{r}, 0")
    if pf == 2: prefetch()
    stamp(a, opt, 1)
    a("s_barrier")
    stamp(a, opt, 2)
    for r in reads(a, 0, 0, 0): a(r)
    a.raw(".p2align 6")
    a.label(f"L_{name}_loop", keep_hist=True)
    start = len(a.lines)
    nomfma = opt.get("nomfma", False)
    for c in range(4):
        st = c & 1
        M = mfmas(st)
        if opt.get("order") == "w":
            M = [M[3*i+j] for j in range(3) for i in range(4)]
        if nomfma: M = ["s_nop 0"] * 12
        if opt.get("fake16"):
            M2 = []
            import re as _re
            for q, m in enumerate(M):
                g = _re.match(r"v_mfma_f32_32x32x16_bf16 v\[(\d+):\d+\], (\S+), (\S+), ", m)
                d = int(g.group(1)) + 8 * (c & 1)
                M2.append(f"v_mfma_f32_16x16x32_bf16 {v(d,4)}, {g.group(2)}, {g.group(3)}, {v(d,4)}\nv_mfma_f32_16x16x32_bf16 {v(d+4,4)}, {g.group(3)}, {g.group(2)}, {v(d+4,4)}")
            M = M2
        c1 = (c + 1) & 3
        R = reads(a, st ^ 1, c1, c1 & 1)
        pre = []
        if c & 1:
            pre += [f"s_add_u32 s31, s31, {W_SLOT}", f"s_cmp_eq_u32 s31, {W_SLOT*NW}", "s_cselect_b32 s31, 0, s31"]
        if c == 3:
            pre += [f"s_add_u32 s30, s30, {X_SLOT}", f"s_cmp_eq_u32 s30, {X_BASE+X_SLOT*NX}", f"s_cselect_b32 s30, {X_BASE}, s30"]
        a("s_waitcnt lgkmcnt(0)" if opt.get("order") == "w" else "s_waitcnt lgkmcnt(3)")
        a(M[0])
        for p in pre[:3]: a(p)
        a(M[1])
        for p in pre[3:]: a(p)
        if c & 1: a("v_add_u32 v7, s31, v5")
        a(f"v_add_u32 v6, s30, v{1+c1}")
        a(M[2])
        a("s_waitcnt lgkmcnt(0)")
        if c & 1: a("s_barrier")
        sched = [2, 2, 2, 2, 1, 1, 0, 0, 0]
        k = 0
        for g in range(9):
            for _ in range(sched[g]):
                a(R[k]); k += 1
            if c == 3 and g == 7:
                a("s_sub_u32 s28, s28, 1")
                a("s_cmp_lg_u32 s28, 0")
            a(M[3 + g])
    a(f"s_cbranch_scc1 L_{name}_loop")
    body = a.lines[start:]
    n1, n2 = check_loop(body)
    assert n1 == 0 and n2 == 0, (n1, n2)
    a("s_waitcnt lgkmcnt(0)")
    a("s_nop 15")
    stamp(a, opt, 3)
    if pf:
        a("s_waitcnt vmcnt(0)")
        a("v_mbcnt_lo_u32_b32 v0, -1, 0")
        a("v_mbcnt_hi_u32_b32 v0, -1, v0")
    a(f"""
    s_lshl_b32 s38, s26, 1
    s_add_u32 s38, s38, s37          ; head
    s_lshl_b32 s39, s25, 3
    s_lshl_b32 s29, s36, 2
    s_add_u32 s39, s39, s29          ; tb0
    s_lshl_b32 s40, s38, 6
    s_add_u32 s40, s40, s39          ; h*64+tb0
    v_lshlrev_b32 v1, 4, v0          ; lane*16
    s_cmp_eq_u32 s24, 0
    s_cbranch_scc1 L_{name}_epiA
    """)
    epi_B(a, name, opt)
    a(f"s_branch L_{name}_fin")
    a.label(f"L_{name}_epiA")
    epi_A(a, name, opt)
    a(f"s_branch L_{name}_fin")

def cvt_inplace(a, base):
    for r in range(8):
        a(f"v_cvt_pk_bf16_f32 v{base+r}, v{base+2*r}, v{base+2*r+1}")

def epi_B(a, name, opt):
    sfl = opt.get("stflags", " sc0 sc1")
    qs = LOG2E / math.sqrt(32.0)
    a(f"""
    s_lshl_b32 s41, s40, 11
    s_add_u32 s41, s41, {QB_OFF}
    s_add_u32 s42, s41, 4096
    s_lshl_b32 s43, s40, 12
    s_add_u32 s43, s43, {KVB_OFF}
    s_mov_b32 s44, {f2u(qs)}
    s_mov_b32 s45, {f2u(qs)}
    v_and_b32 v2, 0x33, v0
    v_and_b32 v3, 4, v0
    v_lshlrev_b32 v3, 1, v3
    v_or_b32 v2, v2, v3
    v_and_b32 v3, 8, v0
    v_lshrrev_b32 v3, 1, v3
    v_or_b32 v2, v2, v3
    v_lshlrev_b32 v2, 4, v2
    """)
    for i in range(4):
        Q = ACCQ + 16 * i; K = ACCK + 16 * i; V = ACCV + 16 * i
        cvt_inplace(a, K)
        a(f"buffer_store_dwordx4 {v(K,4)}, v2, s[16:19], s43 offen{sfl}")
        a(f"buffer_store_dwordx4 {v(K+4,4)}, v2, s[16:19], s43 offen offset:1024{sfl}")
        cvt_inplace(a, V)
        a(f"buffer_store_dwordx4 {v(V,4)}, v1, s[16:19], s43 offen offset:2048{sfl}")
        a(f"buffer_store_dwordx4 {v(V+4,4)}, v1, s[16:19], s43 offen offset:3072{sfl}")
        for r in range(0, 16, 2):
            a(f"v_pk_mul_f32 {v(Q+r,2)}, {v(Q+r,2)}, s[44:45]")
        cvt_inplace(a, Q)
        sq = "s41" if i < 2 else "s42"
        a(f"buffer_store_dwordx4 {v(Q,4)}, v1, s[16:19], {sq} offen offset:{(i&1)*2048}{sfl}")
        a(f"buffer_store_dwordx4 {v(Q+4,4)}, v1, s[16:19], {sq} offen offset:{(i&1)*2048+1024}{sfl}")
        if i < 3: a("s_add_u32 s43, s43, 4096")

import re as _re
def unpack(a, t):
    m = _re.match(r"v_pk_(add|mul|fma)_f32 (.*)", t)
    if not m: return a(t)
    op = m.group(1); rest = m.group(2)
    mods = dict((k, [int(x) for x in val.split(",")]) for k, val in _re.findall(r"(op_sel_hi|neg_lo|neg_hi):\[([0-9,]+)\]", rest))
    rest = _re.sub(r"\s+(op_sel_hi|neg_lo|neg_hi):\[[0-9,]+\]", "", rest)
    ops = [o.strip() for o in split_ops(rest)]
    def half(o, hi):
        g = _re.match(r"([vs])\[(\d+):(\d+)\]", o)
        return f"{g.group(1)}{int(g.group(2)) + hi}"
    n = len(ops) - 1
    for hi in (0, 1):
        srcs = []
        for i in range(n):
            sel = hi if mods.get("op_sel_hi", [1] * n)[i] else 0
            neg = mods.get("neg_hi" if hi else "neg_lo", [0] * n)[i]
            srcs.append(("-" if neg else "") + half(ops[1 + i], sel))
        a(f"v_{op}_f32 {half(ops[0], hi)}, " + ", ".join(srcs))

def softmax_pm(a0, P, EP, T, pk=True):
    a = a0 if pk else (lambda t: unpack(a0, t))
    mx, mn, t0, t1 = T, T + 1, T + 2, T + 3
    a(f"v_max3_f32 v{mx}, v{P}, v{P+1}, v{P+2}")
    a(f"v_min3_f32 v{mn}, v{P}, v{P+1}, v{P+2}")
    for r in range(3, 15, 2):
        a(f"v_max3_f32 v{mx}, v{mx}, v{P+r}, v{P+r+1}")
        a(f"v_min3_f32 v{mn}, v{mn}, v{P+r}, v{P+r+1}")
    a(f"v_max_f32 v{mx}, v{mx}, v{P+15}")
    a(f"v_min_f32 v{mn}, v{mn}, v{P+15}")
    a(f"v_mov_b32 v{t0}, v{mx}")
    a(f"v_mov_b32 v{t1}, v{mn}")
    a(f"v_permlane32_swap_b32 v{mx}, v{t0}")
    a(f"v_permlane32_swap_b32 v{mn}, v{t1}")
    a(f"v_max_f32 v{mx}, v{mx}, v{t0}")
    a(f"v_min_f32 v{mn}, v{mn}, v{t1}")
    a(f"v_mul_f32 v{T+4}, s44, v{mx}")
    a(f"v_mul_f32 v{T+6}, s44, v{mn}")
    for r in range(0, 16, 2):
        a(f"v_pk_fma_f32 {v(EP+r,2)}, {v(P+r,2)}, s[44:45], {v(T+4,2)} op_sel_hi:[1,1,0] neg_lo:[0,0,1] neg_hi:[0,0,1]")
    for r in range(0, 16, 2):
        a(f"v_pk_fma_f32 {v(P+r,2)}, {v(P+r,2)}, s[44:45], {v(T+6,2)} op_sel_hi:[1,1,0] neg_lo:[1,0,0] neg_hi:[1,0,0]")
    for r in range(16): a(f"v_exp_f32 v{EP+r}, v{EP+r}")
    for r in range(16): a(f"v_exp_f32 v{P+r}, v{P+r}")
    sp, sm = T + 8, T + 10
    a(f"v_pk_add_f32 {v(sp,2)}, {v(EP,2)}, {v(EP+2,2)}")
    a(f"v_pk_add_f32 {v(sm,2)}, {v(P,2)}, {v(P+2,2)}")
    for r in range(4, 16, 2):
        a(f"v_pk_add_f32 {v(sp,2)}, {v(sp,2)}, {v(EP+r,2)}")
        a(f"v_pk_add_f32 {v(sm,2)}, {v(sm,2)}, {v(P+r,2)}")
    a(f"v_add_f32 v{sp}, v{sp}, v{sp+1}")
    a(f"v_add_f32 v{sm}, v{sm}, v{sm+1}")
    a(f"v_mov_b32 v{t0}, v{sp}")
    a(f"v_mov_b32 v{t1}, v{sm}")
    a(f"v_permlane32_swap_b32 v{sp}, v{t0}")
    a(f"v_permlane32_swap_b32 v{sm}, v{t1}")
    a(f"v_add_f32 v{sp}, v{sp}, v{t0}")
    a(f"v_add_f32 v{sm}, v{sm}, v{t1}")
    a(f"v_rcp_f32 v{sp}, v{sp}")
    a(f"v_rcp_f32 v{sm}, v{sm}")
    for r in range(0, 16, 2):
        a(f"v_pk_mul_f32 {v(EP+r,2)}, {v(EP+r,2)}, {v(sp,2)} op_sel_hi:[1,0]")
    for r in range(0, 16, 2):
        a(f"v_pk_mul_f32 {v(P+r,2)}, {v(P+r,2)}, {v(sm,2)} op_sel_hi:[1,0]")
    cvt_inplace(a0, EP)
    cvt_inplace(a0, P)

PH_STRIDE = 136
PH_BLK = 32 * PH_STRIDE

HND = 0
WP = 8; SEL = 16; TT = 20; PFS = [32, 48]; ZP_ = None

class Rec:
    def __init__(self): self.l = []
    def __call__(self, t):
        for x in t.strip().split("\n"):
            x = x.strip()
            if x and not x.startswith(";"): self.l.append(x)

def merge(a, main, side, start=0, every=3):
    k = 0
    for n, x in enumerate(main):
        a(x)
        if n >= start and (n - start) % every == every - 1 and k < len(side):
            a(side[k]); k += 1
            while k < len(side) and side[k - 1].startswith("s_waitcnt"):
                a(side[k]); k += 1
    for x in side[k:]: a(x)

def epiA_setup(a):
    a(f"""
    s_mov_b32 s44, {f2u(LOG2E)}
    s_mov_b32 s45, {f2u(LOG2E)}
    v_lshrrev_b32 v2, 5, v0          ; h
    v_bfe_u32 v3, v0, 2, 2           ; r
    v_lshl_add_u32 v3, v2, 2, v3     ; 4h+r
    v_bfe_u32 v4, v0, 4, 1           ; nb
    v_lshlrev_b32 v4, 5, v4
    v_and_b32 v7, 3, v0
    v_lshl_add_u32 v4, v7, 3, v4     ; nb*32+cc*8
    v_lshl_add_u32 v7, v3, 6, v4
    s_lshl_b32 s29, s37, 11
    s_add_u32 s29, s29, {WPHI_LDS}
    v_add_u32 v7, s29, v7
    """)
    for u in range(2):
        for b in range(2):
            a(f"ds_read_b64_tr_b16 {v(WP+4*u+2*b,2)}, v7 offset:{(16*u+8*b)*64}")
    a(f"""
    s_and_b32 s46, s27, 3
    s_mul_i32 s46, s46, {4*PH_BLK}
    s_add_u32 s46, s46, {PHI0}
    v_and_b32 v6, 31, v0
    v_mul_u32_u24 v6, {PH_STRIDE}, v6
    v_lshl_add_u32 v6, v2, 3, v6
    v_add_u32 v6, s46, v6
    v_mul_u32_u24 v7, {PH_STRIDE}, v3
    v_add3_u32 v7, v7, v4, s46
    """)

def pk_mfma(a, P, K):
    a(f"v_mfma_f32_32x32x16_bf16 {v(P,16)}, {v(WP,4)}, {v(K,4)}, 0")
    a(f"v_mfma_f32_32x32x16_bf16 {v(P,16)}, {v(WP+4,4)}, {v(K+4,4)}, {v(P,16)}")

def phi_write(a, blk, P, E):
    for pm in range(2):
        S = E if pm == 0 else P
        for g in range(4):
            a(f"ds_write_b64 v6, {v(S+2*g,2)} offset:{blk*PH_BLK + pm*64 + 16*g}")

KH = 0
VH = 24576
PHI0 = VH + 32768

def epi_A(a, name, opt):
    sfl = opt.get("stflags", " sc0 sc1")
    es = opt.get("estamp")
    a(f"""
    s_mul_i32 s29, s27, 6144
    v_add_u32 v5, s29, v1
    """)
    for i in (1, 2, 3):
        base = ACCK + 16 * i
        cvt_inplace(a, base)
        for u in range(2):
            a(f"ds_write_b128 v5, {v(base+4*u,4)} offset:{KH + (i-1)*2048 + u*1024}")
    a(f"""
    s_lshl_b32 s41, s40, 11
    s_add_u32 s41, s41, {QA_OFF}
    s_add_u32 s42, s41, 4096
    s_lshl_b32 s29, s27, 13
    v_add_u32 v5, s29, v1
    """)
    cvt_inplace(a, ACCK)
    a("s_waitcnt lgkmcnt(0)")
    a("s_barrier")
    if es == 1: stamp(a, opt, 1)
    epiA_setup(a)
    PP = ACCK + 16; EE = ACCK + 32
    KV = ACCK + 48; Z = ACCK + 8
    for i in range(4):
        V = ACCV + 16 * i
        cvt_inplace(a, V)
        if i == 0:
            a("s_waitcnt lgkmcnt(0)")
            pk_mfma(a, PP, ACCK)
        for u in range(2):
            a(f"ds_write_b128 v5, {v(V+4*u,4)} offset:{VH + i*2048 + u*1024}")
    qlate = opt.get("qlate", 0)
    def qstores():
        for i in range(4):
            Q = ACCQ + 16 * i
            if not qlate: cvt_inplace(a, Q)
            sq = "s41" if i < 2 else "s42"
            a(f"buffer_store_dwordx4 {v(Q,4)}, v1, s[16:19], {sq} offen offset:{(i&1)*2048}{sfl}")
            a(f"buffer_store_dwordx4 {v(Q+4,4)}, v1, s[16:19], {sq} offen offset:{(i&1)*2048+1024}{sfl}")
    if not qlate: qstores()
    if es == 1: stamp(a, opt, 2)
    softmax_pm(a, PP, EE, TT)
    phi_write(a, 0, PP, EE)
    a(f"""
    v_lshrrev_b32 v2, 4, v0
    v_lshrrev_b32 v3, 3, v0
    v_xor_b32 v2, v2, v3
    v_and_b32 v2, 1, v2
    v_cmp_eq_u32 vcc, 0, v2
    v_mov_b32 v3, 0x3f803f80
    v_mov_b32 v2, 0
    v_cndmask_b32 v{SEL}, v2, v3, vcc
    v_mov_b32 v{SEL+1}, v{SEL}
    v_mov_b32 v{SEL+2}, v{SEL}
    v_mov_b32 v{SEL+3}, v{SEL}
    s_lshl_b32 s29, s36, 6
    v_add_u32 v7, s29, v7
    s_cmp_eq_u32 s36, 0
    s_mov_b32 s29, {2*4*PH_BLK}
    s_cselect_b32 s29, s29, {(-2*4*PH_BLK) & 0xffffffff}
    v_add_u32 v3, s29, v7
    v_xor_b32 v5, {2*8192}, v5       ; partner V
    s_lshl_b32 s47, s38, 3
    s_add_u32 s47, s47, s25          ; h*8+tt
    s_lshl_b32 s48, s47, 13
    s_lshl_b32 s29, s36, 12
    s_add_u32 s48, s48, s29
    s_add_u32 s48, s48, {KVP_OFF}
    s_lshl_b32 s49, s47, 8
    s_lshl_b32 s29, s36, 7
    s_add_u32 s49, s49, s29
    s_add_u32 s49, s49, {ZP_OFF}
    v_bfe_u32 v4, v0, 3, 1
    v_lshlrev_b32 v4, 6, v4
    v_lshrrev_b32 v2, 4, v0
    v_lshl_add_u32 v4, v2, 4, v4     ; z offset
    s_waitcnt lgkmcnt(0)
    """)
    if es == 2: stamp(a, opt, 1)
    a("s_barrier")
    if es == 2: stamp(a, opt, 2)
    def tr(blk, who, PF):
        for u in range(2):
            for b in range(2):
                a(f"ds_read_b64_tr_b16 {v(PF+4*u+2*b,2)}, {'v7' if who == 0 else 'v3'} offset:{blk*PH_BLK + (16*u+8*b)*PH_STRIDE}")
    first = [True]
    def kv(blk, who, PF):
        V = ACCV + 16 * blk + 8 * who
        for u in range(2):
            c = "0" if first[0] else v(KV, 16)
            cz = "0" if first[0] else v(Z, 4)
            first[0] = False
            a(f"v_mfma_f32_32x32x16_bf16 {v(KV,16)}, {v(PF+4*u,4)}, {v(V+4*u,4)}, {c}")
            a(f"v_mfma_f32_16x16x32_bf16 {v(Z,4)}, {v(PF+4*u,4)}, {v(SEL,4)}, {cz}")
    F = [32, 40, 48, 56]
    tr(0, 0, F[0]); tr(1, 0, F[1])
    for i in range(2):
        for u in range(2):
            a(f"ds_read_b128 {v(ACCV+16*i+8+4*u,4)}, v5 offset:{VH + i*2048 + u*1024}")
    a("s_waitcnt lgkmcnt(8)")
    kv(0, 0, F[0])
    tr(0, 1, F[2])
    a("s_waitcnt lgkmcnt(8)")
    kv(1, 0, F[1])
    tr(1, 1, F[3])
    a("s_waitcnt lgkmcnt(4)")
    kv(0, 1, F[2])
    for i in range(2, 4):
        for u in range(2):
            a(f"ds_read_b128 {v(ACCV+16*i+8+4*u,4)}, v5 offset:{VH + i*2048 + u*1024}")
    a("s_waitcnt lgkmcnt(4)")
    kv(1, 1, F[3])
    for blk in (2, 3):
        if qlate:
            for i in (2 * blk - 4, 2 * blk - 3): cvt_inplace(a, ACCQ + 16 * i)
        if qlate == 1 and blk == 3: qstores()
        if es == 3 and blk == 3: stamp(a, opt, 1)
        a("s_barrier")
        if es == 3 and blk == 3: stamp(a, opt, 2)
        tr(blk, 0, F[0]); tr(blk, 1, F[1])
        a("s_waitcnt lgkmcnt(4)")
        kv(blk, 0, F[0])
        a("s_waitcnt lgkmcnt(0)")
        kv(blk, 1, F[1])
    for g in range(4):
        a(f"buffer_store_dwordx4 {v(KV+4*g,4)}, v1, s[16:19], s48 offen offset:{g*1024}{sfl}")
    a(f"buffer_store_dwordx4 {v(Z,4)}, v4, s[16:19], s49 offen{sfl}")
    if qlate == 2: qstores()

def helper_A(a, name, opt):
    a(f"""
    s_cmp_lg_u32 s24, 0
    s_cbranch_scc1 L_{name}_fin
    s_and_b32 s37, s27, 1            ; hd
    s_and_b32 s29, s27, 3
    s_mul_i32 s29, s29, 6144
    v_lshlrev_b32 v5, 4, v0
    v_add_u32 v5, s29, v5
    """)
    epiA_setup(a)
    a("s_barrier")
    if opt.get("hprio", 0): a(f"s_setprio {opt.get('hprio')}")
    a("s_barrier")
    K = 64; PP = [96, 112, 128]; EE = 144
    for q in range(6): a(f"ds_read_b128 {v(K+4*q,4)}, v5 offset:{KH + q*1024}")
    for i in range(3):
        a(f"s_waitcnt lgkmcnt({4-2*i})")
        pk_mfma(a, PP[i], K + 8 * i)
    if opt.get("hloop", 1):
        a("s_mov_b32 s28, 3")
        a("s_nop 7")
        a.label(f"L_{name}_hl")
        softmax_pm(a, PP[0], EE, TT)
        phi_write(a, 1, PP[0], EE)
        a(f"v_add_u32 v6, {PH_BLK}, v6")
        a("s_waitcnt lgkmcnt(0)")
        a("s_barrier")
        for r in range(0, 32, 2): a(f"v_pk_mov_b32 {v(PP[0]+r,2)}, {v(PP[1]+r,2)}, {v(PP[1]+r,2)} op_sel:[0,1]")
        a(f"""
        s_sub_u32 s28, s28, 1
        s_cmp_lg_u32 s28, 0
        s_cbranch_scc1 L_{name}_hl
        """)
    else:
        for i in range(3):
            softmax_pm(a, PP[i], EE, TT)
            phi_write(a, 1 + i, PP[i], EE)
            a("s_waitcnt lgkmcnt(0)")
            a("s_barrier")

def gen_loader(a, name, opt):
    lfl = opt.get("ldflags", "")
    a.label(f"L_{name}_loader")
    koff = opt.get("koff", 1)
    if koff == 0: a("s_mov_b32 s49, 0")
    elif opt.get("map", 0) in (0, 2):
        a("""
        s_lshr_b32 s49, s3, 1
        s_xor_b32 s49, s49, s3
        s_and_b32 s49, s49, 1
        s_lshl_b32 s49, s49, 3
        """)
        if koff == 2:
            a("""
            s_add_u32 s29, s25, s26
            s_and_b32 s29, s29, 1
            s_lshl_b32 s29, s29, 2
            s_add_u32 s49, s49, s29
            """)
    else:
        a("""
        s_lshr_b32 s49, s3, 1
        s_lshl_b32 s49, s49, 2
        s_lshl_b32 s29, s3, 3
        s_add_u32 s49, s49, s29
        s_and_b32 s49, s49, 15
        """)
    a(f"""
    s_sub_u32 s36, s27, 4            ; lw
    v_lshrrev_b32 v1, 3, v0          ; r
    v_and_b32 v2, 7, v0              ; p
    s_and_b32 s29, s36, 1
    s_lshl_b32 s29, s29, 2
    v_lshrrev_b32 v3, 1, v1
    v_add_u32 v4, s29, v3            ; f
    v_xor_b32 v4, v4, v2
    v_lshlrev_b32 v4, 4, v4
    s_lshl_b32 s29, s36, 3
    v_add_u32 v5, s29, v1            ; 8lw + r
    v_lshl_add_u32 v8, v5, 11, v4
    """)
    if opt.get("xrot"):
        a("v_and_b32 v6, 15, v5")
        a("v_lshl_add_u32 v8, v6, 7, v8")
    for n in range(1, 8): a(f"v_add_u32 v{8+n}, {n*65536}, v8")
    a(f"""
    v_and_b32 v3, 1, v3
    v_lshlrev_b32 v3, 2, v3
    v_xor_b32 v3, v3, v2
    v_lshlrev_b32 v3, 4, v3
    v_mul_u32_u24 v16, 6144, v5
    v_add_u32 v16, v16, v3
    s_lshl_b32 s29, s26, 7
    v_add_u32 v16, s29, v16
    """)
    if opt.get("wrot"):
        a("v_and_b32 v6, 15, v5")
        a("v_lshl_add_u32 v16, v6, 7, v16")
    a(f"""
    v_add_u32 v17, 2048, v16
    v_add_u32 v18, 4096, v16
    v_lshlrev_b32 v19, 4, v0
    s_lshl_b32 s37, s36, 10          ; lw*1024
    s_add_u32 s30, s37, {X_BASE}
    s_mov_b32 s31, s37
    s_lshl_b32 s38, s49, 7           ; X soffset
    s_mul_i32 s39, s49, {64*6144}    ; W soffset
    s_add_u32 s40, s37, {X_BASE + NX*X_SLOT}
    s_add_u32 s41, s37, {W_SLOT*NW}
    s_add_u32 s42, s37, {X_BASE}
    """)
    lpf = opt.get("lpf", 0)
    if lpf:
        a(f"""
        s_cmp_eq_u32 s36, 0
        s_cselect_b32 s56, s8, s12
        s_cselect_b32 s57, s9, s13
        s_cselect_b32 s58, s10, s14
        s_mov_b32 s59, 0x20000
        s_mov_b32 s54, 512
        s_cselect_b32 s54, s54, {256*6144}
        s_mov_b32 s53, s54                      ; block 1
        s_lshr_b32 s55, s2, 3
        s_and_b32 s55, s55, 3
        s_lshr_b32 s52, s2, 5                   ; cl
        v_and_b32 v20, 31, v0
        s_lshl_b32 s29, s52, 5
        v_add_u32 v20, s29, v20
        v_lshlrev_b32 v20, 11, v20
        v_lshrrev_b32 v21, 5, v0
        v_lshl_add_u32 v20, v21, 7, v20         ; X voffset
        v_lshlrev_b32 v21, 2, v0
        v_add_u32 v21, s55, v21
        v_mul_u32_u24 v21, 6144, v21
        s_lshl_b32 s29, s26, 7
        s_sub_u32 s51, s36, 1
        s_lshl_b32 s51, s51, 11
        s_add_u32 s29, s29, s51
        v_add_u32 v21, s29, v21                 ; W voffset
        v_mov_b32 v22, s36
        v_cmp_eq_u32 vcc, 0, v22
        s_add_u32 s55, s55, s52
        s_and_b32 s55, s55, 3                   ; phase
        v_cndmask_b32 v20, v21, v20, vcc
        s_mov_b32 s50, 0
        """)
    pfn = [0]
    def PF(cond=True):
        if not lpf: return
        pfn[0] += 1
        L = f"L_{name}_pf{pfn[0]}"
        if cond:
            a(f"""
            s_and_b32 s29, s50, 3
            s_add_u32 s50, s50, 1
            s_cmp_lg_u32 s29, {"s55" if lpf == 1 else "0"}
            s_cbranch_scc1 {L}
            s_cmp_gt_u32 s50, 8
            s_cbranch_scc1 {L}
            """)
        a("buffer_load_dword v22, v20, s[56:59], s53 offen")
        a(f"""
        s_cmp_lg_u32 s36, 0
        s_cbranch_scc1 {L}b
        buffer_load_dword v23, v20, s[56:59], s53 offen offset:256
        """)
        a.label(L + "b")
        a("s_add_u32 s53, s53, s54")
        a.label(L)
    def GX():
        for n in range(8):
            a(f"s_add_u32 m0, s30, {n*4096}")
            a(f"buffer_load_dwordx4 v{8+n}, s[8:11], s38 offen{lfl} lds")
        a(f"""
        s_add_u32 s38, s38, 128
        s_and_b32 s38, s38, 2047
        s_add_u32 s30, s30, {X_SLOT}
        s_cmp_eq_u32 s30, s40
        s_cselect_b32 s30, s42, s30
        """)
    def GW():
        for sg in range(3):
            a(f"s_add_u32 m0, s31, {sg*4096}")
            a(f"buffer_load_dwordx4 v{16+sg}, s[12:15], s39 offen{lfl} lds")
        a(f"""
        s_add_u32 s39, s39, {32*6144}
        s_cmp_eq_u32 s39, {1024*6144}
        s_cselect_b32 s39, 0, s39
        s_add_u32 s31, s31, {W_SLOT}
        s_cmp_eq_u32 s31, s41
        s_cselect_b32 s31, s37, s31
        """)
    def WB(n):
        a(f"s_waitcnt vmcnt({n})")
        a("s_barrier")
    if opt.get("ramp", 1):
        GW(); GX(); GW()
        stamp(a, opt, 1)
        a("s_waitcnt vmcnt(3)")
        stamp(a, opt, 2)
        a("s_barrier")
        GX(); GW(); PF(False); WB(11)
        GW(); GX(); WB(11)
        GW(); GX(); PF(); WB(19)
        GW(); GW(); GW(); WB(17)
        GX(); GW(); PF(); WB(17)
        GW(); WB(17)
        GX(); GW(); PF()
        a("s_mov_b32 s28, 10")
    else:
        GW(); GX(); GW(); GX(); GW(); GW(); GX(); GW()
        stamp(a, opt, 1)
        a("s_waitcnt vmcnt(28)")
        stamp(a, opt, 2)
        a("s_barrier")
        a("s_mov_b32 s28, 13")
    a.label(f"L_{name}_lloop")
    a("s_waitcnt vmcnt(25)")
    a("s_barrier")
    GW()
    a("s_waitcnt vmcnt(17)")
    a("s_barrier")
    GX(); GW(); PF()
    a("s_sub_u32 s28, s28, 1")
    a("s_cmp_lg_u32 s28, 0")
    a(f"s_cbranch_scc1 L_{name}_lloop")
    stamp(a, opt, 3)
    a("s_waitcnt vmcnt(25)")
    a("s_barrier")
    GW()
    a(f"""
    s_lshl_b32 s29, s26, 12
    s_add_u32 s29, s29, s37
    s_add_u32 m0, s37, {WPHI_LDS}
    s_nop 0
    buffer_load_dwordx4 v19, s[20:23], s29 offen lds
    """)
    a("s_waitcnt vmcnt(18)")
    a("s_barrier")
    a("s_waitcnt vmcnt(15)")
    a("s_barrier")
    a("s_waitcnt vmcnt(4)")
    a("s_barrier")
    a("s_waitcnt vmcnt(0)")
    a("s_barrier")
    helper_A(a, name, opt)
```

```python
from asmlib import *
import math, sys
import k1
from k1 import (QB_OFF, KVB_OFF, QA_OFF, KVP_OFF, ZP_OFF, O_OFF, LOG2E, f2u, softmax_pm, cvt_inplace,
                W_SLOT, NW, X_BASE, X_SLOT, NX, WPHI_LDS, ACCQ, ACCK, ACCV, reads as p1_reads, mfmas as p1_mfmas,
                epi_A, epi_B, epiA_setup, pk_mfma, phi_write, KH, TT, PH_BLK)

NAME = "concat_heads__linear_kernel_hedgehog__mha_block__prompt_kernel"
FLG = 29 << 20
F1A, F2B, F2A = FLG + 2048, FLG + 4096, FLG + 5120
F1B = FLG + 16384
F1C = F1B + 16384
QL0 = 139264
STAMP_OFF = 30 << 20
VSNAP, VFA, VPOL = 250, 251, 252
SC = " sc0 sc1"

def stamp(a, opt, idx):
    if not opt.get("stamp"): return
    a(f"s_memrealtime s[{60+2*idx}:{61+2*idx}]")
    a("s_waitcnt lgkmcnt(0)")
def stamp_out(a, opt):
    if not opt.get("stamp"): return
    a("s_waitcnt vmcnt(0)")
    stamp(a, opt, 11)
    if opt.get("stamp") == 2:
        a("s_cmp_lg_u32 s27, 0\ns_cbranch_scc1 L_end\nv_mov_b32 v9, 0\ns_mov_b64 exec, 1")
        for i in range(1, 12):
            a(f"s_sub_u32 s29, s{60+2*i}, s60")
            a("v_mov_b32 v8, s29")
            a(f"buffer_atomic_umax v8, v9, s[84:87], 0 offen offset:{4*i} sc1")
        a("s_not_b32 s29, s60\nv_mov_b32 v8, s29\nbuffer_atomic_umax v8, v9, s[84:87], 0 offen offset:48 sc1")
        a("v_mov_b32 v8, s82\nbuffer_atomic_umax v8, v9, s[84:87], 0 offen offset:52 sc1")
        a("v_mov_b32 v8, s60\nbuffer_atomic_umax v8, v9, s[84:87], 0 offen offset:56 sc1")
        return
    a(f"""
    s_lshl_b32 s29, s2, 3
    s_add_u32 s29, s29, s27
    s_lshl_b32 s29, s29, 6
    s_add_u32 s29, s29, {STAMP_OFF}
    v_mov_b32 v9, 0
    """)
    for i in range(12):
        a(f"v_mov_b32 v8, s{60+2*i}")
        a(f"buffer_store_dword v8, v9, s[16:19], s29 offen offset:{4*i}")

def code_pf(a, opt, junk):
    if not opt.get("cpf", 1): return 0
    a(f"""
    s_and_b32 s29, s27, 3
    s_lshl_b32 s29, s29, 13
    v_lshlrev_b32 v{junk}, 7, v0
    v_add_u32 v{junk}, s29, v{junk}
    v_min_u32 v{junk}, L_end-L_pc, v{junk}
    global_load_dword v{junk}, v{junk}, s[94:95]
    """)
    return 1

_uid = [0]
def only_w4(a):
    _uid[0] += 1
    L = f"L_w4_{_uid[0]}"
    a(f"s_cmp_lg_u32 s27, 4\ns_cbranch_scc1 {L}")
    return L
def poll(a, lo, n):
    L = only_w4(a)
    mask = ((1 << n) - 1) << lo
    a(f"""
    s_mov_b32 s88, {mask & 0xffffffff}
    s_mov_b32 s89, {mask >> 32}
    s_mov_b32 s90, 0x400000
    s_mov_b64 exec, s[88:89]
    """)
    a.label(L + "p")
    a(f"""
    buffer_load_dword v{VPOL}, v{VFA}, s[16:19], 0 offen sc0 sc1
    s_waitcnt vmcnt(0)
    v_cmp_eq_u32 vcc, v{VPOL}, v{VSNAP}
    s_sub_u32 s90, s90, 1
    s_cbranch_scc1 {L}d
    s_cbranch_vccz {L}d
    s_sleep 1
    s_branch {L}p
    """)
    a.label(L + "d")
    a("s_mov_b64 exec, -1")
    a.label(L)
def need_chunk(a, single=False):
    _uid[0] += 1
    L = f"L_nc_{_uid[0]}"
    a(f"""
    s_bitcmp1_b32 s92, s93
    s_cbranch_scc1 {L}
    s_mov_b32 s90, 0x400000
    s_lshl_b64 s[88:89], 1, s93
    s_mov_b64 exec, {"s[88:89]" if single else "0xff"}
    """)
    a.label(L + "p")
    a(f"""
    buffer_load_dword v{VPOL}, v{VFA}, s[16:19], 0 offen sc0 sc1
    s_waitcnt vmcnt(0)
    v_cmp_ne_u32 vcc, v{VPOL}, v{VSNAP}
    s_sub_u32 s90, s90, 1
    s_cbranch_scc1 {L}d
    s_or_b32 s92, s92, vcc_lo
    s_mov_b64 exec, s[88:89]
    s_bitcmp1_b32 s92, s93
    s_cbranch_scc1 {L}d
    s_sleep 2
    s_branch {L}p
    """)
    a.label(L + "d")
    a("s_mov_b64 exec, -1")
    a.label(L)
def look(a):
    a(f"""
    s_mov_b32 exec_lo, 0xffff0000
    s_mov_b32 exec_hi, 0xffff
    buffer_load_dword v{VPOL}, v{VFA}, s[16:19], 0 offen sc0 sc1
    s_waitcnt vmcnt(0)
    v_cmp_ne_u32 vcc, v{VPOL}, v{VSNAP}
    s_mov_b64 exec, -1
    s_lshr_b64 s[88:89], vcc, 16
    s_mov_b32 s92, s88
    """)
def need_mask(a):
    _uid[0] += 1
    L = f"L_nm_{_uid[0]}"
    a("s_mov_b32 s90, 0x400000")
    a.label(L + "p")
    a(f"""
    s_andn2_b32 s88, s93, s92
    s_cbranch_scc0 {L}
    s_sub_u32 s90, s90, 1
    s_cbranch_scc1 {L}
    """)
    look(a)
    a(f"s_branch {L}p")
    a.label(L)

def publish(a, lane, all_helpers=False, n=1):
    L = None if all_helpers else only_w4(a)
    a(f"""
    v_add_u32 v{VPOL}, 1, v{VSNAP}
    s_mov_b32 exec_lo, 0
    s_mov_b32 exec_hi, {((1 << n) - 1) << (lane - 32)}
    buffer_store_dword v{VPOL}, v{VFA}, s[16:19], 0 offen sc0 sc1
    s_mov_b64 exec, -1
    """)
    if L: a.label(L)

def p1_compute(a, opt):
    a(f"""
    s_lshr_b32 s36, s27, 1          ; tw
    s_and_b32 s37, s27, 1           ; hd
    v_and_b32 v8, 31, v0            ; n
    v_lshrrev_b32 v9, 5, v0         ; h
    v_bfe_u32 v10, v8, 1, 3         ; f
    v_xor_b32 v10, v10, v9
    v_lshlrev_b32 v10, 4, v10
    s_lshl_b32 s29, s36, 14
    v_lshlrev_b32 v11, 7, v8
    v_add3_u32 v1, v11, v10, s29
    v_xor_b32 v2, 32, v1
    v_xor_b32 v3, 64, v1
    v_xor_b32 v4, 0x60, v1
    v_bfe_u32 v10, v0, 2, 2         ; r
    v_lshl_add_u32 v11, v9, 3, v10
    v_lshlrev_b32 v11, 7, v11
    v_lshrrev_b32 v10, 1, v10
    v_xor_b32 v10, s37, v10
    v_lshl_add_u32 v11, v10, 6, v11
    v_bfe_u32 v10, v0, 4, 1
    v_lshl_add_u32 v11, v10, 5, v11
    v_and_b32 v10, 3, v0
    v_lshl_add_u32 v5, v10, 3, v11
    s_mov_b32 s30, {X_BASE}
    s_mov_b32 s31, 0
    v_add_u32 v6, s30, v1
    v_mov_b32 v7, v5
    s_mov_b32 s28, 16
    """)
    code_pf(a, opt, 12)
    for r in range(64, 256): a(f"v_mov_b32 v{r}, 0")
    a("s_waitcnt vmcnt(0)")
    spf = opt.get("spf", 0)
    if spf:
        a(f"""
        s_lshr_b32 s41, s2, 4
        s_lshl_b32 s41, s41, 3
        s_add_u32 s41, s41, s3
        s_cmp_ge_u32 s27, 2
        s_cbranch_scc1 L_spf_done
        s_cmp_eq_u32 s27, 1
        s_cbranch_scc1 L_spf_x
        s_lshr_b32 s42, s41, 1
        s_lshl_b32 s42, s42, 17
        s_and_b32 s41, s41, 1
        s_lshl_b32 s41, s41, 10
        s_add_u32 s42, s42, s41
        v_lshlrev_b32 v0, 11, v0
        buffer_load_dword v0, v0, s[12:15], s42 offen offset:384
        s_branch L_spf_done
        """)
        a.label("L_spf_x")
        if spf == 1:
            a(f"""
            v_and_b32 v10, 15, v0
            v_lshlrev_b32 v10, 11, v10
            v_and_b32 v0, 16, v0
            v_lshl_add_u32 v0, v0, 6, v10
            s_lshl_b32 s42, s26, 15
            buffer_load_dword v0, v0, s[8:11], s42 offen offset:384
            """)
        a.label("L_spf_done")
    a("s_barrier")
    stamp(a, opt, 1)
    for r in p1_reads(a, 0, 0, 0): a(r)
    a.raw(".p2align 6")
    a.label("L_p1_loop", keep_hist=True)
    start = len(a.lines)
    for c in range(4):
        st = c & 1
        M = p1_mfmas(st)
        c1 = (c + 1) & 3
        R = p1_reads(a, st ^ 1, c1, c1 & 1)
        pre = []
        if c & 1:
            pre += [f"s_add_u32 s31, s31, {W_SLOT}", f"s_cmp_eq_u32 s31, {W_SLOT*NW}", "s_cselect_b32 s31, 0, s31"]
        if c == 3:
            pre += [f"s_add_u32 s30, s30, {X_SLOT}", f"s_cmp_eq_u32 s30, {X_BASE+X_SLOT*NX}", f"s_cselect_b32 s30, {X_BASE}, s30"]
        a("s_waitcnt lgkmcnt(3)")
        a(M[0])
        for p in pre[:3]: a(p)
        a(M[1])
        for p in pre[3:]: a(p)
        if c & 1: a("v_add_u32 v7, s31, v5")
        a(f"v_add_u32 v6, s30, v{1+c1}")
        a(M[2])
        a("s_waitcnt lgkmcnt(0)")
        if c & 1: a("s_barrier")
        sched = [2, 2, 2, 2, 1, 1, 0, 0, 0]
        k = 0
        for g in range(9):
            for _ in range(sched[g]):
                a(R[k]); k += 1
            if c == 3 and g == 7:
                a("s_sub_u32 s28, s28, 1")
                a("s_cmp_lg_u32 s28, 0")
            a(M[3 + g])
    a("s_cbranch_scc1 L_p1_loop")
    assert check_loop(a.lines[start:]) == (0, 0)
    a("s_waitcnt vmcnt(0) lgkmcnt(0)")
    a("v_mbcnt_lo_u32_b32 v0, -1, 0")
    a("v_mbcnt_hi_u32_b32 v0, -1, v0")
    stamp(a, opt, 2)
    a(f"""
    s_lshl_b32 s38, s26, 1
    s_add_u32 s38, s38, s37          ; head
    s_lshl_b32 s39, s25, 3
    s_lshl_b32 s29, s36, 2
    s_add_u32 s39, s39, s29          ; tb0
    s_lshl_b32 s40, s38, 6
    s_add_u32 s40, s40, s39          ; h*64+tb0
    v_lshlrev_b32 v1, 4, v0
    s_nop 3
    s_cmp_eq_u32 s24, 0
    s_cbranch_scc1 L_p1_epiA
    """)
    epi_B_lds(a)
    a("s_branch L_p1_done")
    a.label("L_p1_epiA")
    epi_A(a, "p1", {"qlate": opt.get("qlate", 0)})
    a.label("L_p1_done")

def epi_B_lds(a):
    qs = LOG2E / math.sqrt(32.0)
    a(f"""
    s_mov_b32 s44, {f2u(qs)}
    s_mov_b32 s45, {f2u(qs)}
    v_and_b32 v2, 0x33, v0
    v_and_b32 v3, 4, v0
    v_lshl_or_b32 v2, v3, 1, v2
    v_and_b32 v3, 8, v0
    v_lshrrev_b32 v3, 1, v3
    v_or_b32 v2, v2, v3
    s_mul_i32 s41, s37, {3*32768}
    s_lshl_b32 s29, s36, 14
    s_add_u32 s41, s41, s29
    v_lshl_add_u32 v2, v2, 4, s41
    v_add_u32 v3, s41, v1            ; V address
    s_lshl_b32 s42, s36, 13
    s_add_u32 s42, s42, {QL0}
    s_add_u32 s43, s29, {2*32768}
    s_cmp_eq_u32 s37, 0
    s_cselect_b32 s42, s42, s43
    s_cselect_b32 s43, 0, 4096
    v_add_u32 v4, s42, v1
    v_add_u32 v5, s43, v4
    """)
    for i in range(4):
        Q = ACCQ + 16 * i; K = ACCK + 16 * i; V = ACCV + 16 * i
        cvt_inplace(a, K)
        a(f"ds_write_b128 v2, {v(K,4)} offset:{i*4096}")
        a(f"ds_write_b128 v2, {v(K+4,4)} offset:{i*4096+1024}")
        cvt_inplace(a, V)
        a(f"ds_write_b128 v3, {v(V,4)} offset:{i*4096+2048}")
        a(f"ds_write_b128 v3, {v(V+4,4)} offset:{i*4096+3072}")
        for r in range(0, 16, 2):
            a(f"v_pk_mul_f32 {v(Q+r,2)}, {v(Q+r,2)}, s[44:45]")
        cvt_inplace(a, Q)
        ad = "v4" if i < 2 else "v5"
        a(f"ds_write_b128 {ad}, {v(Q,4)} offset:{i*2048}")
        a(f"ds_write_b128 {ad}, {v(Q+4,4)} offset:{i*2048+1024}")

def p1_helper(a, opt):
    if opt.get("map", 1) == 1 and opt.get("koff", 2) == 1:
        a("""
        s_lshr_b32 s49, s3, 1
        s_lshl_b32 s49, s49, 2
        s_lshl_b32 s29, s3, 3
        s_add_u32 s49, s49, s29
        s_and_b32 s49, s49, 15
        """)
    else:
        a("""
        s_lshr_b32 s49, s3, 1
        s_xor_b32 s49, s49, s3
        s_and_b32 s49, s49, 1
        s_lshl_b32 s49, s49, 3
        """)
    a(f"""
    s_sub_u32 s36, s27, 4            ; lw
    v_lshrrev_b32 v1, 3, v0          ; r
    v_and_b32 v2, 7, v0              ; p
    v_lshrrev_b32 v3, 1, v1
    s_lshl_b32 s29, s36, 3
    v_add_u32 v5, s29, v1            ; 8lw + r
    v_and_b32 v6, 1, v3
    v_lshlrev_b32 v6, 2, v6
    v_xor_b32 v6, v6, v2
    v_lshlrev_b32 v6, 4, v6
    v_mul_u32_u24 v16, 6144, v5
    s_lshl_b32 s29, s26, 7
    v_add3_u32 v16, v16, v6, s29
    """)
    if opt.get("split"):
        a(f"""
        s_add_u32 s43, s26, {opt.get("split")}
        s_and_b32 s43, s43, 15
        s_sub_u32 s43, s43, s26
        s_lshl_b32 s43, s43, 1
        v_and_b32 v6, 64, v6
        v_mul_lo_u32 v6, v6, s43
        v_add_u32 v16, v16, v6
        """)
    a(f"""
    v_add_u32 v17, 2048, v16
    v_add_u32 v18, 4096, v16
    s_lshl_b32 s37, s36, 10          ; lw*1024
    s_add_u32 s30, s37, {X_BASE}
    s_mov_b32 s31, s37
    s_lshl_b32 s38, s49, 7           ; X soffset
    s_mul_i32 s39, s49, {64*6144}    ; W soffset
    s_add_u32 s40, s37, {X_BASE + NX*X_SLOT}
    s_add_u32 s41, s37, {W_SLOT*NW}
    s_add_u32 s42, s37, {X_BASE}
    """)
    def GX():
        for n in range(8):
            a(f"s_add_u32 m0, s30, {n*4096}")
            a(f"buffer_load_dwordx4 v{8+n}, s[8:11], s38 offen lds")
        a(f"""
        s_add_u32 s38, s38, 128
        s_and_b32 s38, s38, 2047
        s_add_u32 s30, s30, {X_SLOT}
        s_cmp_eq_u32 s30, s40
        s_cselect_b32 s30, s42, s30
        """)
    def GW():
        for sg in range(3):
            a(f"s_add_u32 m0, s31, {sg*4096}")
            a(f"buffer_load_dwordx4 v{16+sg}, s[12:15], s39 offen lds")
        a(f"""
        s_add_u32 s39, s39, {32*6144}
        s_cmp_eq_u32 s39, {1024*6144}
        s_cselect_b32 s39, 0, s39
        s_add_u32 s31, s31, {W_SLOT}
        s_cmp_eq_u32 s31, s41
        s_cselect_b32 s31, s37, s31
        """)
    def WB(n):
        a(f"s_waitcnt vmcnt({n})")
        a("s_barrier")
    GW()
    a(f"""
    s_and_b32 s29, s36, 1
    s_lshl_b32 s29, s29, 2
    v_add_u32 v4, s29, v3            ; f
    v_xor_b32 v4, v4, v2
    v_lshlrev_b32 v4, 4, v4
    v_lshl_add_u32 v8, v5, 11, v4
    """)
    for n in range(1, 8): a(f"v_add_u32 v{8+n}, {n*65536}, v8")
    GX(); GW()
    a(f"""
    v_lshlrev_b32 v19, 4, v0
    s_lshl_b32 s43, s26, 7
    s_add_u32 s43, s43, {FLG}        ; F1A[ct] - 2048
    s_lshl_b32 s46, s26, 10
    s_lshl_b32 s29, s36, 2
    s_add_u32 s46, s46, s29
    s_add_u32 s46, s46, {F1B}
    s_lshl_b32 s29, s24, 14
    s_sub_u32 s47, s46, s29
    s_add_u32 s47, s47, 16384
    v_lshl_add_u32 v20, v0, 7, s47
    s_add_u32 s47, s43, {2048-32}
    v_lshl_add_u32 v21, v0, 2, s47
    v_cmp_gt_u32 vcc, 8, v0
    s_and_b32 s47, s3, 3
    s_lshl_b32 s47, s47, 1
    s_bfe_u32 s29, s2, 0x10004
    s_add_u32 s47, s47, s29
    v_cndmask_b32 v20, v21, v20, vcc
    s_lshl_b32 s48, s47, 7
    s_add_u32 s48, s48, {F2B - 64}
    s_lshr_b32 s47, s47, 1
    s_lshl_b32 s47, s47, 7
    s_add_u32 s47, s47, {F2A - 64}
    s_cmp_lt_u32 s3, 4
    s_cselect_b32 s47, s47, s48
    s_lshl_b32 s29, s36, 11
    s_add_u32 s47, s47, s29
    v_lshl_add_u32 v21, v0, 2, s47   ; lanes 16..47
    v_cmp_gt_u32 vcc, 16, v0
    s_lshl_b32 s29, s25, 7
    s_add_u32 s46, s46, s29
    s_lshl_b32 s29, s25, 2
    s_add_u32 s47, s43, s29
    v_cndmask_b32 v20, v21, v20, vcc
    s_add_u32 s47, s47, 2048
    s_cmp_eq_u32 s24, 0
    s_cselect_b32 s46, s47, s46
    v_and_b32 v21, 1, v0
    v_lshl_add_u32 v21, v21, 14, s46
    v_cmp_gt_u32 vcc, 48, v0
    s_lshl_b32 s46, s26, 3
    s_lshl_b32 s29, s24, 2
    s_sub_u32 s47, s46, s29
    v_cndmask_b32 v20, v21, v20, vcc
    s_lshl_b32 s29, s25, 7
    s_add_u32 s47, s47, s29
    s_add_u32 s47, s47, {F2B + 4}
    v_and_b32 v22, 3, v0
    v_lshl_add_u32 v21, v22, 11, s47
    v_cmp_gt_u32 vcc, 52, v0
    s_and_b32 s29, s25, 1
    s_lshl_b32 s29, s29, 2
    s_add_u32 s46, s46, s29
    v_cndmask_b32 v20, v21, v20, vcc
    s_lshr_b32 s29, s25, 1
    s_lshl_b32 s29, s29, 7
    s_add_u32 s46, s46, s29
    s_add_u32 s46, s46, {F2A}
    v_lshl_add_u32 v21, v22, 11, s46
    v_cmp_gt_u32 vcc, 56, v0
    s_mov_b32 s92, 0
    s_nop 0
    v_cndmask_b32 v{VFA}, v21, v20, vcc
    """)
    gpf = opt.get("gpf", 0)
    if gpf:
        a(f"""
        s_lshr_b32 s46, s2, 4
        s_lshl_b32 s46, s46, 3
        s_add_u32 s46, s46, s3
        s_lshr_b32 s47, s46, 2
        s_mul_i32 s47, s47, {6*2048}
        s_and_b32 s29, s46, 1
        s_lshl_b32 s29, s29, 10
        s_add_u32 s47, s47, s29
        s_bfe_u32 s29, s46, 0x10001
        s_mul_i32 s29, s29, {8*192*2048}
        s_add_u32 s47, s47, s29
        s_add_u32 s51, s47, {gpf*192*2048 + 384}
        v_lshlrev_b32 v23, 11, v0
        """)
    def SPF():
        if not gpf: return
        _uid[0] += 1
        L = f"L_g_{_uid[0]}"
        a(f"""
        s_cmp_lg_u32 s27, 5
        s_cbranch_scc1 {L}
        s_mov_b64 exec, 0x3f
        buffer_load_dword v248, v23, s[12:15], s51 offen
        s_mov_b64 exec, -1
        s_add_u32 s51, s51, {192*2048}
        """)
        a.label(L)
    SPF()
    a("s_waitcnt vmcnt(3)")
    a("s_barrier")
    a(f"buffer_load_dword v{VSNAP}, v{VFA}, s[16:19], 0 offen sc0 sc1")
    SPF(); GX(); GW(); WB(11)
    SPF(); GW(); GX(); WB(11)
    L = only_w4(a)
    a(f"""
    v_mov_b32 v20, 1
    v_mov_b32 v21, 0
    s_mov_b64 exec, 1
    buffer_atomic_add v20, v21, s[84:87], 0 offen sc1
    s_mov_b64 exec, -1
    """)
    a.label(L)
    SPF(); GW(); GX(); WB(19)
    GW(); GW(); GW(); WB(17)
    SPF(); GX(); GW(); WB(17)
    GW(); WB(17)
    (SPF() if gpf == 2 else None); GX(); GW()
    a("s_mov_b32 s28, 10")
    a.label("L_p1_lloop")
    WB(25); GW(); WB(17); GX(); GW()
    a(f"""
    s_sub_u32 s28, s28, 1
    s_cmp_lg_u32 s28, 0
    s_cbranch_scc1 L_p1_lloop
    """)
    WB(25)
    GW()
    a(f"""
    s_lshl_b32 s29, s26, 12
    s_add_u32 s29, s29, s37
    s_add_u32 m0, s37, {WPHI_LDS}
    s_nop 0
    buffer_load_dwordx4 v19, s[20:23], s29 offen lds
    """)
    n = code_pf(a, opt, 249)
    WB(18 + n); WB(15 + n); WB(4 + n); WB(n)
    L = only_w4(a)
    a("s_mov_b32 s90, 0x400000\nv_mov_b32 v21, 0")
    a.label(L + "p")
    a(f"""
    buffer_load_dword v20, v21, s[84:87], 0 offen sc0 sc1
    s_waitcnt vmcnt(0)
    v_cmp_gt_u32 vcc, 256, v20
    s_sub_u32 s90, s90, 1
    s_cbranch_scc1 {L}
    s_cbranch_vccz {L}
    s_sleep 1
    s_branch {L}p
    """)
    a.label(L)
    a(f"""
    s_cmp_lg_u32 s24, 0
    s_cbranch_scc1 L_p1_hB
    s_and_b32 s37, s27, 1            ; hd
    s_and_b32 s29, s27, 3
    s_mul_i32 s29, s29, 6144
    v_lshlrev_b32 v5, 4, v0
    v_add_u32 v5, s29, v5
    """)
    epiA_setup(a)
    a("s_barrier")
    a("s_barrier")
    K = 64; PP = [96, 112, 128]; EE = 144
    for q in range(6): a(f"ds_read_b128 {v(K+4*q,4)}, v5 offset:{KH + q*1024}")
    for i in range(3):
        a(f"s_waitcnt lgkmcnt({4-2*i})")
        pk_mfma(a, PP[i], K + 8 * i)
    for i in range(3):
        softmax_pm(a, PP[i], EE, TT)
        phi_write(a, 1 + i, PP[i], EE)
        a("s_waitcnt lgkmcnt(0)")
        if i < 2: a("s_barrier")
    a.label("L_p1_hB")
    a("s_barrier")

SLOT = 32768
KVF = 131072; ZF = KVF + 4096; WPH = KVF + 5120
SELL = 8; LACC = [12, 16]; QF = [24, 32]; KS = [40, 48]; VS = [56, 64]
NEGM = [72, 88]; SB = [104, 120]; OA = [136, 152]

def p2_ids(a):
    a(f"""
    s_lshl_b32 s34, s26, 1
    s_add_u32 s34, s34, 1
    s_sub_u32 s34, s34, s24
    s_and_b32 s31, s27, 3
    s_lshl_b32 s35, s25, 3
    s_lshl_b32 s29, s31, 1
    s_add_u32 s35, s35, s29
    s_lshl_b32 s40, s34, 18
    s_add_u32 s40, s40, {KVB_OFF}
    v_lshlrev_b32 v1, 4, v0
    """)

def p2_compute(a, opt):
    lf = opt.get("lf", " sc1")
    NT = 8
    stamp(a, opt, 3)
    p2_ids(a)
    a(f"""
    s_lshl_b32 s47, s35, 5
    s_add_u32 s47, s47, s34
    s_lshl_b32 s47, s47, 11
    s_add_u32 s47, s47, {O_OFF + (4<<20)}
    s_waitcnt lgkmcnt(0)
    v_mov_b32 v4, 0xdddd
    v_and_b32 v2, 4, v0
    v_cmp_eq_u32 vcc, 0, v2
    v_mov_b32 v2, 0
    v_mov_b32 v3, 0x3f803f80
    v_cndmask_b32 v{SELL}, v2, v3, vcc
    v_cndmask_b32 v{SELL+2}, v3, v2, vcc
    v_mov_b32 v{SELL+1}, v{SELL}
    v_mov_b32 v{SELL+3}, v{SELL+2}
    v_mov_b32 v2, v1
    s_lshl_b32 s29, s31, 12
    s_add_u32 s29, s29, {QL0}
    v_add_u32 v5, s29, v1
    s_waitcnt vmcnt(0)
    s_barrier
    """)
    stamp(a, opt, 5)
    def kread(st, addr, j): return [f"ds_read_b128 {v(KS[st]+4*u,4)}, {addr} offset:{j*4096+u*1024}" for u in range(2)]
    def vread(st, addr, j): return [f"ds_read_b128 {v(VS[st]+4*u,4)}, {addr} offset:{j*4096+2048+u*1024}" for u in range(2)]
    for b in range(2):
        for u in range(2):
            a(f"ds_read_b128 {v(QF[b]+4*u,4)}, v5 offset:{b*2048+u*1024}")
    for r in kread(0, "v2", 0) + vread(0, "v2", 0) + kread(1, "v2", 1): a(r)
    for b in range(2):
        for r in range(16): a(f"v_mov_b32 v{OA[b]+r}, 0")
        for r in range(4): a(f"v_mov_b32 v{LACC[b]+r}, 0")
    for r in range(4, 8): a(f"v_mov_b32 v{VS[1]+r}, 0")
    a("s_waitcnt lgkmcnt(4)")
    for b in range(2):
        a(f"v_mfma_f32_32x32x16_bf16 {v(SB[b],16)}, {v(KS[0],4)}, {v(QF[b],4)}, 0")
        a(f"v_mfma_f32_32x32x16_bf16 {v(SB[b],16)}, {v(KS[0]+4,4)}, {v(QF[b]+4,4)}, {v(SB[b],16)}")
    def rowmax(S, dst, init=True):
        if init:
            a(f"v_max3_f32 v{dst}, v{S}, v{S+1}, v{S+2}")
            for r in range(3, 15, 2): a(f"v_max3_f32 v{dst}, v{dst}, v{S+r}, v{S+r+1}")
            a(f"v_max_f32 v{dst}, v{dst}, v{S+15}")
        else:
            for r in range(0, 16, 2): a(f"v_max3_f32 v{dst}, v{dst}, v{S+r}, v{S+r+1}")
    def finish_max(dst, tmp, NM):
        a(f"v_mov_b32 v{tmp}, v{dst}")
        a(f"v_permlane32_swap_b32 v{dst}, v{tmp}")
        a(f"v_max_f32 v{dst}, v{dst}, v{tmp}")
        for r in range(16): a(f"v_sub_f32 v{NM+r}, 0, v{dst}")
    rowmax(SB[0], 6); finish_max(6, 7, NEGM[0])
    a(f"v_mfma_f32_32x32x16_bf16 {v(SB[0],16)}, {v(KS[0],4)}, {v(QF[0],4)}, {v(NEGM[0],16)}")
    a(f"v_mfma_f32_32x32x16_bf16 {v(SB[0],16)}, {v(KS[0]+4,4)}, {v(QF[0]+4,4)}, {v(SB[0],16)}")
    rowmax(SB[1], 6); finish_max(6, 7, NEGM[1])
    for r in range(8, 16): a(f"v_mov_b32 v{SB[1]+r}, 0")
    a("s_mov_b32 s28, 0")
    a.raw(".p2align 6")
    a.label("L_p2_loop", keep_hist=True)
    start = len(a.lines)
    pat = "ePeeelreMeeeNweeeVeeeeeLr"
    for n in range(2 * NT):
        j = n >> 1; b = n & 1
        A = SB[b]; B = SB[b ^ 1]
        jprev = j - 1 if b == 0 else j
        jnext = j if b == 0 else j + 1
        if b == 0: R = vread((j + 1) & 1, "v2" if j + 1 < NT else "v3", (j + 1) % NT)
        else: R = kread(j & 1, "v2" if j + 2 < NT else "v3", (j + 2) % NT)
        e = rr = 0
        for ch in pat:
            if ch == "e": a(f"v_exp_f32 v{A+e}, v{A+e}"); e += 1
            elif ch == "P":
                a(f"v_smfmac_f32_32x32x32_bf16 {v(OA[b^1],16)}, {v(VS[jprev&1]+4,4)}, {v(B+8,8)}, v4")
                if n == 2 * NT - 3: a("s_barrier")
            elif ch == "l": a(f"v_smfmac_f32_16x16x64_bf16 {v(LACC[b^1],4)}, {v(SELL,4)}, {v(B+8,8)}, v4")
            elif ch == "L": a(f"v_smfmac_f32_16x16x64_bf16 {v(LACC[b],4)}, {v(SELL,4)}, {v(A,8)}, v4")
            elif ch == "w": a("s_waitcnt lgkmcnt(1)" if b == 0 else "s_nop 0")
            elif ch == "M":
                a(f"v_mfma_f32_32x32x16_bf16 {v(B,16)}, {v(KS[jnext&1],4)}, {v(QF[b^1],4)}, {v(NEGM[b^1],16)}")
                if n == 2 * NT - 1: a("v_mov_b32 v2, v3")
            elif ch == "N": a(f"v_mfma_f32_32x32x16_bf16 {v(B,16)}, {v(KS[jnext&1]+4,4)}, {v(QF[b^1]+4,4)}, {v(B,16)}")
            elif ch == "V":
                a(f"v_smfmac_f32_32x32x32_bf16 {v(OA[b],16)}, {v(VS[j&1],4)}, {v(A,8)}, v4")
                if n == 2 * NT - 1: a("s_add_u32 s28, s28, 1")
                if n == 0: a(f"v_add_u32 v3, {SLOT}, v2")
                if n == 1: a(f"v_and_b32 v3, {4*SLOT-1}, v3")
            elif ch == "r": a(R[rr]); rr += 1
    a("s_cmp_lt_u32 s28, 8")
    a("s_cbranch_scc1 L_p2_loop")
    assert check_loop(a.lines[start:]) == (0, 0)
    a("s_nop 1")
    a(f"v_smfmac_f32_32x32x32_bf16 {v(OA[1],16)}, {v(VS[1]+4,4)}, {v(SB[1]+8,8)}, v4")
    a(f"v_smfmac_f32_16x16x64_bf16 {v(LACC[1],4)}, {v(SELL,4)}, {v(SB[1]+8,8)}, v4")
    stamp(a, opt, 6)
    O0 = OA[0]; O1 = OA[1]; L0r = LACC[0]
    a("s_mov_b32 s48, 0")
    a.label("L_p2_blk")
    a(f"""
    s_mov_b32 s36, 0x5d800000        ; 2^60
    v_cmp_nlt_f32 vcc, v{L0r}, s36
    s_cmp_lg_u64 vcc, 0
    s_cbranch_scc1 L_p2_slow
    """)
    a.label("L_p2_fin", keep_hist=True)
    a(f"v_rcp_f32 v{L0r}, v{L0r}")
    for r in range(0, 16, 2):
        a(f"v_pk_mul_f32 {v(O0+r,2)}, {v(O0+r,2)}, {v(L0r,2)} op_sel_hi:[1,0]")
    cvt_inplace(a, O0)
    a(f"buffer_store_dwordx4 {v(O0,4)}, v1, s[16:19], s47 offen{SC}")
    a(f"buffer_store_dwordx4 {v(O0+4,4)}, v1, s[16:19], s47 offen offset:1024{SC}")
    a(f"""
    s_cmp_lg_u32 s48, 0
    s_cbranch_scc1 L_p2_out
    s_mov_b32 s48, 1
    s_add_u32 s47, s47, 65536
    """)
    for r in range(16): a(f"v_mov_b32 v{O0+r}, v{O1+r}")
    a(f"v_mov_b32 v{L0r}, v{LACC[1]}")
    for r in range(8): a(f"v_mov_b32 v{QF[0]+r}, v{QF[1]+r}")
    a("s_branch L_p2_blk")
    S0 = SB[0]; Q0 = QF[0]; NM = NEGM[0]
    a.label("L_p2_slow")
    a(f"""
    s_waitcnt lgkmcnt(0)
    s_mov_b32 s36, s40
    s_mov_b32 s28, 0
    v_mov_b32 v6, 0xff800000
    """)
    a.label("L_p2_slow1")
    a(f"""
    buffer_load_dwordx4 {v(KS[0],4)}, v1, s[16:19], s36 offen{lf}
    buffer_load_dwordx4 {v(KS[0]+4,4)}, v1, s[16:19], s36 offen offset:1024{lf}
    s_waitcnt vmcnt(0)
    v_mfma_f32_32x32x16_bf16 {v(S0,16)}, {v(KS[0],4)}, {v(Q0,4)}, 0
    v_mfma_f32_32x32x16_bf16 {v(S0,16)}, {v(KS[0]+4,4)}, {v(Q0+4,4)}, {v(S0,16)}
    """)
    rowmax(S0, 6, init=False)
    a(f"""
    s_add_u32 s36, s36, 4096
    s_add_u32 s28, s28, 1
    s_cmp_lt_u32 s28, 64
    s_cbranch_scc1 L_p2_slow1
    """)
    finish_max(6, 7, NM)
    for r in range(16): a(f"v_mov_b32 v{O0+r}, 0")
    for r in range(4): a(f"v_mov_b32 v{L0r+r}, 0")
    a("s_mov_b32 s36, s40\ns_mov_b32 s28, 0")
    a.label("L_p2_slow2")
    a(f"""
    buffer_load_dwordx4 {v(KS[0],4)}, v1, s[16:19], s36 offen{lf}
    buffer_load_dwordx4 {v(KS[0]+4,4)}, v1, s[16:19], s36 offen offset:1024{lf}
    buffer_load_dwordx4 {v(VS[0],4)}, v1, s[16:19], s36 offen offset:2048{lf}
    buffer_load_dwordx4 {v(VS[0]+4,4)}, v1, s[16:19], s36 offen offset:3072{lf}
    s_waitcnt vmcnt(0)
    v_mfma_f32_32x32x16_bf16 {v(S0,16)}, {v(KS[0],4)}, {v(Q0,4)}, {v(NM,16)}
    v_mfma_f32_32x32x16_bf16 {v(S0,16)}, {v(KS[0]+4,4)}, {v(Q0+4,4)}, {v(S0,16)}
    """)
    for r in range(16): a(f"v_exp_f32 v{S0+r}, v{S0+r}")
    a(f"""
    v_smfmac_f32_32x32x32_bf16 {v(O0,16)}, {v(VS[0],4)}, {v(S0,8)}, v4
    v_smfmac_f32_16x16x64_bf16 {v(L0r,4)}, {v(SELL,4)}, {v(S0,8)}, v4
    v_smfmac_f32_32x32x32_bf16 {v(O0,16)}, {v(VS[0]+4,4)}, {v(S0+8,8)}, v4
    v_smfmac_f32_16x16x64_bf16 {v(L0r,4)}, {v(SELL,4)}, {v(S0+8,8)}, v4
    s_nop 15
    s_add_u32 s36, s36, 4096
    s_add_u32 s28, s28, 1
    s_cmp_lt_u32 s28, 64
    s_cbranch_scc1 L_p2_slow2
    s_nop 15
    s_branch L_p2_fin
    """)
    a.label("L_p2_out")

def p2_helper(a, opt):
    lf = opt.get("lf", " sc1")
    P0 = 8; QAF = 160; ZP0 = 88; JUNK = 96
    WP = 8; KVR = 16; ZR = 32; PQ = 48; EP = 104; T = 120; NUM = 136; DEN = 64
    p2_ids(a)
    a(f"""
    s_lshl_b32 s41, s31, 13          ; hw*8192
    s_add_u32 s40, s40, s41
    s_mov_b32 s43, s41
    s_mov_b32 s93, s25
    s_mov_b32 s44, {f2u(LOG2E)}
    s_mov_b32 s45, {f2u(LOG2E)}
    s_lshr_b32 s50, s2, 3
    s_lshl_b32 s50, s50, 16
    s_lshl_b32 s37, s31, 14
    s_add_u32 s50, s50, s37
    v_lshlrev_b32 v3, 7, v0
    s_lshl_b32 s38, s26, 1
    s_add_u32 s38, s38, 1
    s_lshl_b32 s38, s38, 6
    s_add_u32 s38, s38, s35
    s_lshl_b32 s38, s38, 11
    s_add_u32 s38, s38, {QB_OFF}
    """)
    def advance():
        a(f"""
        s_add_u32 s93, s93, 1
        s_and_b32 s93, s93, 7
        s_add_u32 s43, s43, {SLOT}
        s_and_b32 s43, s43, {4*SLOT-1}
        """)
    def chunk(single=False):
        need_chunk(a, single)
        a("s_lshl_b32 s42, s93, 15\ns_add_u32 s42, s42, s40")
        for hf in range(2):
            a(f"s_add_u32 m0, s43, {hf*4096}")
            a(f"s_add_u32 s29, s42, {hf*4096}")
            for n in range(4):
                a(f"buffer_load_dwordx4 v1, s[16:19], s29 offen offset:{n*1024}{lf} lds")
        advance()
    def PF():
        a(f"buffer_load_dword v{JUNK}, v3, s[52:55], s50 offen")
        a(f"s_add_u32 s50, s50, 8192")
    def WB(n):
        a(f"s_waitcnt vmcnt({n})")
        a("s_barrier")
    a("s_cmp_lg_u32 s24, 0\ns_cbranch_scc1 L_p2_hB")
    stamp(a, opt, 3)
    chunk(True)
    a(f"""
    s_lshl_b32 s29, s31, 12
    s_add_u32 m0, s29, {QL0}
    s_nop 0
    """)
    for n in range(4):
        a(f"buffer_load_dwordx4 v1, s[16:19], s38 offen offset:{n*1024}{lf} lds")
    stamp(a, opt, 4)
    WB(0)
    publish(a, 48)
    chunk()
    WB(0)
    chunk(); chunk(); PF()
    WB(9)
    chunk(); PF()
    WB(10)
    chunk()
    WB(9)
    chunk()
    WB(8)
    chunk()
    WB(8)
    WB(0)
    a("s_branch L_p2_hdone")
    a.label("L_p2_hB")
    a(f"""
    v_add_u32 v2, s41, v1
    v_add_u32 v4, {2*SLOT}, v2
    s_lshl_b32 s42, s25, 15
    s_add_u32 s42, s42, s40
    s_add_u32 s46, s42, 4096
    s_add_u32 s47, s42, {1<<18}
    s_add_u32 s48, s46, {1<<18}
    s_barrier
    """)
    stamp(a, opt, 3)
    a("s_setprio 2")
    for q in range(8): a(f"ds_read_b128 {v(8+4*q,4)}, v2 offset:{q*1024}")
    for q in range(4): a(f"ds_read_b128 {v(40+4*q,4)}, v4 offset:{SLOT+q*1024}")
    for q in range(8):
        a(f"s_waitcnt lgkmcnt({min(11-q+min(q,4), 15) if False else 11-q+min(q,4)})")
        a(f"buffer_store_dwordx4 {v(8+4*q,4)}, v1, s[16:19], {'s42' if q < 4 else 's46'} offen offset:{(q&3)*1024}{SC}")
        if q < 4: a(f"ds_read_b128 {v(56+4*q,4)}, v4 offset:{SLOT+4096+q*1024}")
    for q in range(4): a(f"ds_read_b128 {v(72+4*q,4)}, v4 offset:{q*1024}")
    for q in range(8):
        a(f"s_waitcnt lgkmcnt({11-q})")
        a(f"buffer_store_dwordx4 {v(40+4*q,4)}, v1, s[16:19], {'s47' if q < 4 else 's48'} offen offset:{(q&3)*1024}{SC}")
    for q in range(4):
        a(f"s_waitcnt lgkmcnt({3-q})")
        a(f"buffer_store_dwordx4 {v(72+4*q,4)}, v1, s[16:19], s38 offen offset:{q*1024}{SC}")
    advance()
    stamp(a, opt, 1)
    a("s_waitcnt vmcnt(12)")
    publish(a, 48, all_helpers=True)
    stamp(a, opt, 4)
    a("s_waitcnt vmcnt(1)")
    publish(a, 49, all_helpers=True)
    stamp(a, opt, 2)
    chunk(True)
    stamp(a, opt, 6)
    a("s_waitcnt vmcnt(0)")
    stamp(a, opt, 9)
    WB(0)
    stamp(a, opt, 5)
    chunk(); chunk(); PF()
    WB(9)
    poll(a, 8, 8)
    chunk(); PF()
    WB(10)
    chunk()
    a(f"""
    s_lshl_b32 s34, s26, 1
    s_and_b32 s29, s25, 1
    s_add_u32 s34, s34, s29
    s_and_b32 s35, s25, 6
    s_lshl_b32 s35, s35, 3
    s_lshl_b32 s29, s31, 2
    s_add_u32 s35, s35, s29
    s_lshl_b32 s38, s34, 6
    s_add_u32 s38, s38, s35
    s_lshl_b32 s38, s38, 11
    s_add_u32 s38, s38, {QA_OFF}
    s_add_u32 s39, s38, 4096
    s_lshl_b32 s46, s35, 5
    s_add_u32 s46, s46, s34
    s_lshl_b32 s46, s46, 11
    s_add_u32 s46, s46, {O_OFF}
    s_lshl_b32 s36, s34, 16
    s_add_u32 s36, s36, {KVP_OFF}
    s_lshl_b32 s29, s31, 11
    s_add_u32 s36, s36, s29
    """)
    for t in range(8):
        a(f"buffer_load_dwordx4 {v(P0+8*t,4)}, v1, s[16:19], s36 offen{lf}")
        a(f"buffer_load_dwordx4 {v(P0+8*t+4,4)}, v1, s[16:19], s36 offen offset:1024{lf}")
        if t < 7: a("s_add_u32 s36, s36, 8192")
    a(f"""
    s_and_b32 s37, s31, 1
    s_lshl_b32 s37, s37, 10
    s_lshl_b32 s36, s34, 11
    s_add_u32 s36, s36, s37
    s_add_u32 m0, s37, {WPH}
    v_lshlrev_b32 v6, 2, v0
    buffer_load_dwordx4 v1, s[20:23], s36 offen lds
    s_lshl_b32 s36, s34, 11
    s_add_u32 s36, s36, {ZP_OFF}
    """)
    for t in range(8):
        a(f"buffer_load_dword v{ZP0+t}, v6, s[16:19], s36 offen offset:{t*256}{lf}")
    for q in range(8):
        a(f"buffer_load_dwordx4 {v(QAF+4*q,4)}, v1, s[16:19], {'s38' if q < 4 else 's39'} offen offset:{(q&3)*1024}{lf}")
    a("s_waitcnt vmcnt(8)")
    for t in range(1, 8):
        for r in range(0, 8, 2):
            a(f"v_pk_add_f32 {v(P0+r,2)}, {v(P0+r,2)}, {v(P0+8*t+r,2)}")
    for r in range(4): a(f"v_cvt_pk_bf16_f32 v{P0+r}, v{P0+2*r}, v{P0+2*r+1}")
    a(f"""
    s_lshl_b32 s36, s31, 10
    s_add_u32 s36, s36, {KVF}
    v_add_u32 v6, s36, v1
    ds_write_b128 v6, {v(P0,4)}
    """)
    for t in range(1, 8): a(f"v_add_f32 v{ZP0}, v{ZP0}, v{ZP0+t}")
    a(f"""
    v_cvt_pk_bf16_f32 v{ZP0}, v{ZP0}, v{ZP0}
    v_lshrrev_b32 v6, 4, v0
    v_lshlrev_b32 v6, 5, v6
    v_and_b32 v7, 4, v0
    v_lshl_add_u32 v6, v7, 2, v6
    v_and_b32 v7, 8, v0
    v_add_u32 v6, v6, v7
    v_and_b32 v7, 3, v0
    v_lshl_add_u32 v6, v7, 1, v6
    v_add_u32 v6, {ZF}, v6
    ds_write_b16 v6, v{ZP0}
    v_mov_b32 v7, 0
    ds_write_b16 v6, v7 offset:128
    v_lshrrev_b32 v5, 5, v0          ; h
    v_bfe_u32 v6, v0, 2, 2
    v_lshl_add_u32 v6, v5, 2, v6     ; 4h+r
    v_bfe_u32 v7, v0, 4, 1
    v_lshlrev_b32 v7, 5, v7
    v_lshl_add_u32 v6, v6, 6, v7
    v_and_b32 v7, 3, v0
    v_lshl_add_u32 v6, v7, 3, v6
    v_add_u32 v2, {WPH}, v6
    v_lshrrev_b32 v6, 2, v0
    v_lshrrev_b32 v7, 4, v0
    v_xor_b32 v6, v6, v7
    v_and_b32 v6, 1, v6
    v_cmp_eq_u32 vcc, 0, v6
    v_lshlrev_b32 v5, 4, v5
    v_add_u32 v5, {ZF}, v5
    v_mov_b32 v6, {ZF+128}
    v_cndmask_b32 v7, v6, v5, vcc
    v_add_u32 v6, {KVF}, v1
    """)
    a("s_waitcnt lgkmcnt(0)")
    a("s_barrier")
    chunk()
    for u in range(2):
        for b in range(2):
            a(f"ds_read_b64_tr_b16 {v(WP+4*u+2*b,2)}, v2 offset:{(16*u+8*b)*64}")
    for f in range(4): a(f"ds_read_b128 {v(KVR+4*f,4)}, v6 offset:{f*1024}")
    for f in range(4): a(f"ds_read_b128 {v(ZR+4*f,4)}, v7 offset:{f*32}")
    a("s_waitcnt vmcnt(8) lgkmcnt(0)")
    def oa_block(b):
        a(f"v_mfma_f32_32x32x16_bf16 {v(PQ,16)}, {v(WP,4)}, {v(QAF+8*b,4)}, 0")
        a(f"v_mfma_f32_32x32x16_bf16 {v(PQ,16)}, {v(WP+4,4)}, {v(QAF+8*b+4,4)}, {v(PQ,16)}")
        softmax_pm(a, PQ, EP, T)
        for f in range(4):
            F = (EP if f < 2 else PQ) + 4 * (f & 1)
            a(f"v_mfma_f32_32x32x16_bf16 {v(NUM,16)}, {v(KVR+4*f,4)}, {v(F,4)}, {'0' if f == 0 else v(NUM,16)}")
            a(f"v_mfma_f32_16x16x32_bf16 {v(DEN,4)}, {v(ZR+4*f,4)}, {v(F,4)}, {'0' if f == 0 else v(DEN,4)}")
        a(f"""
        v_add_f32 v{DEN}, {f2u(1e-6)}, v{DEN}
        v_rcp_f32 v{DEN}, v{DEN}
        """)
        for r in range(0, 16, 2):
            a(f"v_pk_mul_f32 {v(NUM+r,2)}, {v(NUM+r,2)}, {v(DEN,2)} op_sel_hi:[1,0]")
        cvt_inplace(a, NUM)
        a(f"buffer_store_dwordx4 {v(NUM,4)}, v1, s[16:19], s46 offen{SC}")
        a(f"buffer_store_dwordx4 {v(NUM+4,4)}, v1, s[16:19], s46 offen offset:1024{SC}")
        a(f"s_add_u32 s46, s46, 65536")
    a("s_mov_b32 s28, 0")
    a.label("L_p2_oa")
    oa_block(0)
    for r in range(0, 24, 2): a(f"v_pk_mov_b32 {v(QAF+r,2)}, {v(QAF+8+r,2)}, {v(QAF+8+r,2)} op_sel:[0,1]")
    a(f"""
    s_add_u32 s28, s28, 1
    s_cmp_eq_u32 s28, 2
    s_cbranch_scc0 L_p2_oa1
    s_barrier
    """)
    chunk()
    a.label("L_p2_oa1")
    a("s_cmp_lt_u32 s28, 4\ns_cbranch_scc1 L_p2_oa")
    WB(12)
    WB(0)
    publish(a, 56, n=4)
    a("s_setprio 0")
    a.label("L_p2_hdone")

NS = 5
ACC3 = 72
OS = [8, 16, 24, 32]; WSR = [40, 48, 56, 64]
def p3_ids(a):
    a(f"""
    s_lshr_b32 s24, s3, 2            ; branch
    s_and_b32 s25, s3, 3
    s_lshl_b32 s25, s25, 2
    s_bfe_u32 s29, s2, 0x20003
    s_add_u32 s25, s25, s29
    s_lshr_b32 s26, s2, 5
    """)

def p3_compute(a, opt):
    a("s_waitcnt lgkmcnt(0)")
    p3_ids(a)
    a(f"""
    s_lshr_b32 s36, s27, 1           ; tw
    s_and_b32 s37, s27, 1            ; cw
    v_lshlrev_b32 v1, 4, v0
    s_lshl_b32 s29, s36, 13
    v_add_u32 v1, s29, v1
    v_lshrrev_b32 v2, 5, v0          ; h
    v_bfe_u32 v3, v0, 2, 2           ; r
    v_lshl_add_u32 v4, v2, 2, v3
    v_lshlrev_b32 v4, 8, v4
    s_lshl_b32 s29, s37, 1
    v_xor_b32 v3, s29, v3
    v_lshl_add_u32 v4, v3, 6, v4
    v_bfe_u32 v5, v0, 4, 1
    v_lshl_add_u32 v4, v5, 5, v4
    v_and_b32 v5, 3, v0
    v_lshl_add_u32 v4, v5, 3, v4
    v_add_u32 v2, 16384, v4
    v_xor_b32 v3, 64, v2
    s_mov_b32 s30, 0
    v_mov_b32 v4, v1
    v_mov_b32 v5, v2
    v_mov_b32 v6, v3
    s_mov_b32 s28, 16
    """)
    for r in range(ACC3, ACC3 + 64): a(f"v_mov_b32 v{r}, 0")
    def reads(st, c):
        O = OS[st]; W = WSR[st]
        o = [f"ds_read_b128 {v(O+4*i,4)}, v4 offset:{i*4096+c*1024}" for i in range(2)]
        w = [f"ds_read_b64_tr_b16 {v(W+4*cb+2*b,2)}, v{5+cb} offset:{(16*c+8*b)*256}" for cb in range(2) for b in range(2)]
        return [w[0], w[1], o[0], o[1], w[2], w[3]]
    def mf(st):
        O = OS[st]; W = WSR[st]
        return [f"v_mfma_f32_32x32x16_bf16 {v(ACC3+16*(2*i+cb),16)}, {v(W+4*cb,4)}, {v(O+4*i,4)}, {v(ACC3+16*(2*i+cb),16)}"
                for cb in range(2) for i in range(2)]
    a("s_waitcnt vmcnt(0)")
    stamp(a, opt, 7)
    a("s_barrier")
    stamp(a, opt, 8)
    a("s_barrier")
    stamp(a, opt, 9)
    for r in reads(0, 0) + reads(1, 1): a(r)
    a.raw(".p2align 6")
    a.label("L_p3_loop", keep_hist=True)
    start = len(a.lines)
    for c in range(4):
        M = mf(c); R = reads((c + 2) & 3, (c + 2) & 3)
        a("s_waitcnt lgkmcnt(6)")
        a(M[0])
        if c == 2: a("s_barrier")
        a(R[0]); a(R[1])
        a(M[1])
        a(R[2]); a(R[3])
        a(M[2])
        a(R[4]); a(R[5])
        if c == 1:
            a(f"""
            s_add_u32 s30, s30, {SLOT}
            s_cmp_eq_u32 s30, {SLOT*NS}
            s_cselect_b32 s30, 0, s30
            """)
        a(M[3])
        if c == 1:
            a("""
            v_add_u32 v4, s30, v1
            v_add_u32 v5, s30, v2
            v_add_u32 v6, s30, v3
            """)
        if c == 3:
            a("s_sub_u32 s28, s28, 1")
            a("s_cmp_lg_u32 s28, 0")
    a("s_cbranch_scc1 L_p3_loop")
    assert check_loop(a.lines[start:]) == (0, 0)
    a("s_waitcnt lgkmcnt(0)")
    stamp(a, opt, 10)
    RS = 144
    a(f"""
    s_lshl_b32 s38, s25, 7
    s_lshl_b32 s29, s36, 6
    s_add_u32 s38, s38, s29          ; token0
    s_lshl_b32 s38, s38, 12
    s_lshl_b32 s29, s24, 11
    s_add_u32 s38, s38, s29
    s_lshl_b32 s29, s26, 8
    s_add_u32 s38, s38, s29
    s_lshl_b32 s29, s37, 7
    s_add_u32 s38, s38, s29
    s_mul_i32 s29, s27, {64*RS}
    s_add_u32 s29, s29, {2*SLOT}
    v_and_b32 v1, 31, v0
    v_mul_u32_u24 v1, {RS}, v1
    v_lshrrev_b32 v2, 5, v0
    v_lshl_add_u32 v1, v2, 3, v1
    v_add_u32 v1, s29, v1
    v_lshrrev_b32 v2, 3, v0
    v_and_b32 v3, 7, v0
    v_mul_u32_u24 v4, {RS}, v2
    v_lshl_add_u32 v4, v3, 4, v4
    v_add_u32 v4, s29, v4
    v_lshlrev_b32 v2, 12, v2
    v_lshl_add_u32 v2, v3, 4, v2
    """)
    for i in range(2):
        for cb in range(2):
            D = ACC3 + 16 * (2 * i + cb)
            for r in range(8): a(f"v_cvt_pk_bf16_f32 v{D+r}, v{D+2*r}, v{D+2*r+1}")
            for g in range(4):
                a(f"ds_write_b64 v1, {v(D+2*g,2)} offset:{i*32*RS + cb*64 + g*16}")
        for q in range(4):
            a(f"ds_read_b128 {v(8+16*i+4*q,4)}, v4 offset:{(i*32+q*8)*RS}")
    for i in range(2):
        for q in range(4):
            a(f"s_waitcnt lgkmcnt({(3-q) + (12 if i == 0 else 0)})")
            a(f"buffer_store_dwordx4 {v(8+16*i+4*q,4)}, v2, s[56:59], s38 offen{SC}")
            a(f"s_add_u32 s38, s38, {8*4096}")

def p3_helper(a, opt):
    lf = opt.get("lf", " sc1")
    p3_ids(a)
    a(f"""
    s_sub_u32 s36, s27, 4            ; lw
    v_lshlrev_b32 v1, 4, v0
    v_lshrrev_b32 v2, 4, v0          ; r
    v_and_b32 v3, 15, v0             ; p
    v_lshlrev_b32 v4, 2, v2
    v_xor_b32 v3, v3, v4
    v_lshlrev_b32 v3, 4, v3
    v_lshl_add_u32 v8, v2, 11, v3
    s_lshl_b32 s29, s26, 8
    s_lshl_b32 s37, s36, 15
    s_add_u32 s29, s29, s37
    v_add_u32 v8, s29, v8
    v_add_u32 v9, 8192, v8
    v_add_u32 v10, 16384, v8
    v_add_u32 v11, 24576, v8
    s_lshl_b32 s38, s25, 2
    s_add_u32 s38, s38, s36          ; tb
    s_lshl_b32 s38, s38, 16
    s_lshl_b32 s29, s24, 22
    s_add_u32 s38, s38, s29
    s_add_u32 s38, s38, {O_OFF}      ; O soffset
    s_lshl_b32 s37, s36, 12          ; lw*4096
    s_add_u32 s40, s37, {SLOT*NS}
    """)
    ORD = opt.get("ord", [0, 1, 2, 4, 5, 6, 7, 8, 9, 10, 12, 13, 14, 15, 3, 11])
    def GWs(t):
        a(f"s_mov_b32 s39, {ORD[t]*64*2048}")
        for n in range(4):
            a(f"s_add_u32 m0, s37, {t*SLOT+16384+n*1024}")
            a(f"buffer_load_dwordx4 v{8+n}, s[52:55], s39 offen lds")
    def GOs(t):
        a(f"s_add_u32 m0, s37, {t*SLOT}")
        a(f"s_add_u32 s29, s38, {ORD[t]*4096}")
        for n in range(4): a(f"buffer_load_dwordx4 v1, s[16:19], s29 offen offset:{n*1024}{lf} lds")
    def hm(*ts): return sum(3 << (2 * ORD[t]) for t in ts)
    def G():
        a(f"""
        s_and_b32 s41, s42, 15
        s_lshr_b64 s[42:43], s[42:43], 4
        s_lshl_b32 s39, s41, 17
        s_lshl_b32 s29, s41, 1
        s_lshl_b32 s93, 3, s29
        """)
        for n in range(4):
            a(f"s_add_u32 m0, s30, {16384+n*1024}")
            a(f"buffer_load_dwordx4 v{8+n}, s[52:55], s39 offen lds")
        need_mask(a)
        a(f"""
        s_lshl_b32 s29, s41, 12
        s_mov_b32 m0, s30
        s_add_u32 s29, s29, s38
        """)
        for n in range(4): a(f"buffer_load_dwordx4 v1, s[16:19], s29 offen offset:{n*1024}{lf} lds")
        a(f"""
        s_add_u32 s30, s30, {SLOT}
        s_cmp_eq_u32 s30, s40
        s_cselect_b32 s30, s37, s30
        """)
    packed = sum(ORD[5 + i] << (4 * i) for i in range(11))
    a(f"""
    s_mov_b32 s42, {packed & 0xffffffff}
    s_mov_b32 s43, {packed >> 32}
    s_mov_b32 s30, s37
    s_mov_b32 s48, 0
    """)
    code_pf(a, opt, 249)
    GWs(4)
    a("s_barrier")
    GWs(0); GWs(1); GWs(2)
    look(a)
    a(f"""
    s_andn2_b32 s88, {hm(0, 1)}, s92
    s_cbranch_scc1 L_p3_notyet
    s_mov_b32 s48, 1
    """)
    GOs(0); GOs(1)
    a.label("L_p3_notyet")
    a("s_barrier")
    stamp(a, opt, 7)
    publish(a, 52, n=4)
    GWs(3)
    a(f"""
    s_cmp_lg_u32 s48, 0
    s_cbranch_scc1 L_p3_have
    s_mov_b32 s93, {hm(0, 1)}
    """)
    need_mask(a)
    stamp(a, opt, 8)
    GOs(0); GOs(1)
    a.label("L_p3_have")
    a("s_waitcnt vmcnt(4)")
    a("s_barrier")
    a(f"s_mov_b32 s93, {hm(2)}")
    need_mask(a)
    GOs(2)
    a("s_waitcnt vmcnt(4)")
    a("s_barrier")
    a(f"s_mov_b32 s93, {hm(3, 4)}")
    need_mask(a)
    GOs(3); GOs(4)
    a("s_waitcnt vmcnt(8)")
    a("s_barrier")
    G()
    a("s_waitcnt vmcnt(12)")
    a("s_barrier")
    G()
    a("s_mov_b32 s28, 9")
    a.label("L_p3_lloop")
    a("s_waitcnt vmcnt(16)")
    a("s_barrier")
    G()
    a(f"""
    s_sub_u32 s28, s28, 1
    s_cmp_lg_u32 s28, 0
    s_cbranch_scc1 L_p3_lloop
    """)
    for n in (16, 8, 0):
        a(f"s_waitcnt vmcnt({n})")
        a("s_barrier")

def gen(opt):
    mp = opt.get("map", 1)
    a = Asm()
    a.raw(khead(NAME))
    a(f"""
    s_getpc_b64 s[94:95]
    """)
    a.label("L_pc", keep_hist=True)
    a(f"""
    s_cmp_ge_u32 s2, 256
    s_cbranch_scc1 L_end
    s_and_b32 s3, s2, 7
    s_bfe_u32 s24, s2, {0x10003 if mp == 1 else 0x10002}
    s_lshl_b32 s29, s24, 5
    s_load_dwordx4 s[4:7], s[0:1], s29
    s_load_dwordx2 s[32:33], s[0:1], 72
    s_load_dwordx2 s[34:35], s[0:1], 16
    s_lshr_b32 s29, s3, 2
    s_mul_i32 s29, s29, 24
    s_add_u32 s29, s29, 24
    s_load_dwordx2 s[52:53], s[0:1], s29
    s_load_dwordx4 s[44:47], s[0:1], 56
    s_and_b32 s25, s3, 1
    s_lshl_b32 s25, s25, 2
    s_bfe_u32 s29, s2, {0x20004 if mp == 1 else 0x20003}
    s_add_u32 s25, s25, s29          ; tt
    s_bfe_u32 s26, s3, {0x20001 if mp == 1 else 0x10001}
    s_lshl_b32 s26, s26, {2 if mp == 1 else 3}
    s_lshr_b32 s29, s2, {6 if mp == 1 else 5}
    s_add_u32 s26, s26, s29          ; ct
    v_lshrrev_b32 v1, 6, v0
    v_and_b32 v0, 63, v0
    v_readfirstlane_b32 s27, v1
    s_lshl_b32 s29, s25, 19
    s_mov_b32 s10, 0x80000
    s_mov_b32 s11, 0x20000
    s_mov_b32 s14, 0x600000
    s_mov_b32 s15, 0x20000
    s_mov_b32 s18, 0x10000000
    s_mov_b32 s19, 0x20000
    s_mov_b32 s22, 0x10000
    s_mov_b32 s23, 0x20000
    s_mov_b32 s54, 0x200000
    s_mov_b32 s55, 0x20000
    s_mov_b32 s58, 0x800000
    s_mov_b32 s59, 0x20000
    s_mov_b32 s86, 256
    s_mov_b32 s87, 0x20000
    s_waitcnt lgkmcnt(0)
    s_add_u32 s8, s4, s29
    s_addc_u32 s9, s5, 0
    s_mov_b32 s12, s6
    s_mov_b32 s13, s7
    s_mov_b32 s16, s32
    s_mov_b32 s17, s33
    s_mov_b32 s20, s34
    s_mov_b32 s21, s35
    s_mov_b32 s56, s44
    s_mov_b32 s57, s45
    s_mov_b32 s84, s46
    s_mov_b32 s85, s47
    """)
    for i in range(12): stamp(a, opt, i)
    a("s_cmp_lt_u32 s27, 4\ns_cbranch_scc1 L_compute")
    p1_helper(a, opt)
    p2_helper(a, opt)
    p3_helper(a, opt)
    a("s_branch L_fin")
    a.label("L_compute")
    p1_compute(a, opt)
    p2_compute(a, opt)
    p3_compute(a, opt)
    a.label("L_fin")
    stamp_out(a, opt)
    a.label("L_end")
    a("s_endpgm")
    return a.text()

if __name__ == "__main__":
    import json, subprocess
    out = sys.argv[1]
    opt = json.loads(sys.argv[2]) if len(sys.argv) > 2 else {}
    HEADER = open("concat_heads__linear_kernel_hedgehog__mha_block__prompt.s.ref").read().split("; Override launch")[0]
    launch = f"; @launch kernel={NAME} grid=(256,1,1) block=(512,1,1) lds=163840" if opt.get("list", 1) else "; @launch grid=(256,1,1) block=(512,1,1) lds=163840"
    s = HEADER + launch + '\n.amdgcn_target "amdgcn-amd-amdhsa--gfx950"\n.text\n' + gen(opt) + '.section .rodata,"a"\n' + kdesc(NAME, 256, 100)
    open(out, "w").write(s)
    r = subprocess.run(["clang", "-x", "assembler", "-target", "amdgcn-amd-amdhsa", "-mcpu=gfx950", "-c", out, "-o", "_b.o"], capture_output=True, text=True)
    if r.returncode != 0:
        print(r.stderr[:1500]); raise SystemExit(1)
```

```python
from asmlib import *
import math

QB_OFF = 0
KVB_OFF = 4 << 20
QA_OFF = 12 << 20
KVP_OFF = 16 << 20
ZP_OFF = 18 << 20
O_OFF = 20 << 20
WS_BYTES = 268435456

W_SLOT = 12288; NW = 5
X_BASE = W_SLOT * NW
X_SLOT = 32768; NX = 3
WPHI_LDS = X_BASE + NX * X_SLOT
LOG2E = 1.4426950408889634
def f2u(x):
    import struct
    return struct.unpack("<I", struct.pack("<f", x))[0]

ACCQ, ACCK, ACCV = 64, 128, 192
XS = [8, 24]; WS_ = [40, 52]

STAMP_OFF = 30 << 20
def stamp(a, opt, idx):
    if not opt.get("stamp"): return
    a(f"s_memtime s[{60+2*idx}:{61+2*idx}]")
    a(f"s_memrealtime s[{72+2*idx}:{73+2*idx}]")
    a("s_waitcnt lgkmcnt(0)")
def stamp_out(a, opt, nw=8):
    if not opt.get("stamp"): return
    a("s_waitcnt vmcnt(0)")
    stamp(a, opt, 5)
    a(f"""
    s_mul_i32 s29, s2, {nw}
    s_add_u32 s29, s29, s27
    s_lshl_b32 s29, s29, 6
    s_add_u32 s29, s29, {STAMP_OFF + (opt.get('stamp') - 1) * 262144}
    v_mov_b32 v9, 0
    """)
    for i in range(6):
        a(f"v_mov_b32 v8, s{60+2*i}")
        a(f"buffer_store_dword v8, v9, s[16:19], s29 offen offset:{4*i}")
    for i in range(6):
        a(f"v_mov_b32 v8, s{72+2*i}")
        a(f"buffer_store_dword v8, v9, s[16:19], s29 offen offset:{24+4*i}")
    a("s_getreg_b32 s3, hwreg(HW_REG_XCC_ID)")
    a("v_mov_b32 v8, s3")
    a(f"buffer_store_dword v8, v9, s[16:19], s29 offen offset:48")

def gen_k1(name="k1_kernel", opt=None):
    opt = opt or {}
    a = Asm()
    a.raw(khead(name))
    a(f"""
    s_cmp_ge_u32 s2, 256
    s_cbranch_scc1 L_{name}_end
    s_and_b32 s3, s2, 7
    s_lshr_b32 s28, s2, 3
    """)
    if opt.get("only") == "xcd":
        a(f"s_cmp_ge_u32 s3, 4\ns_cbranch_scc1 L_{name}_end")
    if opt.get("only") == "half":
        a(f"s_cmp_ge_u32 s28, 16\ns_cbranch_scc1 L_{name}_end")
    if opt.get("only") == "q3":
        a(f"s_cmp_ge_u32 s28, 24\ns_cbranch_scc1 L_{name}_end")
    if opt.get("map", 0) == 2:
        a("""
        s_lshr_b32 s24, s3, 2
        s_and_b32 s25, s3, 1
        s_lshl_b32 s25, s25, 2
        s_lshr_b32 s29, s28, 3
        s_add_u32 s25, s25, s29
        s_lshr_b32 s26, s3, 1
        s_and_b32 s26, s26, 1
        s_lshl_b32 s26, s26, 3
        s_and_b32 s29, s28, 7
        s_add_u32 s26, s26, s29
        """)
    elif opt.get("map", 0) == 0:
        a("""
        s_lshr_b32 s24, s3, 2
        s_and_b32 s25, s3, 1
        s_lshl_b32 s25, s25, 2
        s_and_b32 s29, s28, 3
        s_add_u32 s25, s25, s29
        s_lshr_b32 s26, s3, 1
        s_and_b32 s26, s26, 1
        s_lshl_b32 s26, s26, 3
        s_lshr_b32 s29, s28, 2
        s_add_u32 s26, s26, s29
        """)
    else:
        a("""
        s_and_b32 s24, s28, 1
        s_lshr_b32 s28, s28, 1
        s_and_b32 s25, s3, 1
        s_lshl_b32 s25, s25, 2
        s_and_b32 s29, s28, 3
        s_add_u32 s25, s25, s29
        s_lshr_b32 s26, s3, 1
        s_lshl_b32 s26, s26, 2
        s_lshr_b32 s29, s28, 2
        s_add_u32 s26, s26, s29
        """)
    a(f"""
    s_lshl_b32 s29, s24, 5
    s_load_dwordx4 s[4:7], s[0:1], s29
    s_load_dwordx2 s[32:33], s[0:1], 72
    s_load_dwordx2 s[34:35], s[0:1], 16
    v_lshrrev_b32 v1, 6, v0
    v_and_b32 v0, 63, v0
    v_readfirstlane_b32 s27, v1
    s_lshl_b32 s29, s25, 19
    s_waitcnt lgkmcnt(0)
    s_add_u32 s8, s4, s29
    s_addc_u32 s9, s5, 0
    s_mov_b32 s10, 0x80000
    s_mov_b32 s11, 0x20000
    s_mov_b32 s12, s6
    s_mov_b32 s13, s7
    s_mov_b32 s14, 0x600000
    s_mov_b32 s15, 0x20000
    s_mov_b32 s16, s32
    s_mov_b32 s17, s33
    s_mov_b32 s18, 0x10000000
    s_mov_b32 s19, 0x20000
    s_mov_b32 s20, s34
    s_mov_b32 s21, s35
    s_mov_b32 s22, 0x10000
    s_mov_b32 s23, 0x20000
    """)
    for i in range(6): stamp(a, opt, i)
    a(f"""
    s_cmp_ge_u32 s27, 4
    s_cbranch_scc1 L_{name}_loader
    """)
    gen_compute(a, name, opt)
    gen_loader(a, name, opt)
    a.label(f"L_{name}_fin")
    stamp(a, opt, 4)
    stamp_out(a, opt)
    a.label(f"L_{name}_end")
    a("s_endpgm")
    return a.text()

def reads(a_or_list, st, c1, sp):
    X = XS[st]; W = WS_[st]
    def wr(seg, b): return f"ds_read_b64_tr_b16 {v(W+4*seg+2*b,2)}, v7 offset:{seg*4096 + (16*sp+4*b)*128}"
    def xr(i): return f"ds_read_b128 {v(X+4*i,4)}, v6 offset:{i*4096}"
    return [wr(0,0), wr(0,1), xr(0), wr(1,0), wr(1,1), wr(2,0), wr(2,1), xr(1), xr(2), xr(3)]

def mfmas(st):
    X = XS[st]; W = WS_[st]
    out = []
    for i in range(4):
        out.append(f"v_mfma_f32_32x32x16_bf16 {v(ACCQ+16*i,16)}, {v(W,4)}, {v(X+4*i,4)}, {v(ACCQ+16*i,16)}")
        out.append(f"v_mfma_f32_32x32x16_bf16 {v(ACCK+16*i,16)}, {v(W+4,4)}, {v(X+4*i,4)}, {v(ACCK+16*i,16)}")
        out.append(f"v_mfma_f32_32x32x16_bf16 {v(ACCV+16*i,16)}, {v(X+4*i,4)}, {v(W+8,4)}, {v(ACCV+16*i,16)}")
    return out

def gen_compute(a, name, opt):
    a(f"""
    s_lshr_b32 s36, s27, 1          ; tw
    s_and_b32 s37, s27, 1           ; hd
    v_and_b32 v8, 31, v0            ; n
    v_lshrrev_b32 v9, 5, v0         ; h
    v_lshrrev_b32 v10, 1, v8
    v_and_b32 v10, 7, v10           ; f
    v_xor_b32 v10, v10, v9          ; h ^ f
    v_lshlrev_b32 v10, 4, v10
    s_lshl_b32 s29, s36, 14         ; tw*128*128
    v_lshlrev_b32 v11, 7, v8
    v_add_u32 v11, s29, v11
    v_add_u32 v1, v11, v10
    v_xor_b32 v2, 32, v1
    v_xor_b32 v3, 64, v1
    v_xor_b32 v4, 0x60, v1
    v_lshrrev_b32 v10, 2, v0
    v_and_b32 v10, 3, v10           ; r
    v_lshlrev_b32 v11, 3, v9        ; 8h
    v_add_u32 v11, v11, v10
    v_lshlrev_b32 v11, 7, v11       ; row*128
    v_lshrrev_b32 v10, 1, v10       ; r>>1
    v_xor_b32 v10, s37, v10
    v_lshlrev_b32 v10, 6, v10
    v_add_u32 v11, v11, v10
    v_lshrrev_b32 v10, 4, v0
    v_and_b32 v10, 1, v10
    v_lshlrev_b32 v10, 5, v10
    v_add_u32 v11, v11, v10
    v_and_b32 v10, 3, v0
    v_lshlrev_b32 v10, 3, v10
    v_add_u32 v5, v11, v10
    s_mov_b32 s30, {X_BASE}
    s_mov_b32 s31, 0
    v_add_u32 v6, s30, v1
    v_mov_b32 v7, v5
    s_mov_b32 s28, 16
    """)
    pf = opt.get("pf", 0)
    def prefetch():
        a(f"""
        s_lshr_b32 s50, s2, 5
        s_lshl_b32 s50, s50, 16          ; 32 rows * 2048
        s_lshl_b32 s51, s27, 8
        s_add_u32 s50, s50, s51          ; + w*256
        v_lshlrev_b32 v10, 11, v8        ; n*2048
        v_lshl_add_u32 v10, v9, 7, v10   ; + h*128
        s_lshr_b32 s51, s2, 3
        s_and_b32 s51, s51, 3
        v_lshlrev_b32 v11, 2, v0
        v_add_u32 v11, s51, v11
        v_mul_u32_u24 v11, 6144, v11
        s_lshl_b32 s51, s26, 7
        s_mul_i32 s52, s27, {256*6144}
        s_add_u32 s51, s51, s52
        """)
        a("buffer_load_dword v0, v10, s[8:11], s50 offen")
        for sg in range(3):
            a(f"buffer_load_dword v0, v11, s[12:15], s51 offen")
            if sg < 2: a("s_add_u32 s51, s51, 2048")
        a("buffer_load_dword v0, v10, s[8:11], s50 offen offset:1024")
    if pf == 1: prefetch()
    for r in range(64, 256): a(f"v_mov_b32 v{r}, 0")
    if pf == 2: prefetch()
    stamp(a, opt, 1)
    a("s_barrier")
    stamp(a, opt, 2)
    for r in reads(a, 0, 0, 0): a(r)
    a.raw(".p2align 6")
    a.label(f"L_{name}_loop", keep_hist=True)
    start = len(a.lines)
    nomfma = opt.get("nomfma", False)
    for c in range(4):
        st = c & 1
        M = mfmas(st)
        if opt.get("order") == "w":
            M = [M[3*i+j] for j in range(3) for i in range(4)]
        if nomfma: M = ["s_nop 0"] * 12
        if opt.get("agpr"):
            import re as _r2
            def cv(m):
                g = _r2.match(r"(v_mfma\S+) v\[(\d+):(\d+)\], (\S+), (\S+), ", m)
                d0 = int(g.group(2)) - 64
                return f"{g.group(1)} a[{d0}:{d0+15}], {g.group(4)}, {g.group(5)}, a[{d0}:{d0+15}]"
            M = [cv(m) for m in M]
        if opt.get("swapab"):
            import re as _r3
            def sw(m):
                g = _r3.match(r"(v_mfma\S+) (\S+), (\S+), (\S+), (\S+)", m)
                return f"{g.group(1)} {g.group(2)}, {g.group(4)}, {g.group(3)}, {g.group(5)}"
            M = [sw(m) if (q % 3 != 2) == (opt["swapab"] == 1) else m for q, m in enumerate(M)]
        if opt.get("fake16"):
            M2 = []
            import re as _re
            for q, m in enumerate(M):
                g = _re.match(r"v_mfma_f32_32x32x16_bf16 v\[(\d+):\d+\], (\S+), (\S+), ", m)
                d = int(g.group(1)) + 8 * (c & 1)
                M2.append(f"v_mfma_f32_16x16x32_bf16 {v(d,4)}, {g.group(2)}, {g.group(3)}, {v(d,4)}\nv_mfma_f32_16x16x32_bf16 {v(d+4,4)}, {g.group(3)}, {g.group(2)}, {v(d+4,4)}")
            M = M2
        c1 = (c + 1) & 3
        R = reads(a, st ^ 1, c1, c1 & 1)
        pre = []
        if c & 1:
            pre += [f"s_add_u32 s31, s31, {W_SLOT}", f"s_cmp_eq_u32 s31, {W_SLOT*NW}", "s_cselect_b32 s31, 0, s31"]
        if c == 3:
            pre += [f"s_add_u32 s30, s30, {X_SLOT}", f"s_cmp_eq_u32 s30, {X_BASE+X_SLOT*NX}", f"s_cselect_b32 s30, {X_BASE}, s30"]
        a("s_waitcnt lgkmcnt(0)" if opt.get("order") == "w" else "s_waitcnt lgkmcnt(3)")
        a(M[0])
        for p in pre[:3]: a(p)
        a(M[1])
        for p in pre[3:]: a(p)
        if c & 1: a("v_add_u32 v7, s31, v5")
        a(f"v_add_u32 v6, s30, v{1+c1}")
        a(M[2])
        a("s_waitcnt lgkmcnt(0)")
        if c & 1: a("s_barrier")
        sched = [2, 2, 2, 2, 1, 1, 0, 0, 0]
        k = 0
        for g in range(9):
            for _ in range(sched[g]):
                a(R[k]); k += 1
            if c == 3 and g == 7:
                a("s_sub_u32 s28, s28, 1")
                a("s_cmp_lg_u32 s28, 0")
            a(M[3 + g])
    a(f"s_cbranch_scc1 L_{name}_loop")
    body = a.lines[start:]
    n1, n2 = check_loop(body)
    assert n1 == 0 and n2 == 0, (n1, n2)
    a("s_waitcnt lgkmcnt(0)")
    a("s_nop 15")
    stamp(a, opt, 3)
    if pf:
        a("s_waitcnt vmcnt(0)")
        a("v_mbcnt_lo_u32_b32 v0, -1, 0")
        a("v_mbcnt_hi_u32_b32 v0, -1, v0")
    a(f"""
    s_lshl_b32 s38, s26, 1
    s_add_u32 s38, s38, s37          ; head
    s_lshl_b32 s39, s25, 3
    s_lshl_b32 s29, s36, 2
    s_add_u32 s39, s39, s29          ; tb0
    s_lshl_b32 s40, s38, 6
    s_add_u32 s40, s40, s39          ; h*64+tb0
    v_lshlrev_b32 v1, 4, v0          ; lane*16
    s_cmp_eq_u32 s24, 0
    s_cbranch_scc1 L_{name}_epiA
    """)
    epi_B(a, name, opt)
    a(f"s_branch L_{name}_fin")
    a.label(f"L_{name}_epiA")
    epi_A(a, name, opt)
    a(f"s_branch L_{name}_fin")

def cvt_inplace(a, base):
    for r in range(8):
        a(f"v_cvt_pk_bf16_f32 v{base+r}, v{base+2*r}, v{base+2*r+1}")

def epi_B(a, name, opt):
    sfl = opt.get("stflags", " sc0 sc1")
    qs = LOG2E / math.sqrt(32.0)
    a(f"""
    s_lshl_b32 s41, s40, 11
    s_add_u32 s41, s41, {QB_OFF}
    s_add_u32 s42, s41, 4096
    s_lshl_b32 s43, s40, 12
    s_add_u32 s43, s43, {KVB_OFF}
    s_mov_b32 s44, {f2u(qs)}
    s_mov_b32 s45, {f2u(qs)}
    v_and_b32 v2, 0x33, v0
    v_and_b32 v3, 4, v0
    v_lshlrev_b32 v3, 1, v3
    v_or_b32 v2, v2, v3
    v_and_b32 v3, 8, v0
    v_lshrrev_b32 v3, 1, v3
    v_or_b32 v2, v2, v3
    v_lshlrev_b32 v2, 4, v2
    """)
    for i in range(4):
        Q = ACCQ + 16 * i; K = ACCK + 16 * i; V = ACCV + 16 * i
        cvt_inplace(a, K)
        a(f"buffer_store_dwordx4 {v(K,4)}, v2, s[16:19], s43 offen{sfl}")
        a(f"buffer_store_dwordx4 {v(K+4,4)}, v2, s[16:19], s43 offen offset:1024{sfl}")
        cvt_inplace(a, V)
        a(f"buffer_store_dwordx4 {v(V,4)}, v1, s[16:19], s43 offen offset:2048{sfl}")
        a(f"buffer_store_dwordx4 {v(V+4,4)}, v1, s[16:19], s43 offen offset:3072{sfl}")
        for r in range(0, 16, 2):
            a(f"v_pk_mul_f32 {v(Q+r,2)}, {v(Q+r,2)}, s[44:45]")
        cvt_inplace(a, Q)
        sq = "s41" if i < 2 else "s42"
        a(f"buffer_store_dwordx4 {v(Q,4)}, v1, s[16:19], {sq} offen offset:{(i&1)*2048}{sfl}")
        a(f"buffer_store_dwordx4 {v(Q+4,4)}, v1, s[16:19], {sq} offen offset:{(i&1)*2048+1024}{sfl}")
        if i < 3: a("s_add_u32 s43, s43, 4096")

import re as _re
def unpack(a, t):
    m = _re.match(r"v_pk_(add|mul|fma)_f32 (.*)", t)
    if not m: return a(t)
    op = m.group(1); rest = m.group(2)
    mods = dict((k, [int(x) for x in val.split(",")]) for k, val in _re.findall(r"(op_sel_hi|neg_lo|neg_hi):\[([0-9,]+)\]", rest))
    rest = _re.sub(r"\s+(op_sel_hi|neg_lo|neg_hi):\[[0-9,]+\]", "", rest)
    ops = [o.strip() for o in split_ops(rest)]
    def half(o, hi):
        g = _re.match(r"([vs])\[(\d+):(\d+)\]", o)
        return f"{g.group(1)}{int(g.group(2)) + hi}"
    n = len(ops) - 1
    for hi in (0, 1):
        srcs = []
        for i in range(n):
            sel = hi if mods.get("op_sel_hi", [1] * n)[i] else 0
            neg = mods.get("neg_hi" if hi else "neg_lo", [0] * n)[i]
            srcs.append(("-" if neg else "") + half(ops[1 + i], sel))
        a(f"v_{op}_f32 {half(ops[0], hi)}, " + ", ".join(srcs))

def softmax_pm(a0, P, EP, T, pk=True):
    a = a0 if pk else (lambda t: unpack(a0, t))
    mx, mn, t0, t1 = T, T + 1, T + 2, T + 3
    a(f"v_max3_f32 v{mx}, v{P}, v{P+1}, v{P+2}")
    a(f"v_min3_f32 v{mn}, v{P}, v{P+1}, v{P+2}")
    for r in range(3, 15, 2):
        a(f"v_max3_f32 v{mx}, v{mx}, v{P+r}, v{P+r+1}")
        a(f"v_min3_f32 v{mn}, v{mn}, v{P+r}, v{P+r+1}")
    a(f"v_max_f32 v{mx}, v{mx}, v{P+15}")
    a(f"v_min_f32 v{mn}, v{mn}, v{P+15}")
    a(f"v_mov_b32 v{t0}, v{mx}")
    a(f"v_mov_b32 v{t1}, v{mn}")
    a(f"v_permlane32_swap_b32 v{mx}, v{t0}")
    a(f"v_permlane32_swap_b32 v{mn}, v{t1}")
    a(f"v_max_f32 v{mx}, v{mx}, v{t0}")
    a(f"v_min_f32 v{mn}, v{mn}, v{t1}")
    a(f"v_mul_f32 v{T+4}, s44, v{mx}")
    a(f"v_mul_f32 v{T+6}, s44, v{mn}")
    for r in range(0, 16, 2):
        a(f"v_pk_fma_f32 {v(EP+r,2)}, {v(P+r,2)}, s[44:45], {v(T+4,2)} op_sel_hi:[1,1,0] neg_lo:[0,0,1] neg_hi:[0,0,1]")
    for r in range(0, 16, 2):
        a(f"v_pk_fma_f32 {v(P+r,2)}, {v(P+r,2)}, s[44:45], {v(T+6,2)} op_sel_hi:[1,1,0] neg_lo:[1,0,0] neg_hi:[1,0,0]")
    for r in range(16): a(f"v_exp_f32 v{EP+r}, v{EP+r}")
    for r in range(16): a(f"v_exp_f32 v{P+r}, v{P+r}")
    sp, sm = T + 8, T + 10
    a(f"v_pk_add_f32 {v(sp,2)}, {v(EP,2)}, {v(EP+2,2)}")
    a(f"v_pk_add_f32 {v(sm,2)}, {v(P,2)}, {v(P+2,2)}")
    for r in range(4, 16, 2):
        a(f"v_pk_add_f32 {v(sp,2)}, {v(sp,2)}, {v(EP+r,2)}")
        a(f"v_pk_add_f32 {v(sm,2)}, {v(sm,2)}, {v(P+r,2)}")
    a(f"v_add_f32 v{sp}, v{sp}, v{sp+1}")
    a(f"v_add_f32 v{sm}, v{sm}, v{sm+1}")
    a(f"v_mov_b32 v{t0}, v{sp}")
    a(f"v_mov_b32 v{t1}, v{sm}")
    a(f"v_permlane32_swap_b32 v{sp}, v{t0}")
    a(f"v_permlane32_swap_b32 v{sm}, v{t1}")
    a(f"v_add_f32 v{sp}, v{sp}, v{t0}")
    a(f"v_add_f32 v{sm}, v{sm}, v{t1}")
    a(f"v_rcp_f32 v{sp}, v{sp}")
    a(f"v_rcp_f32 v{sm}, v{sm}")
    for r in range(0, 16, 2):
        a(f"v_pk_mul_f32 {v(EP+r,2)}, {v(EP+r,2)}, {v(sp,2)} op_sel_hi:[1,0]")
    for r in range(0, 16, 2):
        a(f"v_pk_mul_f32 {v(P+r,2)}, {v(P+r,2)}, {v(sm,2)} op_sel_hi:[1,0]")
    cvt_inplace(a0, EP)
    cvt_inplace(a0, P)

PH_STRIDE = 136
PH_BLK = 32 * PH_STRIDE

HND = 0
WP = 8; SEL = 16; TT = 20; PFS = [32, 48]; ZP_ = None

class Rec:
    def __init__(self): self.l = []
    def __call__(self, t):
        for x in t.strip().split("\n"):
            x = x.strip()
            if x and not x.startswith(";"): self.l.append(x)

def merge(a, main, side, start=0, every=3):
    k = 0
    for n, x in enumerate(main):
        a(x)
        if n >= start and (n - start) % every == every - 1 and k < len(side):
            a(side[k]); k += 1
            while k < len(side) and side[k - 1].startswith("s_waitcnt"):
                a(side[k]); k += 1
    for x in side[k:]: a(x)

def epiA_setup(a, m16=False):
    a(f"""
    s_mov_b32 s44, {f2u(LOG2E)}
    s_mov_b32 s45, {f2u(LOG2E)}
    v_lshrrev_b32 v2, 5, v0          ; h
    v_bfe_u32 v3, v0, 2, 2           ; r
    v_lshl_add_u32 v3, v2, 2, v3     ; 4h+r
    v_bfe_u32 v4, v0, 4, 1           ; nb
    v_lshlrev_b32 v4, 5, v4
    v_and_b32 v7, 3, v0
    v_lshl_add_u32 v4, v7, 3, v4     ; nb*32+cc*8
    v_lshl_add_u32 v7, v3, 6, v4
    s_lshl_b32 s29, s37, 11
    s_add_u32 s29, s29, {WPHI_LDS}
    v_add_u32 v7, s29, v7
    """)
    for u in range(2):
        for b in range(2):
            a(f"ds_read_b64_tr_b16 {v(WP+4*u+2*b,2)}, v7 offset:{((8*u+16*b) if m16 else (16*u+8*b))*64}")
    a(f"""
    s_and_b32 s46, s27, 3
    s_mul_i32 s46, s46, {4*PH_BLK}
    s_add_u32 s46, s46, {PHI0}
    v_and_b32 v6, 31, v0
    v_mul_u32_u24 v6, {PH_STRIDE}, v6
    v_lshl_add_u32 v6, v2, 3, v6
    v_add_u32 v6, s46, v6
    v_mul_u32_u24 v7, {PH_STRIDE}, v3
    v_add3_u32 v7, v7, v4, s46
    """)

def pk_mfma(a, P, K):
    a(f"v_mfma_f32_32x32x16_bf16 {v(P,16)}, {v(WP,4)}, {v(K,4)}, 0")
    a(f"v_mfma_f32_32x32x16_bf16 {v(P,16)}, {v(WP+4,4)}, {v(K+4,4)}, {v(P,16)}")

def phi_write(a, blk, P, E):
    for pm in range(2):
        S = E if pm == 0 else P
        for g in range(4):
            a(f"ds_write_b64 v6, {v(S+2*g,2)} offset:{blk*PH_BLK + pm*64 + 16*g}")

KH = 0
VH = 32768
PHI0 = VH + 32768

def epi_A(a, name, opt):
    sfl = opt.get("stflags", " sc0 sc1")
    es = opt.get("estamp")
    a(f"""
    s_mul_i32 s29, s27, 6144
    v_add_u32 v5, s29, v1
    """)
    for i in (1, 2, 3):
        base = ACCK + 16 * i
        cvt_inplace(a, base)
        for u in range(2):
            a(f"ds_write_b128 v5, {v(base+4*u,4)} offset:{KH + (i-1)*2048 + u*1024}")
    a(f"""
    s_lshl_b32 s41, s40, 11
    s_add_u32 s41, s41, {QA_OFF}
    s_add_u32 s42, s41, 4096
    s_lshl_b32 s29, s27, 13
    v_add_u32 v5, s29, v1
    """)
    cvt_inplace(a, ACCK)
    a("s_waitcnt lgkmcnt(0)")
    a("s_barrier")
    if es == 1: stamp(a, opt, 1)
    epiA_setup(a)
    PP = ACCK + 16; EE = ACCK + 32
    KV = ACCK + 48; Z = ACCK + 8
    for i in range(4):
        V = ACCV + 16 * i
        cvt_inplace(a, V)
        if i == 0:
            a("s_waitcnt lgkmcnt(0)")
            pk_mfma(a, PP, ACCK)
        for u in range(2):
            a(f"ds_write_b128 v5, {v(V+4*u,4)} offset:{VH + i*2048 + u*1024}")
    qlate = opt.get("qlate", 0)
    def qstores():
        for i in range(4):
            Q = ACCQ + 16 * i
            if not qlate: cvt_inplace(a, Q)
            sq = "s41" if i < 2 else "s42"
            a(f"buffer_store_dwordx4 {v(Q,4)}, v1, s[16:19], {sq} offen offset:{(i&1)*2048}{sfl}")
            a(f"buffer_store_dwordx4 {v(Q+4,4)}, v1, s[16:19], {sq} offen offset:{(i&1)*2048+1024}{sfl}")
    if not qlate: qstores()
    if es == 1: stamp(a, opt, 2)
    softmax_pm(a, PP, EE, TT)
    phi_write(a, 0, PP, EE)
    a(f"""
    v_lshrrev_b32 v2, 4, v0
    v_lshrrev_b32 v3, 3, v0
    v_xor_b32 v2, v2, v3
    v_and_b32 v2, 1, v2
    v_cmp_eq_u32 vcc, 0, v2
    v_mov_b32 v3, 0x3f803f80
    v_mov_b32 v2, 0
    v_cndmask_b32 v{SEL}, v2, v3, vcc
    v_mov_b32 v{SEL+1}, v{SEL}
    v_mov_b32 v{SEL+2}, v{SEL}
    v_mov_b32 v{SEL+3}, v{SEL}
    s_lshl_b32 s29, s36, 6
    v_add_u32 v7, s29, v7
    s_cmp_eq_u32 s36, 0
    s_mov_b32 s29, {2*4*PH_BLK}
    s_cselect_b32 s29, s29, {(-2*4*PH_BLK) & 0xffffffff}
    v_add_u32 v3, s29, v7
    v_xor_b32 v5, {2*8192}, v5       ; partner V
    s_lshl_b32 s47, s38, 3
    s_add_u32 s47, s47, s25          ; h*8+tt
    s_lshl_b32 s48, s47, 13
    s_lshl_b32 s29, s36, 12
    s_add_u32 s48, s48, s29
    s_add_u32 s48, s48, {KVP_OFF}
    s_lshl_b32 s49, s47, 8
    s_lshl_b32 s29, s36, 7
    s_add_u32 s49, s49, s29
    s_add_u32 s49, s49, {ZP_OFF}
    v_bfe_u32 v4, v0, 3, 1
    v_lshlrev_b32 v4, 6, v4
    v_lshrrev_b32 v2, 4, v0
    v_lshl_add_u32 v4, v2, 4, v4     ; z offset
    s_waitcnt lgkmcnt(0)
    """)
    if es == 2: stamp(a, opt, 1)
    a("s_barrier")
    if es == 2: stamp(a, opt, 2)
    def tr(blk, who, PF):
        for u in range(2):
            for b in range(2):
                a(f"ds_read_b64_tr_b16 {v(PF+4*u+2*b,2)}, {'v7' if who == 0 else 'v3'} offset:{blk*PH_BLK + (16*u+8*b)*PH_STRIDE}")
    first = [True]
    def kv(blk, who, PF):
        V = ACCV + 16 * blk + 8 * who
        for u in range(2):
            c = "0" if first[0] else v(KV, 16)
            cz = "0" if first[0] else v(Z, 4)
            first[0] = False
            a(f"v_mfma_f32_32x32x16_bf16 {v(KV,16)}, {v(PF+4*u,4)}, {v(V+4*u,4)}, {c}")
            a(f"v_mfma_f32_16x16x32_bf16 {v(Z,4)}, {v(PF+4*u,4)}, {v(SEL,4)}, {cz}")
    F = [32, 40, 48, 56]
    tr(0, 0, F[0]); tr(1, 0, F[1])
    for i in range(2):
        for u in range(2):
            a(f"ds_read_b128 {v(ACCV+16*i+8+4*u,4)}, v5 offset:{VH + i*2048 + u*1024}")
    a("s_waitcnt lgkmcnt(8)")
    kv(0, 0, F[0])
    tr(0, 1, F[2])
    a("s_waitcnt lgkmcnt(8)")
    kv(1, 0, F[1])
    tr(1, 1, F[3])
    a("s_waitcnt lgkmcnt(4)")
    kv(0, 1, F[2])
    for i in range(2, 4):
        for u in range(2):
            a(f"ds_read_b128 {v(ACCV+16*i+8+4*u,4)}, v5 offset:{VH + i*2048 + u*1024}")
    a("s_waitcnt lgkmcnt(4)")
    kv(1, 1, F[3])
    for blk in (2, 3):
        if qlate:
            for i in (2 * blk - 4, 2 * blk - 3): cvt_inplace(a, ACCQ + 16 * i)
        if qlate == 1 and blk == 3: qstores()
        if es == 3 and blk == 3: stamp(a, opt, 1)
        a("s_barrier")
        if es == 3 and blk == 3: stamp(a, opt, 2)
        tr(blk, 0, F[0]); tr(blk, 1, F[1])
        a("s_waitcnt lgkmcnt(4)")
        kv(blk, 0, F[0])
        a("s_waitcnt lgkmcnt(0)")
        kv(blk, 1, F[1])
    for g in range(4):
        a(f"buffer_store_dwordx4 {v(KV+4*g,4)}, v1, s[16:19], s48 offen offset:{g*1024}{sfl}")
    a(f"buffer_store_dwordx4 {v(Z,4)}, v4, s[16:19], s49 offen{sfl}")
    if qlate == 2: qstores()

def epi_A16(a, name, opt):
    sfl = opt.get("stflags", " sc0 sc1")
    es = opt.get("estamp")
    a(f"""
    s_lshl_b32 s29, s27, 13
    v_add_u32 v61, s29, v60
    v_add_u32 v5, s29, v1
    """)
    for i in (1, 2, 3, 0):
        base = ACCK + 16 * i
        cvt_inplace(a, base)
        for u in range(2):
            a(f"ds_write_b128 v61, {v(base+4*u,4)} offset:{KH + i*2048 + u*256}")
    for u in range(2): a(f"ds_read_b128 {v(ACCK+4*u,4)}, v5 offset:{KH + u*1024}")
    a(f"""
    s_lshl_b32 s41, s40, 11
    s_add_u32 s41, s41, {QA_OFF}
    s_add_u32 s42, s41, 4096
    """)
    a("s_waitcnt lgkmcnt(0)")
    a("s_barrier")
    if es == 1: stamp(a, opt, 1)
    epiA_setup(a, True)
    PP = ACCK + 16; EE = ACCK + 32
    KV = ACCK + 48; Z = ACCK + 8
    for i in range(4):
        V = ACCV + 16 * i
        cvt_inplace(a, V)
        if i == 0:
            a("s_waitcnt lgkmcnt(0)")
            pk_mfma(a, PP, ACCK)
        for u in range(2):
            a(f"ds_write_b128 v61, {v(V+4*u,4)} offset:{VH + i*2048 + u*256}")
        for u in range(2):
            a(f"ds_read_b128 {v(V+4*u,4)}, v5 offset:{VH + i*2048 + u*1024}")
    qlate = opt.get("qlate", 0)
    def qstores():
        for i in range(4):
            Q = ACCQ + 16 * i
            if not qlate: cvt_inplace(a, Q)
            sq = "s41" if i < 2 else "s42"
            a(f"buffer_store_dwordx4 {v(Q,4)}, v60, s[16:19], {sq} offen offset:{(i&1)*2048}{sfl}")
            a(f"buffer_store_dwordx4 {v(Q+4,4)}, v60, s[16:19], {sq} offen offset:{(i&1)*2048+256}{sfl}")
    if not qlate: qstores()
    if es == 1: stamp(a, opt, 2)
    softmax_pm(a, PP, EE, TT)
    phi_write(a, 0, PP, EE)
    a(f"""
    v_lshrrev_b32 v2, 4, v0
    v_lshrrev_b32 v3, 3, v0
    v_xor_b32 v2, v2, v3
    v_and_b32 v2, 1, v2
    v_cmp_eq_u32 vcc, 0, v2
    v_mov_b32 v3, 0x3f803f80
    v_mov_b32 v2, 0
    v_cndmask_b32 v{SEL}, v2, v3, vcc
    v_mov_b32 v{SEL+1}, v{SEL}
    v_mov_b32 v{SEL+2}, v{SEL}
    v_mov_b32 v{SEL+3}, v{SEL}
    s_lshl_b32 s29, s36, 6
    v_add_u32 v7, s29, v7
    s_cmp_eq_u32 s36, 0
    s_mov_b32 s29, {2*4*PH_BLK}
    s_cselect_b32 s29, s29, {(-2*4*PH_BLK) & 0xffffffff}
    v_add_u32 v3, s29, v7
    v_xor_b32 v5, {2*8192}, v5       ; partner V
    s_lshl_b32 s47, s38, 3
    s_add_u32 s47, s47, s25          ; h*8+tt
    s_lshl_b32 s48, s47, 13
    s_lshl_b32 s29, s36, 12
    s_add_u32 s48, s48, s29
    s_add_u32 s48, s48, {KVP_OFF}
    s_lshl_b32 s49, s47, 8
    s_lshl_b32 s29, s36, 7
    s_add_u32 s49, s49, s29
    s_add_u32 s49, s49, {ZP_OFF}
    v_bfe_u32 v4, v0, 3, 1
    v_lshlrev_b32 v4, 6, v4
    v_lshrrev_b32 v2, 4, v0
    v_lshl_add_u32 v4, v2, 4, v4     ; z offset
    s_waitcnt lgkmcnt(0)
    """)
    if es == 2: stamp(a, opt, 1)
    a("s_barrier")
    if es == 2: stamp(a, opt, 2)
    def tr(blk, who, PF):
        for u in range(2):
            for b in range(2):
                a(f"ds_read_b64_tr_b16 {v(PF+4*u+2*b,2)}, {'v7' if who == 0 else 'v3'} offset:{blk*PH_BLK + (8*u+16*b)*PH_STRIDE}")
    first = [True]
    def kv(blk, who, PF):
        V = ACCV + 16 * blk + 8 * who
        for u in range(2):
            c = "0" if first[0] else v(KV, 16)
            cz = "0" if first[0] else v(Z, 4)
            first[0] = False
            a(f"v_mfma_f32_32x32x16_bf16 {v(KV,16)}, {v(PF+4*u,4)}, {v(V+4*u,4)}, {c}")
            a(f"v_mfma_f32_16x16x32_bf16 {v(Z,4)}, {v(PF+4*u,4)}, {v(SEL,4)}, {cz}")
    F = [32, 40, 48, 8]
    tr(0, 0, F[0]); tr(1, 0, F[1])
    for i in range(2):
        for u in range(2):
            a(f"ds_read_b128 {v(ACCV+16*i+8+4*u,4)}, v5 offset:{VH + i*2048 + u*1024}")
    a("s_waitcnt lgkmcnt(8)")
    kv(0, 0, F[0])
    tr(0, 1, F[2])
    a("s_waitcnt lgkmcnt(8)")
    kv(1, 0, F[1])
    tr(1, 1, F[3])
    a("s_waitcnt lgkmcnt(4)")
    kv(0, 1, F[2])
    for i in range(2, 4):
        for u in range(2):
            a(f"ds_read_b128 {v(ACCV+16*i+8+4*u,4)}, v5 offset:{VH + i*2048 + u*1024}")
    a("s_waitcnt lgkmcnt(4)")
    kv(1, 1, F[3])
    for blk in (2, 3):
        if qlate:
            for i in (2 * blk - 4, 2 * blk - 3): cvt_inplace(a, ACCQ + 16 * i)
        if qlate == 1 and blk == 3: qstores()
        if blk == 3 and opt.get("hook"): opt["hook"](a)
        if es == 3 and blk == 3: stamp(a, opt, 1)
        a("s_barrier")
        if es == 3 and blk == 3: stamp(a, opt, 2)
        tr(blk, 0, F[0]); tr(blk, 1, F[1])
        a("s_waitcnt lgkmcnt(4)")
        kv(blk, 0, F[0])
        a("s_waitcnt lgkmcnt(0)")
        kv(blk, 1, F[1])
    for g in range(4):
        a(f"buffer_store_dwordx4 {v(KV+4*g,4)}, v1, s[16:19], s48 offen offset:{g*1024}{sfl}")
    a(f"buffer_store_dwordx4 {v(Z,4)}, v4, s[16:19], s49 offen{sfl}")
    if qlate == 2: qstores()

def helper_A(a, name, opt):
    a(f"""
    s_cmp_lg_u32 s24, 0
    s_cbranch_scc1 L_{name}_fin
    s_and_b32 s37, s27, 1            ; hd
    s_and_b32 s29, s27, 3
    s_mul_i32 s29, s29, 6144
    v_lshlrev_b32 v5, 4, v0
    v_add_u32 v5, s29, v5
    """)
    epiA_setup(a)
    a("s_barrier")
    if opt.get("hprio", 0): a(f"s_setprio {opt.get('hprio')}")
    a("s_barrier")
    K = 64; PP = [96, 112, 128]; EE = 144
    for q in range(6): a(f"ds_read_b128 {v(K+4*q,4)}, v5 offset:{KH + q*1024}")
    for i in range(3):
        a(f"s_waitcnt lgkmcnt({4-2*i})")
        pk_mfma(a, PP[i], K + 8 * i)
    if opt.get("hloop", 1):
        a("s_mov_b32 s28, 3")
        a("s_nop 7")
        a.label(f"L_{name}_hl")
        softmax_pm(a, PP[0], EE, TT)
        phi_write(a, 1, PP[0], EE)
        a(f"v_add_u32 v6, {PH_BLK}, v6")
        a("s_waitcnt lgkmcnt(0)")
        a("s_barrier")
        for r in range(0, 32, 2): a(f"v_pk_mov_b32 {v(PP[0]+r,2)}, {v(PP[1]+r,2)}, {v(PP[1]+r,2)} op_sel:[0,1]")
        a(f"""
        s_sub_u32 s28, s28, 1
        s_cmp_lg_u32 s28, 0
        s_cbranch_scc1 L_{name}_hl
        """)
    else:
        for i in range(3):
            softmax_pm(a, PP[i], EE, TT)
            phi_write(a, 1 + i, PP[i], EE)
            a("s_waitcnt lgkmcnt(0)")
            a("s_barrier")

def gen_loader(a, name, opt):
    lfl = opt.get("ldflags", "")
    a.label(f"L_{name}_loader")
    koff = opt.get("koff", 1)
    if koff == 0: a("s_mov_b32 s49, 0")
    elif opt.get("map", 0) in (0, 2):
        a("""
        s_lshr_b32 s49, s3, 1
        s_xor_b32 s49, s49, s3
        s_and_b32 s49, s49, 1
        s_lshl_b32 s49, s49, 3
        """)
        if koff == 2:
            a("""
            s_add_u32 s29, s25, s26
            s_and_b32 s29, s29, 1
            s_lshl_b32 s29, s29, 2
            s_add_u32 s49, s49, s29
            """)
    else:
        a("""
        s_lshr_b32 s49, s3, 1
        s_lshl_b32 s49, s49, 2
        s_lshl_b32 s29, s3, 3
        s_add_u32 s49, s49, s29
        s_and_b32 s49, s49, 15
        """)
    a(f"""
    s_sub_u32 s36, s27, 4            ; lw
    v_lshrrev_b32 v1, 3, v0          ; r
    v_and_b32 v2, 7, v0              ; p
    s_and_b32 s29, s36, 1
    s_lshl_b32 s29, s29, 2
    v_lshrrev_b32 v3, 1, v1
    v_add_u32 v4, s29, v3            ; f
    v_xor_b32 v4, v4, v2
    v_lshlrev_b32 v4, 4, v4
    s_lshl_b32 s29, s36, 3
    v_add_u32 v5, s29, v1            ; 8lw + r
    v_lshl_add_u32 v8, v5, 11, v4
    """)
    if opt.get("xrot"):
        a("v_and_b32 v6, 15, v5")
        a("v_lshl_add_u32 v8, v6, 7, v8")
    for n in range(1, 8): a(f"v_add_u32 v{8+n}, {n*65536}, v8")
    a(f"""
    v_and_b32 v3, 1, v3
    v_lshlrev_b32 v3, 2, v3
    v_xor_b32 v3, v3, v2
    v_lshlrev_b32 v3, 4, v3
    v_mul_u32_u24 v16, 6144, v5
    v_add_u32 v16, v16, v3
    s_lshl_b32 s29, s26, 7
    v_add_u32 v16, s29, v16
    """)
    if opt.get("wrot"):
        a("v_and_b32 v6, 15, v5")
        a("v_lshl_add_u32 v16, v6, 7, v16")
    a(f"""
    v_add_u32 v17, 2048, v16
    v_add_u32 v18, 4096, v16
    v_lshlrev_b32 v19, 4, v0
    s_lshl_b32 s37, s36, 10          ; lw*1024
    s_add_u32 s30, s37, {X_BASE}
    s_mov_b32 s31, s37
    s_lshl_b32 s38, s49, 7           ; X soffset
    s_mul_i32 s39, s49, {64*6144}    ; W soffset
    s_add_u32 s40, s37, {X_BASE + NX*X_SLOT}
    s_add_u32 s41, s37, {W_SLOT*NW}
    s_add_u32 s42, s37, {X_BASE}
    """)
    lpf = opt.get("lpf", 0)
    if lpf:
        a(f"""
        s_cmp_eq_u32 s36, 0
        s_cselect_b32 s56, s8, s12
        s_cselect_b32 s57, s9, s13
        s_cselect_b32 s58, s10, s14
        s_mov_b32 s59, 0x20000
        s_mov_b32 s54, 512
        s_cselect_b32 s54, s54, {256*6144}
        s_mov_b32 s53, s54                      ; block 1
        s_lshr_b32 s55, s2, 3
        s_and_b32 s55, s55, 3
        s_lshr_b32 s52, s2, 5                   ; cl
        v_and_b32 v20, 31, v0
        s_lshl_b32 s29, s52, 5
        v_add_u32 v20, s29, v20
        v_lshlrev_b32 v20, 11, v20
        v_lshrrev_b32 v21, 5, v0
        v_lshl_add_u32 v20, v21, 7, v20         ; X voffset
        v_lshlrev_b32 v21, 2, v0
        v_add_u32 v21, s55, v21
        v_mul_u32_u24 v21, 6144, v21
        s_lshl_b32 s29, s26, 7
        s_sub_u32 s51, s36, 1
        s_lshl_b32 s51, s51, 11
        s_add_u32 s29, s29, s51
        v_add_u32 v21, s29, v21                 ; W voffset
        v_mov_b32 v22, s36
        v_cmp_eq_u32 vcc, 0, v22
        s_add_u32 s55, s55, s52
        s_and_b32 s55, s55, 3                   ; phase
        v_cndmask_b32 v20, v21, v20, vcc
        s_mov_b32 s50, 0
        """)
    pfn = [0]
    def PF(cond=True):
        if not lpf: return
        pfn[0] += 1
        L = f"L_{name}_pf{pfn[0]}"
        if cond:
            a(f"""
            s_and_b32 s29, s50, 3
            s_add_u32 s50, s50, 1
            s_cmp_lg_u32 s29, {"s55" if lpf == 1 else "0"}
            s_cbranch_scc1 {L}
            s_cmp_gt_u32 s50, 8
            s_cbranch_scc1 {L}
            """)
        a("buffer_load_dword v22, v20, s[56:59], s53 offen")
        a(f"""
        s_cmp_lg_u32 s36, 0
        s_cbranch_scc1 {L}b
        buffer_load_dword v23, v20, s[56:59], s53 offen offset:256
        """)
        a.label(L + "b")
        a("s_add_u32 s53, s53, s54")
        a.label(L)
    def GX():
        for n in range(8):
            a(f"s_add_u32 m0, s30, {n*4096}")
            a(f"buffer_load_dwordx4 v{8+n}, s[8:11], s38 offen{lfl} lds")
        a(f"""
        s_add_u32 s38, s38, 128
        s_and_b32 s38, s38, 2047
        s_add_u32 s30, s30, {X_SLOT}
        s_cmp_eq_u32 s30, s40
        s_cselect_b32 s30, s42, s30
        """)
    def GW():
        for sg in range(3):
            a(f"s_add_u32 m0, s31, {sg*4096}")
            a(f"buffer_load_dwordx4 v{16+sg}, s[12:15], s39 offen{lfl} lds")
        a(f"""
        s_add_u32 s39, s39, {32*6144}
        s_cmp_eq_u32 s39, {1024*6144}
        s_cselect_b32 s39, 0, s39
        s_add_u32 s31, s31, {W_SLOT}
        s_cmp_eq_u32 s31, s41
        s_cselect_b32 s31, s37, s31
        """)
    def WB(n):
        a(f"s_waitcnt vmcnt({n})")
        a("s_barrier")
    if opt.get("ramp", 1):
        GW(); GX(); GW()
        stamp(a, opt, 1)
        a("s_waitcnt vmcnt(3)")
        stamp(a, opt, 2)
        a("s_barrier")
        GX(); GW(); PF(False); WB(11)
        GW(); GX(); WB(11)
        GW(); GX(); PF(); WB(19)
        GW(); GW(); GW(); WB(17)
        GX(); GW(); PF(); WB(17)
        GW(); WB(17)
        GX(); GW(); PF()
        a("s_mov_b32 s28, 10")
    else:
        GW(); GX(); GW(); GX(); GW(); GW(); GX(); GW()
        stamp(a, opt, 1)
        a("s_waitcnt vmcnt(28)")
        stamp(a, opt, 2)
        a("s_barrier")
        a("s_mov_b32 s28, 13")
    a.label(f"L_{name}_lloop")
    a("s_waitcnt vmcnt(25)")
    a("s_barrier")
    GW()
    a("s_waitcnt vmcnt(17)")
    a("s_barrier")
    GX(); GW(); PF()
    a("s_sub_u32 s28, s28, 1")
    a("s_cmp_lg_u32 s28, 0")
    a(f"s_cbranch_scc1 L_{name}_lloop")
    stamp(a, opt, 3)
    a("s_waitcnt vmcnt(25)")
    a("s_barrier")
    GW()
    a(f"""
    s_lshl_b32 s29, s26, 12
    s_add_u32 s29, s29, s37
    s_add_u32 m0, s37, {WPHI_LDS}
    s_nop 0
    buffer_load_dwordx4 v19, s[20:23], s29 offen lds
    """)
    a("s_waitcnt vmcnt(18)")
    a("s_barrier")
    a("s_waitcnt vmcnt(15)")
    a("s_barrier")
    a("s_waitcnt vmcnt(4)")
    a("s_barrier")
    a("s_waitcnt vmcnt(0)")
    a("s_barrier")
    helper_A(a, name, opt)
```

```python
from asmlib import *
from k1 import W_SLOT, NW, X_BASE, X_SLOT, NX

XSL = [8, 12, 16, 20]
WLATE = [24, 28, 32]
WEARLY = [[36, 40, 44], [48, 52, 56]]
AQ, AK, AV = 64, 128, 192
EARLY_J = [0, 1, 2]; LATE_J = [3, 4, 5]

def acc(i, j):
    seg, cb = j >> 1, j & 1
    if seg < 2: return (AQ, AK)[seg] + 8 * i + 4 * cb
    return AV + 16 * (i >> 1) + 8 * cb + 4 * (i & 1)

def wreg(j, par):
    return WEARLY[par][EARLY_J.index(j)] if j in EARLY_J else WLATE[LATE_J.index(j)]

def order():
    o = [(0, j) for j in EARLY_J] + [(1, j) for j in EARLY_J] + [(0, j) for j in LATE_J] + [(1, j) for j in LATE_J]
    for i in range(2, 6): o += [(i, j) for j in range(6)]
    o += [(6, j) for j in LATE_J] + [(7, j) for j in LATE_J] + [(6, j) for j in EARLY_J] + [(7, j) for j in EARLY_J]
    return o

def xread(i, areg): return f"ds_read_b128 {v(XSL[i & 3],4)}, {areg} offset:{i*2048}"
def wreads(j, par):
    seg, cb = j >> 1, j & 1
    return [f"ds_read_b64_tr_b16 {v(wreg(j, par)+2*b,2)}, v{6+cb} offset:{seg*4096 + 4*b*128}" for b in range(2)]

def mfma(i, j, par):
    D = v(acc(i, j), 4); X = v(XSL[i & 3], 4); W = v(wreg(j, par), 4)
    return f"v_mfma_f32_16x16x32_bf16 {D}, {W}, {X}, {D}" if j < 4 else f"v_mfma_f32_16x16x32_bf16 {D}, {X}, {W}, {D}"

def step_plan(par, bar_at):
    G = [[] for _ in range(48)]
    cur, nxt = ("v4", "v5") if par == 0 else ("v5", "v4")
    def put(n, ins, tag=None): G[n].append((ins, tag))
    put(0, xread(3, cur), ("x", 3, 0))
    put(9, xread(4, cur), ("x", 4, 0))
    put(12, xread(5, cur), ("x", 5, 0))
    put(18, xread(6, cur), ("x", 6, 0))
    put(23, xread(7, cur), ("x", 7, 0))
    put(2, f"s_add_u32 s31, s31, {W_SLOT}"); put(2, f"s_cmp_eq_u32 s31, {W_SLOT*NW}"); put(3, "s_cselect_b32 s31, 0, s31")
    put(4, "v_add_u32 v6, s31, v2"); put(5, "v_xor_b32 v7, 32, v6")
    if par == 1:
        put(6, f"s_add_u32 s30, s30, {X_SLOT}"); put(6, f"s_cmp_eq_u32 s30, {X_BASE+X_SLOT*NX}"); put(7, f"s_cselect_b32 s30, {X_BASE}, s30")
        put(8, "v_add_u32 v4, s30, v1")
        put(46, "s_sub_u32 s28, s28, 1"); put(46, "s_cmp_lg_u32 s28, 0")
    else:
        put(8, "v_xor_b32 v5, 64, v4")
    put(bar_at, "s_barrier")
    n = bar_at + 1
    seq = []
    for j in EARLY_J: seq += [(r, ("w", j, 1, b)) for b, r in enumerate(wreads(j, par ^ 1))]
    pos = [n + k for k in range(6)]
    for p, (r, t) in zip(pos, seq): put(p, r, t)
    put(max(30, n + 6), xread(0, nxt), ("x", 0, 1))
    put(36, xread(1, nxt), ("x", 1, 1))
    for k, j in enumerate(LATE_J):
        rs = wreads(j, par ^ 1)
        put(39 + k + k, rs[0], ("w", j, 1, 0)); put(40 + k + k, rs[1], ("w", j, 1, 1))
    put(45, xread(2, nxt), ("x", 2, 1))
    return G

def emit_loop(a, opt):
    bar_at = opt.get("bar16", 24)
    O = order()
    last = {}
    for n, (i, j) in enumerate(O): last[("x", i)] = n; last[("w", j)] = n
    plans = [step_plan(0, bar_at), step_plan(1, bar_at)]
    for G in plans:
        for n, g in enumerate(G):
            for ins, t in g:
                if not t: continue
                if t[0] == "x":
                    prev = (t[1] - 4) if t[2] == 0 else (t[1] + 4)
                    if prev >= 0: assert last[("x", prev)] <= n, (t, n)
                elif t[1] in LATE_J: assert last[("w", t[1])] <= n, (t, n)
    issue = []
    waits = {}
    pro = [("w", j, 0, b) for j in EARLY_J for b in range(2)] + [("x", 0, 0), ("x", 1, 0)] + [("w", j, 0, b) for j in LATE_J for b in range(2)] + [("x", 2, 0)]
    issue += pro
    done = 0
    for s in range(4):
        G = plans[s & 1]
        for n, (i, j) in enumerate(O):
            needs = [("x", i, s), ("w", j, s, 0), ("w", j, s, 1)]
            k = max(issue.index(t) for t in needs) + 1
            w = None
            if k > done:
                w = len(issue) - k; done = k
            waits[(s, n)] = w
            for ins, t in G[n]:
                if t: issue.append((t[0], t[1], s + t[2]) + tuple(t[3:]))
    for n in range(48):
        assert waits[(0, n)] == waits[(2, n)] and waits[(1, n)] == waits[(3, n)], n
    for j in EARLY_J:
        for r in wreads(j, 0): a(r)
    a(xread(0, "v4")); a(xread(1, "v4"))
    for j in LATE_J:
        for r in wreads(j, 0): a(r)
    a(xread(2, "v4"))
    a.raw(".p2align 6")
    a.label("L_p1_loop", keep_hist=True)
    start = len(a.lines)
    for s in range(2):
        for n, (i, j) in enumerate(O):
            w = waits[(s, n)]
            if w is not None: a(f"s_waitcnt lgkmcnt({min(w, 15)})")
            a(mfma(i, j, s))
            for ins, t in plans[s][n]: a(ins)
    a("s_cbranch_scc1 L_p1_loop")
    assert check_loop(a.lines[start:]) == (0, 0), check_loop(a.lines[start:])

def setup(a):
    a(f"""
    s_lshr_b32 s36, s27, 1          ; tw
    s_and_b32 s37, s27, 1           ; hd
    v_and_b32 v8, 15, v0            ; t
    v_lshrrev_b32 v9, 4, v0         ; g
    v_lshrrev_b32 v10, 1, v8        ; f
    v_xor_b32 v10, v10, v9
    v_lshlrev_b32 v10, 4, v10
    s_lshl_b32 s29, s36, 14
    v_lshlrev_b32 v11, 7, v8
    v_add3_u32 v1, v11, v10, s29
    v_bfe_u32 v10, v0, 2, 2         ; r
    v_lshl_add_u32 v11, v9, 3, v10  ; 8g + r
    v_lshlrev_b32 v11, 7, v11
    v_lshrrev_b32 v10, 1, v10
    v_and_b32 v9, 1, v9
    v_xor_b32 v9, s37, v9
    v_lshl_add_u32 v10, v9, 1, v10
    v_lshl_add_u32 v11, v10, 5, v11
    v_and_b32 v10, 3, v0
    v_lshl_add_u32 v2, v10, 3, v11
    s_mov_b32 s30, {X_BASE}
    s_mov_b32 s31, 0
    v_add_u32 v4, s30, v1
    v_mov_b32 v6, v2
    v_xor_b32 v7, 32, v2
    s_mov_b32 s28, 16
    """)
```

```python
from asmlib import *
import math, sys
import k1
from k1 import (QB_OFF, KVB_OFF, QA_OFF, KVP_OFF, ZP_OFF, O_OFF, LOG2E, f2u, softmax_pm, cvt_inplace,
                W_SLOT, NW, X_BASE, X_SLOT, NX, WPHI_LDS, ACCQ, ACCK, ACCV, reads as p1_reads, mfmas as p1_mfmas,
                epi_A, epi_B, epiA_setup, pk_mfma, phi_write, KH, TT, PH_BLK, Rec, epi_A16)
import p1v16

NAME = "concat_heads__linear_kernel_hedgehog__mha_block__prompt_kernel"
FLG = 29 << 20
F1A, F2B, F2A = FLG + 2048, FLG + 4096, FLG + 5120
F1B = FLG + 16384
F1C = F1B + 16384
QL0 = 139264
STAMP_OFF = 30 << 20
VSNAP, VFA, VPOL = 250, 251, 252
SC = " sc0 sc1"

def stamp(a, opt, idx):
    if not opt.get("stamp"): return
    a(f"s_memrealtime s[{60+2*idx}:{61+2*idx}]")
    a("s_waitcnt lgkmcnt(0)")
def stamp_out(a, opt):
    if not opt.get("stamp"): return
    a("s_waitcnt vmcnt(0)")
    stamp(a, opt, 11)
    if opt.get("stamp") == 2:
        a("s_cmp_lg_u32 s27, 0\ns_cbranch_scc1 L_end\nv_mov_b32 v9, 0\ns_mov_b64 exec, 1")
        for i in range(1, 12):
            a(f"s_sub_u32 s29, s{60+2*i}, s60")
            a("v_mov_b32 v8, s29")
            a(f"buffer_atomic_umax v8, v9, s[84:87], 0 offen offset:{4*i} sc1")
        a("s_not_b32 s29, s60\nv_mov_b32 v8, s29\nbuffer_atomic_umax v8, v9, s[84:87], 0 offen offset:48 sc1")
        a("v_mov_b32 v8, s82\nbuffer_atomic_umax v8, v9, s[84:87], 0 offen offset:52 sc1")
        a("v_mov_b32 v8, s60\nbuffer_atomic_umax v8, v9, s[84:87], 0 offen offset:56 sc1")
        return
    a(f"""
    s_lshl_b32 s29, s2, 3
    s_add_u32 s29, s29, s27
    s_lshl_b32 s29, s29, 6
    s_add_u32 s29, s29, {STAMP_OFF}
    v_mov_b32 v9, 0
    """)
    for i in range(12):
        a(f"v_mov_b32 v8, s{60+2*i}")
        a(f"buffer_store_dword v8, v9, s[16:19], s29 offen offset:{4*i}")

def code_pf(a, opt, junk):
    if not opt.get("cpf", 1): return 0
    a(f"""
    s_and_b32 s29, s27, 3
    s_lshl_b32 s29, s29, 13
    v_lshlrev_b32 v{junk}, 7, v0
    v_add_u32 v{junk}, s29, v{junk}
    v_min_u32 v{junk}, L_end-L_pc, v{junk}
    global_load_dword v{junk}, v{junk}, s[94:95]
    """)
    return 1

_uid = [0]
def only_w4(a):
    _uid[0] += 1
    L = f"L_w4_{_uid[0]}"
    a(f"s_cmp_lg_u32 s27, 4\ns_cbranch_scc1 {L}")
    return L
def poll(a, lo, n, cnt=None):
    L = only_w4(a)
    mask = ((1 << n) - 1) << lo
    a(f"""
    s_mov_b32 s88, {mask & 0xffffffff}
    s_mov_b32 s89, {mask >> 32}
    s_mov_b32 s90, 0x400000
    s_mov_b64 exec, s[88:89]
    """)
    a.label(L + "p")
    a(f"""
    buffer_load_dword v{VPOL}, v{VFA}, s[16:19], 0 offen sc0 sc1
    s_waitcnt vmcnt(0)
    v_sub_u32 v{VPOL}, v{VPOL}, v{VSNAP}
    v_cmp_ne_u32 vcc, {cnt}, v{VPOL}
    s_sub_u32 s90, s90, 1
    s_cbranch_scc1 {L}d
    s_cbranch_vccz {L}d
    s_sleep 1
    s_branch {L}p
    """)
    a.label(L + "d")
    a("s_mov_b64 exec, -1")
    a.label(L)
def need_chunk(a, single=False):
    _uid[0] += 1
    L = f"L_nc_{_uid[0]}"
    a(f"""
    s_bitcmp1_b32 s92, s93
    s_cbranch_scc1 {L}
    s_mov_b32 s90, 0x400000
    s_lshl_b64 s[88:89], 1, s93
    s_mov_b64 exec, {"s[88:89]" if single else "0xff"}
    """)
    a.label(L + "p")
    a(f"""
    buffer_load_dword v{VPOL}, v{VFA}, s[16:19], 0 offen sc0 sc1
    s_waitcnt vmcnt(0)
    v_cmp_ne_u32 vcc, v{VPOL}, v{VSNAP}
    s_sub_u32 s90, s90, 1
    s_cbranch_scc1 {L}d
    s_or_b32 s92, s92, vcc_lo
    s_mov_b64 exec, s[88:89]
    s_bitcmp1_b32 s92, s93
    s_cbranch_scc1 {L}d
    s_sleep 2
    s_branch {L}p
    """)
    a.label(L + "d")
    a("s_mov_b64 exec, -1")
    a.label(L)
def look(a):
    a(f"""
    s_mov_b32 exec_lo, 0xffff0000
    s_mov_b32 exec_hi, 0xffff
    buffer_load_dword v{VPOL}, v{VFA}, s[16:19], 0 offen sc0 sc1
    s_waitcnt vmcnt(0)
    v_cmp_ne_u32 vcc, v{VPOL}, v{VSNAP}
    s_mov_b64 exec, -1
    s_lshr_b64 s[88:89], vcc, 16
    s_mov_b32 s92, s88
    """)
def need_mask(a):
    _uid[0] += 1
    L = f"L_nm_{_uid[0]}"
    a("s_mov_b32 s90, 0x400000")
    a.label(L + "p")
    a(f"""
    s_andn2_b32 s88, s93, s92
    s_cbranch_scc0 {L}
    s_sub_u32 s90, s90, 1
    s_cbranch_scc1 {L}
    """)
    look(a)
    a(f"s_branch {L}p")
    a.label(L)

def publish(a, lane, all_helpers=False, n=1):
    L = None if all_helpers else only_w4(a)
    a(f"""
    v_add_u32 v{VPOL}, 1, v{VSNAP}
    s_mov_b32 exec_lo, 0
    s_mov_b32 exec_hi, {((1 << n) - 1) << (lane - 32)}
    buffer_store_dword v{VPOL}, v{VFA}, s[16:19], 0 offen sc0 sc1
    s_mov_b64 exec, -1
    """)
    if L: a.label(L)

def p1_setup32(a):
    a(f"""
    s_lshr_b32 s36, s27, 1          ; tw
    s_and_b32 s37, s27, 1           ; hd
    v_and_b32 v8, 31, v0            ; n
    v_lshrrev_b32 v9, 5, v0         ; h
    v_bfe_u32 v10, v8, 1, 3         ; f
    v_xor_b32 v10, v10, v9
    v_lshlrev_b32 v10, 4, v10
    s_lshl_b32 s29, s36, 14
    v_lshlrev_b32 v11, 7, v8
    v_add3_u32 v1, v11, v10, s29
    v_xor_b32 v2, 32, v1
    v_xor_b32 v3, 64, v1
    v_xor_b32 v4, 0x60, v1
    v_bfe_u32 v10, v0, 2, 2         ; r
    v_lshl_add_u32 v11, v9, 3, v10
    v_lshlrev_b32 v11, 7, v11
    v_lshrrev_b32 v10, 1, v10
    v_xor_b32 v10, s37, v10
    v_lshl_add_u32 v11, v10, 6, v11
    v_bfe_u32 v10, v0, 4, 1
    v_lshl_add_u32 v11, v10, 5, v11
    v_and_b32 v10, 3, v0
    v_lshl_add_u32 v5, v10, 3, v11
    s_mov_b32 s30, {X_BASE}
    s_mov_b32 s31, 0
    v_add_u32 v6, s30, v1
    v_mov_b32 v7, v5
    s_mov_b32 s28, 16
    """)

def p1_loop32(a):
    for r in p1_reads(a, 0, 0, 0): a(r)
    a.raw(".p2align 6")
    a.label("L_p1_loop", keep_hist=True)
    start = len(a.lines)
    for c in range(4):
        st = c & 1
        M = p1_mfmas(st)
        c1 = (c + 1) & 3
        R = p1_reads(a, st ^ 1, c1, c1 & 1)
        pre = []
        if c & 1:
            pre += [f"s_add_u32 s31, s31, {W_SLOT}", f"s_cmp_eq_u32 s31, {W_SLOT*NW}", "s_cselect_b32 s31, 0, s31"]
        if c == 3:
            pre += [f"s_add_u32 s30, s30, {X_SLOT}", f"s_cmp_eq_u32 s30, {X_BASE+X_SLOT*NX}", f"s_cselect_b32 s30, {X_BASE}, s30"]
        a("s_waitcnt lgkmcnt(3)")
        a(M[0])
        for p in pre[:3]: a(p)
        a(M[1])
        for p in pre[3:]: a(p)
        if c & 1: a("v_add_u32 v7, s31, v5")
        a(f"v_add_u32 v6, s30, v{1+c1}")
        a(M[2])
        a("s_waitcnt lgkmcnt(0)")
        if c & 1: a("s_barrier")
        sched = [2, 2, 2, 2, 1, 1, 0, 0, 0]
        k = 0
        for g in range(9):
            for _ in range(sched[g]):
                a(R[k]); k += 1
            if c == 3 and g == 7:
                a("s_sub_u32 s28, s28, 1")
                a("s_cmp_lg_u32 s28, 0")
            a(M[3 + g])
    a("s_cbranch_scc1 L_p1_loop")
    assert check_loop(a.lines[start:]) == (0, 0)

def p1_compute(a, opt):
    m16 = opt.get("m16", 1)
    if m16: p1v16.setup(a)
    else: p1_setup32(a)
    code_pf(a, opt, 12)
    for r in range(64, 256): a(f"v_mov_b32 v{r}, 0")
    a("s_waitcnt vmcnt(0)")
    spf = opt.get("spf", 0)
    if spf:
        a(f"""
        s_lshr_b32 s41, s2, 4
        s_lshl_b32 s41, s41, 3
        s_add_u32 s41, s41, s3
        s_cmp_ge_u32 s27, 2
        s_cbranch_scc1 L_spf_done
        s_cmp_eq_u32 s27, 1
        s_cbranch_scc1 L_spf_x
        s_lshr_b32 s42, s41, 1
        s_lshl_b32 s42, s42, 17
        s_and_b32 s41, s41, 1
        s_lshl_b32 s41, s41, 10
        s_add_u32 s42, s42, s41
        v_lshlrev_b32 v0, 11, v0
        buffer_load_dword v0, v0, s[12:15], s42 offen offset:384
        s_branch L_spf_done
        """)
        a.label("L_spf_x")
        if spf == 1:
            a(f"""
            v_and_b32 v10, 15, v0
            v_lshlrev_b32 v10, 11, v10
            v_and_b32 v0, 16, v0
            v_lshl_add_u32 v0, v0, 6, v10
            s_lshl_b32 s42, s26, 15
            buffer_load_dword v0, v0, s[8:11], s42 offen offset:384
            """)
        a.label("L_spf_done")
    a("s_barrier")
    stamp(a, opt, 1)
    if m16: p1v16.emit_loop(a, opt)
    else: p1_loop32(a)
    a("s_waitcnt vmcnt(0) lgkmcnt(0)")
    a("v_mbcnt_lo_u32_b32 v0, -1, 0")
    a("v_mbcnt_hi_u32_b32 v0, -1, v0")
    stamp(a, opt, 2)
    a(f"""
    s_lshl_b32 s38, s26, 1
    s_add_u32 s38, s38, s37          ; head
    s_lshl_b32 s39, s25, 3
    s_lshl_b32 s29, s36, 2
    s_add_u32 s39, s39, s29          ; tb0
    s_lshl_b32 s40, s38, 6
    s_add_u32 s40, s40, s39          ; h*64+tb0
    v_lshlrev_b32 v1, 4, v0
    s_mov_b32 s91, 0
    v_and_b32 v60, 15, v0
    v_lshrrev_b32 v61, 4, v0
    v_lshlrev_b32 v60, 4, v60
    v_lshl_add_u32 v60, v61, 9, v60  ; g*512 + t*16
    s_cmp_eq_u32 s24, 0
    s_cbranch_scc1 L_p1_epiA
    """)
    epi_B_lds(a, m16)
    a("s_branch L_p1_done")
    a.label("L_p1_epiA")
    (epi_A16 if m16 else epi_A)(a, "p1", {"qlate": opt.get("qlate", 0)})
    a.label("L_p1_done")

def epi_B_lds(a, m16):
    qs = LOG2E / math.sqrt(32.0)
    a(f"""
    s_mov_b32 s44, {f2u(qs)}
    s_mov_b32 s45, {f2u(qs)}
    v_and_b32 v2, 0x33, v0
    v_and_b32 v3, 4, v0
    v_lshl_or_b32 v2, v3, 1, v2
    v_and_b32 v3, 8, v0
    v_lshrrev_b32 v3, 1, v3
    v_or_b32 v2, v2, v3
    v_lshlrev_b32 v2, 4, v2
    """)
    U = 256 if m16 else 1024
    if m16: a("v_mov_b32 v2, v60\nv_mov_b32 v1, v60")
    a(f"""
    s_cmp_lg_u32 s37, 0
    s_cbranch_scc1 L_p1_hd1
    s_lshl_b32 s41, s36, 14
    v_add_u32 v2, s41, v2
    v_add_u32 v3, s41, v1
    s_lshl_b32 s42, s36, 13
    s_add_u32 s42, s42, {QL0}
    v_add_u32 v4, s42, v1
    """)
    def conv(i):
        return ACCQ + 16 * i, ACCK + 16 * i, ACCV + 16 * i
    for i in range(4):
        Q, K, V = conv(i)
        cvt_inplace(a, K)
        a(f"ds_write_b128 v2, {v(K,4)} offset:{i*4096}")
        a(f"ds_write_b128 v2, {v(K+4,4)} offset:{i*4096+U}")
        cvt_inplace(a, V)
        a(f"ds_write_b128 v3, {v(V,4)} offset:{i*4096+2048}")
        a(f"ds_write_b128 v3, {v(V+4,4)} offset:{i*4096+2048+U}")
    a("s_waitcnt lgkmcnt(0)")
    a("s_barrier")
    for i in range(4):
        Q, K, V = conv(i)
        for r in range(0, 16, 2):
            a(f"v_pk_mul_f32 {v(Q+r,2)}, {v(Q+r,2)}, s[44:45]")
        cvt_inplace(a, Q)
        a(f"ds_write_b128 v4, {v(Q,4)} offset:{i*2048}")
        a(f"ds_write_b128 v4, {v(Q+4,4)} offset:{i*2048+U}")
    a("s_branch L_p1_done")
    a.label("L_p1_hd1")
    a(f"""
    s_lshl_b32 s41, s40, 11
    s_add_u32 s41, s41, {QB_OFF}
    s_add_u32 s42, s41, 4096
    s_lshl_b32 s43, s40, 12
    s_add_u32 s43, s43, {KVB_OFF}
    s_mov_b32 s91, 3
    """)
    for i in range(4):
        Q, K, V = conv(i)
        cvt_inplace(a, K)
        a(f"buffer_store_dwordx4 {v(K,4)}, v2, s[16:19], s43 offen{SC}")
        a(f"buffer_store_dwordx4 {v(K+4,4)}, v2, s[16:19], s43 offen offset:{U}{SC}")
        cvt_inplace(a, V)
        a(f"buffer_store_dwordx4 {v(V,4)}, v1, s[16:19], s43 offen offset:2048{SC}")
        a(f"buffer_store_dwordx4 {v(V+4,4)}, v1, s[16:19], s43 offen offset:{2048+U}{SC}")
        for r in range(0, 16, 2):
            a(f"v_pk_mul_f32 {v(Q+r,2)}, {v(Q+r,2)}, s[44:45]")
        cvt_inplace(a, Q)
        sq = "s41" if i < 2 else "s42"
        a(f"buffer_store_dwordx4 {v(Q,4)}, v1, s[16:19], {sq} offen offset:{(i&1)*2048}{SC}")
        a(f"buffer_store_dwordx4 {v(Q+4,4)}, v1, s[16:19], {sq} offen offset:{(i&1)*2048+U}{SC}")
        if i < 3: a("s_add_u32 s43, s43, 4096")
        if i == 1: a("s_barrier")

def p1_helper(a, opt):
    if opt.get("map", 1) == 1 and opt.get("koff", 2) == 1:
        a("""
        s_lshr_b32 s49, s3, 1
        s_lshl_b32 s49, s49, 2
        s_lshl_b32 s29, s3, 3
        s_add_u32 s49, s49, s29
        s_and_b32 s49, s49, 15
        """)
    else:
        a("""
        s_lshr_b32 s49, s3, 1
        s_xor_b32 s49, s49, s3
        s_and_b32 s49, s49, 1
        s_lshl_b32 s49, s49, 3
        """)
    a(f"""
    s_sub_u32 s36, s27, 4            ; lw
    v_lshrrev_b32 v1, 3, v0          ; r
    v_and_b32 v2, 7, v0              ; p
    v_lshrrev_b32 v3, 1, v1
    s_lshl_b32 s29, s36, 3
    v_add_u32 v5, s29, v1            ; 8lw + r
    v_and_b32 v6, 1, v3
    """)
    m16 = opt.get("m16", 1)
    if m16: a("s_and_b32 s29, s36, 1\ns_lshl_b32 s29, s29, 2\nv_lshl_add_u32 v6, v6, 1, s29")
    else: a("v_lshlrev_b32 v6, 2, v6")
    a(f"""
    v_xor_b32 v6, v6, v2
    v_lshlrev_b32 v6, 4, v6
    v_mul_u32_u24 v16, 6144, v5
    s_lshl_b32 s29, s26, 7
    v_add3_u32 v16, v16, v6, s29
    """)
    if opt.get("split"):
        a(f"""
        s_add_u32 s43, s26, {opt.get("split")}
        s_and_b32 s43, s43, 15
        s_sub_u32 s43, s43, s26
        s_lshl_b32 s43, s43, 1
        v_and_b32 v6, 64, v6
        v_mul_lo_u32 v6, v6, s43
        v_add_u32 v16, v16, v6
        """)
    a(f"""
    v_add_u32 v17, 2048, v16
    v_add_u32 v18, 4096, v16
    s_lshl_b32 s37, s36, 10          ; lw*1024
    s_add_u32 s30, s37, {X_BASE}
    s_mov_b32 s31, s37
    s_lshl_b32 s38, s49, 7           ; X soffset
    s_mul_i32 s39, s49, {64*6144}    ; W soffset
    s_add_u32 s40, s37, {X_BASE + NX*X_SLOT}
    s_add_u32 s41, s37, {W_SLOT*NW}
    s_add_u32 s42, s37, {X_BASE}
    """)
    def GX():
        for n in range(8):
            a(f"s_add_u32 m0, s30, {n*4096}")
            a(f"buffer_load_dwordx4 v{8+n}, s[8:11], s38 offen lds")
        a(f"""
        s_add_u32 s38, s38, 128
        s_and_b32 s38, s38, 2047
        s_add_u32 s30, s30, {X_SLOT}
        s_cmp_eq_u32 s30, s40
        s_cselect_b32 s30, s42, s30
        """)
    def GW():
        for sg in range(3):
            a(f"s_add_u32 m0, s31, {sg*4096}")
            a(f"buffer_load_dwordx4 v{16+sg}, s[12:15], s39 offen lds")
        a(f"""
        s_add_u32 s39, s39, {32*6144}
        s_cmp_eq_u32 s39, {1024*6144}
        s_cselect_b32 s39, 0, s39
        s_add_u32 s31, s31, {W_SLOT}
        s_cmp_eq_u32 s31, s41
        s_cselect_b32 s31, s37, s31
        """)
    def WB(n):
        a(f"s_waitcnt vmcnt({n})")
        a("s_barrier")
    GW()
    a(f"""
    s_and_b32 s29, s36, 1
    s_lshl_b32 s29, s29, 2
    v_add_u32 v4, s29, v3            ; f
    v_xor_b32 v4, v4, v2
    v_lshlrev_b32 v4, 4, v4
    v_lshl_add_u32 v8, v5, 11, v4
    """)
    for n in range(1, 8): a(f"v_add_u32 v{8+n}, {n*65536}, v8")
    GX(); GW()
    a(f"""
    v_lshlrev_b32 v19, 4, v0
    s_lshl_b32 s43, s26, 7
    s_add_u32 s43, s43, {FLG}        ; F1A[ct] - 2048
    s_lshl_b32 s46, s26, 10
    s_lshl_b32 s29, s36, 2
    s_add_u32 s46, s46, s29
    s_add_u32 s46, s46, {F1B}
    s_lshl_b32 s29, s24, 14
    s_sub_u32 s47, s46, s29
    s_add_u32 s47, s47, 16384
    v_lshl_add_u32 v20, v0, 7, s47
    s_add_u32 s47, s43, {2048-32}
    v_lshl_add_u32 v21, v0, 2, s47
    v_cmp_gt_u32 vcc, 8, v0
    s_and_b32 s47, s3, 3
    s_lshl_b32 s47, s47, 1
    s_bfe_u32 s29, s2, 0x10004
    s_add_u32 s47, s47, s29
    v_cndmask_b32 v20, v21, v20, vcc
    s_lshl_b32 s48, s47, 7
    s_add_u32 s48, s48, {F2B - 64}
    s_lshr_b32 s47, s47, 1
    s_lshl_b32 s47, s47, 7
    s_add_u32 s47, s47, {F2A - 64}
    s_cmp_lt_u32 s3, 4
    s_cselect_b32 s47, s47, s48
    s_lshl_b32 s29, s36, 11
    s_add_u32 s47, s47, s29
    v_lshl_add_u32 v21, v0, 2, s47   ; lanes 16..47
    v_cmp_gt_u32 vcc, 16, v0
    s_lshl_b32 s29, s25, 7
    s_add_u32 s46, s46, s29
    s_lshl_b32 s29, s25, 2
    s_add_u32 s47, s43, s29
    v_cndmask_b32 v20, v21, v20, vcc
    s_add_u32 s47, s47, 2048
    s_cmp_eq_u32 s24, 0
    s_cselect_b32 s46, s47, s46
    v_and_b32 v21, 1, v0
    v_lshl_add_u32 v21, v21, 14, s46
    v_cmp_gt_u32 vcc, 48, v0
    s_lshl_b32 s46, s26, 3
    s_lshl_b32 s29, s24, 2
    s_sub_u32 s47, s46, s29
    v_cndmask_b32 v20, v21, v20, vcc
    s_lshl_b32 s29, s25, 7
    s_add_u32 s47, s47, s29
    s_add_u32 s47, s47, {F2B + 4}
    v_and_b32 v22, 3, v0
    v_lshl_add_u32 v21, v22, 11, s47
    v_cmp_gt_u32 vcc, 52, v0
    s_and_b32 s29, s25, 1
    s_lshl_b32 s29, s29, 2
    s_add_u32 s46, s46, s29
    v_cndmask_b32 v20, v21, v20, vcc
    s_lshr_b32 s29, s25, 1
    s_lshl_b32 s29, s29, 7
    s_add_u32 s46, s46, s29
    s_add_u32 s46, s46, {F2A}
    v_lshl_add_u32 v21, v22, 11, s46
    v_cmp_gt_u32 vcc, 56, v0
    s_mov_b32 s92, 0
    s_nop 0
    v_cndmask_b32 v{VFA}, v21, v20, vcc
    """)
    gpf = opt.get("gpf", 0)
    if gpf:
        a(f"""
        s_lshr_b32 s46, s2, 4
        s_lshl_b32 s46, s46, 3
        s_add_u32 s46, s46, s3
        s_lshr_b32 s47, s46, 2
        s_mul_i32 s47, s47, {6*2048}
        s_and_b32 s29, s46, 1
        s_lshl_b32 s29, s29, 10
        s_add_u32 s47, s47, s29
        s_bfe_u32 s29, s46, 0x10001
        s_mul_i32 s29, s29, {8*192*2048}
        s_add_u32 s47, s47, s29
        s_add_u32 s51, s47, {gpf*192*2048 + 384}
        v_lshlrev_b32 v23, 11, v0
        """)
    def SPF():
        if not gpf: return
        _uid[0] += 1
        L = f"L_g_{_uid[0]}"
        a(f"""
        s_cmp_lg_u32 s27, 5
        s_cbranch_scc1 {L}
        s_mov_b64 exec, 0x3f
        buffer_load_dword v248, v23, s[12:15], s51 offen
        s_mov_b64 exec, -1
        s_add_u32 s51, s51, {192*2048}
        """)
        a.label(L)
    SPF()
    a("s_waitcnt vmcnt(3)")
    a("s_barrier")
    a(f"buffer_load_dword v{VSNAP}, v{VFA}, s[16:19], 0 offen sc0 sc1")
    SPF(); GX(); GW(); WB(11)
    SPF(); GW(); GX(); WB(11)
    L = only_w4(a)
    a(f"""
    v_mov_b32 v20, 1
    v_mov_b32 v21, 0
    s_mov_b64 exec, 1
    buffer_atomic_add v20, v21, s[84:87], 0 offen sc1
    s_mov_b64 exec, -1
    """)
    a.label(L)
    if m16:
        SPF(); GW(); GW(); GW()
        npeel = (2 if gpf == 2 else 1) if gpf else 0
        for _ in range(npeel):
            WB(17); GX(); GW(); WB(17); SPF(); GW()
        a(f"s_mov_b32 s28, {12 - npeel}")
        a.label("L_p1_lloop")
        WB(17); GX(); GW(); WB(17); GW()
        a(f"""
        s_sub_u32 s28, s28, 1
        s_cmp_lg_u32 s28, 0
        s_cbranch_scc1 L_p1_lloop
        """)
        WB(17); GX(); GW()
    else:
        SPF(); GW(); GX(); WB(19)
        GW(); GW(); GW(); WB(17)
        SPF(); GX(); GW(); WB(17)
        GW(); WB(17)
        tlb = opt.get("tlb", 0)
        if tlb:
            if tlb == 1: a("s_cmp_ge_u32 s2, 8\ns_cbranch_scc1 L_tlb_done")
            a(f"""
            s_cmp_lg_u32 s27, 4
            s_cbranch_scc1 L_tlb_1
            v_lshlrev_b32 v248, 19, v0
            buffer_load_dword v248, v248, s[16:19], 0 offen
            s_branch L_tlb_done
            """)
            a.label("L_tlb_1")
            a(f"""
            s_cmp_lg_u32 s27, 5
            s_cbranch_scc1 L_tlb_done
            v_lshlrev_b32 v248, 19, v0
            s_mov_b64 exec, 0xffff
            buffer_load_dword v248, v248, s[56:59], 0 offen
            s_mov_b64 exec, -1
            """)
            a.label("L_tlb_done")
        (SPF() if gpf == 2 else None); GX(); GW()
        a("s_mov_b32 s28, 10")
        a.label("L_p1_lloop")
        WB(25); GW(); WB(17); GX(); GW()
        a(f"""
        s_sub_u32 s28, s28, 1
        s_cmp_lg_u32 s28, 0
        s_cbranch_scc1 L_p1_lloop
        """)
        WB(25)
        GW()
    a(f"""
    s_lshl_b32 s29, s26, 12
    s_add_u32 s29, s29, s37
    s_add_u32 m0, s37, {WPHI_LDS}
    s_nop 0
    buffer_load_dwordx4 v19, s[20:23], s29 offen lds
    """)
    n = code_pf(a, opt, 249)
    WB(18 + n); WB(15 + n); WB(4 + n); WB(n)
    L = only_w4(a)
    a("s_mov_b32 s90, 0x400000\nv_mov_b32 v21, 0")
    a.label(L + "p")
    a(f"""
    buffer_load_dword v20, v21, s[84:87], 0 offen sc0 sc1
    s_waitcnt vmcnt(0)
    v_cmp_gt_u32 vcc, 256, v20
    s_sub_u32 s90, s90, 1
    s_cbranch_scc1 {L}
    s_cbranch_vccz {L}
    s_sleep 1
    s_branch {L}p
    """)
    a.label(L)
    p2_helper_setup(a)
    a(f"""
    v_mov_b32 v247, v3
    s_mov_b32 s91, 0
    s_cmp_lg_u32 s24, 0
    s_cbranch_scc1 L_p1_hB
    s_and_b32 s37, s27, 1            ; hd
    s_and_b32 s29, s27, 3
    s_mul_i32 s29, s29, {8192 if m16 else 6144}
    v_add_u32 v5, s29, v1
    """)
    epiA_setup(a, m16)
    a("s_barrier")
    a("s_barrier")
    K = 64; PP = [96, 112, 128]; EE = 144
    for q in range(6): a(f"ds_read_b128 {v(K+4*q,4)}, v5 offset:{KH + q*1024 + (2048 if m16 else 0)}")
    for i in range(3):
        a(f"s_waitcnt lgkmcnt({4-2*i})")
        pk_mfma(a, PP[i], K + 8 * i)
    lf = opt.get("lf", " sc1")
    for i in range(3):
        r = Rec(); softmax_pm(r, PP[i], EE, TT)
        cut = opt.get("cut", 70)
        if i == 2 and opt.get("early", 1):
            c0 = opt.get("c0", 30); cut = opt.get("cut", len(r.l))
            for x in r.l[:c0]: a(x)
            a(f"""
            s_lshl_b64 s[88:89], 1, s93
            s_mov_b64 exec, s[88:89]
            buffer_load_dword v{VPOL}, v{VFA}, s[16:19], 0 offen sc0 sc1
            s_mov_b64 exec, -1
            """)
            for x in r.l[c0:cut]: a(x)
            phi_write(a, 1 + i, PP[i], EE)
            a("s_waitcnt lgkmcnt(0)")
            a("s_barrier")
            a(f"""
            s_waitcnt vmcnt(0)
            s_mov_b64 exec, s[88:89]
            v_cmp_ne_u32 vcc, v{VPOL}, v{VSNAP}
            s_mov_b64 exec, -1
            s_nop 0
            s_cbranch_vccz L_p1_noearly
            s_mov_b32 s91, 1
            """)
            p2_c0_loads(a, lf)
            a.label("L_p1_noearly")
            a("s_branch L_p1_hdone")
        else:
            for x in r.l: a(x)
            phi_write(a, 1 + i, PP[i], EE)
            a("s_waitcnt lgkmcnt(0)")
            if i < 2: a("s_barrier")
    a.label("L_p1_hB")
    a("s_barrier")
    a.label("L_p1_hdone")

SLOT = 32768
KVF = 131072; ZF = KVF + 4096; WPH = KVF + 5120
SELL = 8; LACC = [12, 16]; QF = [24, 32]; KS = [40, 48]; VS = [56, 64]
NEGM = [72, 88]; SB = [104, 120]; OA = [136, 152]

def p2_ids(a):
    a(f"""
    s_lshl_b32 s34, s26, 1
    s_add_u32 s34, s34, 1
    s_sub_u32 s34, s34, s24
    s_and_b32 s31, s27, 3
    s_lshl_b32 s35, s25, 3
    s_lshl_b32 s29, s31, 1
    s_add_u32 s35, s35, s29
    s_lshl_b32 s40, s34, 18
    s_add_u32 s40, s40, {KVB_OFF}
    v_lshlrev_b32 v1, 4, v0
    """)

def p2_compute(a, opt):
    lf = opt.get("lf", " sc1")
    NT = 8
    stamp(a, opt, 3)
    p2_ids(a)
    a(f"""
    s_lshl_b32 s47, s35, 5
    s_add_u32 s47, s47, s34
    s_lshl_b32 s47, s47, 11
    s_add_u32 s47, s47, {O_OFF + (4<<20)}
    s_waitcnt lgkmcnt(0)
    v_mov_b32 v4, 0xdddd
    v_and_b32 v2, 4, v0
    v_cmp_eq_u32 vcc, 0, v2
    v_mov_b32 v2, 0
    v_mov_b32 v3, 0x3f803f80
    v_cndmask_b32 v{SELL}, v2, v3, vcc
    v_cndmask_b32 v{SELL+2}, v3, v2, vcc
    v_mov_b32 v{SELL+1}, v{SELL}
    v_mov_b32 v{SELL+3}, v{SELL+2}
    v_mov_b32 v2, v1
    """)
    if opt.get("m16", 1):
        a("""
        v_and_b32 v22, 0x23, v0
        v_and_b32 v20, 4, v0
        v_lshl_or_b32 v22, v20, 2, v22
        v_and_b32 v20, 0x18, v0
        v_lshrrev_b32 v20, 1, v20
        v_or_b32 v22, v22, v20
        v_lshlrev_b32 v22, 4, v22
        """)
    else: a("v_mov_b32 v22, v1")
    a(f"""
    v_mov_b32 v20, v22
    v_xor_b32 v23, v22, v1
    s_lshl_b32 s29, s31, 12
    s_add_u32 s29, s29, {QL0}
    v_add_u32 v5, s29, v1
    s_lshl_b32 s49, s26, 10
    s_lshl_b32 s29, s25, 7
    s_add_u32 s49, s49, s29
    s_lshl_b32 s29, s36, 3
    s_add_u32 s49, s49, s29
    s_add_u32 s49, s49, {F1C}
    s_lshl_b32 s48, s26, 7
    s_lshl_b32 s29, s25, 2
    s_add_u32 s48, s48, s29
    s_add_u32 s48, s48, {F1A}        ; F1A[ct][tt]
    s_cmp_eq_u32 s24, 0
    s_cselect_b32 s49, s48, s49
    s_cselect_b32 s90, 1, s91
    s_mov_b32 s91, 0
    s_barrier
    """)
    stamp(a, opt, 5)
    def kread(st, addr, j): return [f"ds_read_b128 {v(KS[st]+4*u,4)}, {dict(v2='v20', v3='v21')[addr]} offset:{j*4096+u*1024}" for u in range(2)]
    def vread(st, addr, j): return [f"ds_read_b128 {v(VS[st]+4*u,4)}, {addr} offset:{j*4096+2048+u*1024}" for u in range(2)]
    for b in range(2):
        for u in range(2):
            a(f"ds_read_b128 {v(QF[b]+4*u,4)}, v5 offset:{b*2048+u*1024}")
    for r in kread(0, "v2", 0) + vread(0, "v2", 0) + kread(1, "v2", 1): a(r)
    for b in range(2):
        for r in range(16): a(f"v_mov_b32 v{OA[b]+r}, 0")
        for r in range(4): a(f"v_mov_b32 v{LACC[b]+r}, 0")
    for r in range(4, 8): a(f"v_mov_b32 v{VS[1]+r}, 0")
    a("s_waitcnt lgkmcnt(4)")
    for b in range(2):
        a(f"v_mfma_f32_32x32x16_bf16 {v(SB[b],16)}, {v(KS[0],4)}, {v(QF[b],4)}, 0")
        a(f"v_mfma_f32_32x32x16_bf16 {v(SB[b],16)}, {v(KS[0]+4,4)}, {v(QF[b]+4,4)}, {v(SB[b],16)}")
    def rowmax(S, dst, init=True):
        if init:
            a(f"v_max3_f32 v{dst}, v{S}, v{S+1}, v{S+2}")
            for r in range(3, 15, 2): a(f"v_max3_f32 v{dst}, v{dst}, v{S+r}, v{S+r+1}")
            a(f"v_max_f32 v{dst}, v{dst}, v{S+15}")
        else:
            for r in range(0, 16, 2): a(f"v_max3_f32 v{dst}, v{dst}, v{S+r}, v{S+r+1}")
    def finish_max(dst, tmp, NM):
        a(f"v_mov_b32 v{tmp}, v{dst}")
        a(f"v_permlane32_swap_b32 v{dst}, v{tmp}")
        a(f"v_max_f32 v{dst}, v{dst}, v{tmp}")
        for r in range(16): a(f"v_sub_f32 v{NM+r}, 0, v{dst}")
    rowmax(SB[0], 6); finish_max(6, 7, NEGM[0])
    a(f"v_mfma_f32_32x32x16_bf16 {v(SB[0],16)}, {v(KS[0],4)}, {v(QF[0],4)}, {v(NEGM[0],16)}")
    a(f"v_mfma_f32_32x32x16_bf16 {v(SB[0],16)}, {v(KS[0]+4,4)}, {v(QF[0]+4,4)}, {v(SB[0],16)}")
    rowmax(SB[1], 6); finish_max(6, 7, NEGM[1])
    for r in range(8, 16): a(f"v_mov_b32 v{SB[1]+r}, 0")
    a("s_mov_b32 s28, 0\ns_mov_b64 vcc, s[90:91]")
    a.raw(".p2align 6")
    a.label("L_p2_loop", keep_hist=True)
    start = len(a.lines)
    pat = "ePeeelreMeeeNweeeVeeeeeLr"
    for n in range(2 * NT):
        j = n >> 1; b = n & 1
        A = SB[b]; B = SB[b ^ 1]
        jprev = j - 1 if b == 0 else j
        jnext = j if b == 0 else j + 1
        if b == 0: R = vread((j + 1) & 1, "v2" if j + 1 < NT else "v3", (j + 1) % NT)
        else: R = kread(j & 1, "v2" if j + 2 < NT else "v3", (j + 2) % NT)
        e = rr = 0
        for ch in pat:
            if ch == "e": a(f"v_exp_f32 v{A+e}, v{A+e}"); e += 1
            elif ch == "P":
                a(f"v_smfmac_f32_32x32x32_bf16 {v(OA[b^1],16)}, {v(VS[jprev&1]+4,4)}, {v(B+8,8)}, v4")
                if n == 2 * NT - 3: a("s_barrier")
            elif ch == "l": a(f"v_smfmac_f32_16x16x64_bf16 {v(LACC[b^1],4)}, {v(SELL,4)}, {v(B+8,8)}, v4")
            elif ch == "L": a(f"v_smfmac_f32_16x16x64_bf16 {v(LACC[b],4)}, {v(SELL,4)}, {v(A,8)}, v4")
            elif ch == "w":
                if b == 0: a("s_waitcnt lgkmcnt(1)")
                elif n == opt.get("pubn", 1):
                    a("s_cbranch_vccnz L_p2_pub")
                    a.label("L_p2_pubret", keep_hist=True)
                else: a("s_nop 0")
            elif ch == "M":
                a(f"v_mfma_f32_32x32x16_bf16 {v(B,16)}, {v(KS[jnext&1],4)}, {v(QF[b^1],4)}, {v(NEGM[b^1],16)}")
                if n == 2 * NT - 1: a("v_mov_b32 v2, v3")
            elif ch == "N": a(f"v_mfma_f32_32x32x16_bf16 {v(B,16)}, {v(KS[jnext&1]+4,4)}, {v(QF[b^1]+4,4)}, {v(B,16)}")
            elif ch == "V":
                a(f"v_smfmac_f32_32x32x32_bf16 {v(OA[b],16)}, {v(VS[j&1],4)}, {v(A,8)}, v4")
                if n == 2 * NT - 1: a("s_add_u32 s28, s28, 1")
                if n == 0: a(f"v_add_u32 v3, {SLOT}, v2")
                if n == 1: a(f"v_and_b32 v3, {4*SLOT-1}, v3")
                if n == 2: a("v_xor_b32 v21, v23, v3")
                if n == 2 * NT - 2: a("v_mov_b32 v20, v21")
            elif ch == "r": a(R[rr]); rr += 1
    a("s_cmp_lt_u32 s28, 8")
    a("s_cbranch_scc1 L_p2_loop")
    assert check_loop(a.lines[start:]) == (0, 0)
    a("s_nop 1")
    a(f"v_smfmac_f32_32x32x32_bf16 {v(OA[1],16)}, {v(VS[1]+4,4)}, {v(SB[1]+8,8)}, v4")
    a(f"v_smfmac_f32_16x16x64_bf16 {v(LACC[1],4)}, {v(SELL,4)}, {v(SB[1]+8,8)}, v4")
    stamp(a, opt, 6)
    O0 = OA[0]; O1 = OA[1]; L0r = LACC[0]
    a("s_mov_b32 s48, 0")
    a.label("L_p2_blk")
    a(f"""
    s_mov_b32 s36, 0x5d800000        ; 2^60
    v_cmp_nlt_f32 vcc, v{L0r}, s36
    s_cmp_lg_u64 vcc, 0
    s_cbranch_scc1 L_p2_slow
    """)
    a.label("L_p2_fin", keep_hist=True)
    a(f"v_rcp_f32 v{L0r}, v{L0r}")
    for r in range(0, 16, 2):
        a(f"v_pk_mul_f32 {v(O0+r,2)}, {v(O0+r,2)}, {v(L0r,2)} op_sel_hi:[1,0]")
    cvt_inplace(a, O0)
    a(f"buffer_store_dwordx4 {v(O0,4)}, v1, s[16:19], s47 offen{SC}")
    a(f"buffer_store_dwordx4 {v(O0+4,4)}, v1, s[16:19], s47 offen offset:1024{SC}")
    a(f"""
    s_cmp_lg_u32 s48, 0
    s_cbranch_scc1 L_p2_out
    s_mov_b32 s48, 1
    s_add_u32 s47, s47, 65536
    """)
    for r in range(16): a(f"v_mov_b32 v{O0+r}, v{O1+r}")
    a(f"v_mov_b32 v{L0r}, v{LACC[1]}")
    for r in range(8): a(f"v_mov_b32 v{QF[0]+r}, v{QF[1]+r}")
    a("s_branch L_p2_blk")
    a.label("L_p2_pub")
    a(f"""
    s_waitcnt vmcnt(0)
    v_mov_b32 v6, 1
    v_lshlrev_b32 v7, 2, v0
    s_mov_b64 exec, vcc
    buffer_atomic_add v6, v7, s[16:19], s49 offen sc1
    s_mov_b64 exec, -1
    s_mov_b64 vcc, 0
    s_nop 4
    s_branch L_p2_pubret
    """)
    S0 = SB[0]; Q0 = QF[0]; NM = NEGM[0]
    a.label("L_p2_slow")
    a(f"""
    s_waitcnt lgkmcnt(0)
    s_mov_b32 s36, s40
    s_mov_b32 s28, 0
    v_mov_b32 v6, 0xff800000
    """)
    a.label("L_p2_slow1")
    a(f"""
    buffer_load_dwordx4 {v(KS[0],4)}, v22, s[16:19], s36 offen{lf}
    buffer_load_dwordx4 {v(KS[0]+4,4)}, v22, s[16:19], s36 offen offset:1024{lf}
    s_waitcnt vmcnt(0)
    v_mfma_f32_32x32x16_bf16 {v(S0,16)}, {v(KS[0],4)}, {v(Q0,4)}, 0
    v_mfma_f32_32x32x16_bf16 {v(S0,16)}, {v(KS[0]+4,4)}, {v(Q0+4,4)}, {v(S0,16)}
    """)
    rowmax(S0, 6, init=False)
    a(f"""
    s_add_u32 s36, s36, 4096
    s_add_u32 s28, s28, 1
    s_cmp_lt_u32 s28, 64
    s_cbranch_scc1 L_p2_slow1
    """)
    finish_max(6, 7, NM)
    for r in range(16): a(f"v_mov_b32 v{O0+r}, 0")
    for r in range(4): a(f"v_mov_b32 v{L0r+r}, 0")
    a("s_mov_b32 s36, s40\ns_mov_b32 s28, 0")
    a.label("L_p2_slow2")
    a(f"""
    buffer_load_dwordx4 {v(KS[0],4)}, v22, s[16:19], s36 offen{lf}
    buffer_load_dwordx4 {v(KS[0]+4,4)}, v22, s[16:19], s36 offen offset:1024{lf}
    buffer_load_dwordx4 {v(VS[0],4)}, v1, s[16:19], s36 offen offset:2048{lf}
    buffer_load_dwordx4 {v(VS[0]+4,4)}, v1, s[16:19], s36 offen offset:3072{lf}
    s_waitcnt vmcnt(0)
    v_mfma_f32_32x32x16_bf16 {v(S0,16)}, {v(KS[0],4)}, {v(Q0,4)}, {v(NM,16)}
    v_mfma_f32_32x32x16_bf16 {v(S0,16)}, {v(KS[0]+4,4)}, {v(Q0+4,4)}, {v(S0,16)}
    """)
    for r in range(16): a(f"v_exp_f32 v{S0+r}, v{S0+r}")
    a(f"""
    v_smfmac_f32_32x32x32_bf16 {v(O0,16)}, {v(VS[0],4)}, {v(S0,8)}, v4
    v_smfmac_f32_16x16x64_bf16 {v(L0r,4)}, {v(SELL,4)}, {v(S0,8)}, v4
    v_smfmac_f32_32x32x32_bf16 {v(O0,16)}, {v(VS[0]+4,4)}, {v(S0+8,8)}, v4
    v_smfmac_f32_16x16x64_bf16 {v(L0r,4)}, {v(SELL,4)}, {v(S0+8,8)}, v4
    s_nop 15
    s_add_u32 s36, s36, 4096
    s_add_u32 s28, s28, 1
    s_cmp_lt_u32 s28, 64
    s_cbranch_scc1 L_p2_slow2
    s_nop 15
    s_branch L_p2_fin
    """)
    a.label("L_p2_out")

def p2_helper_setup(a):
    p2_ids(a)
    a(f"""
    s_lshl_b32 s41, s31, 13          ; hw*8192
    s_add_u32 s40, s40, s41
    s_mov_b32 s43, s41
    s_mov_b32 s93, s25
    s_mov_b32 s44, {f2u(LOG2E)}
    s_mov_b32 s45, {f2u(LOG2E)}
    s_lshr_b32 s50, s2, 3
    s_lshl_b32 s50, s50, 16
    s_lshl_b32 s37, s31, 14
    s_add_u32 s50, s50, s37
    v_lshlrev_b32 v3, 7, v0
    s_lshl_b32 s38, s26, 1
    s_add_u32 s38, s38, 1
    s_lshl_b32 s38, s38, 6
    s_add_u32 s38, s38, s35
    s_lshl_b32 s38, s38, 11
    s_add_u32 s38, s38, {QB_OFF}
    """)

def p2_c0_loads(a, lf):
    a("s_lshl_b32 s42, s93, 15\ns_add_u32 s42, s42, s40")
    for hf in range(2):
        a(f"s_add_u32 m0, s43, {hf*4096}")
        a(f"s_add_u32 s29, s42, {hf*4096}")
        for n in range(4):
            a(f"buffer_load_dwordx4 v1, s[16:19], s29 offen offset:{n*1024}{lf} lds")
    a(f"""
    s_lshl_b32 s29, s31, 12
    s_add_u32 m0, s29, {QL0}
    s_nop 0
    """)
    for n in range(4):
        a(f"buffer_load_dwordx4 v1, s[16:19], s38 offen offset:{n*1024}{lf} lds")

def p2_helper(a, opt):
    lf = opt.get("lf", " sc1")
    P0 = 8; QAF = 160; ZP0 = 88; JUNK = 96
    WP = 8; KVR = 16; ZR = 32; PQ = 48; EP = 104; T = 120; NUM = 136; DEN = 64
    def advance():
        a(f"""
        s_add_u32 s93, s93, 1
        s_and_b32 s93, s93, 7
        s_add_u32 s43, s43, {SLOT}
        s_and_b32 s43, s43, {4*SLOT-1}
        """)
    def chunk(single=False):
        need_chunk(a, single)
        a("s_lshl_b32 s42, s93, 15\ns_add_u32 s42, s42, s40")
        for hf in range(2):
            a(f"s_add_u32 m0, s43, {hf*4096}")
            a(f"s_add_u32 s29, s42, {hf*4096}")
            for n in range(4):
                a(f"buffer_load_dwordx4 v1, s[16:19], s29 offen offset:{n*1024}{lf} lds")
        advance()
    def PF():
        a(f"buffer_load_dword v{JUNK}, v247, s[52:55], s50 offen")
        a(f"s_add_u32 s50, s50, 8192")
    def WB(n):
        a(f"s_waitcnt vmcnt({n})")
        a("s_barrier")
    a("s_cmp_lg_u32 s24, 0\ns_cbranch_scc1 L_p2_hB")
    stamp(a, opt, 3)
    a("s_cmp_lg_u32 s91, 0\ns_cbranch_scc1 L_p2_c0done")
    need_chunk(a, True)
    p2_c0_loads(a, lf)
    a.label("L_p2_c0done")
    advance()
    stamp(a, opt, 4)
    WB(0)
    chunk()
    WB(0)
    chunk(); chunk(); PF()
    WB(9)
    chunk(); PF()
    WB(10)
    chunk()
    WB(9)
    chunk()
    WB(8)
    chunk()
    WB(8)
    WB(0)
    a("s_branch L_p2_hdone")
    a.label("L_p2_hB")
    a(f"""
    v_add_u32 v2, s41, v1
    s_lshl_b32 s42, s25, 15
    s_add_u32 s42, s42, s40
    s_add_u32 s46, s42, 4096
    s_barrier
    """)
    stamp(a, opt, 3)
    a("s_setprio 2")
    for q in range(8): a(f"ds_read_b128 {v(8+4*q,4)}, v2 offset:{q*1024}")
    hb = opt.get("hb", 8)
    for q in range(8):
        if q == hb: a("s_barrier")
        a(f"s_waitcnt lgkmcnt({7-q})")
        a(f"buffer_store_dwordx4 {v(8+4*q,4)}, v1, s[16:19], {'s42' if q < 4 else 's46'} offen offset:{(q&3)*1024}{SC}")
    advance()
    stamp(a, opt, 1)
    if hb >= 8: a("s_barrier")
    a("s_waitcnt vmcnt(0)")
    publish(a, 48, all_helpers=True)
    stamp(a, opt, 4)
    chunk(True)
    stamp(a, opt, 6)
    a("s_waitcnt vmcnt(0)")
    stamp(a, opt, 9)
    WB(0)
    stamp(a, opt, 5)
    chunk(); chunk(); PF()
    WB(9)
    poll(a, 8, 8, 4)
    chunk(); PF()
    WB(10)
    chunk()
    a(f"""
    s_lshl_b32 s34, s26, 1
    s_and_b32 s29, s25, 1
    s_add_u32 s34, s34, s29
    s_and_b32 s35, s25, 6
    s_lshl_b32 s35, s35, 3
    s_lshl_b32 s29, s31, 2
    s_add_u32 s35, s35, s29
    s_lshl_b32 s38, s34, 6
    s_add_u32 s38, s38, s35
    s_lshl_b32 s38, s38, 11
    s_add_u32 s38, s38, {QA_OFF}
    s_add_u32 s39, s38, 4096
    s_lshl_b32 s46, s35, 5
    s_add_u32 s46, s46, s34
    s_lshl_b32 s46, s46, 11
    s_add_u32 s46, s46, {O_OFF}
    s_lshl_b32 s36, s34, 16
    s_add_u32 s36, s36, {KVP_OFF}
    s_lshl_b32 s29, s31, 11
    s_add_u32 s36, s36, s29
    """)
    for t in range(8):
        a(f"buffer_load_dwordx4 {v(P0+8*t,4)}, v1, s[16:19], s36 offen{lf}")
        a(f"buffer_load_dwordx4 {v(P0+8*t+4,4)}, v1, s[16:19], s36 offen offset:1024{lf}")
        if t < 7: a("s_add_u32 s36, s36, 8192")
    a(f"""
    s_and_b32 s37, s31, 1
    s_lshl_b32 s37, s37, 10
    s_lshl_b32 s36, s34, 11
    s_add_u32 s36, s36, s37
    s_add_u32 m0, s37, {WPH}
    v_lshlrev_b32 v6, 2, v0
    buffer_load_dwordx4 v1, s[20:23], s36 offen lds
    s_lshl_b32 s36, s34, 11
    s_add_u32 s36, s36, {ZP_OFF}
    """)
    for t in range(8):
        a(f"buffer_load_dword v{ZP0+t}, v6, s[16:19], s36 offen offset:{t*256}{lf}")
    for q in range(8):
        a(f"buffer_load_dwordx4 {v(QAF+4*q,4)}, v1, s[16:19], {'s38' if q < 4 else 's39'} offen offset:{(q&3)*1024}{lf}")
    a("s_waitcnt vmcnt(8)")
    for t in range(1, 8):
        for r in range(0, 8, 2):
            a(f"v_pk_add_f32 {v(P0+r,2)}, {v(P0+r,2)}, {v(P0+8*t+r,2)}")
    for r in range(4): a(f"v_cvt_pk_bf16_f32 v{P0+r}, v{P0+2*r}, v{P0+2*r+1}")
    a(f"""
    s_lshl_b32 s36, s31, 10
    s_add_u32 s36, s36, {KVF}
    v_add_u32 v6, s36, v1
    ds_write_b128 v6, {v(P0,4)}
    """)
    for t in range(1, 8): a(f"v_add_f32 v{ZP0}, v{ZP0}, v{ZP0+t}")
    a(f"""
    v_cvt_pk_bf16_f32 v{ZP0}, v{ZP0}, v{ZP0}
    v_lshrrev_b32 v6, 4, v0
    v_lshlrev_b32 v6, 5, v6
    v_and_b32 v7, 4, v0
    v_lshl_add_u32 v6, v7, 2, v6
    v_and_b32 v7, 8, v0
    v_add_u32 v6, v6, v7
    v_and_b32 v7, 3, v0
    v_lshl_add_u32 v6, v7, 1, v6
    v_add_u32 v6, {ZF}, v6
    ds_write_b16 v6, v{ZP0}
    v_mov_b32 v7, 0
    ds_write_b16 v6, v7 offset:128
    v_lshrrev_b32 v5, 5, v0          ; h
    v_bfe_u32 v6, v0, 2, 2
    v_lshl_add_u32 v6, v5, 2, v6     ; 4h+r
    v_bfe_u32 v7, v0, 4, 1
    v_lshlrev_b32 v7, 5, v7
    v_lshl_add_u32 v6, v6, 6, v7
    v_and_b32 v7, 3, v0
    v_lshl_add_u32 v6, v7, 3, v6
    v_add_u32 v2, {WPH}, v6
    v_lshrrev_b32 v6, 2, v0
    v_lshrrev_b32 v7, 4, v0
    v_xor_b32 v6, v6, v7
    v_and_b32 v6, 1, v6
    v_cmp_eq_u32 vcc, 0, v6
    v_lshlrev_b32 v5, 4, v5
    v_add_u32 v5, {ZF}, v5
    v_mov_b32 v6, {ZF+128}
    v_cndmask_b32 v7, v6, v5, vcc
    v_add_u32 v6, {KVF}, v1
    """)
    a("s_waitcnt lgkmcnt(0)")
    a("s_barrier")
    chunk()
    for u in range(2):
        for b in range(2):
            a(f"ds_read_b64_tr_b16 {v(WP+4*u+2*b,2)}, v2 offset:{((8*u+16*b) if opt.get('m16', 1) else (16*u+8*b))*64}")
    for f in range(4): a(f"ds_read_b128 {v(KVR+4*f,4)}, v6 offset:{f*1024}")
    for f in range(4): a(f"ds_read_b128 {v(ZR+4*f,4)}, v7 offset:{f*32}")
    a("s_waitcnt vmcnt(8) lgkmcnt(0)")
    def oa_block(b):
        a(f"v_mfma_f32_32x32x16_bf16 {v(PQ,16)}, {v(WP,4)}, {v(QAF+8*b,4)}, 0")
        a(f"v_mfma_f32_32x32x16_bf16 {v(PQ,16)}, {v(WP+4,4)}, {v(QAF+8*b+4,4)}, {v(PQ,16)}")
        softmax_pm(a, PQ, EP, T)
        for f in range(4):
            F = (EP if f < 2 else PQ) + 4 * (f & 1)
            a(f"v_mfma_f32_32x32x16_bf16 {v(NUM,16)}, {v(KVR+4*f,4)}, {v(F,4)}, {'0' if f == 0 else v(NUM,16)}")
            a(f"v_mfma_f32_16x16x32_bf16 {v(DEN,4)}, {v(ZR+4*f,4)}, {v(F,4)}, {'0' if f == 0 else v(DEN,4)}")
        a(f"""
        v_add_f32 v{DEN}, {f2u(1e-6)}, v{DEN}
        v_rcp_f32 v{DEN}, v{DEN}
        """)
        for r in range(0, 16, 2):
            a(f"v_pk_mul_f32 {v(NUM+r,2)}, {v(NUM+r,2)}, {v(DEN,2)} op_sel_hi:[1,0]")
        cvt_inplace(a, NUM)
        a(f"buffer_store_dwordx4 {v(NUM,4)}, v1, s[16:19], s46 offen{SC}")
        a(f"buffer_store_dwordx4 {v(NUM+4,4)}, v1, s[16:19], s46 offen offset:1024{SC}")
        a(f"s_add_u32 s46, s46, 65536")
    a("s_mov_b32 s28, 0")
    a.label("L_p2_oa")
    oa_block(0)
    for r in range(0, 24, 2): a(f"v_pk_mov_b32 {v(QAF+r,2)}, {v(QAF+8+r,2)}, {v(QAF+8+r,2)} op_sel:[0,1]")
    a(f"""
    s_add_u32 s28, s28, 1
    s_cmp_eq_u32 s28, 2
    s_cbranch_scc0 L_p2_oa1
    s_barrier
    """)
    chunk()
    a.label("L_p2_oa1")
    a("s_cmp_lt_u32 s28, 4\ns_cbranch_scc1 L_p2_oa")
    WB(12)
    WB(0)
    publish(a, 56, n=4)
    a("s_setprio 0")
    a.label("L_p2_hdone")

NS = 5
ACC3 = 72
OS = [8, 16, 24, 32]; WSR = [40, 48, 56, 64]
def p3_ids(a):
    a(f"""
    s_lshr_b32 s24, s3, 2            ; branch
    s_and_b32 s25, s3, 3
    s_lshl_b32 s25, s25, 2
    s_bfe_u32 s29, s2, 0x20003
    s_add_u32 s25, s25, s29
    s_lshr_b32 s26, s2, 5
    """)

def p3_compute(a, opt):
    a("s_waitcnt lgkmcnt(0)")
    p3_ids(a)
    a(f"""
    s_lshr_b32 s36, s27, 1           ; tw
    s_and_b32 s37, s27, 1            ; cw
    v_lshlrev_b32 v1, 4, v0
    s_lshl_b32 s29, s36, 13
    v_add_u32 v1, s29, v1
    v_lshrrev_b32 v2, 5, v0          ; h
    v_bfe_u32 v3, v0, 2, 2           ; r
    v_lshl_add_u32 v4, v2, 2, v3
    v_lshlrev_b32 v4, 8, v4
    s_lshl_b32 s29, s37, 1
    v_xor_b32 v3, s29, v3
    v_lshl_add_u32 v4, v3, 6, v4
    v_bfe_u32 v5, v0, 4, 1
    v_lshl_add_u32 v4, v5, 5, v4
    v_and_b32 v5, 3, v0
    v_lshl_add_u32 v4, v5, 3, v4
    v_add_u32 v2, 16384, v4
    v_xor_b32 v3, 64, v2
    s_mov_b32 s30, 0
    v_mov_b32 v4, v1
    v_mov_b32 v5, v2
    v_mov_b32 v6, v3
    s_mov_b32 s28, 16
    """)
    for r in range(ACC3, ACC3 + 64): a(f"v_mov_b32 v{r}, 0")
    def reads(st, c):
        O = OS[st]; W = WSR[st]
        o = [f"ds_read_b128 {v(O+4*i,4)}, v4 offset:{i*4096+c*1024}" for i in range(2)]
        w = [f"ds_read_b64_tr_b16 {v(W+4*cb+2*b,2)}, v{5+cb} offset:{(16*c+8*b)*256}" for cb in range(2) for b in range(2)]
        return [w[0], w[1], o[0], o[1], w[2], w[3]]
    def mf(st):
        O = OS[st]; W = WSR[st]
        return [f"v_mfma_f32_32x32x16_bf16 {v(ACC3+16*(2*i+cb),16)}, {v(W+4*cb,4)}, {v(O+4*i,4)}, {v(ACC3+16*(2*i+cb),16)}"
                for cb in range(2) for i in range(2)]
    a("s_waitcnt vmcnt(0)")
    stamp(a, opt, 7)
    a("s_barrier")
    stamp(a, opt, 8)
    a("s_barrier")
    stamp(a, opt, 9)
    for r in reads(0, 0) + reads(1, 1): a(r)
    a.raw(".p2align 6")
    a.label("L_p3_loop", keep_hist=True)
    start = len(a.lines)
    for c in range(4):
        M = mf(c); R = reads((c + 2) & 3, (c + 2) & 3)
        a("s_waitcnt lgkmcnt(6)")
        a(M[0])
        if c == 2: a("s_barrier")
        a(R[0]); a(R[1])
        a(M[1])
        a(R[2]); a(R[3])
        a(M[2])
        a(R[4]); a(R[5])
        if c == 1:
            a(f"""
            s_add_u32 s30, s30, {SLOT}
            s_cmp_eq_u32 s30, {SLOT*NS}
            s_cselect_b32 s30, 0, s30
            """)
        a(M[3])
        if c == 1:
            a("""
            v_add_u32 v4, s30, v1
            v_add_u32 v5, s30, v2
            v_add_u32 v6, s30, v3
            """)
        if c == 3:
            a("s_sub_u32 s28, s28, 1")
            a("s_cmp_lg_u32 s28, 0")
    a("s_cbranch_scc1 L_p3_loop")
    assert check_loop(a.lines[start:]) == (0, 0)
    a("s_waitcnt lgkmcnt(0)")
    stamp(a, opt, 10)
    RS = 144
    a(f"""
    s_lshl_b32 s38, s25, 7
    s_lshl_b32 s29, s36, 6
    s_add_u32 s38, s38, s29          ; token0
    s_lshl_b32 s38, s38, 12
    s_lshl_b32 s29, s24, 11
    s_add_u32 s38, s38, s29
    s_lshl_b32 s29, s26, 8
    s_add_u32 s38, s38, s29
    s_lshl_b32 s29, s37, 7
    s_add_u32 s38, s38, s29
    s_mul_i32 s29, s27, {64*RS}
    s_add_u32 s29, s29, {2*SLOT}
    v_and_b32 v1, 31, v0
    v_mul_u32_u24 v1, {RS}, v1
    v_lshrrev_b32 v2, 5, v0
    v_lshl_add_u32 v1, v2, 3, v1
    v_add_u32 v1, s29, v1
    v_lshrrev_b32 v2, 3, v0
    v_and_b32 v3, 7, v0
    v_mul_u32_u24 v4, {RS}, v2
    v_lshl_add_u32 v4, v3, 4, v4
    v_add_u32 v4, s29, v4
    v_lshlrev_b32 v2, 12, v2
    v_lshl_add_u32 v2, v3, 4, v2
    """)
    for i in range(2):
        for cb in range(2):
            D = ACC3 + 16 * (2 * i + cb)
            for r in range(8): a(f"v_cvt_pk_bf16_f32 v{D+r}, v{D+2*r}, v{D+2*r+1}")
            for g in range(4):
                a(f"ds_write_b64 v1, {v(D+2*g,2)} offset:{i*32*RS + cb*64 + g*16}")
        for q in range(4):
            a(f"ds_read_b128 {v(8+16*i+4*q,4)}, v4 offset:{(i*32+q*8)*RS}")
    for i in range(2):
        for q in range(4):
            a(f"s_waitcnt lgkmcnt({(3-q) + (12 if i == 0 else 0)})")
            a(f"buffer_store_dwordx4 {v(8+16*i+4*q,4)}, v2, s[56:59], s38 offen{SC}")
            a(f"s_add_u32 s38, s38, {8*4096}")

def p3_helper(a, opt):
    lf = opt.get("lf", " sc1")
    p3_ids(a)
    a(f"""
    s_sub_u32 s36, s27, 4            ; lw
    v_lshlrev_b32 v1, 4, v0
    v_lshrrev_b32 v2, 4, v0          ; r
    v_and_b32 v3, 15, v0             ; p
    v_lshlrev_b32 v4, 2, v2
    v_xor_b32 v3, v3, v4
    v_lshlrev_b32 v3, 4, v3
    v_lshl_add_u32 v8, v2, 11, v3
    s_lshl_b32 s29, s26, 8
    s_lshl_b32 s37, s36, 15
    s_add_u32 s29, s29, s37
    v_add_u32 v8, s29, v8
    v_add_u32 v9, 8192, v8
    v_add_u32 v10, 16384, v8
    v_add_u32 v11, 24576, v8
    s_lshl_b32 s38, s25, 2
    s_add_u32 s38, s38, s36          ; tb
    s_lshl_b32 s38, s38, 16
    s_lshl_b32 s29, s24, 22
    s_add_u32 s38, s38, s29
    s_add_u32 s38, s38, {O_OFF}      ; O soffset
    s_lshl_b32 s37, s36, 12          ; lw*4096
    s_add_u32 s40, s37, {SLOT*NS}
    """)
    ORD = opt.get("ord", [0, 1, 2, 4, 5, 6, 7, 8, 9, 10, 12, 13, 14, 15, 3, 11])
    def GWs(t):
        a(f"s_mov_b32 s39, {ORD[t]*64*2048}")
        for n in range(4):
            a(f"s_add_u32 m0, s37, {t*SLOT+16384+n*1024}")
            a(f"buffer_load_dwordx4 v{8+n}, s[52:55], s39 offen lds")
    def GOs(t):
        a(f"s_add_u32 m0, s37, {t*SLOT}")
        a(f"s_add_u32 s29, s38, {ORD[t]*4096}")
        for n in range(4): a(f"buffer_load_dwordx4 v1, s[16:19], s29 offen offset:{n*1024}{lf} lds")
    def hm(*ts): return sum(3 << (2 * ORD[t]) for t in ts)
    def G():
        a(f"""
        s_and_b32 s41, s42, 15
        s_lshr_b64 s[42:43], s[42:43], 4
        s_lshl_b32 s39, s41, 17
        s_lshl_b32 s29, s41, 1
        s_lshl_b32 s93, 3, s29
        """)
        for n in range(4):
            a(f"s_add_u32 m0, s30, {16384+n*1024}")
            a(f"buffer_load_dwordx4 v{8+n}, s[52:55], s39 offen lds")
        need_mask(a)
        a(f"""
        s_lshl_b32 s29, s41, 12
        s_mov_b32 m0, s30
        s_add_u32 s29, s29, s38
        """)
        for n in range(4): a(f"buffer_load_dwordx4 v1, s[16:19], s29 offen offset:{n*1024}{lf} lds")
        a(f"""
        s_add_u32 s30, s30, {SLOT}
        s_cmp_eq_u32 s30, s40
        s_cselect_b32 s30, s37, s30
        """)
    packed = sum(ORD[5 + i] << (4 * i) for i in range(11))
    a(f"""
    s_mov_b32 s42, {packed & 0xffffffff}
    s_mov_b32 s43, {packed >> 32}
    s_mov_b32 s30, s37
    s_mov_b32 s48, 0
    """)
    code_pf(a, opt, 249)
    GWs(4)
    a("s_barrier")
    GWs(0); GWs(1); GWs(2)
    look(a)
    a(f"""
    s_andn2_b32 s88, {hm(0, 1)}, s92
    s_cbranch_scc1 L_p3_notyet
    s_mov_b32 s48, 1
    """)
    GOs(0); GOs(1)
    a.label("L_p3_notyet")
    a("s_barrier")
    stamp(a, opt, 7)
    publish(a, 52, n=4)
    GWs(3)
    a(f"""
    s_cmp_lg_u32 s48, 0
    s_cbranch_scc1 L_p3_have
    s_mov_b32 s93, {hm(0, 1)}
    """)
    need_mask(a)
    stamp(a, opt, 8)
    GOs(0); GOs(1)
    a.label("L_p3_have")
    a("s_waitcnt vmcnt(4)")
    a("s_barrier")
    a(f"s_mov_b32 s93, {hm(2)}")
    need_mask(a)
    GOs(2)
    a("s_waitcnt vmcnt(4)")
    a("s_barrier")
    a(f"s_mov_b32 s93, {hm(3, 4)}")
    need_mask(a)
    GOs(3); GOs(4)
    a("s_waitcnt vmcnt(8)")
    a("s_barrier")
    G()
    a("s_waitcnt vmcnt(12)")
    a("s_barrier")
    G()
    a("s_mov_b32 s28, 9")
    a.label("L_p3_lloop")
    a("s_waitcnt vmcnt(16)")
    a("s_barrier")
    G()
    a(f"""
    s_sub_u32 s28, s28, 1
    s_cmp_lg_u32 s28, 0
    s_cbranch_scc1 L_p3_lloop
    """)
    for n in (16, 8, 0):
        a(f"s_waitcnt vmcnt({n})")
        a("s_barrier")

def gen(opt):
    mp = opt.get("map", 1)
    a = Asm()
    a.raw(khead(NAME))
    a(f"""
    s_getpc_b64 s[94:95]
    """)
    a.label("L_pc", keep_hist=True)
    if opt.get("fixe"): a("s_memrealtime s[60:61]")
    a(f"""
    s_cmp_ge_u32 s2, 256
    s_cbranch_scc1 L_end
    s_and_b32 s3, s2, 7
    s_bfe_u32 s24, s2, {0x10003 if mp == 1 else 0x10002}
    s_lshl_b32 s29, s24, 5
    s_load_dwordx4 s[4:7], s[0:1], s29
    s_load_dwordx2 s[32:33], s[0:1], 72
    s_load_dwordx2 s[34:35], s[0:1], 16
    s_lshr_b32 s29, s3, 2
    s_mul_i32 s29, s29, 24
    s_add_u32 s29, s29, 24
    s_load_dwordx2 s[52:53], s[0:1], s29
    s_load_dwordx4 s[44:47], s[0:1], 56
    s_and_b32 s25, s3, 1
    s_lshl_b32 s25, s25, 2
    s_bfe_u32 s29, s2, {0x20004 if mp == 1 else 0x20003}
    s_add_u32 s25, s25, s29          ; tt
    s_bfe_u32 s26, s3, {0x20001 if mp == 1 else 0x10001}
    s_lshl_b32 s26, s26, {2 if mp == 1 else 3}
    s_lshr_b32 s29, s2, {6 if mp == 1 else 5}
    s_add_u32 s26, s26, s29          ; ct
    v_lshrrev_b32 v1, 6, v0
    v_and_b32 v0, 63, v0
    v_readfirstlane_b32 s27, v1
    s_lshl_b32 s29, s25, 19
    s_mov_b32 s10, 0x80000
    s_mov_b32 s11, 0x20000
    s_mov_b32 s14, 0x600000
    s_mov_b32 s15, 0x20000
    s_mov_b32 s18, 0x10000000
    s_mov_b32 s19, 0x20000
    s_mov_b32 s22, 0x10000
    s_mov_b32 s23, 0x20000
    s_mov_b32 s54, 0x200000
    s_mov_b32 s55, 0x20000
    s_mov_b32 s58, 0x800000
    s_mov_b32 s59, 0x20000
    s_mov_b32 s86, 256
    s_mov_b32 s87, 0x20000
    s_waitcnt lgkmcnt(0)
    s_add_u32 s8, s4, s29
    s_addc_u32 s9, s5, 0
    s_mov_b32 s12, s6
    s_mov_b32 s13, s7
    s_mov_b32 s16, s32
    s_mov_b32 s17, s33
    s_mov_b32 s20, s34
    s_mov_b32 s21, s35
    s_mov_b32 s56, s44
    s_mov_b32 s57, s45
    s_mov_b32 s84, s46
    s_mov_b32 s85, s47
    """)
    for i in range(12): stamp(a, opt, i)
    if opt.get("fixt") and not opt.get("fixe"): a("s_memrealtime s[60:61]\ns_waitcnt lgkmcnt(0)")
    a("s_cmp_lt_u32 s27, 4\ns_cbranch_scc1 L_compute")
    p1_helper(a, opt)
    p2_helper(a, opt)
    p3_helper(a, opt)
    a("s_branch L_fin")
    a.label("L_compute")
    p1_compute(a, opt)
    p2_compute(a, opt)
    p3_compute(a, opt)
    a.label("L_fin")
    if opt.get("fixt"):
        a("s_cmp_ge_u32 s27, 4\ns_cbranch_scc1 L_end")
        a.label("L_fixt")
        a(f"""
        s_memrealtime s[62:63]
        s_waitcnt lgkmcnt(0)
        s_sub_u32 s62, s62, s60
        s_cmp_lt_u32 s62, {opt["fixt"]}
        s_cbranch_scc1 L_fixt
        """)
    stamp_out(a, opt)
    a.label("L_end")
    a("s_endpgm")
    return a.text()

if __name__ == "__main__":
    import json, subprocess
    out = sys.argv[1]
    opt = json.loads(sys.argv[2]) if len(sys.argv) > 2 else {}
    HEADER = open("concat_heads__linear_kernel_hedgehog__mha_block__prompt.s.ref").read().split("; Override launch")[0]
    launch = f"; @launch kernel={NAME} grid=(256,1,1) block=(512,1,1) lds=163840" if opt.get("list", 1) else "; @launch grid=(256,1,1) block=(512,1,1) lds=163840"
    s = HEADER + launch + '\n.amdgcn_target "amdgcn-amd-amdhsa--gfx950"\n.text\n' + gen(opt) + '.section .rodata,"a"\n' + kdesc(NAME, 256, 100)
    open(out, "w").write(s)
    r = subprocess.run(["clang", "-x", "assembler", "-target", "amdgcn-amd-amdhsa", "-mcpu=gfx950", "-c", out, "-o", "_b.o"], capture_output=True, text=True)
    if r.returncode != 0:
        print(r.stderr[:1500]); raise SystemExit(1)
```

```python
from asmlib import *
import math, sys
import k1
from k1 import (QB_OFF, KVB_OFF, QA_OFF, KVP_OFF, ZP_OFF, O_OFF, LOG2E, f2u, softmax_pm, cvt_inplace,
                W_SLOT, NW, X_BASE, X_SLOT, NX, WPHI_LDS, ACCQ, ACCK, ACCV, reads as p1_reads, mfmas as p1_mfmas,
                epi_A, epi_B, epiA_setup, pk_mfma, phi_write, KH, TT, PH_BLK, Rec, epi_A16)
import p1v16

NAME = "concat_heads__linear_kernel_hedgehog__mha_block__prompt_kernel"
FLG = 29 << 20
F1A, F2B, F2A = FLG + 2048, FLG + 4096, FLG + 5120
F1B = FLG + 16384
F1C = F1B + 16384
QL0 = 139264
STAMP_OFF = 30 << 20
VSNAP, VFA, VPOL = 250, 251, 252
SC = " sc0 sc1"

def stamp(a, opt, idx):
    if not opt.get("stamp"): return
    a(f"s_memrealtime s[{60+2*idx}:{61+2*idx}]")
    a("s_waitcnt lgkmcnt(0)")
def stamp_out(a, opt):
    if not opt.get("stamp"): return
    a("s_waitcnt vmcnt(0)")
    stamp(a, opt, 11)
    if opt.get("stamp") == 2:
        a("s_cmp_lg_u32 s27, 0\ns_cbranch_scc1 L_end\nv_mov_b32 v9, 0\ns_mov_b64 exec, 1")
        for i in range(1, 12):
            a(f"s_sub_u32 s29, s{60+2*i}, s60")
            a("v_mov_b32 v8, s29")
            a(f"buffer_atomic_umax v8, v9, s[84:87], 0 offen offset:{4*i} sc1")
        a("s_not_b32 s29, s60\nv_mov_b32 v8, s29\nbuffer_atomic_umax v8, v9, s[84:87], 0 offen offset:48 sc1")
        a("v_mov_b32 v8, s82\nbuffer_atomic_umax v8, v9, s[84:87], 0 offen offset:52 sc1")
        a("v_mov_b32 v8, s60\nbuffer_atomic_umax v8, v9, s[84:87], 0 offen offset:56 sc1")
        return
    a(f"""
    s_lshl_b32 s29, s2, 3
    s_add_u32 s29, s29, s27
    s_lshl_b32 s29, s29, 6
    s_add_u32 s29, s29, {STAMP_OFF}
    v_mov_b32 v9, 0
    """)
    for i in range(12):
        a(f"v_mov_b32 v8, s{60+2*i}")
        a(f"buffer_store_dword v8, v9, s[16:19], s29 offen offset:{4*i}")

def code_pf(a, opt, junk):
    if not opt.get("cpf", 1): return 0
    a(f"""
    s_and_b32 s29, s27, 3
    s_lshl_b32 s29, s29, 13
    v_lshlrev_b32 v{junk}, 7, v0
    v_add_u32 v{junk}, s29, v{junk}
    v_min_u32 v{junk}, L_end-L_pc, v{junk}
    global_load_dword v{junk}, v{junk}, s[94:95]
    """)
    return 1

_uid = [0]
def only_w4(a):
    _uid[0] += 1
    L = f"L_w4_{_uid[0]}"
    a(f"s_cmp_lg_u32 s27, 4\ns_cbranch_scc1 {L}")
    return L
def poll(a, lo, n, cnt=None):
    L = only_w4(a)
    mask = ((1 << n) - 1) << lo
    a(f"""
    s_mov_b32 s88, {mask & 0xffffffff}
    s_mov_b32 s89, {mask >> 32}
    s_mov_b32 s90, 0x400000
    s_mov_b64 exec, s[88:89]
    """)
    a.label(L + "p")
    a(f"""
    buffer_load_dword v{VPOL}, v{VFA}, s[16:19], 0 offen sc0 sc1
    s_waitcnt vmcnt(0)
    v_sub_u32 v{VPOL}, v{VPOL}, v{VSNAP}
    v_cmp_ne_u32 vcc, {cnt}, v{VPOL}
    s_sub_u32 s90, s90, 1
    s_cbranch_scc1 {L}d
    s_cbranch_vccz {L}d
    s_sleep 1
    s_branch {L}p
    """)
    a.label(L + "d")
    a("s_mov_b64 exec, -1")
    a.label(L)
def need_chunk(a, single=False):
    _uid[0] += 1
    L = f"L_nc_{_uid[0]}"
    a(f"""
    s_bitcmp1_b32 s92, s93
    s_cbranch_scc1 {L}
    s_mov_b32 s90, 0x400000
    s_lshl_b64 s[88:89], 1, s93
    s_mov_b64 exec, {"s[88:89]" if single else "0xff"}
    """)
    a.label(L + "p")
    a(f"""
    buffer_load_dword v{VPOL}, v{VFA}, s[16:19], 0 offen sc0 sc1
    s_waitcnt vmcnt(0)
    v_cmp_ne_u32 vcc, v{VPOL}, v{VSNAP}
    s_sub_u32 s90, s90, 1
    s_cbranch_scc1 {L}d
    s_or_b32 s92, s92, vcc_lo
    s_mov_b64 exec, s[88:89]
    s_bitcmp1_b32 s92, s93
    s_cbranch_scc1 {L}d
    s_sleep 2
    s_branch {L}p
    """)
    a.label(L + "d")
    a("s_mov_b64 exec, -1")
    a.label(L)
def look(a):
    a(f"""
    s_mov_b32 exec_lo, 0xffff0000
    s_mov_b32 exec_hi, 0xffff
    buffer_load_dword v{VPOL}, v{VFA}, s[16:19], 0 offen sc0 sc1
    s_waitcnt vmcnt(0)
    v_cmp_ne_u32 vcc, v{VPOL}, v{VSNAP}
    s_mov_b64 exec, -1
    s_lshr_b64 s[88:89], vcc, 16
    s_mov_b32 s92, s88
    """)
def need_mask(a):
    _uid[0] += 1
    L = f"L_nm_{_uid[0]}"
    a("s_mov_b32 s90, 0x400000")
    a.label(L + "p")
    a(f"""
    s_andn2_b32 s88, s93, s92
    s_cbranch_scc0 {L}
    s_sub_u32 s90, s90, 1
    s_cbranch_scc1 {L}
    """)
    look(a)
    a(f"s_branch {L}p")
    a.label(L)

def publish(a, lane, all_helpers=False, n=1):
    L = None if all_helpers else only_w4(a)
    a(f"""
    v_add_u32 v{VPOL}, 1, v{VSNAP}
    s_mov_b32 exec_lo, 0
    s_mov_b32 exec_hi, {((1 << n) - 1) << (lane - 32)}
    buffer_store_dword v{VPOL}, v{VFA}, s[16:19], 0 offen sc0 sc1
    s_mov_b64 exec, -1
    """)
    if L: a.label(L)

def p1_setup32(a):
    a(f"""
    s_lshr_b32 s36, s27, 1          ; tw
    s_and_b32 s37, s27, 1           ; hd
    v_and_b32 v8, 31, v0            ; n
    v_lshrrev_b32 v9, 5, v0         ; h
    v_bfe_u32 v10, v8, 1, 3         ; f
    v_xor_b32 v10, v10, v9
    v_lshlrev_b32 v10, 4, v10
    s_lshl_b32 s29, s36, 14
    v_lshlrev_b32 v11, 7, v8
    v_add3_u32 v1, v11, v10, s29
    v_xor_b32 v2, 32, v1
    v_xor_b32 v3, 64, v1
    v_xor_b32 v4, 0x60, v1
    v_bfe_u32 v10, v0, 2, 2         ; r
    v_lshl_add_u32 v11, v9, 3, v10
    v_lshlrev_b32 v11, 7, v11
    v_lshrrev_b32 v10, 1, v10
    v_xor_b32 v10, s37, v10
    v_lshl_add_u32 v11, v10, 6, v11
    v_bfe_u32 v10, v0, 4, 1
    v_lshl_add_u32 v11, v10, 5, v11
    v_and_b32 v10, 3, v0
    v_lshl_add_u32 v5, v10, 3, v11
    s_mov_b32 s30, {X_BASE}
    s_mov_b32 s31, 0
    v_add_u32 v6, s30, v1
    v_mov_b32 v7, v5
    s_mov_b32 s28, 16
    """)

def p1_loop32(a):
    for r in p1_reads(a, 0, 0, 0): a(r)
    a.raw(".p2align 6")
    a.label("L_p1_loop", keep_hist=True)
    start = len(a.lines)
    for c in range(4):
        st = c & 1
        M = p1_mfmas(st)
        c1 = (c + 1) & 3
        R = p1_reads(a, st ^ 1, c1, c1 & 1)
        pre = []
        if c & 1:
            pre += [f"s_add_u32 s31, s31, {W_SLOT}", f"s_cmp_eq_u32 s31, {W_SLOT*NW}", "s_cselect_b32 s31, 0, s31"]
        if c == 3:
            pre += [f"s_add_u32 s30, s30, {X_SLOT}", f"s_cmp_eq_u32 s30, {X_BASE+X_SLOT*NX}", f"s_cselect_b32 s30, {X_BASE}, s30"]
        a("s_waitcnt lgkmcnt(3)")
        a(M[0])
        for p in pre[:3]: a(p)
        a(M[1])
        for p in pre[3:]: a(p)
        if c & 1: a("v_add_u32 v7, s31, v5")
        a(f"v_add_u32 v6, s30, v{1+c1}")
        a(M[2])
        a("s_waitcnt lgkmcnt(0)")
        if c & 1: a("s_barrier")
        sched = [2, 2, 2, 2, 1, 1, 0, 0, 0]
        k = 0
        for g in range(9):
            for _ in range(sched[g]):
                a(R[k]); k += 1
            if c == 3 and g == 7:
                a("s_sub_u32 s28, s28, 1")
                a("s_cmp_lg_u32 s28, 0")
            a(M[3 + g])
    a("s_cbranch_scc1 L_p1_loop")
    assert check_loop(a.lines[start:]) == (0, 0)

def p1_compute(a, opt):
    m16 = opt.get("m16", 1)
    if m16: p1v16.setup(a)
    else: p1_setup32(a)
    code_pf(a, opt, 12)
    for r in range(64, 256): a(f"v_mov_b32 v{r}, 0")
    a("s_waitcnt vmcnt(0)")
    spf = opt.get("spf", 0)
    if spf:
        a(f"""
        s_lshr_b32 s41, s2, 4
        s_lshl_b32 s41, s41, 3
        s_add_u32 s41, s41, s3
        s_cmp_ge_u32 s27, 2
        s_cbranch_scc1 L_spf_done
        s_cmp_eq_u32 s27, 1
        s_cbranch_scc1 L_spf_x
        s_lshr_b32 s42, s41, 1
        s_lshl_b32 s42, s42, 17
        s_and_b32 s41, s41, 1
        s_lshl_b32 s41, s41, 10
        s_add_u32 s42, s42, s41
        v_lshlrev_b32 v0, 11, v0
        buffer_load_dword v0, v0, s[12:15], s42 offen offset:384
        s_branch L_spf_done
        """)
        a.label("L_spf_x")
        if spf == 1:
            a(f"""
            v_and_b32 v10, 15, v0
            v_lshlrev_b32 v10, 11, v10
            v_and_b32 v0, 16, v0
            v_lshl_add_u32 v0, v0, 6, v10
            s_lshl_b32 s42, s26, 15
            buffer_load_dword v0, v0, s[8:11], s42 offen offset:384
            """)
        a.label("L_spf_done")
    a("s_barrier")
    stamp(a, opt, 1)
    if m16: p1v16.emit_loop(a, opt)
    else: p1_loop32(a)
    a("s_waitcnt vmcnt(0) lgkmcnt(0)")
    a("v_mbcnt_lo_u32_b32 v0, -1, 0")
    a("v_mbcnt_hi_u32_b32 v0, -1, v0")
    stamp(a, opt, 2)
    a(f"""
    s_lshl_b32 s38, s26, 1
    s_add_u32 s38, s38, s37          ; head
    s_lshl_b32 s39, s25, 3
    s_lshl_b32 s29, s36, 2
    s_add_u32 s39, s39, s29          ; tb0
    s_lshl_b32 s40, s38, 6
    s_add_u32 s40, s40, s39          ; h*64+tb0
    v_lshlrev_b32 v1, 4, v0
    s_mov_b32 s91, 0
    v_and_b32 v60, 15, v0
    v_lshrrev_b32 v61, 4, v0
    v_lshlrev_b32 v60, 4, v60
    v_lshl_add_u32 v60, v61, 9, v60  ; g*512 + t*16
    s_cmp_eq_u32 s24, 0
    s_cbranch_scc1 L_p1_epiA
    """)
    epi_B_lds(a, m16)
    a("s_branch L_p1_done")
    a.label("L_p1_epiA")
    (epi_A16 if m16 else epi_A)(a, "p1", {"qlate": opt.get("qlate", 0)})
    a.label("L_p1_done")

def epi_B_lds(a, m16):
    qs = LOG2E / math.sqrt(32.0)
    a(f"""
    s_mov_b32 s44, {f2u(qs)}
    s_mov_b32 s45, {f2u(qs)}
    v_and_b32 v2, 0x33, v0
    v_and_b32 v3, 4, v0
    v_lshl_or_b32 v2, v3, 1, v2
    v_and_b32 v3, 8, v0
    v_lshrrev_b32 v3, 1, v3
    v_or_b32 v2, v2, v3
    v_lshlrev_b32 v2, 4, v2
    """)
    U = 256 if m16 else 1024
    if m16: a("v_mov_b32 v2, v60\nv_mov_b32 v1, v60")
    a(f"""
    s_cmp_lg_u32 s37, 0
    s_cbranch_scc1 L_p1_hd1
    s_lshl_b32 s41, s36, 14
    v_add_u32 v2, s41, v2
    v_add_u32 v3, s41, v1
    s_lshl_b32 s42, s36, 13
    s_add_u32 s42, s42, {QL0}
    v_add_u32 v4, s42, v1
    """)
    def conv(i):
        return ACCQ + 16 * i, ACCK + 16 * i, ACCV + 16 * i
    for i in range(4):
        Q, K, V = conv(i)
        cvt_inplace(a, K)
        a(f"ds_write_b128 v2, {v(K,4)} offset:{i*4096}")
        a(f"ds_write_b128 v2, {v(K+4,4)} offset:{i*4096+U}")
        cvt_inplace(a, V)
        a(f"ds_write_b128 v3, {v(V,4)} offset:{i*4096+2048}")
        a(f"ds_write_b128 v3, {v(V+4,4)} offset:{i*4096+2048+U}")
    a("s_waitcnt lgkmcnt(0)")
    a("s_barrier")
    for i in range(4):
        Q, K, V = conv(i)
        for r in range(0, 16, 2):
            a(f"v_pk_mul_f32 {v(Q+r,2)}, {v(Q+r,2)}, s[44:45]")
        cvt_inplace(a, Q)
        a(f"ds_write_b128 v4, {v(Q,4)} offset:{i*2048}")
        a(f"ds_write_b128 v4, {v(Q+4,4)} offset:{i*2048+U}")
    a("s_branch L_p1_done")
    a.label("L_p1_hd1")
    a(f"""
    s_lshl_b32 s41, s40, 11
    s_add_u32 s41, s41, {QB_OFF}
    s_add_u32 s42, s41, 4096
    s_lshl_b32 s43, s40, 12
    s_add_u32 s43, s43, {KVB_OFF}
    s_mov_b32 s91, 3
    """)
    for i in range(4):
        Q, K, V = conv(i)
        cvt_inplace(a, K)
        a(f"buffer_store_dwordx4 {v(K,4)}, v2, s[16:19], s43 offen{SC}")
        a(f"buffer_store_dwordx4 {v(K+4,4)}, v2, s[16:19], s43 offen offset:{U}{SC}")
        cvt_inplace(a, V)
        a(f"buffer_store_dwordx4 {v(V,4)}, v1, s[16:19], s43 offen offset:2048{SC}")
        a(f"buffer_store_dwordx4 {v(V+4,4)}, v1, s[16:19], s43 offen offset:{2048+U}{SC}")
        for r in range(0, 16, 2):
            a(f"v_pk_mul_f32 {v(Q+r,2)}, {v(Q+r,2)}, s[44:45]")
        cvt_inplace(a, Q)
        sq = "s41" if i < 2 else "s42"
        a(f"buffer_store_dwordx4 {v(Q,4)}, v1, s[16:19], {sq} offen offset:{(i&1)*2048}{SC}")
        a(f"buffer_store_dwordx4 {v(Q+4,4)}, v1, s[16:19], {sq} offen offset:{(i&1)*2048+U}{SC}")
        if i < 3: a("s_add_u32 s43, s43, 4096")
        if i == 1: a("s_barrier")

def p1_helper(a, opt):
    if opt.get("map", 1) == 1 and opt.get("koff", 2) == 1:
        a("""
        s_lshr_b32 s49, s3, 1
        s_lshl_b32 s49, s49, 2
        s_lshl_b32 s29, s3, 3
        s_add_u32 s49, s49, s29
        s_and_b32 s49, s49, 15
        """)
    else:
        a("""
        s_lshr_b32 s49, s3, 1
        s_xor_b32 s49, s49, s3
        s_and_b32 s49, s49, 1
        s_lshl_b32 s49, s49, 3
        """)
    a(f"""
    s_sub_u32 s36, s27, 4            ; lw
    v_lshrrev_b32 v1, 3, v0          ; r
    v_and_b32 v2, 7, v0              ; p
    v_lshrrev_b32 v3, 1, v1
    s_lshl_b32 s29, s36, 3
    v_add_u32 v5, s29, v1            ; 8lw + r
    v_and_b32 v6, 1, v3
    """)
    m16 = opt.get("m16", 1)
    if m16: a("s_and_b32 s29, s36, 1\ns_lshl_b32 s29, s29, 2\nv_lshl_add_u32 v6, v6, 1, s29")
    else: a("v_lshlrev_b32 v6, 2, v6")
    a(f"""
    v_xor_b32 v6, v6, v2
    v_lshlrev_b32 v6, 4, v6
    v_mul_u32_u24 v16, 6144, v5
    s_lshl_b32 s29, s26, 7
    v_add3_u32 v16, v16, v6, s29
    """)
    if opt.get("split"):
        a(f"""
        s_add_u32 s43, s26, {opt.get("split")}
        s_and_b32 s43, s43, 15
        s_sub_u32 s43, s43, s26
        s_lshl_b32 s43, s43, 1
        v_and_b32 v6, 64, v6
        v_mul_lo_u32 v6, v6, s43
        v_add_u32 v16, v16, v6
        """)
    a(f"""
    v_add_u32 v17, 2048, v16
    v_add_u32 v18, 4096, v16
    s_lshl_b32 s37, s36, 10          ; lw*1024
    s_add_u32 s30, s37, {X_BASE}
    s_mov_b32 s31, s37
    s_lshl_b32 s38, s49, 7           ; X soffset
    s_mul_i32 s39, s49, {64*6144}    ; W soffset
    s_add_u32 s40, s37, {X_BASE + NX*X_SLOT}
    s_add_u32 s41, s37, {W_SLOT*NW}
    s_add_u32 s42, s37, {X_BASE}
    """)
    def GX():
        for n in range(8):
            a(f"s_add_u32 m0, s30, {n*4096}")
            a(f"buffer_load_dwordx4 v{8+n}, s[8:11], s38 offen lds")
        a(f"""
        s_add_u32 s38, s38, 128
        s_and_b32 s38, s38, 2047
        s_add_u32 s30, s30, {X_SLOT}
        s_cmp_eq_u32 s30, s40
        s_cselect_b32 s30, s42, s30
        """)
    def GW():
        for sg in range(3):
            a(f"s_add_u32 m0, s31, {sg*4096}")
            a(f"buffer_load_dwordx4 v{16+sg}, s[12:15], s39 offen lds")
        a(f"""
        s_add_u32 s39, s39, {32*6144}
        s_cmp_eq_u32 s39, {1024*6144}
        s_cselect_b32 s39, 0, s39
        s_add_u32 s31, s31, {W_SLOT}
        s_cmp_eq_u32 s31, s41
        s_cselect_b32 s31, s37, s31
        """)
    def WB(n):
        a(f"s_waitcnt vmcnt({n})")
        a("s_barrier")
    GW()
    a(f"""
    s_and_b32 s29, s36, 1
    s_lshl_b32 s29, s29, 2
    v_add_u32 v4, s29, v3            ; f
    v_xor_b32 v4, v4, v2
    v_lshlrev_b32 v4, 4, v4
    v_lshl_add_u32 v8, v5, 11, v4
    """)
    for n in range(1, 8): a(f"v_add_u32 v{8+n}, {n*65536}, v8")
    GX(); GW()
    a(f"""
    v_lshlrev_b32 v19, 4, v0
    s_lshl_b32 s43, s26, 7
    s_add_u32 s43, s43, {FLG}        ; F1A[ct] - 2048
    s_lshl_b32 s46, s26, 10
    s_lshl_b32 s29, s36, 2
    s_add_u32 s46, s46, s29
    s_add_u32 s46, s46, {F1B}
    s_lshl_b32 s29, s24, 14
    s_sub_u32 s47, s46, s29
    s_add_u32 s47, s47, 16384
    v_lshl_add_u32 v20, v0, 7, s47
    s_add_u32 s47, s43, {2048-32}
    v_lshl_add_u32 v21, v0, 2, s47
    v_cmp_gt_u32 vcc, 8, v0
    s_and_b32 s47, s3, 3
    s_lshl_b32 s47, s47, 1
    s_bfe_u32 s29, s2, 0x10004
    s_add_u32 s47, s47, s29
    v_cndmask_b32 v20, v21, v20, vcc
    s_lshl_b32 s48, s47, 7
    s_add_u32 s48, s48, {F2B - 64}
    s_lshr_b32 s47, s47, 1
    s_lshl_b32 s47, s47, 7
    s_add_u32 s47, s47, {F2A - 64}
    s_cmp_lt_u32 s3, 4
    s_cselect_b32 s47, s47, s48
    s_lshl_b32 s29, s36, 11
    s_add_u32 s47, s47, s29
    v_lshl_add_u32 v21, v0, 2, s47   ; lanes 16..47
    v_cmp_gt_u32 vcc, 16, v0
    s_lshl_b32 s29, s25, 7
    s_add_u32 s46, s46, s29
    s_lshl_b32 s29, s25, 2
    s_add_u32 s47, s43, s29
    v_cndmask_b32 v20, v21, v20, vcc
    s_add_u32 s47, s47, 2048
    s_cmp_eq_u32 s24, 0
    s_cselect_b32 s46, s47, s46
    v_and_b32 v21, 1, v0
    v_lshl_add_u32 v21, v21, 14, s46
    v_cmp_gt_u32 vcc, 48, v0
    s_lshl_b32 s46, s26, 3
    s_lshl_b32 s29, s24, 2
    s_sub_u32 s47, s46, s29
    v_cndmask_b32 v20, v21, v20, vcc
    s_lshl_b32 s29, s25, 7
    s_add_u32 s47, s47, s29
    s_add_u32 s47, s47, {F2B + 4}
    v_and_b32 v22, 3, v0
    v_lshl_add_u32 v21, v22, 11, s47
    v_cmp_gt_u32 vcc, 52, v0
    s_and_b32 s29, s25, 1
    s_lshl_b32 s29, s29, 2
    s_add_u32 s46, s46, s29
    v_cndmask_b32 v20, v21, v20, vcc
    s_lshr_b32 s29, s25, 1
    s_lshl_b32 s29, s29, 7
    s_add_u32 s46, s46, s29
    s_add_u32 s46, s46, {F2A}
    v_lshl_add_u32 v21, v22, 11, s46
    v_cmp_gt_u32 vcc, 56, v0
    s_mov_b32 s92, 0
    s_nop 0
    v_cndmask_b32 v{VFA}, v21, v20, vcc
    """)
    gpf = opt.get("gpf", 3)
    if gpf:
        a(f"""
        s_lshr_b32 s46, s2, 4
        s_lshl_b32 s46, s46, 3
        s_add_u32 s46, s46, s3
        s_lshr_b32 s47, s46, 2
        s_mul_i32 s47, s47, {6*2048}
        s_and_b32 s29, s46, 1
        s_lshl_b32 s29, s29, 10
        s_add_u32 s47, s47, s29
        s_bfe_u32 s29, s46, 0x10001
        s_mul_i32 s29, s29, {8*192*2048}
        s_add_u32 s47, s47, s29
        s_add_u32 s51, s47, {gpf*192*2048 + 384}
        v_lshlrev_b32 v23, 11, v0
        """)
    def SPF():
        if not gpf: return
        _uid[0] += 1
        L = f"L_g_{_uid[0]}"
        a(f"""
        s_cmp_lg_u32 s27, 5
        s_cbranch_scc1 {L}
        s_mov_b64 exec, 0x3f
        buffer_load_dword v248, v23, s[12:15], s51 offen
        s_mov_b64 exec, -1
        s_add_u32 s51, s51, {192*2048}
        """)
        a.label(L)
    SPF()
    a("s_waitcnt vmcnt(3)")
    a("s_barrier")
    a(f"buffer_load_dword v{VSNAP}, v{VFA}, s[16:19], 0 offen sc0 sc1")
    SPF(); GX(); GW(); WB(11)
    SPF(); GW(); GX(); WB(11)
    L = only_w4(a)
    a(f"""
    v_mov_b32 v20, 1
    v_mov_b32 v21, 0
    s_mov_b64 exec, 1
    buffer_atomic_add v20, v21, s[84:87], 0 offen sc1
    s_mov_b64 exec, -1
    """)
    a.label(L)
    if m16:
        SPF(); GW(); GW(); GW()
        npeel = (2 if gpf == 2 else 1) if gpf else 0
        for _ in range(npeel):
            WB(17); GX(); GW(); WB(17); SPF(); GW()
        a(f"s_mov_b32 s28, {12 - npeel}")
        a.label("L_p1_lloop")
        WB(17); GX(); GW(); WB(17); GW()
        a(f"""
        s_sub_u32 s28, s28, 1
        s_cmp_lg_u32 s28, 0
        s_cbranch_scc1 L_p1_lloop
        """)
        WB(17); GX(); GW()
    else:
        SPF(); GW(); GX(); WB(19)
        GW(); GW(); GW(); WB(17)
        SPF(); GX(); GW(); WB(17)
        GW(); WB(17)
        tlb = opt.get("tlb", 0)
        if tlb:
            if tlb == 1: a("s_cmp_ge_u32 s2, 8\ns_cbranch_scc1 L_tlb_done")
            a(f"""
            s_cmp_lg_u32 s27, 4
            s_cbranch_scc1 L_tlb_1
            v_lshlrev_b32 v248, 19, v0
            buffer_load_dword v248, v248, s[16:19], 0 offen
            s_branch L_tlb_done
            """)
            a.label("L_tlb_1")
            a(f"""
            s_cmp_lg_u32 s27, 5
            s_cbranch_scc1 L_tlb_done
            v_lshlrev_b32 v248, 19, v0
            s_mov_b64 exec, 0xffff
            buffer_load_dword v248, v248, s[56:59], 0 offen
            s_mov_b64 exec, -1
            """)
            a.label("L_tlb_done")
        (SPF() if gpf == 2 else None); GX(); GW()
        a("s_mov_b32 s28, 10")
        a.label("L_p1_lloop")
        WB(25); GW(); WB(17); GX(); GW()
        a(f"""
        s_sub_u32 s28, s28, 1
        s_cmp_lg_u32 s28, 0
        s_cbranch_scc1 L_p1_lloop
        """)
        WB(25)
        GW()
    a(f"""
    s_lshl_b32 s29, s26, 12
    s_add_u32 s29, s29, s37
    s_add_u32 m0, s37, {WPHI_LDS}
    s_nop 0
    buffer_load_dwordx4 v19, s[20:23], s29 offen lds
    """)
    n = code_pf(a, opt, 249)
    WB(18 + n); WB(15 + n); WB(4 + n); WB(n)
    L = only_w4(a)
    a("s_mov_b32 s90, 0x400000\nv_mov_b32 v21, 0")
    a.label(L + "p")
    a(f"""
    buffer_load_dword v20, v21, s[84:87], 0 offen sc0 sc1
    s_waitcnt vmcnt(0)
    v_cmp_gt_u32 vcc, 256, v20
    s_sub_u32 s90, s90, 1
    s_cbranch_scc1 {L}
    s_cbranch_vccz {L}
    s_sleep 1
    s_branch {L}p
    """)
    a.label(L)
    p2_helper_setup(a)
    a(f"""
    v_mov_b32 v247, v3
    s_mov_b32 s91, 0
    s_cmp_lg_u32 s24, 0
    s_cbranch_scc1 L_p1_hB
    s_and_b32 s37, s27, 1            ; hd
    s_and_b32 s29, s27, 3
    s_mul_i32 s29, s29, {8192 if m16 else 6144}
    v_add_u32 v5, s29, v1
    """)
    epiA_setup(a, m16)
    a("s_barrier")
    a("s_barrier")
    K = 64; PP = [96, 112, 128]; EE = 144
    for q in range(6): a(f"ds_read_b128 {v(K+4*q,4)}, v5 offset:{KH + q*1024 + (2048 if m16 else 0)}")
    for i in range(3):
        a(f"s_waitcnt lgkmcnt({4-2*i})")
        pk_mfma(a, PP[i], K + 8 * i)
    lf = opt.get("lf", " sc1")
    for i in range(3):
        r = Rec(); softmax_pm(r, PP[i], EE, TT)
        cut = opt.get("cut", 70)
        if i == 2 and opt.get("early", 1):
            c0 = opt.get("c0", 30); cut = opt.get("cut", len(r.l))
            for x in r.l[:c0]: a(x)
            a(f"""
            s_lshl_b64 s[88:89], 1, s93
            s_mov_b64 exec, s[88:89]
            buffer_load_dword v{VPOL}, v{VFA}, s[16:19], 0 offen sc0 sc1
            s_mov_b64 exec, -1
            """)
            for x in r.l[c0:cut]: a(x)
            phi_write(a, 1 + i, PP[i], EE)
            a("s_waitcnt lgkmcnt(0)")
            a("s_barrier")
            a(f"""
            s_waitcnt vmcnt(0)
            s_mov_b64 exec, s[88:89]
            v_cmp_ne_u32 vcc, v{VPOL}, v{VSNAP}
            s_mov_b64 exec, -1
            s_nop 0
            s_cbranch_vccz L_p1_noearly
            s_mov_b32 s91, 1
            """)
            p2_c0_loads(a, lf)
            a.label("L_p1_noearly")
            a("s_branch L_p1_hdone")
        else:
            for x in r.l: a(x)
            phi_write(a, 1 + i, PP[i], EE)
            a("s_waitcnt lgkmcnt(0)")
            if i < 2: a("s_barrier")
    a.label("L_p1_hB")
    a("s_barrier")
    a.label("L_p1_hdone")

SLOT = 32768
KVF = 131072; ZF = KVF + 4096; WPH = KVF + 5120
SELL = 8; LACC = [12, 16]; QF = [24, 32]; KS = [40, 48]; VS = [56, 64]
NEGM = [72, 88]; SB = [104, 120]; OA = [136, 152]

def p2_ids(a):
    a(f"""
    s_lshl_b32 s34, s26, 1
    s_add_u32 s34, s34, 1
    s_sub_u32 s34, s34, s24
    s_and_b32 s31, s27, 3
    s_lshl_b32 s35, s25, 3
    s_lshl_b32 s29, s31, 1
    s_add_u32 s35, s35, s29
    s_lshl_b32 s40, s34, 18
    s_add_u32 s40, s40, {KVB_OFF}
    v_lshlrev_b32 v1, 4, v0
    """)

def p2_compute(a, opt):
    lf = opt.get("lf", " sc1")
    NT = 8
    stamp(a, opt, 3)
    p2_ids(a)
    a(f"""
    s_lshl_b32 s47, s35, 5
    s_add_u32 s47, s47, s34
    s_lshl_b32 s47, s47, 11
    s_add_u32 s47, s47, {O_OFF + (4<<20)}
    s_waitcnt lgkmcnt(0)
    v_mov_b32 v4, 0xdddd
    v_and_b32 v2, 4, v0
    v_cmp_eq_u32 vcc, 0, v2
    v_mov_b32 v2, 0
    v_mov_b32 v3, 0x3f803f80
    v_cndmask_b32 v{SELL}, v2, v3, vcc
    v_cndmask_b32 v{SELL+2}, v3, v2, vcc
    v_mov_b32 v{SELL+1}, v{SELL}
    v_mov_b32 v{SELL+3}, v{SELL+2}
    v_mov_b32 v2, v1
    """)
    if opt.get("m16", 1):
        a("""
        v_and_b32 v22, 0x23, v0
        v_and_b32 v20, 4, v0
        v_lshl_or_b32 v22, v20, 2, v22
        v_and_b32 v20, 0x18, v0
        v_lshrrev_b32 v20, 1, v20
        v_or_b32 v22, v22, v20
        v_lshlrev_b32 v22, 4, v22
        """)
    else: a("v_mov_b32 v22, v1")
    a(f"""
    v_mov_b32 v20, v22
    v_xor_b32 v23, v22, v1
    s_lshl_b32 s29, s31, 12
    s_add_u32 s29, s29, {QL0}
    v_add_u32 v5, s29, v1
    s_lshl_b32 s49, s26, 10
    s_lshl_b32 s29, s25, 7
    s_add_u32 s49, s49, s29
    s_lshl_b32 s29, s36, 3
    s_add_u32 s49, s49, s29
    s_add_u32 s49, s49, {F1C}
    s_lshl_b32 s48, s26, 7
    s_lshl_b32 s29, s25, 2
    s_add_u32 s48, s48, s29
    s_add_u32 s48, s48, {F1A}        ; F1A[ct][tt]
    s_cmp_eq_u32 s24, 0
    s_cselect_b32 s49, s48, s49
    s_cselect_b32 s90, 1, s91
    s_mov_b32 s91, 0
    s_barrier
    """)
    stamp(a, opt, 5)
    def kread(st, addr, j): return [f"ds_read_b128 {v(KS[st]+4*u,4)}, {dict(v2='v20', v3='v21')[addr]} offset:{j*4096+u*1024}" for u in range(2)]
    def vread(st, addr, j): return [f"ds_read_b128 {v(VS[st]+4*u,4)}, {addr} offset:{j*4096+2048+u*1024}" for u in range(2)]
    for b in range(2):
        for u in range(2):
            a(f"ds_read_b128 {v(QF[b]+4*u,4)}, v5 offset:{b*2048+u*1024}")
    for r in kread(0, "v2", 0) + vread(0, "v2", 0) + kread(1, "v2", 1): a(r)
    for b in range(2):
        for r in range(16): a(f"v_mov_b32 v{OA[b]+r}, 0")
        for r in range(4): a(f"v_mov_b32 v{LACC[b]+r}, 0")
    for r in range(4, 8): a(f"v_mov_b32 v{VS[1]+r}, 0")
    a("s_waitcnt lgkmcnt(4)")
    for b in range(2):
        a(f"v_mfma_f32_32x32x16_bf16 {v(SB[b],16)}, {v(KS[0],4)}, {v(QF[b],4)}, 0")
        a(f"v_mfma_f32_32x32x16_bf16 {v(SB[b],16)}, {v(KS[0]+4,4)}, {v(QF[b]+4,4)}, {v(SB[b],16)}")
    def rowmax(S, dst, init=True):
        if init:
            a(f"v_max3_f32 v{dst}, v{S}, v{S+1}, v{S+2}")
            for r in range(3, 15, 2): a(f"v_max3_f32 v{dst}, v{dst}, v{S+r}, v{S+r+1}")
            a(f"v_max_f32 v{dst}, v{dst}, v{S+15}")
        else:
            for r in range(0, 16, 2): a(f"v_max3_f32 v{dst}, v{dst}, v{S+r}, v{S+r+1}")
    def finish_max(dst, tmp, NM):
        a(f"v_mov_b32 v{tmp}, v{dst}")
        a(f"v_permlane32_swap_b32 v{dst}, v{tmp}")
        a(f"v_max_f32 v{dst}, v{dst}, v{tmp}")
        for r in range(16): a(f"v_sub_f32 v{NM+r}, 0, v{dst}")
    rowmax(SB[0], 6); finish_max(6, 7, NEGM[0])
    a(f"v_mfma_f32_32x32x16_bf16 {v(SB[0],16)}, {v(KS[0],4)}, {v(QF[0],4)}, {v(NEGM[0],16)}")
    a(f"v_mfma_f32_32x32x16_bf16 {v(SB[0],16)}, {v(KS[0]+4,4)}, {v(QF[0]+4,4)}, {v(SB[0],16)}")
    rowmax(SB[1], 6); finish_max(6, 7, NEGM[1])
    for r in range(8, 16): a(f"v_mov_b32 v{SB[1]+r}, 0")
    a("s_mov_b32 s28, 0\ns_mov_b64 vcc, s[90:91]")
    a.raw(".p2align 6")
    a.label("L_p2_loop", keep_hist=True)
    start = len(a.lines)
    pat = "ePeeelreMeeeNweeeVeeeeeLr"
    for n in range(2 * NT):
        j = n >> 1; b = n & 1
        A = SB[b]; B = SB[b ^ 1]
        jprev = j - 1 if b == 0 else j
        jnext = j if b == 0 else j + 1
        if b == 0: R = vread((j + 1) & 1, "v2" if j + 1 < NT else "v3", (j + 1) % NT)
        else: R = kread(j & 1, "v2" if j + 2 < NT else "v3", (j + 2) % NT)
        e = rr = 0
        for ch in pat:
            if ch == "e": a(f"v_exp_f32 v{A+e}, v{A+e}"); e += 1
            elif ch == "P":
                a(f"v_smfmac_f32_32x32x32_bf16 {v(OA[b^1],16)}, {v(VS[jprev&1]+4,4)}, {v(B+8,8)}, v4")
                if n == 2 * NT - 3: a("s_barrier")
            elif ch == "l": a(f"v_smfmac_f32_16x16x64_bf16 {v(LACC[b^1],4)}, {v(SELL,4)}, {v(B+8,8)}, v4")
            elif ch == "L": a(f"v_smfmac_f32_16x16x64_bf16 {v(LACC[b],4)}, {v(SELL,4)}, {v(A,8)}, v4")
            elif ch == "w":
                if b == 0: a("s_waitcnt lgkmcnt(1)")
                elif n == opt.get("pubn", 1):
                    a("s_cbranch_vccnz L_p2_pub")
                    a.label("L_p2_pubret", keep_hist=True)
                else: a("s_nop 0")
            elif ch == "M":
                a(f"v_mfma_f32_32x32x16_bf16 {v(B,16)}, {v(KS[jnext&1],4)}, {v(QF[b^1],4)}, {v(NEGM[b^1],16)}")
                if n == 2 * NT - 1: a("v_mov_b32 v2, v3")
            elif ch == "N": a(f"v_mfma_f32_32x32x16_bf16 {v(B,16)}, {v(KS[jnext&1]+4,4)}, {v(QF[b^1]+4,4)}, {v(B,16)}")
            elif ch == "V":
                a(f"v_smfmac_f32_32x32x32_bf16 {v(OA[b],16)}, {v(VS[j&1],4)}, {v(A,8)}, v4")
                if n == 2 * NT - 1: a("s_add_u32 s28, s28, 1")
                if n == 0: a(f"v_add_u32 v3, {SLOT}, v2")
                if n == 1: a(f"v_and_b32 v3, {4*SLOT-1}, v3")
                if n == 2: a("v_xor_b32 v21, v23, v3")
                if n == 2 * NT - 2: a("v_mov_b32 v20, v21")
            elif ch == "r": a(R[rr]); rr += 1
    a("s_cmp_lt_u32 s28, 8")
    a("s_cbranch_scc1 L_p2_loop")
    assert check_loop(a.lines[start:]) == (0, 0)
    a("s_nop 1")
    a(f"v_smfmac_f32_32x32x32_bf16 {v(OA[1],16)}, {v(VS[1]+4,4)}, {v(SB[1]+8,8)}, v4")
    a(f"v_smfmac_f32_16x16x64_bf16 {v(LACC[1],4)}, {v(SELL,4)}, {v(SB[1]+8,8)}, v4")
    stamp(a, opt, 6)
    O0 = OA[0]; O1 = OA[1]; L0r = LACC[0]
    a("s_mov_b32 s48, 0")
    a.label("L_p2_blk")
    a(f"""
    s_mov_b32 s36, 0x5d800000        ; 2^60
    v_cmp_nlt_f32 vcc, v{L0r}, s36
    s_cmp_lg_u64 vcc, 0
    s_cbranch_scc1 L_p2_slow
    """)
    a.label("L_p2_fin", keep_hist=True)
    a(f"v_rcp_f32 v{L0r}, v{L0r}")
    for r in range(0, 16, 2):
        a(f"v_pk_mul_f32 {v(O0+r,2)}, {v(O0+r,2)}, {v(L0r,2)} op_sel_hi:[1,0]")
    cvt_inplace(a, O0)
    a(f"buffer_store_dwordx4 {v(O0,4)}, v1, s[16:19], s47 offen{SC}")
    a(f"buffer_store_dwordx4 {v(O0+4,4)}, v1, s[16:19], s47 offen offset:1024{SC}")
    a(f"""
    s_cmp_lg_u32 s48, 0
    s_cbranch_scc1 L_p2_out
    s_mov_b32 s48, 1
    s_add_u32 s47, s47, 65536
    """)
    for r in range(16): a(f"v_mov_b32 v{O0+r}, v{O1+r}")
    a(f"v_mov_b32 v{L0r}, v{LACC[1]}")
    for r in range(8): a(f"v_mov_b32 v{QF[0]+r}, v{QF[1]+r}")
    a("s_branch L_p2_blk")
    a.label("L_p2_pub")
    a(f"""
    s_waitcnt vmcnt(0)
    v_mov_b32 v6, 1
    v_lshlrev_b32 v7, 2, v0
    s_mov_b64 exec, vcc
    buffer_atomic_add v6, v7, s[16:19], s49 offen sc1
    s_mov_b64 exec, -1
    s_mov_b64 vcc, 0
    s_nop 4
    s_branch L_p2_pubret
    """)
    S0 = SB[0]; Q0 = QF[0]; NM = NEGM[0]
    a.label("L_p2_slow")
    a(f"""
    s_waitcnt lgkmcnt(0)
    s_mov_b32 s36, s40
    s_mov_b32 s28, 0
    v_mov_b32 v6, 0xff800000
    """)
    a.label("L_p2_slow1")
    a(f"""
    buffer_load_dwordx4 {v(KS[0],4)}, v22, s[16:19], s36 offen{lf}
    buffer_load_dwordx4 {v(KS[0]+4,4)}, v22, s[16:19], s36 offen offset:1024{lf}
    s_waitcnt vmcnt(0)
    v_mfma_f32_32x32x16_bf16 {v(S0,16)}, {v(KS[0],4)}, {v(Q0,4)}, 0
    v_mfma_f32_32x32x16_bf16 {v(S0,16)}, {v(KS[0]+4,4)}, {v(Q0+4,4)}, {v(S0,16)}
    """)
    rowmax(S0, 6, init=False)
    a(f"""
    s_add_u32 s36, s36, 4096
    s_add_u32 s28, s28, 1
    s_cmp_lt_u32 s28, 64
    s_cbranch_scc1 L_p2_slow1
    """)
    finish_max(6, 7, NM)
    for r in range(16): a(f"v_mov_b32 v{O0+r}, 0")
    for r in range(4): a(f"v_mov_b32 v{L0r+r}, 0")
    a("s_mov_b32 s36, s40\ns_mov_b32 s28, 0")
    a.label("L_p2_slow2")
    a(f"""
    buffer_load_dwordx4 {v(KS[0],4)}, v22, s[16:19], s36 offen{lf}
    buffer_load_dwordx4 {v(KS[0]+4,4)}, v22, s[16:19], s36 offen offset:1024{lf}
    buffer_load_dwordx4 {v(VS[0],4)}, v1, s[16:19], s36 offen offset:2048{lf}
    buffer_load_dwordx4 {v(VS[0]+4,4)}, v1, s[16:19], s36 offen offset:3072{lf}
    s_waitcnt vmcnt(0)
    v_mfma_f32_32x32x16_bf16 {v(S0,16)}, {v(KS[0],4)}, {v(Q0,4)}, {v(NM,16)}
    v_mfma_f32_32x32x16_bf16 {v(S0,16)}, {v(KS[0]+4,4)}, {v(Q0+4,4)}, {v(S0,16)}
    """)
    for r in range(16): a(f"v_exp_f32 v{S0+r}, v{S0+r}")
    a(f"""
    v_smfmac_f32_32x32x32_bf16 {v(O0,16)}, {v(VS[0],4)}, {v(S0,8)}, v4
    v_smfmac_f32_16x16x64_bf16 {v(L0r,4)}, {v(SELL,4)}, {v(S0,8)}, v4
    v_smfmac_f32_32x32x32_bf16 {v(O0,16)}, {v(VS[0]+4,4)}, {v(S0+8,8)}, v4
    v_smfmac_f32_16x16x64_bf16 {v(L0r,4)}, {v(SELL,4)}, {v(S0+8,8)}, v4
    s_nop 15
    s_add_u32 s36, s36, 4096
    s_add_u32 s28, s28, 1
    s_cmp_lt_u32 s28, 64
    s_cbranch_scc1 L_p2_slow2
    s_nop 15
    s_branch L_p2_fin
    """)
    a.label("L_p2_out")

def p2_helper_setup(a):
    p2_ids(a)
    a(f"""
    s_lshl_b32 s41, s31, 13          ; hw*8192
    s_add_u32 s40, s40, s41
    s_mov_b32 s43, s41
    s_mov_b32 s93, s25
    s_mov_b32 s44, {f2u(LOG2E)}
    s_mov_b32 s45, {f2u(LOG2E)}
    s_lshr_b32 s50, s2, 3
    s_lshl_b32 s50, s50, 16
    s_lshl_b32 s37, s31, 14
    s_add_u32 s50, s50, s37
    v_lshlrev_b32 v3, 7, v0
    s_lshl_b32 s38, s26, 1
    s_add_u32 s38, s38, 1
    s_lshl_b32 s38, s38, 6
    s_add_u32 s38, s38, s35
    s_lshl_b32 s38, s38, 11
    s_add_u32 s38, s38, {QB_OFF}
    """)

def p2_c0_loads(a, lf):
    a("s_lshl_b32 s42, s93, 15\ns_add_u32 s42, s42, s40")
    for hf in range(2):
        a(f"s_add_u32 m0, s43, {hf*4096}")
        a(f"s_add_u32 s29, s42, {hf*4096}")
        for n in range(4):
            a(f"buffer_load_dwordx4 v1, s[16:19], s29 offen offset:{n*1024}{lf} lds")
    a(f"""
    s_lshl_b32 s29, s31, 12
    s_add_u32 m0, s29, {QL0}
    s_nop 0
    """)
    for n in range(4):
        a(f"buffer_load_dwordx4 v1, s[16:19], s38 offen offset:{n*1024}{lf} lds")

def p2_helper(a, opt):
    lf = opt.get("lf", " sc1")
    P0 = 8; QAF = 160; ZP0 = 88; JUNK = 96
    WP = 8; KVR = 16; ZR = 32; PQ = 48; EP = 104; T = 120; NUM = 136; DEN = 64
    def advance():
        a(f"""
        s_add_u32 s93, s93, 1
        s_and_b32 s93, s93, 7
        s_add_u32 s43, s43, {SLOT}
        s_and_b32 s43, s43, {4*SLOT-1}
        """)
    def chunk(single=False):
        need_chunk(a, single)
        a("s_lshl_b32 s42, s93, 15\ns_add_u32 s42, s42, s40")
        for hf in range(2):
            a(f"s_add_u32 m0, s43, {hf*4096}")
            a(f"s_add_u32 s29, s42, {hf*4096}")
            for n in range(4):
                a(f"buffer_load_dwordx4 v1, s[16:19], s29 offen offset:{n*1024}{lf} lds")
        advance()
    def PF():
        a(f"buffer_load_dword v{JUNK}, v247, s[52:55], s50 offen")
        a(f"s_add_u32 s50, s50, 8192")
    def WB(n):
        a(f"s_waitcnt vmcnt({n})")
        a("s_barrier")
    a("s_cmp_lg_u32 s24, 0\ns_cbranch_scc1 L_p2_hB")
    stamp(a, opt, 3)
    a("s_cmp_lg_u32 s91, 0\ns_cbranch_scc1 L_p2_c0done")
    need_chunk(a, True)
    p2_c0_loads(a, lf)
    a.label("L_p2_c0done")
    advance()
    stamp(a, opt, 4)
    WB(0)
    chunk()
    WB(0)
    chunk(); chunk(); PF()
    WB(9)
    chunk(); PF()
    WB(10)
    chunk()
    WB(9)
    chunk()
    WB(8)
    chunk()
    WB(8)
    WB(0)
    a("s_branch L_p2_hdone")
    a.label("L_p2_hB")
    a(f"""
    v_add_u32 v2, s41, v1
    s_lshl_b32 s42, s25, 15
    s_add_u32 s42, s42, s40
    s_add_u32 s46, s42, 4096
    s_barrier
    """)
    stamp(a, opt, 3)
    a("s_setprio 2")
    for q in range(8): a(f"ds_read_b128 {v(8+4*q,4)}, v2 offset:{q*1024}")
    hb = opt.get("hb", 8)
    for q in range(8):
        if q == hb: a("s_barrier")
        a(f"s_waitcnt lgkmcnt({7-q})")
        a(f"buffer_store_dwordx4 {v(8+4*q,4)}, v1, s[16:19], {'s42' if q < 4 else 's46'} offen offset:{(q&3)*1024}{SC}")
    advance()
    stamp(a, opt, 1)
    if hb >= 8: a("s_barrier")
    a("s_waitcnt vmcnt(0)")
    publish(a, 48, all_helpers=True)
    stamp(a, opt, 4)
    chunk(True)
    stamp(a, opt, 6)
    a("s_waitcnt vmcnt(0)")
    stamp(a, opt, 9)
    WB(0)
    stamp(a, opt, 5)
    chunk(); chunk(); PF()
    WB(9)
    poll(a, 8, 8, 4)
    chunk(); PF()
    WB(10)
    chunk()
    a(f"""
    s_lshl_b32 s34, s26, 1
    s_and_b32 s29, s25, 1
    s_add_u32 s34, s34, s29
    s_and_b32 s35, s25, 6
    s_lshl_b32 s35, s35, 3
    s_lshl_b32 s29, s31, 2
    s_add_u32 s35, s35, s29
    s_lshl_b32 s38, s34, 6
    s_add_u32 s38, s38, s35
    s_lshl_b32 s38, s38, 11
    s_add_u32 s38, s38, {QA_OFF}
    s_add_u32 s39, s38, 4096
    s_lshl_b32 s46, s35, 5
    s_add_u32 s46, s46, s34
    s_lshl_b32 s46, s46, 11
    s_add_u32 s46, s46, {O_OFF}
    s_lshl_b32 s36, s34, 16
    s_add_u32 s36, s36, {KVP_OFF}
    s_lshl_b32 s29, s31, 11
    s_add_u32 s36, s36, s29
    """)
    for t in range(8):
        a(f"buffer_load_dwordx4 {v(P0+8*t,4)}, v1, s[16:19], s36 offen{lf}")
        a(f"buffer_load_dwordx4 {v(P0+8*t+4,4)}, v1, s[16:19], s36 offen offset:1024{lf}")
        if t < 7: a("s_add_u32 s36, s36, 8192")
    a(f"""
    s_and_b32 s37, s31, 1
    s_lshl_b32 s37, s37, 10
    s_lshl_b32 s36, s34, 11
    s_add_u32 s36, s36, s37
    s_add_u32 m0, s37, {WPH}
    v_lshlrev_b32 v6, 2, v0
    buffer_load_dwordx4 v1, s[20:23], s36 offen lds
    s_lshl_b32 s36, s34, 11
    s_add_u32 s36, s36, {ZP_OFF}
    """)
    for t in range(8):
        a(f"buffer_load_dword v{ZP0+t}, v6, s[16:19], s36 offen offset:{t*256}{lf}")
    for q in range(8):
        a(f"buffer_load_dwordx4 {v(QAF+4*q,4)}, v1, s[16:19], {'s38' if q < 4 else 's39'} offen offset:{(q&3)*1024}{lf}")
    a("s_waitcnt vmcnt(8)")
    for t in range(1, 8):
        for r in range(0, 8, 2):
            a(f"v_pk_add_f32 {v(P0+r,2)}, {v(P0+r,2)}, {v(P0+8*t+r,2)}")
    for r in range(4): a(f"v_cvt_pk_bf16_f32 v{P0+r}, v{P0+2*r}, v{P0+2*r+1}")
    a(f"""
    s_lshl_b32 s36, s31, 10
    s_add_u32 s36, s36, {KVF}
    v_add_u32 v6, s36, v1
    ds_write_b128 v6, {v(P0,4)}
    """)
    for t in range(1, 8): a(f"v_add_f32 v{ZP0}, v{ZP0}, v{ZP0+t}")
    a(f"""
    v_cvt_pk_bf16_f32 v{ZP0}, v{ZP0}, v{ZP0}
    v_lshrrev_b32 v6, 4, v0
    v_lshlrev_b32 v6, 5, v6
    v_and_b32 v7, 4, v0
    v_lshl_add_u32 v6, v7, 2, v6
    v_and_b32 v7, 8, v0
    v_add_u32 v6, v6, v7
    v_and_b32 v7, 3, v0
    v_lshl_add_u32 v6, v7, 1, v6
    v_add_u32 v6, {ZF}, v6
    ds_write_b16 v6, v{ZP0}
    v_mov_b32 v7, 0
    ds_write_b16 v6, v7 offset:128
    v_lshrrev_b32 v5, 5, v0          ; h
    v_bfe_u32 v6, v0, 2, 2
    v_lshl_add_u32 v6, v5, 2, v6     ; 4h+r
    v_bfe_u32 v7, v0, 4, 1
    v_lshlrev_b32 v7, 5, v7
    v_lshl_add_u32 v6, v6, 6, v7
    v_and_b32 v7, 3, v0
    v_lshl_add_u32 v6, v7, 3, v6
    v_add_u32 v2, {WPH}, v6
    v_lshrrev_b32 v6, 2, v0
    v_lshrrev_b32 v7, 4, v0
    v_xor_b32 v6, v6, v7
    v_and_b32 v6, 1, v6
    v_cmp_eq_u32 vcc, 0, v6
    v_lshlrev_b32 v5, 4, v5
    v_add_u32 v5, {ZF}, v5
    v_mov_b32 v6, {ZF+128}
    v_cndmask_b32 v7, v6, v5, vcc
    v_add_u32 v6, {KVF}, v1
    """)
    a("s_waitcnt lgkmcnt(0)")
    a("s_barrier")
    chunk()
    for u in range(2):
        for b in range(2):
            a(f"ds_read_b64_tr_b16 {v(WP+4*u+2*b,2)}, v2 offset:{((8*u+16*b) if opt.get('m16', 1) else (16*u+8*b))*64}")
    for f in range(4): a(f"ds_read_b128 {v(KVR+4*f,4)}, v6 offset:{f*1024}")
    for f in range(4): a(f"ds_read_b128 {v(ZR+4*f,4)}, v7 offset:{f*32}")
    a("s_waitcnt vmcnt(8) lgkmcnt(0)")
    def oa_block(b):
        a(f"v_mfma_f32_32x32x16_bf16 {v(PQ,16)}, {v(WP,4)}, {v(QAF+8*b,4)}, 0")
        a(f"v_mfma_f32_32x32x16_bf16 {v(PQ,16)}, {v(WP+4,4)}, {v(QAF+8*b+4,4)}, {v(PQ,16)}")
        softmax_pm(a, PQ, EP, T)
        for f in range(4):
            F = (EP if f < 2 else PQ) + 4 * (f & 1)
            a(f"v_mfma_f32_32x32x16_bf16 {v(NUM,16)}, {v(KVR+4*f,4)}, {v(F,4)}, {'0' if f == 0 else v(NUM,16)}")
            a(f"v_mfma_f32_16x16x32_bf16 {v(DEN,4)}, {v(ZR+4*f,4)}, {v(F,4)}, {'0' if f == 0 else v(DEN,4)}")
        a(f"""
        v_add_f32 v{DEN}, {f2u(1e-6)}, v{DEN}
        v_rcp_f32 v{DEN}, v{DEN}
        """)
        for r in range(0, 16, 2):
            a(f"v_pk_mul_f32 {v(NUM+r,2)}, {v(NUM+r,2)}, {v(DEN,2)} op_sel_hi:[1,0]")
        cvt_inplace(a, NUM)
        a(f"buffer_store_dwordx4 {v(NUM,4)}, v1, s[16:19], s46 offen{SC}")
        a(f"buffer_store_dwordx4 {v(NUM+4,4)}, v1, s[16:19], s46 offen offset:1024{SC}")
        a(f"s_add_u32 s46, s46, 65536")
    a("s_mov_b32 s28, 0")
    a.label("L_p2_oa")
    oa_block(0)
    for r in range(0, 24, 2): a(f"v_pk_mov_b32 {v(QAF+r,2)}, {v(QAF+8+r,2)}, {v(QAF+8+r,2)} op_sel:[0,1]")
    a(f"""
    s_add_u32 s28, s28, 1
    s_cmp_eq_u32 s28, 2
    s_cbranch_scc0 L_p2_oa1
    s_barrier
    """)
    chunk()
    a.label("L_p2_oa1")
    a("s_cmp_lt_u32 s28, 4\ns_cbranch_scc1 L_p2_oa")
    WB(12)
    WB(0)
    publish(a, 56, n=4)
    a("s_setprio 0")
    a.label("L_p2_hdone")

NS = 5
ACC3 = 72
OS = [8, 16, 24, 32]; WSR = [40, 48, 56, 64]
def p3_ids(a):
    a(f"""
    s_lshr_b32 s24, s3, 2            ; branch
    s_and_b32 s25, s3, 3
    s_lshl_b32 s25, s25, 2
    s_bfe_u32 s29, s2, 0x20003
    s_add_u32 s25, s25, s29
    s_lshr_b32 s26, s2, 5
    """)

def p3_compute(a, opt):
    a("s_waitcnt lgkmcnt(0)")
    p3_ids(a)
    a(f"""
    s_lshr_b32 s36, s27, 1           ; tw
    s_and_b32 s37, s27, 1            ; cw
    v_lshlrev_b32 v1, 4, v0
    s_lshl_b32 s29, s36, 13
    v_add_u32 v1, s29, v1
    v_lshrrev_b32 v2, 5, v0          ; h
    v_bfe_u32 v3, v0, 2, 2           ; r
    v_lshl_add_u32 v4, v2, 2, v3
    v_lshlrev_b32 v4, 8, v4
    s_lshl_b32 s29, s37, 1
    v_xor_b32 v3, s29, v3
    v_lshl_add_u32 v4, v3, 6, v4
    v_bfe_u32 v5, v0, 4, 1
    v_lshl_add_u32 v4, v5, 5, v4
    v_and_b32 v5, 3, v0
    v_lshl_add_u32 v4, v5, 3, v4
    v_add_u32 v2, 16384, v4
    v_xor_b32 v3, 64, v2
    s_mov_b32 s30, 0
    v_mov_b32 v4, v1
    v_mov_b32 v5, v2
    v_mov_b32 v6, v3
    s_mov_b32 s28, 16
    """)
    for r in range(ACC3, ACC3 + 64): a(f"v_mov_b32 v{r}, 0")
    def reads(st, c):
        O = OS[st]; W = WSR[st]
        o = [f"ds_read_b128 {v(O+4*i,4)}, v4 offset:{i*4096+c*1024}" for i in range(2)]
        w = [f"ds_read_b64_tr_b16 {v(W+4*cb+2*b,2)}, v{5+cb} offset:{(16*c+8*b)*256}" for cb in range(2) for b in range(2)]
        return [w[0], w[1], o[0], o[1], w[2], w[3]]
    def mf(st):
        O = OS[st]; W = WSR[st]
        return [f"v_mfma_f32_32x32x16_bf16 {v(ACC3+16*(2*i+cb),16)}, {v(W+4*cb,4)}, {v(O+4*i,4)}, {v(ACC3+16*(2*i+cb),16)}"
                for cb in range(2) for i in range(2)]
    a("s_waitcnt vmcnt(0)")
    stamp(a, opt, 7)
    a("s_barrier")
    stamp(a, opt, 8)
    a("s_barrier")
    stamp(a, opt, 9)
    for r in reads(0, 0) + reads(1, 1): a(r)
    a.raw(".p2align 6")
    a.label("L_p3_loop", keep_hist=True)
    start = len(a.lines)
    for c in range(4):
        M = mf(c); R = reads((c + 2) & 3, (c + 2) & 3)
        a("s_waitcnt lgkmcnt(6)")
        a(M[0])
        if c == 2: a("s_barrier")
        a(R[0]); a(R[1])
        a(M[1])
        a(R[2]); a(R[3])
        a(M[2])
        a(R[4]); a(R[5])
        if c == 1:
            a(f"""
            s_add_u32 s30, s30, {SLOT}
            s_cmp_eq_u32 s30, {SLOT*NS}
            s_cselect_b32 s30, 0, s30
            """)
        a(M[3])
        if c == 1:
            a("""
            v_add_u32 v4, s30, v1
            v_add_u32 v5, s30, v2
            v_add_u32 v6, s30, v3
            """)
        if c == 3:
            a("s_sub_u32 s28, s28, 1")
            a("s_cmp_lg_u32 s28, 0")
    a("s_cbranch_scc1 L_p3_loop")
    assert check_loop(a.lines[start:]) == (0, 0)
    a("s_waitcnt lgkmcnt(0)")
    stamp(a, opt, 10)
    RS = 144
    a(f"""
    s_lshl_b32 s38, s25, 7
    s_lshl_b32 s29, s36, 6
    s_add_u32 s38, s38, s29          ; token0
    s_lshl_b32 s38, s38, 12
    s_lshl_b32 s29, s24, 11
    s_add_u32 s38, s38, s29
    s_lshl_b32 s29, s26, 8
    s_add_u32 s38, s38, s29
    s_lshl_b32 s29, s37, 7
    s_add_u32 s38, s38, s29
    s_mul_i32 s29, s27, {64*RS}
    s_add_u32 s29, s29, {2*SLOT}
    v_and_b32 v1, 31, v0
    v_mul_u32_u24 v1, {RS}, v1
    v_lshrrev_b32 v2, 5, v0
    v_lshl_add_u32 v1, v2, 3, v1
    v_add_u32 v1, s29, v1
    v_lshrrev_b32 v2, 3, v0
    v_and_b32 v3, 7, v0
    v_mul_u32_u24 v4, {RS}, v2
    v_lshl_add_u32 v4, v3, 4, v4
    v_add_u32 v4, s29, v4
    v_lshlrev_b32 v2, 12, v2
    v_lshl_add_u32 v2, v3, 4, v2
    """)
    for i in range(2):
        for cb in range(2):
            D = ACC3 + 16 * (2 * i + cb)
            for r in range(8): a(f"v_cvt_pk_bf16_f32 v{D+r}, v{D+2*r}, v{D+2*r+1}")
            for g in range(4):
                a(f"ds_write_b64 v1, {v(D+2*g,2)} offset:{i*32*RS + cb*64 + g*16}")
        for q in range(4):
            a(f"ds_read_b128 {v(8+16*i+4*q,4)}, v4 offset:{(i*32+q*8)*RS}")
    for i in range(2):
        for q in range(4):
            a(f"s_waitcnt lgkmcnt({(3-q) + (12 if i == 0 else 0)})")
            a(f"buffer_store_dwordx4 {v(8+16*i+4*q,4)}, v2, s[56:59], s38 offen{SC}")
            a(f"s_add_u32 s38, s38, {8*4096}")

def p3_compute16(a, opt):
    OSET = [8, 24]; WSET = [40, 56]
    a("s_waitcnt lgkmcnt(0)")
    p3_ids(a)
    a(f"""
    s_lshr_b32 s36, s27, 1           ; tw
    s_and_b32 s37, s27, 1            ; cw
    v_and_b32 v7, 15, v0             ; t
    v_lshrrev_b32 v6, 4, v0          ; g
    v_lshlrev_b32 v1, 4, v7
    v_lshl_add_u32 v1, v6, 9, v1
    s_lshl_b32 s29, s36, 13
    v_add_u32 v1, s29, v1
    v_bfe_u32 v3, v0, 2, 3           ; 4(g&1) + r
    v_lshrrev_b32 v2, 5, v0
    v_lshl_add_u32 v2, v2, 4, v3     ; row = 16(g>>1) + 4(g&1) + r
    v_lshlrev_b32 v2, 8, v2
    s_lshl_b32 s29, s37, 2
    v_xor_b32 v3, s29, v3
    v_lshl_add_u32 v2, v3, 5, v2
    v_and_b32 v3, 3, v0
    v_lshl_add_u32 v2, v3, 3, v2
    v_add_u32 v2, 16384, v2
    s_mov_b32 s30, 0
    v_mov_b32 v3, v1
    v_mov_b32 v4, v2
    v_xor_b32 v5, 32, v2
    v_xor_b32 v6, 64, v2
    v_xor_b32 v7, 0x60, v2
    s_mov_b32 s28, 16
    """)
    for r in range(ACC3, ACC3 + 64): a(f"v_mov_b32 v{r}, 0")
    def reads(st, sp):
        O = OSET[st]; W = WSET[st]
        o = [f"ds_read_b128 {v(O+4*i,4)}, v3 offset:{(i>>1)*4096 + sp*2048 + (i&1)*256}" for i in range(4)]
        w = [[f"ds_read_b64_tr_b16 {v(W+4*cb+2*b,2)}, v{4+cb} offset:{(32*sp+8*b)*256}" for b in range(2)] for cb in range(4)]
        return w[0] + [o[0], o[1]] + [o[2], o[3]] + w[1] + w[2] + w[3]
    def mf(st):
        O = OSET[st]; W = WSET[st]
        return [f"v_mfma_f32_16x16x32_bf16 {v(ACC3+16*i+4*cb,4)}, {v(W+4*cb,4)}, {v(O+4*i,4)}, {v(ACC3+16*i+4*cb,4)}"
                for cb in range(4) for i in range(4)]
    a("s_waitcnt vmcnt(0)")
    stamp(a, opt, 7)
    a("s_barrier")
    stamp(a, opt, 8)
    a("s_barrier")
    stamp(a, opt, 9)
    for r in reads(0, 0): a(r)
    a.raw(".p2align 6")
    a.label("L_p3_loop", keep_hist=True)
    start = len(a.lines)
    for sp in range(2):
        M = mf(sp); R = reads(sp ^ 1, sp ^ 1)
        extra = {n: [] for n in range(16)}
        for k, r in enumerate(R): extra[1 + k].append(r)
        if sp == 1: extra[0].append("s_barrier")
        if sp == 0:
            extra[0] += [f"s_add_u32 s30, s30, {SLOT}", f"s_cmp_eq_u32 s30, {SLOT*NS}"]
            extra[1].append("s_cselect_b32 s30, 0, s30")
            extra[13] += ["v_add_u32 v3, s30, v1", "v_add_u32 v4, s30, v2"]
            extra[14] += ["v_xor_b32 v5, 32, v4", "v_xor_b32 v6, 64, v4"]
            extra[15] += ["v_xor_b32 v7, 0x60, v4"]
        else:
            extra[14] += ["s_sub_u32 s28, s28, 1", "s_cmp_lg_u32 s28, 0"]
        waits = {0: 6, 4: 4 + 3, 8: 2 + 7, 12: 0 + 11}
        for n in range(16):
            if n in waits: a(f"s_waitcnt lgkmcnt({waits[n]})")
            a(M[n])
            for x in extra[n]: a(x)
    a("s_cbranch_scc1 L_p3_loop")
    assert check_loop(a.lines[start:]) == (0, 0)
    a("s_waitcnt lgkmcnt(0)")
    stamp(a, opt, 10)
    RS = 144
    a(f"""
    s_lshl_b32 s38, s25, 7
    s_lshl_b32 s29, s36, 6
    s_add_u32 s38, s38, s29          ; token0
    s_lshl_b32 s38, s38, 12
    s_lshl_b32 s29, s24, 11
    s_add_u32 s38, s38, s29
    s_lshl_b32 s29, s26, 8
    s_add_u32 s38, s38, s29
    s_lshl_b32 s29, s37, 7
    s_add_u32 s38, s38, s29
    s_mul_i32 s29, s27, {64*RS}
    s_add_u32 s29, s29, {2*SLOT}
    v_and_b32 v1, 15, v0
    v_mul_u32_u24 v1, {RS}, v1
    v_lshrrev_b32 v2, 4, v0
    v_lshl_add_u32 v1, v2, 3, v1
    v_add_u32 v1, s29, v1
    v_lshrrev_b32 v2, 3, v0
    v_and_b32 v3, 7, v0
    v_mul_u32_u24 v4, {RS}, v2
    v_lshl_add_u32 v4, v3, 4, v4
    v_add_u32 v4, s29, v4
    v_lshlrev_b32 v2, 12, v2
    v_lshl_add_u32 v2, v3, 4, v2
    """)
    for i in range(4):
        D = ACC3 + 16 * i
        for r in range(8): a(f"v_cvt_pk_bf16_f32 v{D+r}, v{D+2*r}, v{D+2*r+1}")
        for cb in range(4):
            a(f"ds_write_b64 v1, {v(D+2*cb,2)} offset:{i*16*RS + cb*32}")
        for q in range(2):
            a(f"ds_read_b128 {v(8+8*i+4*q,4)}, v4 offset:{(i*16+q*8)*RS}")
        if i >= 1:
            for q in range(2):
                a(f"s_waitcnt lgkmcnt({7-q})")
                a(f"buffer_store_dwordx4 {v(8+8*(i-1)+4*q,4)}, v2, s[56:59], s38 offen{SC}")
                a(f"s_add_u32 s38, s38, {8*4096}")
    for q in range(2):
        a(f"s_waitcnt lgkmcnt({1-q})")
        a(f"buffer_store_dwordx4 {v(8+24+4*q,4)}, v2, s[56:59], s38 offen{SC}")
        a(f"s_add_u32 s38, s38, {8*4096}")

def p3_helper(a, opt):
    lf = opt.get("lf", " sc1")
    p3_ids(a)
    a(f"""
    s_sub_u32 s36, s27, 4            ; lw
    v_lshlrev_b32 v1, 4, v0
    v_lshrrev_b32 v2, 4, v0          ; r
    v_and_b32 v3, 15, v0             ; p
    v_lshlrev_b32 v4, {1 if opt.get("m16p3", 1) else 2}, v2
    v_xor_b32 v3, v3, v4
    v_lshlrev_b32 v3, 4, v3
    v_lshl_add_u32 v8, v2, 11, v3
    s_lshl_b32 s29, s26, 8
    s_lshl_b32 s37, s36, 15
    s_add_u32 s29, s29, s37
    v_add_u32 v8, s29, v8
    v_xor_b32 v9, {128 if opt.get("m16p3", 1) else 0}, v8
    v_add_u32 v9, 8192, v9
    v_add_u32 v10, 16384, v8
    v_add_u32 v11, 16384, v9
    s_lshl_b32 s38, s25, 2
    s_add_u32 s38, s38, s36          ; tb
    s_lshl_b32 s38, s38, 16
    s_lshl_b32 s29, s24, 22
    s_add_u32 s38, s38, s29
    s_add_u32 s38, s38, {O_OFF}      ; O soffset
    s_lshl_b32 s37, s36, 12          ; lw*4096
    s_add_u32 s40, s37, {SLOT*NS}
    """)
    def stg(t):
        a(f"s_add_u32 s41, s42, {t}\ns_and_b32 s41, s41, 15")
    def GWs(t):
        stg(t)
        a("s_lshl_b32 s39, s41, 17")
        for n in range(4):
            a(f"s_add_u32 m0, s37, {t*SLOT+16384+n*1024}")
            a(f"buffer_load_dwordx4 v{8+n}, s[52:55], s39 offen lds")
    def GOs(t):
        stg(t)
        a(f"s_add_u32 m0, s37, {t*SLOT}\ns_lshl_b32 s29, s41, 12\ns_add_u32 s29, s29, s38")
        for n in range(4): a(f"buffer_load_dwordx4 v1, s[16:19], s29 offen offset:{n*1024}{lf} lds")
    def hm(t, n):
        a("s_mov_b32 s93, 0")
        for k in range(n):
            stg(t + k)
            a("s_lshl_b32 s29, s41, 1\ns_lshl_b32 s29, 3, s29\ns_or_b32 s93, s93, s29")
    def G():
        a(f"""
        s_and_b32 s41, s43, 15
        s_add_u32 s43, s43, 1
        s_lshl_b32 s39, s41, 17
        s_lshl_b32 s29, s41, 1
        s_lshl_b32 s93, 3, s29
        """)
        for n in range(4):
            a(f"s_add_u32 m0, s30, {16384+n*1024}")
            a(f"buffer_load_dwordx4 v{8+n}, s[52:55], s39 offen lds")
        need_mask(a)
        a(f"""
        s_lshl_b32 s29, s41, 12
        s_mov_b32 m0, s30
        s_add_u32 s29, s29, s38
        """)
        for n in range(4): a(f"buffer_load_dwordx4 v1, s[16:19], s29 offen offset:{n*1024}{lf} lds")
        a(f"""
        s_add_u32 s30, s30, {SLOT}
        s_cmp_eq_u32 s30, s40
        s_cselect_b32 s30, s37, s30
        """)
    a(f"""
    s_lshr_b32 s42, s3, 1
    s_lshl_b32 s42, s42, 2
    s_add_u32 s42, s42, 4
    s_and_b32 s42, s42, {15 if opt.get("rot", 1) else 0}
    s_add_u32 s43, s42, 5
    s_mov_b32 s30, s37
    s_mov_b32 s48, 0
    """)
    code_pf(a, opt, 249)
    GWs(4)
    a("s_barrier")
    GWs(0); GWs(1); GWs(2)
    look(a)
    hm(0, 2)
    a(f"""
    s_andn2_b32 s88, s93, s92
    s_cbranch_scc1 L_p3_notyet
    s_mov_b32 s48, 1
    """)
    GOs(0); GOs(1)
    a.label("L_p3_notyet")
    a("s_barrier")
    stamp(a, opt, 7)
    publish(a, 52, n=4)
    GWs(3)
    a(f"""
    s_cmp_lg_u32 s48, 0
    s_cbranch_scc1 L_p3_have
    """)
    need_mask(a)
    stamp(a, opt, 8)
    GOs(0); GOs(1)
    a.label("L_p3_have")
    a("s_waitcnt vmcnt(4)")
    a("s_barrier")
    hm(2, 1)
    need_mask(a)
    GOs(2)
    a("s_waitcnt vmcnt(4)")
    a("s_barrier")
    hm(3, 2)
    need_mask(a)
    GOs(3); GOs(4)
    a("s_waitcnt vmcnt(8)")
    a("s_barrier")
    G()
    a("s_waitcnt vmcnt(12)")
    a("s_barrier")
    G()
    a("s_mov_b32 s28, 9")
    a.label("L_p3_lloop")
    a("s_waitcnt vmcnt(16)")
    a("s_barrier")
    G()
    a(f"""
    s_sub_u32 s28, s28, 1
    s_cmp_lg_u32 s28, 0
    s_cbranch_scc1 L_p3_lloop
    """)
    for n in (16, 8, 0):
        a(f"s_waitcnt vmcnt({n})")
        a("s_barrier")

def gen(opt):
    mp = opt.get("map", 1)
    a = Asm()
    a.raw(khead(NAME))
    a(f"""
    s_getpc_b64 s[94:95]
    """)
    a.label("L_pc", keep_hist=True)
    if opt.get("fixe"): a("s_memrealtime s[60:61]")
    a(f"""
    s_cmp_ge_u32 s2, 256
    s_cbranch_scc1 L_end
    s_and_b32 s3, s2, 7
    s_bfe_u32 s24, s2, {0x10003 if mp == 1 else 0x10002}
    s_lshl_b32 s29, s24, 5
    s_load_dwordx4 s[4:7], s[0:1], s29
    s_load_dwordx2 s[32:33], s[0:1], 72
    s_load_dwordx2 s[34:35], s[0:1], 16
    s_lshr_b32 s29, s3, 2
    s_mul_i32 s29, s29, 24
    s_add_u32 s29, s29, 24
    s_load_dwordx2 s[52:53], s[0:1], s29
    s_load_dwordx4 s[44:47], s[0:1], 56
    s_and_b32 s25, s3, 1
    s_lshl_b32 s25, s25, 2
    s_bfe_u32 s29, s2, {0x20004 if mp == 1 else 0x20003}
    s_add_u32 s25, s25, s29          ; tt
    s_bfe_u32 s26, s3, {0x20001 if mp == 1 else 0x10001}
    s_lshl_b32 s26, s26, {2 if mp == 1 else 3}
    s_lshr_b32 s29, s2, {6 if mp == 1 else 5}
    s_add_u32 s26, s26, s29          ; ct
    v_lshrrev_b32 v1, 6, v0
    v_and_b32 v0, 63, v0
    v_readfirstlane_b32 s27, v1
    s_lshl_b32 s29, s25, 19
    s_mov_b32 s10, 0x80000
    s_mov_b32 s11, 0x20000
    s_mov_b32 s14, 0x600000
    s_mov_b32 s15, 0x20000
    s_mov_b32 s18, 0x10000000
    s_mov_b32 s19, 0x20000
    s_mov_b32 s22, 0x10000
    s_mov_b32 s23, 0x20000
    s_mov_b32 s54, 0x200000
    s_mov_b32 s55, 0x20000
    s_mov_b32 s58, 0x800000
    s_mov_b32 s59, 0x20000
    s_mov_b32 s86, 256
    s_mov_b32 s87, 0x20000
    s_waitcnt lgkmcnt(0)
    s_add_u32 s8, s4, s29
    s_addc_u32 s9, s5, 0
    s_mov_b32 s12, s6
    s_mov_b32 s13, s7
    s_mov_b32 s16, s32
    s_mov_b32 s17, s33
    s_mov_b32 s20, s34
    s_mov_b32 s21, s35
    s_mov_b32 s56, s44
    s_mov_b32 s57, s45
    s_mov_b32 s84, s46
    s_mov_b32 s85, s47
    """)
    for i in range(12): stamp(a, opt, i)
    if opt.get("fixt") and not opt.get("fixe"): a("s_memrealtime s[60:61]\ns_waitcnt lgkmcnt(0)")
    a("s_cmp_lt_u32 s27, 4\ns_cbranch_scc1 L_compute")
    p1_helper(a, opt)
    p2_helper(a, opt)
    p3_helper(a, opt)
    a("s_branch L_fin")
    a.label("L_compute")
    p1_compute(a, opt)
    p2_compute(a, opt)
    (p3_compute16 if opt.get("m16p3", 1) else p3_compute)(a, opt)
    a.label("L_fin")
    if opt.get("fixt"):
        a("s_cmp_ge_u32 s27, 4\ns_cbranch_scc1 L_end")
        a.label("L_fixt")
        a(f"""
        s_memrealtime s[62:63]
        s_waitcnt lgkmcnt(0)
        s_sub_u32 s62, s62, s60
        s_cmp_lt_u32 s62, {opt["fixt"]}
        s_cbranch_scc1 L_fixt
        """)
    stamp_out(a, opt)
    a.label("L_end")
    a("s_endpgm")
    return a.text()

if __name__ == "__main__":
    import json, subprocess
    out = sys.argv[1]
    opt = json.loads(sys.argv[2]) if len(sys.argv) > 2 else {}
    HEADER = open("concat_heads__linear_kernel_hedgehog__mha_block__prompt.s.ref").read().split("; Override launch")[0]
    launch = f"; @launch kernel={NAME} grid=(256,1,1) block=(512,1,1) lds=163840" if opt.get("list", 1) else "; @launch grid=(256,1,1) block=(512,1,1) lds=163840"
    s = HEADER + launch + '\n.amdgcn_target "amdgcn-amd-amdhsa--gfx950"\n.text\n' + gen(opt) + '.section .rodata,"a"\n' + kdesc(NAME, 256, 100)
    open(out, "w").write(s)
    r = subprocess.run(["clang", "-x", "assembler", "-target", "amdgcn-amd-amdhsa", "-mcpu=gfx950", "-c", out, "-o", "_b.o"], capture_output=True, text=True)
    if r.returncode != 0:
        print(r.stderr[:1500]); raise SystemExit(1)
```

```python
from asmlib import *
import math, sys
import k1
from k1 import (QB_OFF, KVB_OFF, QA_OFF, KVP_OFF, ZP_OFF, O_OFF, LOG2E, f2u, softmax_pm, cvt_inplace,
                W_SLOT, NW, X_BASE, X_SLOT, NX, WPHI_LDS, ACCQ, ACCK, ACCV, reads as p1_reads, mfmas as p1_mfmas,
                epi_A, epi_B, epiA_setup, pk_mfma, phi_write, KH, TT, PH_BLK, Rec, epi_A16)
import p1v16

NAME = "concat_heads__linear_kernel_hedgehog__mha_block__prompt_kernel"
FLG = 29 << 20
F1A, F2B, F2A = FLG + 2048, FLG + 4096, FLG + 5120
F1B = FLG + 16384
F1C = F1B + 16384
F2H = FLG + 49152
TSF = FLG + 12288
ORDW = 138240
QL0 = 139264
STAMP_OFF = 30 << 20
VSNAP, VFA, VPOL = 250, 251, 252
SC = " sc0 sc1"

def stamp(a, opt, idx):
    if opt.get("fixp") is not None and opt["fixp"] == idx:
        a("s_memrealtime s[60:61]\ns_waitcnt lgkmcnt(0)")
    if not opt.get("stamp"): return
    a(f"{'s_memtime' if opt.get('cyc') else 's_memrealtime'} s[{60+2*idx}:{61+2*idx}]")
    a("s_waitcnt lgkmcnt(0)")
def stamp_out(a, opt):
    if not opt.get("stamp"): return
    a("s_waitcnt vmcnt(0)")
    stamp(a, opt, 11)
    if opt.get("stamp") == 2:
        a("s_cmp_lg_u32 s27, 0\ns_cbranch_scc1 L_end\nv_mov_b32 v9, 0\ns_mov_b64 exec, 1")
        for i in range(1, 12):
            a(f"s_sub_u32 s29, s{60+2*i}, s60")
            a("v_mov_b32 v8, s29")
            a(f"buffer_atomic_umax v8, v9, s[84:87], 0 offen offset:{4*i} sc1")
        a("s_not_b32 s29, s60\nv_mov_b32 v8, s29\nbuffer_atomic_umax v8, v9, s[84:87], 0 offen offset:48 sc1")
        a("v_mov_b32 v8, s82\nbuffer_atomic_umax v8, v9, s[84:87], 0 offen offset:52 sc1")
        a("v_mov_b32 v8, s60\nbuffer_atomic_umax v8, v9, s[84:87], 0 offen offset:56 sc1")
        return
    a(f"""
    s_lshl_b32 s29, s2, 3
    s_add_u32 s29, s29, s27
    s_lshl_b32 s29, s29, 6
    s_add_u32 s29, s29, {STAMP_OFF}
    v_mov_b32 v9, 0
    """)
    for i in range(12):
        a(f"v_mov_b32 v8, s{60+2*i}")
        a(f"buffer_store_dword v8, v9, s[16:19], s29 offen offset:{4*i}")

def code_pf(a, opt, junk):
    if not opt.get("cpf", 1): return 0
    a(f"""
    s_and_b32 s29, s27, 3
    s_lshl_b32 s29, s29, 13
    v_lshlrev_b32 v{junk}, 7, v0
    v_add_u32 v{junk}, s29, v{junk}
    v_min_u32 v{junk}, L_end-L_pc, v{junk}
    global_load_dword v{junk}, v{junk}, s[94:95]
    """)
    return 1

_uid = [0]
def only_w4(a):
    _uid[0] += 1
    L = f"L_w4_{_uid[0]}"
    a(f"s_cmp_lg_u32 s27, 4\ns_cbranch_scc1 {L}")
    return L
def poll(a, lo, n, cnt=None):
    L = only_w4(a)
    mask = ((1 << n) - 1) << lo
    a(f"""
    s_mov_b32 s88, {mask & 0xffffffff}
    s_mov_b32 s89, {mask >> 32}
    s_mov_b32 s90, 0x40000
    s_mov_b64 exec, s[88:89]
    """)
    a.label(L + "p")
    a(f"""
    buffer_load_dword v{VPOL}, v{VFA}, s[16:19], 0 offen sc0 sc1
    s_waitcnt vmcnt(0)
    v_sub_u32 v{VPOL}, v{VPOL}, v{VSNAP}
    v_cmp_ne_u32 vcc, {cnt}, v{VPOL}
    s_sub_u32 s90, s90, 1
    s_cbranch_scc1 {L}d
    s_cbranch_vccz {L}d
    s_sleep 1
    s_branch {L}p
    """)
    a.label(L + "d")
    a("s_mov_b64 exec, -1")
    a.label(L)
def need_chunk(a, single=False):
    _uid[0] += 1
    L = f"L_nc_{_uid[0]}"
    a(f"""
    s_bitcmp1_b32 s92, s93
    s_cbranch_scc1 {L}
    s_mov_b32 s90, 0x40000
    s_lshl_b64 s[88:89], 1, s93
    s_mov_b64 exec, {"s[88:89]" if single else "0xff"}
    """)
    a.label(L + "p")
    a(f"""
    buffer_load_dword v{VPOL}, v{VFA}, s[16:19], 0 offen sc0 sc1
    s_waitcnt vmcnt(0)
    v_cmp_ne_u32 vcc, v{VPOL}, v{VSNAP}
    s_sub_u32 s90, s90, 1
    s_cbranch_scc1 {L}d
    s_or_b32 s92, s92, vcc_lo
    s_mov_b64 exec, s[88:89]
    s_bitcmp1_b32 s92, s93
    s_cbranch_scc1 {L}d
    s_sleep 2
    s_branch {L}p
    """)
    a.label(L + "d")
    a("s_mov_b64 exec, -1")
    a.label(L)
def look(a):
    a(f"""
    s_mov_b32 exec_lo, 0xffff0000
    s_mov_b32 exec_hi, 0xffff
    buffer_load_dword v{VPOL}, v{VFA}, s[16:19], 0 offen sc0 sc1
    s_waitcnt vmcnt(0)
    v_sub_u32 v{VPOL}, v{VPOL}, v{VSNAP}
    v_cmp_eq_u32 vcc, 2, v{VPOL}
    s_mov_b64 exec, -1
    s_lshr_b64 s[88:89], vcc, 16
    s_mov_b32 s92, s88
    """)
def need_mask(a):
    _uid[0] += 1
    L = f"L_nm_{_uid[0]}"
    a("s_mov_b32 s90, 0x40000")
    a.label(L + "p")
    a(f"""
    s_andn2_b32 s88, s93, s92
    s_cbranch_scc0 {L}
    s_sub_u32 s90, s90, 1
    s_cbranch_scc1 {L}
    """)
    look(a)
    a(f"s_branch {L}p")
    a.label(L)

def publish(a, lane, all_helpers=False, n=1, inc=1):
    L = None if all_helpers else only_w4(a)
    a(f"""
    v_add_u32 v{VPOL}, {inc}, v{VSNAP}
    s_mov_b32 exec_lo, 0
    s_mov_b32 exec_hi, {((1 << n) - 1) << (lane - 32)}
    buffer_store_dword v{VPOL}, v{VFA}, s[16:19], 0 offen sc0 sc1
    s_mov_b64 exec, -1
    """)
    if L: a.label(L)

def p1_setup32(a):
    a(f"""
    s_lshr_b32 s36, s27, 1          ; tw
    s_and_b32 s37, s27, 1           ; hd
    v_and_b32 v8, 31, v0            ; n
    v_lshrrev_b32 v9, 5, v0         ; h
    v_bfe_u32 v10, v8, 1, 3         ; f
    v_xor_b32 v10, v10, v9
    v_lshlrev_b32 v10, 4, v10
    s_lshl_b32 s29, s36, 14
    v_lshlrev_b32 v11, 7, v8
    v_add3_u32 v1, v11, v10, s29
    v_xor_b32 v2, 32, v1
    v_xor_b32 v3, 64, v1
    v_xor_b32 v4, 0x60, v1
    v_bfe_u32 v10, v0, 2, 2         ; r
    v_lshl_add_u32 v11, v9, 3, v10
    v_lshlrev_b32 v11, 7, v11
    v_lshrrev_b32 v10, 1, v10
    v_xor_b32 v10, s37, v10
    v_lshl_add_u32 v11, v10, 6, v11
    v_bfe_u32 v10, v0, 4, 1
    v_lshl_add_u32 v11, v10, 5, v11
    v_and_b32 v10, 3, v0
    v_lshl_add_u32 v5, v10, 3, v11
    s_mov_b32 s30, {X_BASE}
    s_mov_b32 s31, 0
    v_add_u32 v6, s30, v1
    v_mov_b32 v7, v5
    s_mov_b32 s28, 16
    """)

def p1_loop32(a):
    for r in p1_reads(a, 0, 0, 0): a(r)
    a.raw(".p2align 6")
    a.label("L_p1_loop", keep_hist=True)
    start = len(a.lines)
    for c in range(4):
        st = c & 1
        M = p1_mfmas(st)
        c1 = (c + 1) & 3
        R = p1_reads(a, st ^ 1, c1, c1 & 1)
        pre = []
        if c & 1:
            pre += [f"s_add_u32 s31, s31, {W_SLOT}", f"s_cmp_eq_u32 s31, {W_SLOT*NW}", "s_cselect_b32 s31, 0, s31"]
        if c == 3:
            pre += [f"s_add_u32 s30, s30, {X_SLOT}", f"s_cmp_eq_u32 s30, {X_BASE+X_SLOT*NX}", f"s_cselect_b32 s30, {X_BASE}, s30"]
        a("s_waitcnt lgkmcnt(3)")
        a(M[0])
        for p in pre[:3]: a(p)
        a(M[1])
        for p in pre[3:]: a(p)
        if c & 1: a("v_add_u32 v7, s31, v5")
        a(f"v_add_u32 v6, s30, v{1+c1}")
        a(M[2])
        a("s_waitcnt lgkmcnt(0)")
        if c & 1: a("s_barrier")
        sched = [2, 2, 2, 2, 1, 1, 0, 0, 0]
        k = 0
        for g in range(9):
            for _ in range(sched[g]):
                a(R[k]); k += 1
            if c == 3 and g == 7:
                a("s_sub_u32 s28, s28, 1")
                a("s_cmp_lg_u32 s28, 0")
            a(M[3 + g])
    a("s_cbranch_scc1 L_p1_loop")
    assert check_loop(a.lines[start:]) == (0, 0)

def p1_compute(a, opt):
    m16 = opt.get("m16", 1)
    if m16: p1v16.setup(a)
    else: p1_setup32(a)
    code_pf(a, opt, 12)
    for r in range(64, 256): a(f"v_mov_b32 v{r}, 0")
    a("s_waitcnt vmcnt(0)")
    spf = opt.get("spf", 0)
    if spf:
        a(f"""
        s_lshr_b32 s41, s2, 4
        s_lshl_b32 s41, s41, 3
        s_add_u32 s41, s41, s3
        s_cmp_ge_u32 s27, 2
        s_cbranch_scc1 L_spf_done
        s_cmp_eq_u32 s27, 1
        s_cbranch_scc1 L_spf_x
        s_lshr_b32 s42, s41, 1
        s_lshl_b32 s42, s42, 17
        s_and_b32 s41, s41, 1
        s_lshl_b32 s41, s41, 10
        s_add_u32 s42, s42, s41
        v_lshlrev_b32 v0, 11, v0
        buffer_load_dword v0, v0, s[12:15], s42 offen offset:384
        s_branch L_spf_done
        """)
        a.label("L_spf_x")
        if spf == 1:
            a(f"""
            v_and_b32 v10, 15, v0
            v_lshlrev_b32 v10, 11, v10
            v_and_b32 v0, 16, v0
            v_lshl_add_u32 v0, v0, 6, v10
            s_lshl_b32 s42, s26, 15
            buffer_load_dword v0, v0, s[8:11], s42 offen offset:384
            """)
        a.label("L_spf_done")
    a("s_barrier")
    stamp(a, opt, 1)
    if m16: p1v16.emit_loop(a, opt)
    else: p1_loop32(a)
    a("s_waitcnt vmcnt(0) lgkmcnt(0)")
    a("v_mbcnt_lo_u32_b32 v0, -1, 0")
    a("v_mbcnt_hi_u32_b32 v0, -1, v0")
    stamp(a, opt, 2)
    a(f"""
    s_lshl_b32 s38, s26, 1
    s_add_u32 s38, s38, s37          ; head
    s_lshl_b32 s39, s25, 3
    s_lshl_b32 s29, s36, 2
    s_add_u32 s39, s39, s29          ; tb0
    s_lshl_b32 s40, s38, 6
    s_add_u32 s40, s40, s39          ; h*64+tb0
    v_lshlrev_b32 v1, 4, v0
    s_mov_b32 s91, 0
    v_and_b32 v60, 15, v0
    v_lshrrev_b32 v61, 4, v0
    v_lshlrev_b32 v60, 4, v60
    v_lshl_add_u32 v60, v61, 9, v60  ; g*512 + t*16
    s_cmp_eq_u32 s24, 0
    s_cbranch_scc1 L_p1_epiA
    """)
    epi_B_lds(a, m16)
    a("s_branch L_p1_done")
    a.label("L_p1_epiA")
    (epi_A16 if m16 else epi_A)(a, "p1", {"qlate": opt.get("qlate", 0)})
    a.label("L_p1_done")

def epi_B_lds(a, m16):
    qs = LOG2E / math.sqrt(32.0)
    a(f"""
    s_mov_b32 s44, {f2u(qs)}
    s_mov_b32 s45, {f2u(qs)}
    v_and_b32 v2, 0x33, v0
    v_and_b32 v3, 4, v0
    v_lshl_or_b32 v2, v3, 1, v2
    v_and_b32 v3, 8, v0
    v_lshrrev_b32 v3, 1, v3
    v_or_b32 v2, v2, v3
    v_lshlrev_b32 v2, 4, v2
    """)
    U = 256 if m16 else 1024
    if m16: a("v_mov_b32 v2, v60\nv_mov_b32 v1, v60")
    a(f"""
    s_cmp_lg_u32 s37, 0
    s_cbranch_scc1 L_p1_hd1
    s_lshl_b32 s41, s36, 14
    v_add_u32 v2, s41, v2
    v_add_u32 v3, s41, v1
    s_lshl_b32 s42, s36, 13
    s_add_u32 s42, s42, {QL0}
    v_add_u32 v4, s42, v1
    """)
    def conv(i):
        return ACCQ + 16 * i, ACCK + 16 * i, ACCV + 16 * i
    for i in range(4):
        Q, K, V = conv(i)
        cvt_inplace(a, K)
        a(f"ds_write_b128 v2, {v(K,4)} offset:{i*4096}")
        a(f"ds_write_b128 v2, {v(K+4,4)} offset:{i*4096+U}")
        cvt_inplace(a, V)
        a(f"ds_write_b128 v3, {v(V,4)} offset:{i*4096+2048}")
        a(f"ds_write_b128 v3, {v(V+4,4)} offset:{i*4096+2048+U}")
    a("s_waitcnt lgkmcnt(0)")
    a("s_barrier")
    for i in range(4):
        Q, K, V = conv(i)
        for r in range(0, 16, 2):
            a(f"v_pk_mul_f32 {v(Q+r,2)}, {v(Q+r,2)}, s[44:45]")
        cvt_inplace(a, Q)
        a(f"ds_write_b128 v4, {v(Q,4)} offset:{i*2048}")
        a(f"ds_write_b128 v4, {v(Q+4,4)} offset:{i*2048+U}")
    a("s_branch L_p1_done")
    a.label("L_p1_hd1")
    a(f"""
    s_lshl_b32 s41, s40, 11
    s_add_u32 s41, s41, {QB_OFF}
    s_add_u32 s42, s41, 4096
    s_lshl_b32 s43, s40, 12
    s_add_u32 s43, s43, {KVB_OFF}
    s_mov_b32 s91, 3
    """)
    for i in range(4):
        Q, K, V = conv(i)
        cvt_inplace(a, K)
        a(f"buffer_store_dwordx4 {v(K,4)}, v2, s[16:19], s43 offen{SC}")
        a(f"buffer_store_dwordx4 {v(K+4,4)}, v2, s[16:19], s43 offen offset:{U}{SC}")
        cvt_inplace(a, V)
        a(f"buffer_store_dwordx4 {v(V,4)}, v1, s[16:19], s43 offen offset:2048{SC}")
        a(f"buffer_store_dwordx4 {v(V+4,4)}, v1, s[16:19], s43 offen offset:{2048+U}{SC}")
        for r in range(0, 16, 2):
            a(f"v_pk_mul_f32 {v(Q+r,2)}, {v(Q+r,2)}, s[44:45]")
        cvt_inplace(a, Q)
        sq = "s41" if i < 2 else "s42"
        a(f"buffer_store_dwordx4 {v(Q,4)}, v1, s[16:19], {sq} offen offset:{(i&1)*2048}{SC}")
        a(f"buffer_store_dwordx4 {v(Q+4,4)}, v1, s[16:19], {sq} offen offset:{(i&1)*2048+U}{SC}")
        if i < 3: a("s_add_u32 s43, s43, 4096")
        if i == 1: a("s_barrier")

def p1_helper(a, opt):
    if opt.get("map", 1) == 1 and opt.get("koff", 2) == 1:
        a("""
        s_lshr_b32 s49, s3, 1
        s_lshl_b32 s49, s49, 2
        s_lshl_b32 s29, s3, 3
        s_add_u32 s49, s49, s29
        s_and_b32 s49, s49, 15
        """)
    else:
        a("""
        s_lshr_b32 s49, s3, 1
        s_xor_b32 s49, s49, s3
        s_and_b32 s49, s49, 1
        s_lshl_b32 s49, s49, 3
        """)
    a(f"""
    s_sub_u32 s36, s27, 4            ; lw
    v_lshrrev_b32 v1, 3, v0          ; r
    v_and_b32 v2, 7, v0              ; p
    v_lshrrev_b32 v3, 1, v1
    s_lshl_b32 s29, s36, 3
    v_add_u32 v5, s29, v1            ; 8lw + r
    v_and_b32 v6, 1, v3
    """)
    m16 = opt.get("m16", 1)
    if m16: a("s_and_b32 s29, s36, 1\ns_lshl_b32 s29, s29, 2\nv_lshl_add_u32 v6, v6, 1, s29")
    else: a("v_lshlrev_b32 v6, 2, v6")
    a(f"""
    v_xor_b32 v6, v6, v2
    v_lshlrev_b32 v6, 4, v6
    v_mul_u32_u24 v16, 6144, v5
    s_lshl_b32 s29, s26, 7
    v_add3_u32 v16, v16, v6, s29
    """)
    if opt.get("split"):
        a(f"""
        s_add_u32 s43, s26, {opt.get("split")}
        s_and_b32 s43, s43, 15
        s_sub_u32 s43, s43, s26
        s_lshl_b32 s43, s43, 1
        v_and_b32 v6, 64, v6
        v_mul_lo_u32 v6, v6, s43
        v_add_u32 v16, v16, v6
        """)
    a(f"""
    v_add_u32 v17, 2048, v16
    v_add_u32 v18, 4096, v16
    s_lshl_b32 s37, s36, 10          ; lw*1024
    s_add_u32 s30, s37, {X_BASE}
    s_mov_b32 s31, s37
    s_lshl_b32 s38, s49, 7           ; X soffset
    s_mul_i32 s39, s49, {64*6144}    ; W soffset
    s_add_u32 s40, s37, {X_BASE + NX*X_SLOT}
    s_add_u32 s41, s37, {W_SLOT*NW}
    s_add_u32 s42, s37, {X_BASE}
    """)
    def GX():
        for n in range(8):
            a(f"s_add_u32 m0, s30, {n*4096}")
            a(f"buffer_load_dwordx4 v{8+n}, s[8:11], s38 offen lds")
        a(f"""
        s_add_u32 s38, s38, 128
        s_and_b32 s38, s38, 2047
        s_add_u32 s30, s30, {X_SLOT}
        s_cmp_eq_u32 s30, s40
        s_cselect_b32 s30, s42, s30
        """)
    def GW():
        for sg in range(3):
            a(f"s_add_u32 m0, s31, {sg*4096}")
            a(f"buffer_load_dwordx4 v{16+sg}, s[12:15], s39 offen lds")
        a(f"""
        s_add_u32 s39, s39, {32*6144}
        s_cmp_eq_u32 s39, {1024*6144}
        s_cselect_b32 s39, 0, s39
        s_add_u32 s31, s31, {W_SLOT}
        s_cmp_eq_u32 s31, s41
        s_cselect_b32 s31, s37, s31
        """)
    def WB(n):
        a(f"s_waitcnt vmcnt({n})")
        a("s_barrier")
    GW()
    a(f"""
    s_and_b32 s29, s36, 1
    s_lshl_b32 s29, s29, 2
    v_add_u32 v4, s29, v3            ; f
    v_xor_b32 v4, v4, v2
    v_lshlrev_b32 v4, 4, v4
    v_lshl_add_u32 v8, v5, 11, v4
    """)
    for n in range(1, 8): a(f"v_add_u32 v{8+n}, {n*65536}, v8")
    GX(); GW()
    a(f"""
    v_lshlrev_b32 v19, 4, v0
    s_lshl_b32 s43, s26, 7
    s_add_u32 s43, s43, {FLG}        ; F1A[ct] - 2048
    s_lshl_b32 s46, s26, 10
    s_lshl_b32 s29, s36, 2
    s_add_u32 s46, s46, s29
    s_add_u32 s46, s46, {F1B}
    s_lshl_b32 s29, s24, 14
    s_sub_u32 s47, s46, s29
    s_add_u32 s47, s47, 16384
    v_lshl_add_u32 v20, v0, 7, s47
    s_add_u32 s47, s43, {2048-32}
    v_lshl_add_u32 v21, v0, 2, s47
    v_cmp_gt_u32 vcc, 8, v0
    s_and_b32 s47, s3, 3
    s_lshl_b32 s47, s47, 1
    s_bfe_u32 s29, s2, {0x10005 if MIX[0] else 0x10004}
    s_add_u32 s47, s47, s29
    v_cndmask_b32 v20, v21, v20, vcc
    s_lshl_b32 s48, s47, 1
    s_bfe_u32 s29, s2, {0x10004 if MIX[0] else 0x10003}
    s_add_u32 s48, s48, s29
    s_lshl_b32 s48, s48, 7
    s_add_u32 s48, s48, {F2H - 64}
    s_lshr_b32 s47, s47, 1
    s_lshl_b32 s47, s47, 7
    s_add_u32 s47, s47, {F2A - 64}
    s_cmp_eq_u32 s99, 0
    s_cselect_b32 s47, s47, s48
    s_lshl_b32 s29, s36, 11
    s_add_u32 s47, s47, s29
    v_lshl_add_u32 v21, v0, 2, s47   ; lanes 16..47
    v_cmp_gt_u32 vcc, 16, v0
    s_lshl_b32 s29, s25, 7
    s_add_u32 s46, s46, s29
    s_lshl_b32 s29, s25, 2
    s_add_u32 s47, s43, s29
    v_cndmask_b32 v20, v21, v20, vcc
    s_add_u32 s47, s47, 2048
    s_cmp_eq_u32 s24, 0
    s_cselect_b32 s46, s47, s46
    v_and_b32 v21, 1, v0
    v_lshl_add_u32 v21, v21, 14, s46
    v_cmp_gt_u32 vcc, 48, v0
    s_lshl_b32 s46, s26, 3
    s_lshl_b32 s29, s24, 2
    s_sub_u32 s47, s46, s29
    v_cndmask_b32 v20, v21, v20, vcc
    s_lshl_b32 s29, s25, 7
    s_add_u32 s47, s47, s29
    s_add_u32 s47, s47, {F2B + 4}
    v_and_b32 v22, 3, v0
    v_lshl_add_u32 v21, v22, 11, s47
    v_cmp_gt_u32 vcc, 52, v0
    s_and_b32 s29, s25, 1
    s_lshl_b32 s29, s29, 2
    s_add_u32 s46, s46, s29
    v_cndmask_b32 v20, v21, v20, vcc
    s_lshr_b32 s29, s25, 1
    s_lshl_b32 s29, s29, 7
    s_add_u32 s46, s46, s29
    s_add_u32 s46, s46, {F2A}
    v_lshl_add_u32 v21, v22, 11, s46
    v_cmp_gt_u32 vcc, 56, v0
    s_mov_b32 s92, 0
    s_nop 0
    v_cndmask_b32 v{VFA}, v21, v20, vcc
    """)
    gpf = opt.get("gpf", 3)
    if gpf:
        a(f"""
        s_lshr_b32 s46, s2, 4
        s_lshl_b32 s46, s46, 3
        s_add_u32 s46, s46, s3
        s_lshr_b32 s47, s46, 2
        s_mul_i32 s47, s47, {6*2048}
        s_and_b32 s29, s46, 1
        s_lshl_b32 s29, s29, 10
        s_add_u32 s47, s47, s29
        s_bfe_u32 s29, s46, 0x10001
        s_mul_i32 s29, s29, {8*192*2048}
        s_add_u32 s47, s47, s29
        s_add_u32 s51, s47, {gpf*192*2048 + 384}
        v_lshlrev_b32 v23, 11, v0
        """)
    spre = opt.get("spre", 0)
    if spre:
        a(f"""
        s_lshr_b32 s46, s2, 4
        s_lshl_b32 s46, s46, 3
        s_add_u32 s46, s46, s3
        s_lshl_b32 s47, s46, 2
        s_add_u32 s47, s47, s36
        s_lshl_b32 s47, s47, 13
        s_add_u32 s47, s47, {spre*128}
        s_add_u32 s4, s4, s47
        s_addc_u32 s5, s5, 0
        s_lshr_b32 s47, s46, 6
        s_lshl_b32 s47, s47, 9
        s_and_b32 s29, s46, 63
        s_add_u32 s47, s47, s29
        s_mul_i32 s47, s47, 6144
        s_mul_i32 s29, s36, 1536
        s_add_u32 s47, s47, s29
        s_add_u32 s47, s47, {spre*64*6144}
        s_add_u32 s6, s6, s47
        s_addc_u32 s7, s7, 0
        """)
    vpre = opt.get("vpre", 0)
    if vpre:
        a(f"""
        s_lshr_b32 s46, s2, 4
        s_lshl_b32 s46, s46, 3
        s_add_u32 s46, s46, s3
        s_lshr_b32 s47, s46, 6
        s_lshl_b32 s47, s47, 9
        s_and_b32 s29, s46, 63
        s_add_u32 s47, s47, s29
        s_add_u32 s29, s36, {vpre}
        s_lshl_b32 s96, s29, 6
        s_add_u32 s47, s47, s96
        s_mul_i32 s96, s47, 6144
        s_lshl_b32 s97, s29, 7
        s_lshl_b32 s29, s26, 15
        s_add_u32 s97, s97, s29
        v_lshlrev_b32 v24, 7, v0
        v_and_b32 v25, 15, v0
        v_lshlrev_b32 v25, 11, v25
        v_and_b32 v26, 16, v0
        v_lshl_add_u32 v25, v26, 6, v25
        """)
    def VP(k):
        if not vpre: return
        _uid[0] += 1
        L = f"L_vp_{_uid[0]}"
        a(f"""
        s_cmp_lg_u32 s36, {k}
        s_cbranch_scc1 {L}
        s_mov_b32 exec_lo, -1
        s_mov_b32 exec_hi, 0xffff
        buffer_load_dword v248, v24, s[12:15], s96 offen
        s_mov_b32 exec_hi, 0
        buffer_load_dword v248, v25, s[8:11], s97 offen
        s_mov_b64 exec, -1
        """)
        a.label(L)
    l2p = opt.get("l2p", 0)
    if l2p:
        a(f"""
        s_lshr_b32 s29, s2, 6
        s_lshl_b32 s29, s29, 17
        v_lshlrev_b32 v27, 11, v0
        v_add_u32 v27, s29, v27
        v_and_b32 v28, 15, v0
        v_lshlrev_b32 v28, 2, v28
        s_bfe_u32 s29, s2, 0x20004
        v_add_u32 v28, s29, v28
        v_mul_u32_u24 v28, 6144, v28
        v_lshrrev_b32 v29, 4, v0
        v_lshl_add_u32 v28, v29, 11, v28
        s_lshl_b32 s29, s26, 7
        v_add_u32 v28, s29, v28
        """)
    def L2P():
        if not l2p: return
        _uid[0] += 1
        L = f"L_l2_{_uid[0]}"
        a(f"""
        s_cmp_gt_u32 s28, {opt.get("l2hi", 12)}
        s_cbranch_scc1 {L}
        s_cmp_lt_u32 s28, {l2p}
        s_cbranch_scc1 {L}
        s_cmp_gt_u32 s36, 1
        s_cbranch_scc1 {L}
        s_cmp_eq_u32 s36, 1
        s_cbranch_scc1 {L}w
        s_add_u32 s29, s38, {128*(l2p-1)}
        s_and_b32 s29, s29, 2047
        buffer_load_dword v248, v27, s[8:11], s29 offen
        s_branch {L}
        """)
        a.label(L + "w")
        a(f"""
        s_add_u32 s29, s38, {128*(l2p-1)}
        s_and_b32 s29, s29, 2047
        s_mul_i32 s29, s29, {64*6144//128}
        s_mov_b32 exec_hi, 0xffff
        buffer_load_dword v248, v28, s[12:15], s29 offen
        s_mov_b64 exec, -1
        """)
        a.label(L)
    spn = [0]
    def SP():
        if not spre or spn[0] >= 2 * (8 - spre): return
        h = spn[0] & 1; spn[0] += 1
        for q in range(6): a(f"s_load_dword s98, s[6:7], {(6*h+q)*128}")
        for r in range(4): a(f"s_load_dword s98, s[4:5], {r*2048 + h*1024}")
        if h:
            a(f"""
            s_add_u32 s4, s4, 128
            s_addc_u32 s5, s5, 0
            s_add_u32 s6, s6, {64*6144}
            s_addc_u32 s7, s7, 0
            """)
    def SPF():
        if not gpf: return
        _uid[0] += 1
        L = f"L_g_{_uid[0]}"
        a(f"""
        s_cmp_lg_u32 s27, 5
        s_cbranch_scc1 {L}
        s_mov_b64 exec, 0x3f
        buffer_load_dword v248, v23, s[12:15], s51 offen
        s_mov_b64 exec, -1
        s_add_u32 s51, s51, {192*2048}
        """)
        a.label(L)
    SPF(); SP()
    a("s_waitcnt vmcnt(3)")
    a("s_barrier")
    a(f"buffer_load_dword v{VSNAP}, v{VFA}, s[16:19], 0 offen sc0 sc1")
    SPF(); GX(); GW(); SP(); VP(0); WB(11)
    SPF(); GW(); GX(); SP(); VP(1); WB(11)
    L = only_w4(a)
    a(f"""
    v_mov_b32 v20, 1
    v_mov_b32 v21, 0
    s_mov_b64 exec, 1
    buffer_atomic_add v20, v21, s[84:87], 0 offen sc1
    s_mov_b64 exec, -1
    """)
    a.label(L)
    if m16:
        SPF(); GW(); GW(); GW(); SP(); VP(2)
        npeel = (2 if gpf == 2 else 1) if gpf else 0
        if spre: npeel = max(npeel, 8 - spre - 2)
        for k in range(npeel):
            WB(17); GX(); GW(); SP(); WB(17)
            if k < ((2 if gpf == 2 else 1) if gpf else 0): SPF()
            GW(); SP()
            if k == 0: VP(3)
        a(f"s_mov_b32 s28, {12 - npeel}")
        a.label("L_p1_lloop")
        WB(17); GX(); GW(); WB(17); GW(); L2P()
        a(f"""
        s_sub_u32 s28, s28, 1
        s_cmp_lg_u32 s28, 0
        s_cbranch_scc1 L_p1_lloop
        """)
        WB(17); GX(); GW()
    else:
        SPF(); GW(); GX(); WB(19)
        GW(); GW(); GW(); WB(17)
        SPF(); GX(); GW(); WB(17)
        GW(); WB(17)
        tlb = opt.get("tlb", 0)
        if tlb:
            if tlb == 1: a("s_cmp_ge_u32 s2, 8\ns_cbranch_scc1 L_tlb_done")
            a(f"""
            s_cmp_lg_u32 s27, 4
            s_cbranch_scc1 L_tlb_1
            v_lshlrev_b32 v248, 19, v0
            buffer_load_dword v248, v248, s[16:19], 0 offen
            s_branch L_tlb_done
            """)
            a.label("L_tlb_1")
            a(f"""
            s_cmp_lg_u32 s27, 5
            s_cbranch_scc1 L_tlb_done
            v_lshlrev_b32 v248, 19, v0
            s_mov_b64 exec, 0xffff
            buffer_load_dword v248, v248, s[56:59], 0 offen
            s_mov_b64 exec, -1
            """)
            a.label("L_tlb_done")
        (SPF() if gpf == 2 else None); GX(); GW()
        a("s_mov_b32 s28, 10")
        a.label("L_p1_lloop")
        WB(25); GW(); WB(17); GX(); GW()
        a(f"""
        s_sub_u32 s28, s28, 1
        s_cmp_lg_u32 s28, 0
        s_cbranch_scc1 L_p1_lloop
        """)
        WB(25)
        GW()
    a(f"""
    s_lshl_b32 s29, s26, 12
    s_add_u32 s29, s29, s37
    s_add_u32 m0, s37, {WPHI_LDS}
    s_nop 0
    buffer_load_dwordx4 v19, s[20:23], s29 offen lds
    """)
    n = code_pf(a, opt, 249)
    WB(18 + n); WB(15 + n); WB(4 + n); WB(n)
    a("s_waitcnt lgkmcnt(0)")
    if opt.get("hp1"): a("s_setprio 0")
    L = only_w4(a)
    a("s_mov_b32 s90, 0x40000\nv_mov_b32 v21, 0")
    a.label(L + "p")
    a(f"""
    buffer_load_dword v20, v21, s[84:87], 0 offen sc0 sc1
    s_waitcnt vmcnt(0)
    v_cmp_gt_u32 vcc, 256, v20
    s_sub_u32 s90, s90, 1
    s_cbranch_scc1 {L}
    s_cbranch_vccz {L}
    s_sleep 1
    s_branch {L}p
    """)
    a.label(L)
    p2_helper_setup(a)
    a(f"""
    v_mov_b32 v247, v3
    s_mov_b32 s91, 0
    s_cmp_lg_u32 s24, 0
    s_cbranch_scc1 L_p1_hB
    s_and_b32 s37, s27, 1            ; hd
    s_and_b32 s29, s27, 3
    s_mul_i32 s29, s29, {8192 if m16 else 6144}
    v_add_u32 v5, s29, v1
    """)
    epiA_setup(a, m16)
    a("s_barrier")
    a("s_barrier")
    K = 64; PP = [96, 112, 128]; EE = 144
    for q in range(6): a(f"ds_read_b128 {v(K+4*q,4)}, v5 offset:{KH + q*1024 + (2048 if m16 else 0)}")
    for i in range(3):
        a(f"s_waitcnt lgkmcnt({4-2*i})")
        pk_mfma(a, PP[i], K + 8 * i)
    lf = opt.get("lf", " sc1")
    for i in range(3):
        r = Rec(); softmax_pm(r, PP[i], EE, TT)
        cut = opt.get("cut", 70)
        if i == 2 and opt.get("early", 1):
            c0 = opt.get("c0", 30); cut = opt.get("cut", len(r.l))
            for x in r.l[:c0]: a(x)
            a(f"""
            s_lshl_b64 s[88:89], 1, s93
            s_mov_b64 exec, s[88:89]
            buffer_load_dword v{VPOL}, v{VFA}, s[16:19], 0 offen sc0 sc1
            s_mov_b64 exec, -1
            """)
            for x in r.l[c0:cut]: a(x)
            phi_write(a, 1 + i, PP[i], EE)
            a("s_waitcnt lgkmcnt(0)")
            a("s_barrier")
            a(f"""
            s_waitcnt vmcnt(0)
            s_mov_b64 exec, s[88:89]
            v_cmp_ne_u32 vcc, v{VPOL}, v{VSNAP}
            s_mov_b64 exec, -1
            s_nop 0
            s_cbranch_vccz L_p1_noearly
            s_mov_b32 s91, 1
            """)
            p2_c0_loads(a, lf)
            a.label("L_p1_noearly")
            a("s_branch L_p1_hdone")
        else:
            for x in r.l: a(x)
            phi_write(a, 1 + i, PP[i], EE)
            a("s_waitcnt lgkmcnt(0)")
            if i < 2: a("s_barrier")
    a.label("L_p1_hB")
    a("s_barrier")
    a.label("L_p1_hdone")

SLOT = 32768
KVF = 131072; ZF = KVF + 4096; WPH = KVF + 5120
SELL = 8; LACC = [12, 16]; QF = [24, 32]; KS = [40, 48]; VS = [56, 64]
NEGM = [72, 88]; SB = [104, 120]; OA = [136, 152]

def p2_ids(a):
    a(f"""
    s_lshl_b32 s34, s26, 1
    s_add_u32 s34, s34, 1
    s_sub_u32 s34, s34, s24
    s_and_b32 s31, s27, 3
    s_lshl_b32 s35, s25, 3
    s_lshl_b32 s29, s31, 1
    s_add_u32 s35, s35, s29
    s_lshl_b32 s40, s34, 18
    s_add_u32 s40, s40, {KVB_OFF}
    v_lshlrev_b32 v1, 4, v0
    """)

def p2_compute(a, opt):
    lf = opt.get("lf", " sc1")
    NT = 8
    stamp(a, opt, 3)
    p2_ids(a)
    a(f"""
    s_lshl_b32 s47, s35, 5
    s_add_u32 s47, s47, s34
    s_lshl_b32 s47, s47, 11
    s_add_u32 s47, s47, {O_OFF + (4<<20)}
    s_waitcnt lgkmcnt(0)
    v_mov_b32 v4, 0xdddd
    v_and_b32 v2, 4, v0
    v_cmp_eq_u32 vcc, 0, v2
    v_mov_b32 v2, 0
    v_mov_b32 v3, 0x3f803f80
    v_cndmask_b32 v{SELL}, v2, v3, vcc
    v_cndmask_b32 v{SELL+2}, v3, v2, vcc
    v_mov_b32 v{SELL+1}, v{SELL}
    v_mov_b32 v{SELL+3}, v{SELL+2}
    v_mov_b32 v2, v1
    """)
    if opt.get("m16", 1):
        a("""
        v_and_b32 v22, 0x23, v0
        v_and_b32 v20, 4, v0
        v_lshl_or_b32 v22, v20, 2, v22
        v_and_b32 v20, 0x18, v0
        v_lshrrev_b32 v20, 1, v20
        v_or_b32 v22, v22, v20
        v_lshlrev_b32 v22, 4, v22
        """)
    else: a("v_mov_b32 v22, v1")
    a(f"""
    v_mov_b32 v20, v22
    v_xor_b32 v23, v22, v1
    s_lshl_b32 s29, s31, 12
    s_add_u32 s29, s29, {QL0}
    v_add_u32 v5, s29, v1
    s_lshl_b32 s49, s26, 10
    s_lshl_b32 s29, s25, 7
    s_add_u32 s49, s49, s29
    s_lshl_b32 s29, s36, 3
    s_add_u32 s49, s49, s29
    s_add_u32 s49, s49, {F1C}
    s_lshl_b32 s48, s26, 7
    s_lshl_b32 s29, s25, 2
    s_add_u32 s48, s48, s29
    s_add_u32 s48, s48, {F1A}        ; F1A[ct][tt]
    s_cmp_eq_u32 s24, 0
    s_cselect_b32 s49, s48, s49
    s_cselect_b32 s90, 1, s91
    s_mov_b32 s91, 0
    s_barrier
    """)
    stamp(a, opt, 5)
    def kread(st, addr, j): return [f"ds_read_b128 {v(KS[st]+4*u,4)}, {dict(v2='v20', v3='v21')[addr]} offset:{j*4096+u*1024}" for u in range(2)]
    def vread(st, addr, j): return [f"ds_read_b128 {v(VS[st]+4*u,4)}, {addr} offset:{j*4096+2048+u*1024}" for u in range(2)]
    for b in range(2):
        for u in range(2):
            a(f"ds_read_b128 {v(QF[b]+4*u,4)}, v5 offset:{b*2048+u*1024}")
    for r in kread(0, "v2", 0) + vread(0, "v2", 0) + kread(1, "v2", 1): a(r)
    for b in range(2):
        for r in range(16): a(f"v_mov_b32 v{OA[b]+r}, 0")
        for r in range(4): a(f"v_mov_b32 v{LACC[b]+r}, 0")
    for r in range(4, 8): a(f"v_mov_b32 v{VS[1]+r}, 0")
    a("s_waitcnt lgkmcnt(4)")
    for b in range(2):
        a(f"v_mfma_f32_32x32x16_bf16 {v(SB[b],16)}, {v(KS[0],4)}, {v(QF[b],4)}, 0")
        a(f"v_mfma_f32_32x32x16_bf16 {v(SB[b],16)}, {v(KS[0]+4,4)}, {v(QF[b]+4,4)}, {v(SB[b],16)}")
    def rowmax(S, dst, init=True):
        if init:
            a(f"v_max3_f32 v{dst}, v{S}, v{S+1}, v{S+2}")
            for r in range(3, 15, 2): a(f"v_max3_f32 v{dst}, v{dst}, v{S+r}, v{S+r+1}")
            a(f"v_max_f32 v{dst}, v{dst}, v{S+15}")
        else:
            for r in range(0, 16, 2): a(f"v_max3_f32 v{dst}, v{dst}, v{S+r}, v{S+r+1}")
    def finish_max(dst, tmp, NM):
        a(f"v_mov_b32 v{tmp}, v{dst}")
        a(f"v_permlane32_swap_b32 v{dst}, v{tmp}")
        a(f"v_max_f32 v{dst}, v{dst}, v{tmp}")
        for r in range(16): a(f"v_sub_f32 v{NM+r}, 0, v{dst}")
    rowmax(SB[0], 6); finish_max(6, 7, NEGM[0])
    a(f"v_mfma_f32_32x32x16_bf16 {v(SB[0],16)}, {v(KS[0],4)}, {v(QF[0],4)}, {v(NEGM[0],16)}")
    a(f"v_mfma_f32_32x32x16_bf16 {v(SB[0],16)}, {v(KS[0]+4,4)}, {v(QF[0]+4,4)}, {v(SB[0],16)}")
    rowmax(SB[1], 6); finish_max(6, 7, NEGM[1])
    for r in range(8, 16): a(f"v_mov_b32 v{SB[1]+r}, 0")
    a("s_mov_b32 s28, 0\ns_mov_b64 vcc, s[90:91]")
    a.raw(".p2align 6")
    a.label("L_p2_loop", keep_hist=True)
    start = len(a.lines)
    pat = "ePeeelreMeeeNweeeVeeeeeLr"
    for n in range(2 * NT):
        j = n >> 1; b = n & 1
        A = SB[b]; B = SB[b ^ 1]
        jprev = j - 1 if b == 0 else j
        jnext = j if b == 0 else j + 1
        if b == 0: R = vread((j + 1) & 1, "v2" if j + 1 < NT else "v3", (j + 1) % NT)
        else: R = kread(j & 1, "v2" if j + 2 < NT else "v3", (j + 2) % NT)
        e = rr = 0
        for ch in pat:
            px = opt.get("p2x", "")
            if ch in px and ch != "e":
                a("s_nop 1" if ch in "MN" else "s_nop 2")
                if ch == "P" and n == 2 * NT - 3: a("s_barrier")
                if ch == "M" and n == 2 * NT - 1: a("v_mov_b32 v2, v3")
                if ch == "V":
                    if n == 2 * NT - 1: a("s_add_u32 s28, s28, 1")
                    if n == 0: a(f"v_add_u32 v3, {SLOT}, v2")
                    if n == 1: a(f"v_and_b32 v3, {4*SLOT-1}, v3")
                    if n == 2: a("v_xor_b32 v21, v23, v3")
                    if n == 2 * NT - 2: a("v_mov_b32 v20, v21")
                continue
            if ch == "e" and "e" in px: a("s_nop 1"); e += 1
            elif ch == "e" and "MN" in px: a(f"v_exp_f32 v{A+e}, v{KS[0]+e}"); e += 1
            elif ch == "e": a(f"v_exp_f32 v{A+e}, v{A+e}"); e += 1
            elif ch == "P":
                a(f"v_smfmac_f32_32x32x32_bf16 {v(OA[b^1],16)}, {v(VS[jprev&1]+4,4)}, {v(B+8,8)}, v4")
                if n == 2 * NT - 3: a("s_barrier")
            elif ch == "l": a(f"v_smfmac_f32_16x16x64_bf16 {v(LACC[b^1],4)}, {v(SELL,4)}, {v(B+8,8)}, v4")
            elif ch == "L": a(f"v_smfmac_f32_16x16x64_bf16 {v(LACC[b],4)}, {v(SELL,4)}, {v(A,8)}, v4")
            elif ch == "w":
                if b == 0: a("s_waitcnt lgkmcnt(1)")
                elif n == opt.get("pubn", 1):
                    a("s_cbranch_vccnz L_p2_pub")
                    a.label("L_p2_pubret", keep_hist=True)
                else: a("s_nop 0")
            elif ch == "M":
                a(f"v_mfma_f32_32x32x16_bf16 {v(B,16)}, {v(KS[jnext&1],4)}, {v(QF[b^1],4)}, {v(NEGM[b^1],16)}")
                if n == 2 * NT - 1: a("v_mov_b32 v2, v3")
            elif ch == "N": a(f"v_mfma_f32_32x32x16_bf16 {v(B,16)}, {v(KS[jnext&1]+4,4)}, {v(QF[b^1]+4,4)}, {v(B,16)}")
            elif ch == "V":
                a(f"v_smfmac_f32_32x32x32_bf16 {v(OA[b],16)}, {v(VS[j&1],4)}, {v(A,8)}, v4")
                if n == 2 * NT - 1: a("s_add_u32 s28, s28, 1")
                if n == 0: a(f"v_add_u32 v3, {SLOT}, v2")
                if n == 1: a(f"v_and_b32 v3, {4*SLOT-1}, v3")
                if n == 2: a("v_xor_b32 v21, v23, v3")
                if n == 2 * NT - 2: a("v_mov_b32 v20, v21")
            elif ch == "r": a(R[rr]); rr += 1
    a("s_cmp_lt_u32 s28, 8")
    a("s_cbranch_scc1 L_p2_loop")
    assert check_loop(a.lines[start:]) == (0, 0)
    a("s_nop 1")
    a(f"v_smfmac_f32_32x32x32_bf16 {v(OA[1],16)}, {v(VS[1]+4,4)}, {v(SB[1]+8,8)}, v4")
    a(f"v_smfmac_f32_16x16x64_bf16 {v(LACC[1],4)}, {v(SELL,4)}, {v(SB[1]+8,8)}, v4")
    stamp(a, opt, 6)
    O0 = OA[0]; O1 = OA[1]; L0r = LACC[0]
    a("s_mov_b32 s48, 0")
    a.label("L_p2_blk")
    a(f"""
    s_mov_b32 s36, 0x5d800000        ; 2^60
    v_cmp_nlt_f32 vcc, v{L0r}, s36
    s_cmp_lg_u64 vcc, 0
    {"s_nop 0" if opt.get("p2x") else "s_cbranch_scc1 L_p2_slow"}
    """)
    a.label("L_p2_fin", keep_hist=True)
    a(f"v_rcp_f32 v{L0r}, v{L0r}")
    for r in range(0, 16, 2):
        a(f"v_pk_mul_f32 {v(O0+r,2)}, {v(O0+r,2)}, {v(L0r,2)} op_sel_hi:[1,0]")
    cvt_inplace(a, O0)
    a(f"buffer_store_dwordx4 {v(O0,4)}, v1, s[16:19], s47 offen{SC}")
    a(f"buffer_store_dwordx4 {v(O0+4,4)}, v1, s[16:19], s47 offen offset:1024{SC}")
    a(f"""
    s_cmp_lg_u32 s48, 0
    s_cbranch_scc1 L_p2_out
    s_mov_b32 s48, 1
    s_add_u32 s47, s47, 65536
    """)
    for r in range(16): a(f"v_mov_b32 v{O0+r}, v{O1+r}")
    a(f"v_mov_b32 v{L0r}, v{LACC[1]}")
    for r in range(8): a(f"v_mov_b32 v{QF[0]+r}, v{QF[1]+r}")
    a("s_branch L_p2_blk")
    a.label("L_p2_pub")
    a(f"""
    s_waitcnt vmcnt(0)
    v_mov_b32 v6, 1
    v_lshlrev_b32 v7, 2, v0
    s_mov_b64 exec, vcc
    buffer_atomic_add v6, v7, s[16:19], s49 offen sc1
    s_mov_b64 exec, -1
    s_mov_b64 vcc, 0
    s_nop 4
    s_branch L_p2_pubret
    """)
    S0 = SB[0]; Q0 = QF[0]; NM = NEGM[0]
    a.label("L_p2_slow")
    a(f"""
    s_waitcnt lgkmcnt(0)
    s_mov_b32 s36, s40
    s_mov_b32 s28, 0
    v_mov_b32 v6, 0xff800000
    """)
    a.label("L_p2_slow1")
    a(f"""
    buffer_load_dwordx4 {v(KS[0],4)}, v22, s[16:19], s36 offen{lf}
    buffer_load_dwordx4 {v(KS[0]+4,4)}, v22, s[16:19], s36 offen offset:1024{lf}
    s_waitcnt vmcnt(0)
    v_mfma_f32_32x32x16_bf16 {v(S0,16)}, {v(KS[0],4)}, {v(Q0,4)}, 0
    v_mfma_f32_32x32x16_bf16 {v(S0,16)}, {v(KS[0]+4,4)}, {v(Q0+4,4)}, {v(S0,16)}
    """)
    rowmax(S0, 6, init=False)
    a(f"""
    s_add_u32 s36, s36, 4096
    s_add_u32 s28, s28, 1
    s_cmp_lt_u32 s28, 64
    s_cbranch_scc1 L_p2_slow1
    """)
    finish_max(6, 7, NM)
    for r in range(16): a(f"v_mov_b32 v{O0+r}, 0")
    for r in range(4): a(f"v_mov_b32 v{L0r+r}, 0")
    a("s_mov_b32 s36, s40\ns_mov_b32 s28, 0")
    a.label("L_p2_slow2")
    a(f"""
    buffer_load_dwordx4 {v(KS[0],4)}, v22, s[16:19], s36 offen{lf}
    buffer_load_dwordx4 {v(KS[0]+4,4)}, v22, s[16:19], s36 offen offset:1024{lf}
    buffer_load_dwordx4 {v(VS[0],4)}, v1, s[16:19], s36 offen offset:2048{lf}
    buffer_load_dwordx4 {v(VS[0]+4,4)}, v1, s[16:19], s36 offen offset:3072{lf}
    s_waitcnt vmcnt(0)
    v_mfma_f32_32x32x16_bf16 {v(S0,16)}, {v(KS[0],4)}, {v(Q0,4)}, {v(NM,16)}
    v_mfma_f32_32x32x16_bf16 {v(S0,16)}, {v(KS[0]+4,4)}, {v(Q0+4,4)}, {v(S0,16)}
    """)
    for r in range(16): a(f"v_exp_f32 v{S0+r}, v{S0+r}")
    a(f"""
    v_smfmac_f32_32x32x32_bf16 {v(O0,16)}, {v(VS[0],4)}, {v(S0,8)}, v4
    v_smfmac_f32_16x16x64_bf16 {v(L0r,4)}, {v(SELL,4)}, {v(S0,8)}, v4
    v_smfmac_f32_32x32x32_bf16 {v(O0,16)}, {v(VS[0]+4,4)}, {v(S0+8,8)}, v4
    v_smfmac_f32_16x16x64_bf16 {v(L0r,4)}, {v(SELL,4)}, {v(S0+8,8)}, v4
    s_nop 15
    s_add_u32 s36, s36, 4096
    s_add_u32 s28, s28, 1
    s_cmp_lt_u32 s28, 64
    s_cbranch_scc1 L_p2_slow2
    s_nop 15
    s_branch L_p2_fin
    """)
    a.label("L_p2_out")

def p2_helper_setup(a):
    p2_ids(a)
    a(f"""
    s_lshl_b32 s41, s31, 13          ; hw*8192
    s_add_u32 s40, s40, s41
    s_mov_b32 s43, s41
    s_mov_b32 s93, s25
    s_mov_b32 s44, {f2u(LOG2E)}
    s_mov_b32 s45, {f2u(LOG2E)}
    """)
    if MIX[0]:
        a("""
        s_lshr_b32 s50, s2, 4
        s_lshl_b32 s50, s50, 17
        s_lshl_b32 s37, s31, 15
        s_add_u32 s50, s50, s37
        s_and_b32 s37, s3, 4
        s_lshl_b32 s37, s37, 8
        s_add_u32 s50, s50, s37
        v_lshrrev_b32 v3, 3, v0
        v_and_b32 v2, 7, v0
        v_lshlrev_b32 v3, 11, v3
        v_lshl_add_u32 v3, v2, 7, v3
        """)
    else:
        a("""
        s_lshr_b32 s50, s2, 3
        s_lshl_b32 s50, s50, 16
        s_lshl_b32 s37, s31, 14
        s_add_u32 s50, s50, s37
        v_lshlrev_b32 v3, 7, v0
        """)
    a(f"""
    s_lshl_b32 s38, s26, 1
    s_add_u32 s38, s38, 1
    s_lshl_b32 s38, s38, 6
    s_add_u32 s38, s38, s35
    s_lshl_b32 s38, s38, 11
    s_add_u32 s38, s38, {QB_OFF}
    """)

def p2_c0_loads(a, lf):
    a("s_lshl_b32 s42, s93, 15\ns_add_u32 s42, s42, s40")
    for hf in range(2):
        a(f"s_add_u32 m0, s43, {hf*4096}")
        a(f"s_add_u32 s29, s42, {hf*4096}")
        for n in range(4):
            a(f"buffer_load_dwordx4 v1, s[16:19], s29 offen offset:{n*1024}{lf} lds")
    a(f"""
    s_lshl_b32 s29, s31, 12
    s_add_u32 m0, s29, {QL0}
    s_nop 0
    """)
    for n in range(4):
        a(f"buffer_load_dwordx4 v1, s[16:19], s38 offen offset:{n*1024}{lf} lds")

def p2_helper(a, opt):
    lf = opt.get("lf", " sc1")
    P0 = 8; QAF = 160; ZP0 = 88; JUNK = 96
    WP = 8; KVR = 16; ZR = 32; PQ = 48; EP = 104; T = 120; NUM = 136; DEN = 64
    def advance():
        a(f"""
        s_add_u32 s93, s93, 1
        s_and_b32 s93, s93, 7
        s_add_u32 s43, s43, {SLOT}
        s_and_b32 s43, s43, {4*SLOT-1}
        """)
    def chunk(single=False):
        need_chunk(a, single)
        a("s_lshl_b32 s42, s93, 15\ns_add_u32 s42, s42, s40")
        for hf in range(2):
            a(f"s_add_u32 m0, s43, {hf*4096}")
            a(f"s_add_u32 s29, s42, {hf*4096}")
            for n in range(4):
                a(f"buffer_load_dwordx4 v1, s[16:19], s29 offen offset:{n*1024}{lf} lds")
        advance()
    def PF():
        a(f"buffer_load_dword v{JUNK}, v247, s[52:55], s50 offen")
        a(f"s_add_u32 s50, s50, {16384 if MIX[0] else 8192}")
    def WB(n):
        a(f"s_waitcnt vmcnt({n})")
        a("s_barrier")
    a("s_cmp_lg_u32 s24, 0\ns_cbranch_scc1 L_p2_hB")
    stamp(a, opt, 3)
    a("s_cmp_lg_u32 s91, 0\ns_cbranch_scc1 L_p2_c0done")
    need_chunk(a, True)
    p2_c0_loads(a, lf)
    a.label("L_p2_c0done")
    advance()
    stamp(a, opt, 4)
    WB(0)
    chunk()
    WB(0)
    chunk(); chunk(); PF()
    WB(9)
    chunk(); PF()
    WB(10)
    chunk()
    WB(9)
    chunk()
    WB(8)
    chunk()
    a("s_waitcnt vmcnt(8)")
    a("s_branch L_p2_hjoin")
    a.label("L_p2_hB")
    a(f"""
    v_add_u32 v2, s41, v1
    s_lshl_b32 s42, s25, 15
    s_add_u32 s42, s42, s40
    s_add_u32 s46, s42, 4096
    s_barrier
    """)
    stamp(a, opt, 3)
    a("s_setprio 2")
    for q in range(8): a(f"ds_read_b128 {v(8+4*q,4)}, v2 offset:{q*1024}")
    hb = opt.get("hb", 8)
    for q in range(8):
        if q == hb: a("s_barrier")
        a(f"s_waitcnt lgkmcnt({7-q})")
        a(f"buffer_store_dwordx4 {v(8+4*q,4)}, v1, s[16:19], {'s42' if q < 4 else 's46'} offen offset:{(q&3)*1024}{SC}")
    advance()
    stamp(a, opt, 1)
    if hb >= 8: a("s_barrier")
    a("s_waitcnt vmcnt(0)")
    publish(a, 48, all_helpers=True)
    stamp(a, opt, 4)
    chunk(True)
    stamp(a, opt, 6)
    a("s_waitcnt vmcnt(0)")
    stamp(a, opt, 9)
    WB(0)
    stamp(a, opt, 5)
    chunk(); chunk(); PF()
    WB(9)
    poll(a, 8, 8, 4)
    chunk(); PF()
    WB(10)
    chunk()
    a(f"""
    s_lshl_b32 s34, s26, 1
    s_and_b32 s29, s25, 1
    s_add_u32 s34, s34, s29
    s_and_b32 s35, s25, 6
    s_lshl_b32 s35, s35, 3
    s_lshl_b32 s29, s31, 2
    s_add_u32 s35, s35, s29
    s_lshl_b32 s38, s34, 6
    s_add_u32 s38, s38, s35
    s_lshl_b32 s38, s38, 11
    s_add_u32 s38, s38, {QA_OFF}
    s_add_u32 s39, s38, 4096
    s_lshl_b32 s46, s35, 5
    s_add_u32 s46, s46, s34
    s_lshl_b32 s46, s46, 11
    s_add_u32 s46, s46, {O_OFF}
    s_lshl_b32 s36, s34, 16
    s_add_u32 s36, s36, {KVP_OFF}
    s_lshl_b32 s29, s31, 11
    s_add_u32 s36, s36, s29
    """)
    for t in range(8):
        a(f"buffer_load_dwordx4 {v(P0+8*t,4)}, v1, s[16:19], s36 offen{lf}")
        a(f"buffer_load_dwordx4 {v(P0+8*t+4,4)}, v1, s[16:19], s36 offen offset:1024{lf}")
        if t < 7: a("s_add_u32 s36, s36, 8192")
    a(f"""
    s_and_b32 s37, s31, 1
    s_lshl_b32 s37, s37, 10
    s_lshl_b32 s36, s34, 11
    s_add_u32 s36, s36, s37
    s_add_u32 m0, s37, {WPH}
    v_lshlrev_b32 v6, 2, v0
    buffer_load_dwordx4 v1, s[20:23], s36 offen lds
    s_lshl_b32 s36, s34, 11
    s_add_u32 s36, s36, {ZP_OFF}
    """)
    for t in range(8):
        a(f"buffer_load_dword v{ZP0+t}, v6, s[16:19], s36 offen offset:{t*256}{lf}")
    for q in range(8):
        a(f"buffer_load_dwordx4 {v(QAF+4*q,4)}, v1, s[16:19], {'s38' if q < 4 else 's39'} offen offset:{(q&3)*1024}{lf}")
    a("s_waitcnt vmcnt(8)")
    for t in range(1, 8):
        for r in range(0, 8, 2):
            a(f"v_pk_add_f32 {v(P0+r,2)}, {v(P0+r,2)}, {v(P0+8*t+r,2)}")
    for r in range(4): a(f"v_cvt_pk_bf16_f32 v{P0+r}, v{P0+2*r}, v{P0+2*r+1}")
    a(f"""
    s_lshl_b32 s36, s31, 10
    s_add_u32 s36, s36, {KVF}
    v_add_u32 v6, s36, v1
    ds_write_b128 v6, {v(P0,4)}
    """)
    for t in range(1, 8): a(f"v_add_f32 v{ZP0}, v{ZP0}, v{ZP0+t}")
    a(f"""
    v_cvt_pk_bf16_f32 v{ZP0}, v{ZP0}, v{ZP0}
    v_lshrrev_b32 v6, 4, v0
    v_lshlrev_b32 v6, 5, v6
    v_and_b32 v7, 4, v0
    v_lshl_add_u32 v6, v7, 2, v6
    v_and_b32 v7, 8, v0
    v_add_u32 v6, v6, v7
    v_and_b32 v7, 3, v0
    v_lshl_add_u32 v6, v7, 1, v6
    v_add_u32 v6, {ZF}, v6
    ds_write_b16 v6, v{ZP0}
    v_mov_b32 v7, 0
    ds_write_b16 v6, v7 offset:128
    v_lshrrev_b32 v5, 5, v0          ; h
    v_bfe_u32 v6, v0, 2, 2
    v_lshl_add_u32 v6, v5, 2, v6     ; 4h+r
    v_bfe_u32 v7, v0, 4, 1
    v_lshlrev_b32 v7, 5, v7
    v_lshl_add_u32 v6, v6, 6, v7
    v_and_b32 v7, 3, v0
    v_lshl_add_u32 v6, v7, 3, v6
    v_add_u32 v2, {WPH}, v6
    v_lshrrev_b32 v6, 2, v0
    v_lshrrev_b32 v7, 4, v0
    v_xor_b32 v6, v6, v7
    v_and_b32 v6, 1, v6
    v_cmp_eq_u32 vcc, 0, v6
    v_lshlrev_b32 v5, 4, v5
    v_add_u32 v5, {ZF}, v5
    v_mov_b32 v6, {ZF+128}
    v_cndmask_b32 v7, v6, v5, vcc
    v_add_u32 v6, {KVF}, v1
    """)
    a("s_waitcnt lgkmcnt(0)")
    a("s_barrier")
    chunk()
    for u in range(2):
        for b in range(2):
            a(f"ds_read_b64_tr_b16 {v(WP+4*u+2*b,2)}, v2 offset:{((8*u+16*b) if opt.get('m16', 1) else (16*u+8*b))*64}")
    for f in range(4): a(f"ds_read_b128 {v(KVR+4*f,4)}, v6 offset:{f*1024}")
    for f in range(4): a(f"ds_read_b128 {v(ZR+4*f,4)}, v7 offset:{f*32}")
    a("s_waitcnt vmcnt(8) lgkmcnt(0)")
    def oa_block(b):
        a(f"v_mfma_f32_32x32x16_bf16 {v(PQ,16)}, {v(WP,4)}, {v(QAF+8*b,4)}, 0")
        a(f"v_mfma_f32_32x32x16_bf16 {v(PQ,16)}, {v(WP+4,4)}, {v(QAF+8*b+4,4)}, {v(PQ,16)}")
        softmax_pm(a, PQ, EP, T)
        for f in range(4):
            F = (EP if f < 2 else PQ) + 4 * (f & 1)
            a(f"v_mfma_f32_32x32x16_bf16 {v(NUM,16)}, {v(KVR+4*f,4)}, {v(F,4)}, {'0' if f == 0 else v(NUM,16)}")
            a(f"v_mfma_f32_16x16x32_bf16 {v(DEN,4)}, {v(ZR+4*f,4)}, {v(F,4)}, {'0' if f == 0 else v(DEN,4)}")
        a(f"""
        v_add_f32 v{DEN}, {f2u(1e-6)}, v{DEN}
        v_rcp_f32 v{DEN}, v{DEN}
        """)
        for r in range(0, 16, 2):
            a(f"v_pk_mul_f32 {v(NUM+r,2)}, {v(NUM+r,2)}, {v(DEN,2)} op_sel_hi:[1,0]")
        cvt_inplace(a, NUM)
        a(f"buffer_store_dwordx4 {v(NUM,4)}, v1, s[16:19], s46 offen{SC}")
        a(f"buffer_store_dwordx4 {v(NUM+4,4)}, v1, s[16:19], s46 offen offset:1024{SC}")
        a(f"s_add_u32 s46, s46, 65536")
    a("s_mov_b32 s28, 0")
    a.label("L_p2_oa")
    oa_block(0)
    for r in range(0, 24, 2): a(f"v_pk_mov_b32 {v(QAF+r,2)}, {v(QAF+8+r,2)}, {v(QAF+8+r,2)} op_sel:[0,1]")
    a(f"""
    s_add_u32 s28, s28, 1
    s_cmp_eq_u32 s28, 2
    s_cbranch_scc0 L_p2_oa1
    s_barrier
    """)
    chunk()
    a.label("L_p2_oa1")
    a("s_cmp_lt_u32 s28, 4\ns_cbranch_scc1 L_p2_oa")
    a("s_waitcnt vmcnt(12)")
    a("s_setprio 0")
    a.label("L_p2_hjoin")
    a("s_barrier")
    dyn = opt.get("dyn", 0)
    if dyn:
        L = only_w4(a)
        a(f"""
        s_memrealtime s[88:89]
        s_lshl_b32 s29, s25, 7
        s_lshl_b32 s90, s26, 3
        s_add_u32 s29, s29, s90
        s_lshl_b32 s90, s24, 2
        s_sub_u32 s29, s29, s90
        s_add_u32 s29, s29, {TSF + 4}
        v_mov_b32 v13, 0
        s_waitcnt lgkmcnt(0)
        v_mov_b32 v12, s88
        s_mov_b64 exec, 1
        buffer_store_dword v12, v13, s[16:19], s29 offen sc0 sc1
        s_mov_b64 exec, -1
        """)
        a.label(L)
    a("s_mov_b32 s33, s24")
    p3_helper_setup(a, opt)
    nv = opt.get("nv", 0)
    n1 = p3_wv_loads(a, opt, 5, 5 + nv // 2)
    if opt.get("wearly", 1) and not dyn:
        p3_gw(a, 0); p3_gw(a, 4); n1 += 8
    WB(n1)
    a("s_cmp_eq_u32 s33, 0\ns_cbranch_scc1 L_p2_hdone")
    publish(a, 56, n=4, inc=2)
    a.label("L_p2_hdone")
    p3_wv_loads(a, opt, 5 + nv // 2, 5 + nv)

NS = 5
ACC3 = 72
OS = [8, 16, 24, 32]; WSR = [40, 48, 56, 64]
MIX = [1]
def p3_ids(a):
    if MIX[0]:
        a(f"""
        s_mov_b32 s24, s99               ; branch
        s_and_b32 s25, s3, 3
        s_lshl_b32 s25, s25, 2
        s_bfe_u32 s29, s2, 0x20004
        s_add_u32 s25, s25, s29
        s_and_b32 s26, s3, 4
        s_lshr_b32 s29, s2, 6
        s_add_u32 s26, s26, s29
        """)
        return
    a(f"""
    s_lshr_b32 s24, s3, 2            ; branch
    s_and_b32 s25, s3, 3
    s_lshl_b32 s25, s25, 2
    s_bfe_u32 s29, s2, 0x20003
    s_add_u32 s25, s25, s29
    s_lshr_b32 s26, s2, 5
    """)

def p3_compute(a, opt):
    a("s_waitcnt lgkmcnt(0)")
    p3_ids(a)
    a(f"""
    s_lshr_b32 s36, s27, 1           ; tw
    s_and_b32 s37, s27, 1            ; cw
    v_lshlrev_b32 v1, 4, v0
    s_lshl_b32 s29, s36, 13
    v_add_u32 v1, s29, v1
    v_lshrrev_b32 v2, 5, v0          ; h
    v_bfe_u32 v3, v0, 2, 2           ; r
    v_lshl_add_u32 v4, v2, 2, v3
    v_lshlrev_b32 v4, 8, v4
    s_lshl_b32 s29, s37, 1
    v_xor_b32 v3, s29, v3
    v_lshl_add_u32 v4, v3, 6, v4
    v_bfe_u32 v5, v0, 4, 1
    v_lshl_add_u32 v4, v5, 5, v4
    v_and_b32 v5, 3, v0
    v_lshl_add_u32 v4, v5, 3, v4
    v_add_u32 v2, 16384, v4
    v_xor_b32 v3, 64, v2
    s_mov_b32 s30, 0
    v_mov_b32 v4, v1
    v_mov_b32 v5, v2
    v_mov_b32 v6, v3
    s_mov_b32 s28, 16
    """)
    for r in range(ACC3, ACC3 + 64): a(f"v_mov_b32 v{r}, 0")
    def reads(st, c):
        O = OS[st]; W = WSR[st]
        o = [f"ds_read_b128 {v(O+4*i,4)}, v4 offset:{i*4096+c*1024}" for i in range(2)]
        w = [f"ds_read_b64_tr_b16 {v(W+4*cb+2*b,2)}, v{5+cb} offset:{(16*c+8*b)*256}" for cb in range(2) for b in range(2)]
        return [w[0], w[1], o[0], o[1], w[2], w[3]]
    def mf(st):
        O = OS[st]; W = WSR[st]
        return [f"v_mfma_f32_32x32x16_bf16 {v(ACC3+16*(2*i+cb),16)}, {v(W+4*cb,4)}, {v(O+4*i,4)}, {v(ACC3+16*(2*i+cb),16)}"
                for cb in range(2) for i in range(2)]
    a("s_waitcnt vmcnt(0)")
    stamp(a, opt, 7)
    a("s_barrier")
    stamp(a, opt, 8)
    a("s_barrier")
    stamp(a, opt, 9)
    for r in reads(0, 0) + reads(1, 1): a(r)
    a.raw(".p2align 6")
    a.label("L_p3_loop", keep_hist=True)
    start = len(a.lines)
    for c in range(4):
        M = mf(c); R = reads((c + 2) & 3, (c + 2) & 3)
        a("s_waitcnt lgkmcnt(6)")
        a(M[0])
        if c == 2: a("s_barrier")
        a(R[0]); a(R[1])
        a(M[1])
        a(R[2]); a(R[3])
        a(M[2])
        a(R[4]); a(R[5])
        if c == 1:
            a(f"""
            s_add_u32 s30, s30, {SLOT}
            s_cmp_eq_u32 s30, {SLOT*NS}
            s_cselect_b32 s30, 0, s30
            """)
        a(M[3])
        if c == 1:
            a("""
            v_add_u32 v4, s30, v1
            v_add_u32 v5, s30, v2
            v_add_u32 v6, s30, v3
            """)
        if c == 3:
            a("s_sub_u32 s28, s28, 1")
            a("s_cmp_lg_u32 s28, 0")
    a("s_cbranch_scc1 L_p3_loop")
    assert check_loop(a.lines[start:]) == (0, 0)
    a("s_waitcnt lgkmcnt(0)")
    stamp(a, opt, 10)
    RS = 144
    a(f"""
    s_lshl_b32 s38, s25, 7
    s_lshl_b32 s29, s36, 6
    s_add_u32 s38, s38, s29          ; token0
    s_lshl_b32 s38, s38, 12
    s_lshl_b32 s29, s24, 11
    s_add_u32 s38, s38, s29
    s_lshl_b32 s29, s26, 8
    s_add_u32 s38, s38, s29
    s_lshl_b32 s29, s37, 7
    s_add_u32 s38, s38, s29
    s_mul_i32 s29, s27, {64*RS}
    s_add_u32 s29, s29, {2*SLOT}
    v_and_b32 v1, 31, v0
    v_mul_u32_u24 v1, {RS}, v1
    v_lshrrev_b32 v2, 5, v0
    v_lshl_add_u32 v1, v2, 3, v1
    v_add_u32 v1, s29, v1
    v_lshrrev_b32 v2, 3, v0
    v_and_b32 v3, 7, v0
    v_mul_u32_u24 v4, {RS}, v2
    v_lshl_add_u32 v4, v3, 4, v4
    v_add_u32 v4, s29, v4
    v_lshlrev_b32 v2, 12, v2
    v_lshl_add_u32 v2, v3, 4, v2
    """)
    for i in range(2):
        for cb in range(2):
            D = ACC3 + 16 * (2 * i + cb)
            for r in range(8): a(f"v_cvt_pk_bf16_f32 v{D+r}, v{D+2*r}, v{D+2*r+1}")
            for g in range(4):
                a(f"ds_write_b64 v1, {v(D+2*g,2)} offset:{i*32*RS + cb*64 + g*16}")
        for q in range(4):
            a(f"ds_read_b128 {v(8+16*i+4*q,4)}, v4 offset:{(i*32+q*8)*RS}")
    for i in range(2):
        for q in range(4):
            a(f"s_waitcnt lgkmcnt({(3-q) + (12 if i == 0 else 0)})")
            a(f"buffer_store_dwordx4 {v(8+16*i+4*q,4)}, v2, s[56:59], s38 offen{SC}")
            a(f"s_add_u32 s38, s38, {8*4096}")

def p3_compute16(a, opt):
    OSET = [8, 24]; WSET = [40, 56]
    a(f"""
    s_lshl_b32 s49, s25, 1
    s_lshr_b32 s29, s27, 1
    s_add_u32 s49, s49, s29
    s_lshl_b32 s49, s49, 7
    s_lshl_b32 s29, s34, 2
    s_add_u32 s49, s49, s29
    s_add_u32 s49, s49, {F2H}
    s_waitcnt lgkmcnt(0)
    """)
    p3_ids(a)
    a(f"""
    s_lshr_b32 s36, s27, 1           ; tw
    s_and_b32 s37, s27, 1            ; cw
    v_and_b32 v7, 15, v0             ; t
    v_lshrrev_b32 v6, 4, v0          ; g
    v_lshlrev_b32 v1, 4, v7
    v_lshl_add_u32 v1, v6, 9, v1
    s_lshl_b32 s29, s36, 13
    v_add_u32 v1, s29, v1
    v_bfe_u32 v3, v0, 2, 3           ; 4(g&1) + r
    v_lshrrev_b32 v2, 5, v0
    v_lshl_add_u32 v2, v2, 4, v3     ; row = 16(g>>1) + 4(g&1) + r
    v_lshlrev_b32 v2, 8, v2
    s_lshl_b32 s29, s37, 2
    v_xor_b32 v3, s29, v3
    v_lshl_add_u32 v2, v3, 5, v2
    v_and_b32 v3, 3, v0
    v_lshl_add_u32 v2, v3, 3, v2
    v_add_u32 v2, 16384, v2
    s_mov_b32 s30, 0
    v_mov_b32 v3, v1
    v_mov_b32 v4, v2
    v_xor_b32 v5, 32, v2
    v_xor_b32 v6, 64, v2
    v_xor_b32 v7, 0x60, v2
    s_mov_b32 s28, 16
    """)
    for r in range(ACC3, ACC3 + 64): a(f"v_mov_b32 v{r}, 0")
    def reads(st, sp):
        O = OSET[st]; W = WSET[st]
        o = [f"ds_read_b128 {v(O+4*i,4)}, v3 offset:{(i>>1)*4096 + sp*2048 + (i&1)*256}" for i in range(4)]
        w = [[f"ds_read_b64_tr_b16 {v(W+4*cb+2*b,2)}, v{4+cb} offset:{(32*sp+8*b)*256}" for b in range(2)] for cb in range(4)]
        return w[0] + [o[0], o[1]] + [o[2], o[3]] + w[1] + w[2] + w[3]
    def mf(st):
        O = OSET[st]; W = WSET[st]
        return [f"v_mfma_f32_16x16x32_bf16 {v(ACC3+16*i+4*cb,4)}, {v(W+4*cb,4)}, {v(O+4*i,4)}, {v(ACC3+16*i+4*cb,4)}"
                for cb in range(4) for i in range(4)]
    a(f"""
    v_mov_b32 v8, 1
    v_lshlrev_b32 v9, 11, v0
    s_waitcnt vmcnt(0)
    s_mov_b64 exec, 15
    buffer_atomic_add v8, v9, s[16:19], s49 offen sc1
    s_mov_b64 exec, -1
    """)
    stamp(a, opt, 7)
    a("s_barrier")
    stamp(a, opt, 8)
    a("s_barrier")
    stamp(a, opt, 9)
    for r in reads(0, 0): a(r)
    a.raw(".p2align 6")
    a.label("L_p3_loop", keep_hist=True)
    start = len(a.lines)
    for sp in range(2):
        M = mf(sp); R = reads(sp ^ 1, sp ^ 1)
        if opt.get("p3x") == 1: M = ["s_nop 0"] * 16
        extra = {n: [] for n in range(16)}
        for k, r in enumerate(R): extra[1 + k].append(r)
        if sp == 1: extra[0].append("s_barrier")
        if sp == 0:
            extra[0] += [f"s_add_u32 s30, s30, {SLOT}", f"s_cmp_eq_u32 s30, {SLOT*NS}"]
            extra[1].append("s_cselect_b32 s30, 0, s30")
            extra[13] += ["v_add_u32 v3, s30, v1", "v_add_u32 v4, s30, v2"]
            extra[14] += ["v_xor_b32 v5, 32, v4", "v_xor_b32 v6, 64, v4"]
            extra[15] += ["v_xor_b32 v7, 0x60, v4"]
        else:
            extra[14] += ["s_sub_u32 s28, s28, 1", "s_cmp_lg_u32 s28, 0"]
        waits = {0: 6, 4: 4 + 3, 8: 2 + 7, 12: 0 + 11}
        for n in range(16):
            if n in waits: a(f"s_waitcnt lgkmcnt({waits[n]})")
            a(M[n])
            for x in extra[n]: a(x)
    a("s_cbranch_scc1 L_p3_loop")
    assert check_loop(a.lines[start:]) == (0, 0)
    a("s_waitcnt lgkmcnt(0)")
    stamp(a, opt, 10)
    RS = 144
    a(f"""
    s_lshl_b32 s38, s25, 7
    s_lshl_b32 s29, s36, 6
    s_add_u32 s38, s38, s29          ; token0
    s_lshl_b32 s38, s38, 12
    s_lshl_b32 s29, s24, 11
    s_add_u32 s38, s38, s29
    s_lshl_b32 s29, s26, 8
    s_add_u32 s38, s38, s29
    s_lshl_b32 s29, s37, 7
    s_add_u32 s38, s38, s29
    s_mul_i32 s29, s27, {64*RS}
    s_add_u32 s29, s29, {2*SLOT}
    v_and_b32 v1, 15, v0
    v_mul_u32_u24 v1, {RS}, v1
    v_lshrrev_b32 v2, 4, v0
    v_lshl_add_u32 v1, v2, 3, v1
    v_add_u32 v1, s29, v1
    v_lshrrev_b32 v2, 3, v0
    v_and_b32 v3, 7, v0
    v_mul_u32_u24 v4, {RS}, v2
    v_lshl_add_u32 v4, v3, 4, v4
    v_add_u32 v4, s29, v4
    v_lshlrev_b32 v2, 12, v2
    v_lshl_add_u32 v2, v3, 4, v2
    """)
    for i in range(4):
        D = ACC3 + 16 * i
        for r in range(8): a(f"v_cvt_pk_bf16_f32 v{D+r}, v{D+2*r}, v{D+2*r+1}")
        for cb in range(4):
            a(f"ds_write_b64 v1, {v(D+2*cb,2)} offset:{i*16*RS + cb*32}")
        for q in range(2):
            a(f"ds_read_b128 {v(8+8*i+4*q,4)}, v4 offset:{(i*16+q*8)*RS}")
        if i >= 1:
            for q in range(2):
                a(f"s_waitcnt lgkmcnt({7-q})")
                a(f"buffer_store_dwordx4 {v(8+8*(i-1)+4*q,4)}, v2, s[56:59], s38 offen{SC}")
                a(f"s_add_u32 s38, s38, {8*4096}")
    for q in range(2):
        a(f"s_waitcnt lgkmcnt({1-q})")
        a(f"buffer_store_dwordx4 {v(8+24+4*q,4)}, v2, s[56:59], s38 offen{SC}")
        a(f"s_add_u32 s38, s38, {8*4096}")

def p3_helper_setup(a, opt):
    lf = opt.get("lf", " sc1")
    p3_ids(a)
    a(f"""
    s_sub_u32 s36, s27, 4            ; lw
    v_lshlrev_b32 v1, 4, v0
    v_lshrrev_b32 v2, 4, v0          ; r
    v_and_b32 v3, 15, v0             ; p
    v_lshlrev_b32 v4, {1 if opt.get("m16p3", 1) else 2}, v2
    v_xor_b32 v3, v3, v4
    v_lshlrev_b32 v3, 4, v3
    v_lshl_add_u32 v8, v2, 11, v3
    s_lshl_b32 s29, s26, 8
    s_lshl_b32 s37, s36, 15
    s_add_u32 s29, s29, s37
    v_add_u32 v8, s29, v8
    v_xor_b32 v9, {128 if opt.get("m16p3", 1) else 0}, v8
    v_add_u32 v9, 8192, v9
    v_add_u32 v10, 16384, v8
    v_add_u32 v11, 16384, v9
    s_lshl_b32 s38, s25, 2
    s_add_u32 s38, s38, s36          ; tb
    s_lshl_b32 s38, s38, 16
    s_lshl_b32 s29, s24, 22
    s_add_u32 s38, s38, s29
    s_add_u32 s38, s38, {O_OFF}      ; O soffset
    s_lshl_b32 s37, s36, 12          ; lw*4096
    s_add_u32 s40, s37, {SLOT*NS}
    """)
    a(f"""
    {"s_lshr_b32 s42, s3, 1" if opt.get("rot", 1) == 1 else "s_lshr_b32 s42, s2, 6"}
    s_lshl_b32 s42, s42, {3 if opt.get("rot", 1) == 3 else 2}
    s_add_u32 s42, s42, 4
    s_and_b32 s42, s42, {15 if opt.get("rot", 1) else 0}
    s_mov_b32 s44, s42
    s_add_u32 s45, s42, 4
    s_and_b32 s45, s45, 15
    s_add_u32 s46, s42, 8
    s_and_b32 s46, s46, 15
    s_add_u32 s47, s42, 12
    s_and_b32 s47, s47, 15
    s_mov_b32 s30, s37
    s_mov_b32 s48, 0
    """)

def p3_gw(a, t):
    a(f"s_add_u32 s41, s{44 + (t >> 2)}, {t & 3}\ns_lshl_b32 s39, s41, 17")
    for n in range(4):
        a(f"s_add_u32 m0, s37, {t*SLOT+16384+n*1024}")
        a(f"buffer_load_dwordx4 v{8+n}, s[52:55], s39 offen lds")

WV0 = 16
def p3_wv_loads(a, opt, t0, t1):
    for t in range(t0, t1):
        a(f"s_add_u32 s41, s42, {t}\ns_and_b32 s41, s41, 15\ns_lshl_b32 s39, s41, 17")
        for n in range(4):
            a(f"buffer_load_dwordx4 {v(WV0+16*(t-5)+4*n,4)}, v{8+n}, s[52:55], s39 offen")
    return 4 * (t1 - t0)

def p3_helper(a, opt):
    lf = opt.get("lf", " sc1")
    def stg(t):
        a(f"s_add_u32 s41, s{44 + (t >> 2)}, {t & 3}")
    def GWs(t):
        stg(t)
        a("s_lshl_b32 s39, s41, 17")
        for n in range(4):
            a(f"s_add_u32 m0, s37, {t*SLOT+16384+n*1024}")
            a(f"buffer_load_dwordx4 v{8+n}, s[52:55], s39 offen lds")
    def GOs(t):
        stg(t)
        a(f"s_add_u32 m0, s37, {t*SLOT}\ns_lshl_b32 s29, s41, 12\ns_add_u32 s29, s29, s38")
        for n in range(4): a(f"buffer_load_dwordx4 v1, s[16:19], s29 offen offset:{n*1024}{lf} lds")
    def hm(t, n):
        a("s_mov_b32 s93, 0")
        for k in range(n):
            stg(t + k)
            a("s_lshl_b32 s29, s41, 1\ns_lshl_b32 s29, 3, s29\ns_or_b32 s93, s93, s29")
    def G():
        a(f"""
        s_and_b32 s41, s43, 15
        s_add_u32 s43, s43, 1
        s_lshl_b32 s39, s41, 17
        s_lshl_b32 s29, s41, 1
        s_lshl_b32 s93, 3, s29
        """)
        for n in range(4):
            a(f"s_add_u32 m0, s30, {16384+n*1024}")
            a(f"buffer_load_dwordx4 v{8+n}, s[52:55], s39 offen lds")
        need_mask(a)
        a(f"""
        s_lshl_b32 s29, s41, 12
        s_mov_b32 m0, s30
        s_add_u32 s29, s29, s38
        """)
        for n in range(4): a(f"buffer_load_dwordx4 v1, s[16:19], s29 offen offset:{n*1024}{lf} lds")
        a(f"""
        s_add_u32 s30, s30, {SLOT}
        s_cmp_eq_u32 s30, s40
        s_cselect_b32 s30, s37, s30
        """)
    code_pf(a, opt, 249)
    dyn = opt.get("dyn", 0)
    if dyn:
        L = only_w4(a)
        a(f"""
        s_lshr_b32 s29, s25, 1
        s_lshl_b32 s29, s29, 7
        s_add_u32 s29, s29, {TSF}
        v_lshlrev_b32 v13, 5, v0
        s_sleep {opt.get("dsl", 16)}
        s_mov_b64 exec, 15
        buffer_load_dword v12, v13, s[16:19], s29 offen sc0 sc1
        s_mov_b64 exec, -1
        s_waitcnt vmcnt(0)
        s_memrealtime s[88:89]
        v_lshlrev_b32 v13, 2, v0
        v_subrev_u32 v13, s42, v13
        v_and_b32 v13, 12, v13
        s_waitcnt lgkmcnt(0)
        v_sub_u32 v12, s88, v12          ; age
        v_cmp_gt_u32 vcc, 2000, v12
        v_sub_u32 v12, 2000, v12
        v_mov_b32 v14, 4000
        v_cndmask_b32 v12, v14, v12, vcc
        v_mul_u32_u24 v12, s24, v12
        v_lshrrev_b32 v12, {opt.get("dq", 3)}, v12
        v_lshl_or_b32 v12, v12, 4, v13
        v_lshl_or_b32 v12, v12, 2, v0
        v_readlane_b32 s44, v12, 0
        v_readlane_b32 s45, v12, 1
        v_readlane_b32 s46, v12, 2
        v_readlane_b32 s47, v12, 3
        """)
        for x, y in ((44, 45), (46, 47), (44, 46), (45, 47), (45, 46)):
            a(f"s_min_u32 s29, s{x}, s{y}\ns_max_u32 s{y}, s{x}, s{y}\ns_mov_b32 s{x}, s29")
        a("s_mov_b32 s29, 0")
        for k in range(4):
            a(f"s_and_b32 s{44+k}, s{44+k}, 3\ns_lshl_b32 s{44+k}, s{44+k}, {4*k+2}\ns_or_b32 s29, s29, s{44+k}")
        a(f"""
        v_mov_b32 v12, s29
        v_mov_b32 v13, {ORDW}
        ds_write_b32 v13, v12
        s_waitcnt lgkmcnt(0)
        """)
        a.label(L)
        a("s_barrier")
        a(f"""
        v_mov_b32 v13, {ORDW}
        ds_read_b32 v12, v13
        s_waitcnt lgkmcnt(0)
        v_readfirstlane_b32 s29, v12
        """)
        for k in range(4): a(f"s_bfe_u32 s{44+k}, s29, {0x40000 + 4*k}")
        GWs(0); GWs(1); GWs(2); GWs(4)
    elif opt.get("wearly", 1):
        GWs(1)
        a("s_barrier")
        GWs(2)
    else:
        GWs(4)
        a("s_barrier")
        GWs(0); GWs(1); GWs(2)
    look(a)
    n0 = opt.get("n0", 3)
    hm(0, n0)
    a(f"""
    s_andn2_b32 s88, s93, s92
    s_cbranch_scc1 L_p3_notyet
    s_mov_b32 s48, 1
    """)
    for t in range(n0): GOs(t)
    a.label("L_p3_notyet")
    a("s_barrier")
    stamp(a, opt, 7)
    GWs(3)
    a(f"""
    s_cmp_lg_u32 s48, 0
    s_cbranch_scc1 L_p3_have
    """)
    need_mask(a)
    stamp(a, opt, 8)
    for t in range(n0): GOs(t)
    a.label("L_p3_have")
    a(f"s_waitcnt vmcnt({4*(n0-1)})")
    a("s_barrier")
    if n0 == 2:
        hm(2, 1); need_mask(a); GOs(2)
        a("s_waitcnt vmcnt(4)")
        a("s_barrier")
        hm(3, 2); need_mask(a); GOs(3); GOs(4)
    else:
        hm(3, 1); need_mask(a); GOs(3)
        a("s_waitcnt vmcnt(8)")
        a("s_barrier")
        hm(4, 1); need_mask(a); GOs(4)
    nv = opt.get("nv", 0)
    a("v_add_u32 v12, s37, v1")
    cnt = {2: 4, 3: 4, 4: 4}
    for tau in range(2, 16):
        allowed = sum(cnt.get(k, 0) for k in (tau + 1, tau + 2))
        a(f"s_waitcnt vmcnt({allowed}) lgkmcnt(0)")
        a("s_barrier")
        t = tau + 3
        if t > 15: continue
        slot = (t % NS) * SLOT
        if t < 5 + nv:
            if slot + 16384 + 3072 > 65535:
                a(f"v_add_u32 v13, {slot + 16384}, v12")
                for n in range(4): a(f"ds_write_b128 v13, {v(WV0+16*(t-5)+4*n,4)} offset:{n*1024}")
            else:
                for n in range(4): a(f"ds_write_b128 v12, {v(WV0+16*(t-5)+4*n,4)} offset:{slot+16384+n*1024}")
            cnt[t] = 4
        else:
            stg(t)
            a("s_lshl_b32 s39, s41, 17")
            for n in range(4):
                a(f"s_add_u32 m0, s37, {slot+16384+n*1024}")
                a(f"buffer_load_dwordx4 v{8+n}, s[52:55], s39 offen lds")
            cnt[t] = 8
        hm(t, 1)
        need_mask(a)
        a(f"s_add_u32 m0, s37, {slot}\ns_lshl_b32 s29, s41, 12\ns_add_u32 s29, s29, s38")
        if opt.get("p3x") == 2: cnt[t] -= 4
        else:
            for n in range(4): a(f"buffer_load_dwordx4 v1, s[16:19], s29 offen offset:{n*1024}{lf} lds")

def gen(opt):
    mp = opt.get("map", 1)
    MIX[0] = opt.get("mix", 1)
    a = Asm()
    a.raw(khead(NAME))
    a(f"""
    s_getpc_b64 s[94:95]
    """)
    a.label("L_pc", keep_hist=True)
    if opt.get("fixe"): a("s_memrealtime s[60:61]")
    a(f"""
    s_cmp_ge_u32 s2, 256
    s_cbranch_scc1 L_end
    s_and_b32 s3, s2, 7
    s_bfe_u32 s24, s2, {0x10003 if mp == 1 else 0x10002}
    s_lshl_b32 s29, s24, 5
    s_load_dwordx4 s[4:7], s[0:1], s29
    s_load_dwordx2 s[32:33], s[0:1], 72
    s_load_dwordx2 s[34:35], s[0:1], 16
    {"s_lshr_b32 s99, s3, 2" if not MIX[0] else ("s_mov_b32 s99, s24" if MIX[0] == 1 else "s_xor_b32 s99, s24, 1")}
    s_mul_i32 s29, s99, 24
    s_add_u32 s29, s29, 24
    s_load_dwordx2 s[52:53], s[0:1], s29
    s_load_dwordx4 s[44:47], s[0:1], 56
    s_and_b32 s25, s3, 1
    s_lshl_b32 s25, s25, 2
    s_bfe_u32 s29, s2, {0x20004 if mp == 1 else 0x20003}
    s_add_u32 s25, s25, s29          ; tt
    s_bfe_u32 s26, s3, {0x20001 if mp == 1 else 0x10001}
    s_lshl_b32 s26, s26, {2 if mp == 1 else 3}
    s_lshr_b32 s29, s2, {6 if mp == 1 else 5}
    s_add_u32 s26, s26, s29          ; ct
    v_lshrrev_b32 v1, 6, v0
    v_and_b32 v0, 63, v0
    v_readfirstlane_b32 s27, v1
    s_lshl_b32 s29, s25, 19
    s_mov_b32 s10, 0x80000
    s_mov_b32 s11, 0x20000
    s_mov_b32 s14, 0x600000
    s_mov_b32 s15, 0x20000
    s_mov_b32 s18, 0x10000000
    s_mov_b32 s19, 0x20000
    s_mov_b32 s22, 0x10000
    s_mov_b32 s23, 0x20000
    s_mov_b32 s54, 0x200000
    s_mov_b32 s55, 0x20000
    s_mov_b32 s58, 0x800000
    s_mov_b32 s59, 0x20000
    s_mov_b32 s86, 256
    s_mov_b32 s87, 0x20000
    s_waitcnt lgkmcnt(0)
    s_add_u32 s8, s4, s29
    s_addc_u32 s9, s5, 0
    s_mov_b32 s12, s6
    s_mov_b32 s13, s7
    s_mov_b32 s16, s32
    s_mov_b32 s17, s33
    s_mov_b32 s20, s34
    s_mov_b32 s21, s35
    s_mov_b32 s56, s44
    s_mov_b32 s57, s45
    s_mov_b32 s84, s46
    s_mov_b32 s85, s47
    """)
    for i in range(12): stamp(a, opt, i)
    if opt.get("fixt") and not opt.get("fixe") and opt.get("fixp") is None: a("s_memrealtime s[60:61]\ns_waitcnt lgkmcnt(0)")
    a("s_cmp_lt_u32 s27, 4\ns_cbranch_scc1 L_compute")
    if opt.get("hp1"): a(f"s_setprio {opt['hp1']}")
    p1_helper(a, opt)
    p2_helper(a, opt)
    p3_helper(a, opt)
    a("s_branch L_fin")
    a.label("L_compute")
    p1_compute(a, opt)
    p2_compute(a, opt)
    (p3_compute16 if opt.get("m16p3", 1) else p3_compute)(a, opt)
    a.label("L_fin")
    if opt.get("fixt"):
        a("s_cmp_ge_u32 s27, 4\ns_cbranch_scc1 L_end")
        if opt.get("fixw") is not None: a(f"s_cmp_lg_u32 s2, {opt['fixw']}\ns_cbranch_scc1 L_end")
        a.label("L_fixt")
        a(f"""
        s_memrealtime s[62:63]
        s_waitcnt lgkmcnt(0)
        s_sub_u32 s62, s62, s60
        s_cmp_lt_u32 s62, {opt["fixt"]}
        s_cbranch_scc1 L_fixt
        """)
    stamp_out(a, opt)
    a.label("L_end")
    a("s_endpgm")
    return a.text()

if __name__ == "__main__":
    import json, subprocess
    out = sys.argv[1]
    opt = json.loads(sys.argv[2]) if len(sys.argv) > 2 else {}
    HEADER = open("concat_heads__linear_kernel_hedgehog__mha_block__prompt.s.ref").read().split("; Override launch")[0]
    launch = f"; @launch kernel={NAME} grid=(256,1,1) block=(512,1,1) lds=163840" if opt.get("list", 1) else "; @launch grid=(256,1,1) block=(512,1,1) lds=163840"
    s = HEADER + launch + '\n.amdgcn_target "amdgcn-amd-amdhsa--gfx950"\n.text\n' + gen(opt) + '.section .rodata,"a"\n' + kdesc(NAME, 256, 102)
    open(out, "w").write(s)
    r = subprocess.run(["clang", "-x", "assembler", "-target", "amdgcn-amd-amdhsa", "-mcpu=gfx950", "-c", out, "-o", "_b.o"], capture_output=True, text=True)
    if r.returncode != 0:
        print(r.stderr[:1500]); raise SystemExit(1)
```

```python
from asmlib import *
import math, sys
import k1
from k1 import (QB_OFF, KVB_OFF, QA_OFF, KVP_OFF, ZP_OFF, O_OFF, LOG2E, f2u, softmax_pm, cvt_inplace,
                W_SLOT, NW, X_BASE, X_SLOT, NX, WPHI_LDS, ACCQ, ACCK, ACCV, reads as p1_reads, mfmas as p1_mfmas,
                epi_A, epi_B, epiA_setup, pk_mfma, phi_write, KH, TT, PH_BLK, Rec, epi_A16)
import p1v16

NAME = "concat_heads__linear_kernel_hedgehog__mha_block__prompt_kernel"
FLG = 29 << 20
F1A, F2B, F2A = FLG + 2048, FLG + 4096, FLG + 5120
F1B = FLG + 16384
F1C = F1B + 16384
F2H = FLG + 49152
TSF = FLG + 12288
ORDW = 138240
QL0 = 139264
STAMP_OFF = 30 << 20
VSNAP, VFA, VPOL = 250, 251, 252
SC = " sc0 sc1"

def stamp(a, opt, idx):
    if not opt.get("stamp"): return
    a(f"{'s_memtime' if opt.get('cyc') else 's_memrealtime'} s[{60+2*idx}:{61+2*idx}]")
    a("s_waitcnt lgkmcnt(0)")
def stamp_out(a, opt):
    if not opt.get("stamp"): return
    a("s_waitcnt vmcnt(0)")
    stamp(a, opt, 11)
    if opt.get("stamp") == 2:
        a("s_cmp_lg_u32 s27, 0\ns_cbranch_scc1 L_end\nv_mov_b32 v9, 0\ns_mov_b64 exec, 1")
        for i in range(1, 12):
            a(f"s_sub_u32 s29, s{60+2*i}, s60")
            a("v_mov_b32 v8, s29")
            a(f"buffer_atomic_umax v8, v9, s[84:87], 0 offen offset:{4*i} sc1")
        a("s_not_b32 s29, s60\nv_mov_b32 v8, s29\nbuffer_atomic_umax v8, v9, s[84:87], 0 offen offset:48 sc1")
        a("v_mov_b32 v8, s82\nbuffer_atomic_umax v8, v9, s[84:87], 0 offen offset:52 sc1")
        a("v_mov_b32 v8, s60\nbuffer_atomic_umax v8, v9, s[84:87], 0 offen offset:56 sc1")
        return
    a(f"""
    s_lshl_b32 s29, s2, 3
    s_add_u32 s29, s29, s27
    s_lshl_b32 s29, s29, 6
    s_add_u32 s29, s29, {STAMP_OFF}
    v_mov_b32 v9, 0
    """)
    for i in range(12):
        a(f"v_mov_b32 v8, s{60+2*i}")
        a(f"buffer_store_dword v8, v9, s[16:19], s29 offen offset:{4*i}")

def code_pf(a, opt, junk):
    if not opt.get("cpf", 1): return 0
    a(f"""
    s_and_b32 s29, s27, 3
    s_lshl_b32 s29, s29, 13
    v_lshlrev_b32 v{junk}, 7, v0
    v_add_u32 v{junk}, s29, v{junk}
    v_min_u32 v{junk}, L_end-L_pc, v{junk}
    global_load_dword v{junk}, v{junk}, s[94:95]
    """)
    return 1

_uid = [0]
def only_w4(a):
    _uid[0] += 1
    L = f"L_w4_{_uid[0]}"
    a(f"s_cmp_lg_u32 s27, 4\ns_cbranch_scc1 {L}")
    return L
def poll(a, lo, n, cnt=None):
    L = only_w4(a)
    mask = ((1 << n) - 1) << lo
    a(f"""
    s_mov_b32 s88, {mask & 0xffffffff}
    s_mov_b32 s89, {mask >> 32}
    s_mov_b32 s90, 0x40000
    s_mov_b64 exec, s[88:89]
    """)
    a.label(L + "p")
    a(f"""
    buffer_load_dword v{VPOL}, v{VFA}, s[16:19], 0 offen sc0 sc1
    s_waitcnt vmcnt(0)
    v_sub_u32 v{VPOL}, v{VPOL}, v{VSNAP}
    v_cmp_ne_u32 vcc, {cnt}, v{VPOL}
    s_sub_u32 s90, s90, 1
    s_cbranch_scc1 {L}d
    s_cbranch_vccz {L}d
    s_sleep 1
    s_branch {L}p
    """)
    a.label(L + "d")
    a("s_mov_b64 exec, -1")
    a.label(L)
def need_chunk(a, single=False):
    _uid[0] += 1
    L = f"L_nc_{_uid[0]}"
    a(f"""
    s_bitcmp1_b32 s92, s93
    s_cbranch_scc1 {L}
    s_mov_b32 s90, 0x40000
    s_lshl_b64 s[88:89], 1, s93
    s_mov_b64 exec, {"s[88:89]" if single else "0xff"}
    """)
    a.label(L + "p")
    a(f"""
    buffer_load_dword v{VPOL}, v{VFA}, s[16:19], 0 offen sc0 sc1
    s_waitcnt vmcnt(0)
    v_cmp_ne_u32 vcc, v{VPOL}, v{VSNAP}
    s_sub_u32 s90, s90, 1
    s_cbranch_scc1 {L}d
    s_or_b32 s92, s92, vcc_lo
    s_mov_b64 exec, s[88:89]
    s_bitcmp1_b32 s92, s93
    s_cbranch_scc1 {L}d
    s_sleep 2
    s_branch {L}p
    """)
    a.label(L + "d")
    a("s_mov_b64 exec, -1")
    a.label(L)
def look(a):
    a(f"""
    s_mov_b32 exec_lo, 0xffff0000
    s_mov_b32 exec_hi, 0xffff
    buffer_load_dword v{VPOL}, v{VFA}, s[16:19], 0 offen sc0 sc1
    s_waitcnt vmcnt(0)
    v_sub_u32 v{VPOL}, v{VPOL}, v{VSNAP}
    v_cmp_eq_u32 vcc, 2, v{VPOL}
    s_mov_b64 exec, -1
    s_lshr_b64 s[88:89], vcc, 16
    s_mov_b32 s92, s88
    """)
def need_mask(a):
    _uid[0] += 1
    L = f"L_nm_{_uid[0]}"
    a("s_mov_b32 s90, 0x40000")
    a.label(L + "p")
    a(f"""
    s_andn2_b32 s88, s93, s92
    s_cbranch_scc0 {L}
    s_sub_u32 s90, s90, 1
    s_cbranch_scc1 {L}
    """)
    look(a)
    a(f"s_branch {L}p")
    a.label(L)

def publish(a, lane, all_helpers=False, n=1, inc=1):
    L = None if all_helpers else only_w4(a)
    a(f"""
    v_add_u32 v{VPOL}, {inc}, v{VSNAP}
    s_mov_b32 exec_lo, 0
    s_mov_b32 exec_hi, {((1 << n) - 1) << (lane - 32)}
    buffer_store_dword v{VPOL}, v{VFA}, s[16:19], 0 offen sc0 sc1
    s_mov_b64 exec, -1
    """)
    if L: a.label(L)

def p1_setup32(a):
    a(f"""
    s_lshr_b32 s36, s27, 1          ; tw
    s_and_b32 s37, s27, 1           ; hd
    v_and_b32 v8, 31, v0            ; n
    v_lshrrev_b32 v9, 5, v0         ; h
    v_bfe_u32 v10, v8, 1, 3         ; f
    v_xor_b32 v10, v10, v9
    v_lshlrev_b32 v10, 4, v10
    s_lshl_b32 s29, s36, 14
    v_lshlrev_b32 v11, 7, v8
    v_add3_u32 v1, v11, v10, s29
    v_xor_b32 v2, 32, v1
    v_xor_b32 v3, 64, v1
    v_xor_b32 v4, 0x60, v1
    v_bfe_u32 v10, v0, 2, 2         ; r
    v_lshl_add_u32 v11, v9, 3, v10
    v_lshlrev_b32 v11, 7, v11
    v_lshrrev_b32 v10, 1, v10
    v_xor_b32 v10, s37, v10
    v_lshl_add_u32 v11, v10, 6, v11
    v_bfe_u32 v10, v0, 4, 1
    v_lshl_add_u32 v11, v10, 5, v11
    v_and_b32 v10, 3, v0
    v_lshl_add_u32 v5, v10, 3, v11
    s_mov_b32 s30, {X_BASE}
    s_mov_b32 s31, 0
    v_add_u32 v6, s30, v1
    v_mov_b32 v7, v5
    s_mov_b32 s28, 16
    """)

def p1_loop32(a):
    for r in p1_reads(a, 0, 0, 0): a(r)
    a.raw(".p2align 6")
    a.label("L_p1_loop", keep_hist=True)
    start = len(a.lines)
    for c in range(4):
        st = c & 1
        M = p1_mfmas(st)
        c1 = (c + 1) & 3
        R = p1_reads(a, st ^ 1, c1, c1 & 1)
        pre = []
        if c & 1:
            pre += [f"s_add_u32 s31, s31, {W_SLOT}", f"s_cmp_eq_u32 s31, {W_SLOT*NW}", "s_cselect_b32 s31, 0, s31"]
        if c == 3:
            pre += [f"s_add_u32 s30, s30, {X_SLOT}", f"s_cmp_eq_u32 s30, {X_BASE+X_SLOT*NX}", f"s_cselect_b32 s30, {X_BASE}, s30"]
        a("s_waitcnt lgkmcnt(3)")
        a(M[0])
        for p in pre[:3]: a(p)
        a(M[1])
        for p in pre[3:]: a(p)
        if c & 1: a("v_add_u32 v7, s31, v5")
        a(f"v_add_u32 v6, s30, v{1+c1}")
        a(M[2])
        a("s_waitcnt lgkmcnt(0)")
        if c & 1: a("s_barrier")
        sched = [2, 2, 2, 2, 1, 1, 0, 0, 0]
        k = 0
        for g in range(9):
            for _ in range(sched[g]):
                a(R[k]); k += 1
            if c == 3 and g == 7:
                a("s_sub_u32 s28, s28, 1")
                a("s_cmp_lg_u32 s28, 0")
            a(M[3 + g])
    a("s_cbranch_scc1 L_p1_loop")
    assert check_loop(a.lines[start:]) == (0, 0)

def p1_compute(a, opt):
    m16 = opt.get("m16", 1)
    if m16: p1v16.setup(a)
    else: p1_setup32(a)
    code_pf(a, opt, 12)
    for r in range(64, 256): a(f"v_mov_b32 v{r}, 0")
    a("s_waitcnt vmcnt(0)")
    spf = opt.get("spf", 0)
    if spf:
        a(f"""
        s_lshr_b32 s41, s2, 4
        s_lshl_b32 s41, s41, 3
        s_add_u32 s41, s41, s3
        s_cmp_ge_u32 s27, 2
        s_cbranch_scc1 L_spf_done
        s_cmp_eq_u32 s27, 1
        s_cbranch_scc1 L_spf_x
        s_lshr_b32 s42, s41, 1
        s_lshl_b32 s42, s42, 17
        s_and_b32 s41, s41, 1
        s_lshl_b32 s41, s41, 10
        s_add_u32 s42, s42, s41
        v_lshlrev_b32 v0, 11, v0
        buffer_load_dword v0, v0, s[12:15], s42 offen offset:384
        s_branch L_spf_done
        """)
        a.label("L_spf_x")
        if spf == 1:
            a(f"""
            v_and_b32 v10, 15, v0
            v_lshlrev_b32 v10, 11, v10
            v_and_b32 v0, 16, v0
            v_lshl_add_u32 v0, v0, 6, v10
            s_lshl_b32 s42, s26, 15
            buffer_load_dword v0, v0, s[8:11], s42 offen offset:384
            """)
        a.label("L_spf_done")
    a("s_barrier")
    stamp(a, opt, 1)
    if m16: p1v16.emit_loop(a, opt)
    else: p1_loop32(a)
    a("s_waitcnt vmcnt(0) lgkmcnt(0)")
    a("v_mbcnt_lo_u32_b32 v0, -1, 0")
    a("v_mbcnt_hi_u32_b32 v0, -1, v0")
    stamp(a, opt, 2)
    a(f"""
    s_lshl_b32 s38, s26, 1
    s_add_u32 s38, s38, s37          ; head
    s_lshl_b32 s39, s25, 3
    s_lshl_b32 s29, s36, 2
    s_add_u32 s39, s39, s29          ; tb0
    s_lshl_b32 s40, s38, 6
    s_add_u32 s40, s40, s39          ; h*64+tb0
    v_lshlrev_b32 v1, 4, v0
    s_mov_b32 s91, 0
    v_and_b32 v60, 15, v0
    v_lshrrev_b32 v61, 4, v0
    v_lshlrev_b32 v60, 4, v60
    v_lshl_add_u32 v60, v61, 9, v60  ; g*512 + t*16
    s_cmp_eq_u32 s24, 0
    s_cbranch_scc1 L_p1_epiA
    """)
    epi_B_lds(a, m16)
    a("s_branch L_p1_done")
    a.label("L_p1_epiA")
    (epi_A16 if m16 else epi_A)(a, "p1", {"qlate": opt.get("qlate", 0)})
    a.label("L_p1_done")

def epi_B_lds(a, m16):
    qs = LOG2E / math.sqrt(32.0)
    a(f"""
    s_mov_b32 s44, {f2u(qs)}
    s_mov_b32 s45, {f2u(qs)}
    v_and_b32 v2, 0x33, v0
    v_and_b32 v3, 4, v0
    v_lshl_or_b32 v2, v3, 1, v2
    v_and_b32 v3, 8, v0
    v_lshrrev_b32 v3, 1, v3
    v_or_b32 v2, v2, v3
    v_lshlrev_b32 v2, 4, v2
    """)
    U = 256 if m16 else 1024
    if m16: a("v_mov_b32 v2, v60\nv_mov_b32 v1, v60")
    a(f"""
    s_cmp_lg_u32 s37, 0
    s_cbranch_scc1 L_p1_hd1
    s_lshl_b32 s41, s36, 14
    v_add_u32 v2, s41, v2
    v_add_u32 v3, s41, v1
    s_lshl_b32 s42, s36, 13
    s_add_u32 s42, s42, {QL0}
    v_add_u32 v4, s42, v1
    """)
    def conv(i):
        return ACCQ + 16 * i, ACCK + 16 * i, ACCV + 16 * i
    for i in range(4):
        Q, K, V = conv(i)
        cvt_inplace(a, K)
        a(f"ds_write_b128 v2, {v(K,4)} offset:{i*4096}")
        a(f"ds_write_b128 v2, {v(K+4,4)} offset:{i*4096+U}")
        cvt_inplace(a, V)
        a(f"ds_write_b128 v3, {v(V,4)} offset:{i*4096+2048}")
        a(f"ds_write_b128 v3, {v(V+4,4)} offset:{i*4096+2048+U}")
    a("s_waitcnt lgkmcnt(0)")
    a("s_barrier")
    for i in range(4):
        Q, K, V = conv(i)
        for r in range(0, 16, 2):
            a(f"v_pk_mul_f32 {v(Q+r,2)}, {v(Q+r,2)}, s[44:45]")
        cvt_inplace(a, Q)
        a(f"ds_write_b128 v4, {v(Q,4)} offset:{i*2048}")
        a(f"ds_write_b128 v4, {v(Q+4,4)} offset:{i*2048+U}")
    a("s_branch L_p1_done")
    a.label("L_p1_hd1")
    a(f"""
    s_lshl_b32 s41, s40, 11
    s_add_u32 s41, s41, {QB_OFF}
    s_add_u32 s42, s41, 4096
    s_lshl_b32 s43, s40, 12
    s_add_u32 s43, s43, {KVB_OFF}
    s_mov_b32 s91, 3
    """)
    for i in range(4):
        Q, K, V = conv(i)
        cvt_inplace(a, K)
        a(f"buffer_store_dwordx4 {v(K,4)}, v2, s[16:19], s43 offen{SC}")
        a(f"buffer_store_dwordx4 {v(K+4,4)}, v2, s[16:19], s43 offen offset:{U}{SC}")
        cvt_inplace(a, V)
        a(f"buffer_store_dwordx4 {v(V,4)}, v1, s[16:19], s43 offen offset:2048{SC}")
        a(f"buffer_store_dwordx4 {v(V+4,4)}, v1, s[16:19], s43 offen offset:{2048+U}{SC}")
        for r in range(0, 16, 2):
            a(f"v_pk_mul_f32 {v(Q+r,2)}, {v(Q+r,2)}, s[44:45]")
        cvt_inplace(a, Q)
        sq = "s41" if i < 2 else "s42"
        a(f"buffer_store_dwordx4 {v(Q,4)}, v1, s[16:19], {sq} offen offset:{(i&1)*2048}{SC}")
        a(f"buffer_store_dwordx4 {v(Q+4,4)}, v1, s[16:19], {sq} offen offset:{(i&1)*2048+U}{SC}")
        if i < 3: a("s_add_u32 s43, s43, 4096")
        if i == 1: a("s_barrier")

def p1_helper(a, opt):
    if opt.get("map", 1) == 1 and opt.get("koff", 2) == 1:
        a("""
        s_lshr_b32 s49, s3, 1
        s_lshl_b32 s49, s49, 2
        s_lshl_b32 s29, s3, 3
        s_add_u32 s49, s49, s29
        s_and_b32 s49, s49, 15
        """)
    else:
        a("""
        s_lshr_b32 s49, s3, 1
        s_xor_b32 s49, s49, s3
        s_and_b32 s49, s49, 1
        s_lshl_b32 s49, s49, 3
        """)
    a(f"""
    s_sub_u32 s36, s27, 4            ; lw
    v_lshrrev_b32 v1, 3, v0          ; r
    v_and_b32 v2, 7, v0              ; p
    v_lshrrev_b32 v3, 1, v1
    s_lshl_b32 s29, s36, 3
    v_add_u32 v5, s29, v1            ; 8lw + r
    v_and_b32 v6, 1, v3
    """)
    m16 = opt.get("m16", 1)
    if m16: a("s_and_b32 s29, s36, 1\ns_lshl_b32 s29, s29, 2\nv_lshl_add_u32 v6, v6, 1, s29")
    else: a("v_lshlrev_b32 v6, 2, v6")
    a(f"""
    v_xor_b32 v6, v6, v2
    v_lshlrev_b32 v6, 4, v6
    v_mul_u32_u24 v16, 6144, v5
    s_lshl_b32 s29, s26, 7
    v_add3_u32 v16, v16, v6, s29
    """)
    if opt.get("split"):
        a(f"""
        s_add_u32 s43, s26, {opt.get("split")}
        s_and_b32 s43, s43, 15
        s_sub_u32 s43, s43, s26
        s_lshl_b32 s43, s43, 1
        v_and_b32 v6, 64, v6
        v_mul_lo_u32 v6, v6, s43
        v_add_u32 v16, v16, v6
        """)
    a(f"""
    v_add_u32 v17, 2048, v16
    v_add_u32 v18, 4096, v16
    s_lshl_b32 s37, s36, 10          ; lw*1024
    s_add_u32 s30, s37, {X_BASE}
    s_mov_b32 s31, s37
    s_lshl_b32 s38, s49, 7           ; X soffset
    s_mul_i32 s39, s49, {64*6144}    ; W soffset
    s_add_u32 s40, s37, {X_BASE + NX*X_SLOT}
    s_add_u32 s41, s37, {W_SLOT*NW}
    s_add_u32 s42, s37, {X_BASE}
    """)
    def GX():
        for n in range(8):
            a(f"s_add_u32 m0, s30, {n*4096}")
            a(f"buffer_load_dwordx4 v{8+n}, s[8:11], s38 offen lds")
        a(f"""
        s_add_u32 s38, s38, 128
        s_and_b32 s38, s38, 2047
        s_add_u32 s30, s30, {X_SLOT}
        s_cmp_eq_u32 s30, s40
        s_cselect_b32 s30, s42, s30
        """)
    def GW():
        for sg in range(3):
            a(f"s_add_u32 m0, s31, {sg*4096}")
            a(f"buffer_load_dwordx4 v{16+sg}, s[12:15], s39 offen lds")
        a(f"""
        s_add_u32 s39, s39, {32*6144}
        s_cmp_eq_u32 s39, {1024*6144}
        s_cselect_b32 s39, 0, s39
        s_add_u32 s31, s31, {W_SLOT}
        s_cmp_eq_u32 s31, s41
        s_cselect_b32 s31, s37, s31
        """)
    def WB(n):
        a(f"s_waitcnt vmcnt({n})")
        a("s_barrier")
    GW()
    a(f"""
    s_and_b32 s29, s36, 1
    s_lshl_b32 s29, s29, 2
    v_add_u32 v4, s29, v3            ; f
    v_xor_b32 v4, v4, v2
    v_lshlrev_b32 v4, 4, v4
    v_lshl_add_u32 v8, v5, 11, v4
    """)
    for n in range(1, 8): a(f"v_add_u32 v{8+n}, {n*65536}, v8")
    GX(); GW()
    a(f"""
    v_lshlrev_b32 v19, 4, v0
    s_lshl_b32 s43, s26, 7
    s_add_u32 s43, s43, {FLG}        ; F1A[ct] - 2048
    s_lshl_b32 s46, s26, 10
    s_lshl_b32 s29, s36, 2
    s_add_u32 s46, s46, s29
    s_add_u32 s46, s46, {F1B}
    s_lshl_b32 s29, s24, 14
    s_sub_u32 s47, s46, s29
    s_add_u32 s47, s47, 16384
    v_lshl_add_u32 v20, v0, 7, s47
    s_add_u32 s47, s43, {2048-32}
    v_lshl_add_u32 v21, v0, 2, s47
    v_cmp_gt_u32 vcc, 8, v0
    s_and_b32 s47, s3, 3
    s_lshl_b32 s47, s47, 1
    s_bfe_u32 s29, s2, {0x10005 if MIX[0] else 0x10004}
    s_add_u32 s47, s47, s29
    v_cndmask_b32 v20, v21, v20, vcc
    s_lshl_b32 s48, s47, 1
    s_bfe_u32 s29, s2, {0x10004 if MIX[0] else 0x10003}
    s_add_u32 s48, s48, s29
    s_lshl_b32 s48, s48, 7
    s_add_u32 s48, s48, {F2H - 64}
    s_lshr_b32 s47, s47, 1
    s_lshl_b32 s47, s47, 7
    s_add_u32 s47, s47, {F2A - 64}
    s_cmp_eq_u32 s99, 0
    s_cselect_b32 s47, s47, s48
    s_lshl_b32 s29, s36, 11
    s_add_u32 s47, s47, s29
    v_lshl_add_u32 v21, v0, 2, s47   ; lanes 16..47
    v_cmp_gt_u32 vcc, 16, v0
    s_lshl_b32 s29, s25, 7
    s_add_u32 s46, s46, s29
    s_lshl_b32 s29, s25, 2
    s_add_u32 s47, s43, s29
    v_cndmask_b32 v20, v21, v20, vcc
    s_add_u32 s47, s47, 2048
    s_cmp_eq_u32 s24, 0
    s_cselect_b32 s46, s47, s46
    v_and_b32 v21, 1, v0
    v_lshl_add_u32 v21, v21, 14, s46
    v_cmp_gt_u32 vcc, 48, v0
    s_lshl_b32 s46, s26, 3
    s_lshl_b32 s29, s24, 2
    s_sub_u32 s47, s46, s29
    v_cndmask_b32 v20, v21, v20, vcc
    s_lshl_b32 s29, s25, 7
    s_add_u32 s47, s47, s29
    s_add_u32 s47, s47, {F2B + 4}
    v_and_b32 v22, 3, v0
    v_lshl_add_u32 v21, v22, 11, s47
    v_cmp_gt_u32 vcc, 52, v0
    s_and_b32 s29, s25, 1
    s_lshl_b32 s29, s29, 2
    s_add_u32 s46, s46, s29
    v_cndmask_b32 v20, v21, v20, vcc
    s_lshr_b32 s29, s25, 1
    s_lshl_b32 s29, s29, 7
    s_add_u32 s46, s46, s29
    s_add_u32 s46, s46, {F2A}
    v_lshl_add_u32 v21, v22, 11, s46
    v_cmp_gt_u32 vcc, 56, v0
    s_mov_b32 s92, 0
    s_nop 0
    v_cndmask_b32 v{VFA}, v21, v20, vcc
    """)
    gpf = opt.get("gpf", 3)
    if gpf:
        a(f"""
        s_lshr_b32 s46, s2, 4
        s_lshl_b32 s46, s46, 3
        s_add_u32 s46, s46, s3
        s_lshr_b32 s47, s46, 2
        s_mul_i32 s47, s47, {6*2048}
        s_and_b32 s29, s46, 1
        s_lshl_b32 s29, s29, 10
        s_add_u32 s47, s47, s29
        s_bfe_u32 s29, s46, 0x10001
        s_mul_i32 s29, s29, {8*192*2048}
        s_add_u32 s47, s47, s29
        s_add_u32 s51, s47, {gpf*192*2048 + 384}
        v_lshlrev_b32 v23, 11, v0
        """)
    spre = opt.get("spre", 0)
    if spre:
        a(f"""
        s_lshr_b32 s46, s2, 4
        s_lshl_b32 s46, s46, 3
        s_add_u32 s46, s46, s3
        s_lshl_b32 s47, s46, 2
        s_add_u32 s47, s47, s36
        s_lshl_b32 s47, s47, 13
        s_add_u32 s47, s47, {spre*128}
        s_add_u32 s4, s4, s47
        s_addc_u32 s5, s5, 0
        s_lshr_b32 s47, s46, 6
        s_lshl_b32 s47, s47, 9
        s_and_b32 s29, s46, 63
        s_add_u32 s47, s47, s29
        s_mul_i32 s47, s47, 6144
        s_mul_i32 s29, s36, 1536
        s_add_u32 s47, s47, s29
        s_add_u32 s47, s47, {spre*64*6144}
        s_add_u32 s6, s6, s47
        s_addc_u32 s7, s7, 0
        """)
    vpre = opt.get("vpre", 0)
    if vpre:
        a(f"""
        s_lshr_b32 s46, s2, 4
        s_lshl_b32 s46, s46, 3
        s_add_u32 s46, s46, s3
        s_lshr_b32 s47, s46, 6
        s_lshl_b32 s47, s47, 9
        s_and_b32 s29, s46, 63
        s_add_u32 s47, s47, s29
        s_add_u32 s29, s36, {vpre}
        s_lshl_b32 s96, s29, 6
        s_add_u32 s47, s47, s96
        s_mul_i32 s96, s47, 6144
        s_lshl_b32 s97, s29, 7
        s_lshl_b32 s29, s26, 15
        s_add_u32 s97, s97, s29
        v_lshlrev_b32 v24, 7, v0
        v_and_b32 v25, 15, v0
        v_lshlrev_b32 v25, 11, v25
        v_and_b32 v26, 16, v0
        v_lshl_add_u32 v25, v26, 6, v25
        """)
    def VP(k):
        if not vpre: return
        _uid[0] += 1
        L = f"L_vp_{_uid[0]}"
        a(f"""
        s_cmp_lg_u32 s36, {k}
        s_cbranch_scc1 {L}
        s_mov_b32 exec_lo, -1
        s_mov_b32 exec_hi, 0xffff
        buffer_load_dword v248, v24, s[12:15], s96 offen
        s_mov_b32 exec_hi, 0
        buffer_load_dword v248, v25, s[8:11], s97 offen
        s_mov_b64 exec, -1
        """)
        a.label(L)
    l2p = opt.get("l2p", 0)
    if l2p:
        a(f"""
        s_lshr_b32 s29, s2, 6
        s_lshl_b32 s29, s29, 17
        v_lshlrev_b32 v27, 11, v0
        v_add_u32 v27, s29, v27
        v_and_b32 v28, 15, v0
        v_lshlrev_b32 v28, 2, v28
        s_bfe_u32 s29, s2, 0x20004
        v_add_u32 v28, s29, v28
        v_mul_u32_u24 v28, 6144, v28
        v_lshrrev_b32 v29, 4, v0
        v_lshl_add_u32 v28, v29, 11, v28
        s_lshl_b32 s29, s26, 7
        v_add_u32 v28, s29, v28
        """)
    def L2P():
        if not l2p: return
        _uid[0] += 1
        L = f"L_l2_{_uid[0]}"
        a(f"""
        s_cmp_gt_u32 s28, {opt.get("l2hi", 12)}
        s_cbranch_scc1 {L}
        s_cmp_lt_u32 s28, {l2p}
        s_cbranch_scc1 {L}
        s_cmp_gt_u32 s36, 1
        s_cbranch_scc1 {L}
        s_cmp_eq_u32 s36, 1
        s_cbranch_scc1 {L}w
        s_add_u32 s29, s38, {128*(l2p-1)}
        s_and_b32 s29, s29, 2047
        buffer_load_dword v248, v27, s[8:11], s29 offen
        s_branch {L}
        """)
        a.label(L + "w")
        a(f"""
        s_add_u32 s29, s38, {128*(l2p-1)}
        s_and_b32 s29, s29, 2047
        s_mul_i32 s29, s29, {64*6144//128}
        s_mov_b32 exec_hi, 0xffff
        buffer_load_dword v248, v28, s[12:15], s29 offen
        s_mov_b64 exec, -1
        """)
        a.label(L)
    spn = [0]
    def SP():
        if not spre or spn[0] >= 2 * (8 - spre): return
        h = spn[0] & 1; spn[0] += 1
        for q in range(6): a(f"s_load_dword s98, s[6:7], {(6*h+q)*128}")
        for r in range(4): a(f"s_load_dword s98, s[4:5], {r*2048 + h*1024}")
        if h:
            a(f"""
            s_add_u32 s4, s4, 128
            s_addc_u32 s5, s5, 0
            s_add_u32 s6, s6, {64*6144}
            s_addc_u32 s7, s7, 0
            """)
    def SPF():
        if not gpf: return
        _uid[0] += 1
        L = f"L_g_{_uid[0]}"
        a(f"""
        s_cmp_lg_u32 s27, 5
        s_cbranch_scc1 {L}
        s_mov_b64 exec, 0x3f
        buffer_load_dword v248, v23, s[12:15], s51 offen
        s_mov_b64 exec, -1
        s_add_u32 s51, s51, {192*2048}
        """)
        a.label(L)
    SPF(); SP()
    a("s_waitcnt vmcnt(3)")
    a("s_barrier")
    a(f"buffer_load_dword v{VSNAP}, v{VFA}, s[16:19], 0 offen sc0 sc1")
    SPF(); GX(); GW(); SP(); VP(0); WB(11)
    SPF(); GW(); GX(); SP(); VP(1); WB(11)
    L = only_w4(a)
    a(f"""
    v_mov_b32 v20, 1
    v_mov_b32 v21, 0
    s_mov_b64 exec, 1
    buffer_atomic_add v20, v21, s[84:87], 0 offen sc1
    s_mov_b64 exec, -1
    """)
    a.label(L)
    if m16:
        SPF(); GW(); GW(); GW(); SP(); VP(2)
        npeel = (2 if gpf == 2 else 1) if gpf else 0
        if spre: npeel = max(npeel, 8 - spre - 2)
        for k in range(npeel):
            WB(17); GX(); GW(); SP(); WB(17)
            if k < ((2 if gpf == 2 else 1) if gpf else 0): SPF()
            GW(); SP()
            if k == 0: VP(3)
        a(f"s_mov_b32 s28, {12 - npeel}")
        a.label("L_p1_lloop")
        WB(17); GX(); GW(); WB(17); GW(); L2P()
        a(f"""
        s_sub_u32 s28, s28, 1
        s_cmp_lg_u32 s28, 0
        s_cbranch_scc1 L_p1_lloop
        """)
        WB(17); GX(); GW()
    else:
        SPF(); GW(); GX(); WB(19)
        GW(); GW(); GW(); WB(17)
        SPF(); GX(); GW(); WB(17)
        GW(); WB(17)
        tlb = opt.get("tlb", 0)
        if tlb:
            if tlb == 1: a("s_cmp_ge_u32 s2, 8\ns_cbranch_scc1 L_tlb_done")
            a(f"""
            s_cmp_lg_u32 s27, 4
            s_cbranch_scc1 L_tlb_1
            v_lshlrev_b32 v248, 19, v0
            buffer_load_dword v248, v248, s[16:19], 0 offen
            s_branch L_tlb_done
            """)
            a.label("L_tlb_1")
            a(f"""
            s_cmp_lg_u32 s27, 5
            s_cbranch_scc1 L_tlb_done
            v_lshlrev_b32 v248, 19, v0
            s_mov_b64 exec, 0xffff
            buffer_load_dword v248, v248, s[56:59], 0 offen
            s_mov_b64 exec, -1
            """)
            a.label("L_tlb_done")
        (SPF() if gpf == 2 else None); GX(); GW()
        a("s_mov_b32 s28, 10")
        a.label("L_p1_lloop")
        WB(25); GW(); WB(17); GX(); GW()
        a(f"""
        s_sub_u32 s28, s28, 1
        s_cmp_lg_u32 s28, 0
        s_cbranch_scc1 L_p1_lloop
        """)
        WB(25)
        GW()
    a(f"""
    s_lshl_b32 s29, s26, 12
    s_add_u32 s29, s29, s37
    s_add_u32 m0, s37, {WPHI_LDS}
    s_nop 0
    buffer_load_dwordx4 v19, s[20:23], s29 offen lds
    """)
    n = code_pf(a, opt, 249)
    WB(18 + n); WB(15 + n); WB(4 + n); WB(n)
    a("s_waitcnt lgkmcnt(0)")
    if opt.get("hp1"): a("s_setprio 0")
    L = only_w4(a)
    a("s_mov_b32 s90, 0x40000\nv_mov_b32 v21, 0")
    a.label(L + "p")
    a(f"""
    buffer_load_dword v20, v21, s[84:87], 0 offen sc0 sc1
    s_waitcnt vmcnt(0)
    v_cmp_gt_u32 vcc, 256, v20
    s_sub_u32 s90, s90, 1
    s_cbranch_scc1 {L}
    s_cbranch_vccz {L}
    s_sleep 1
    s_branch {L}p
    """)
    a.label(L)
    p2_helper_setup(a)
    a(f"""
    v_mov_b32 v247, v3
    s_mov_b32 s91, 0
    s_cmp_lg_u32 s24, 0
    s_cbranch_scc1 L_p1_hB
    s_and_b32 s37, s27, 1            ; hd
    s_and_b32 s29, s27, 3
    s_mul_i32 s29, s29, {8192 if m16 else 6144}
    v_add_u32 v5, s29, v1
    """)
    epiA_setup(a, m16)
    a("s_barrier")
    a("s_barrier")
    K = 64; PP = [96, 112, 128]; EE = 144
    for q in range(6): a(f"ds_read_b128 {v(K+4*q,4)}, v5 offset:{KH + q*1024 + (2048 if m16 else 0)}")
    for i in range(3):
        a(f"s_waitcnt lgkmcnt({4-2*i})")
        pk_mfma(a, PP[i], K + 8 * i)
    lf = opt.get("lf", " sc1")
    for i in range(3):
        r = Rec(); softmax_pm(r, PP[i], EE, TT)
        cut = opt.get("cut", 70)
        if i == 2 and opt.get("early", 1):
            c0 = opt.get("c0", 30); cut = opt.get("cut", len(r.l))
            for x in r.l[:c0]: a(x)
            a(f"""
            s_lshl_b64 s[88:89], 1, s93
            s_mov_b64 exec, s[88:89]
            buffer_load_dword v{VPOL}, v{VFA}, s[16:19], 0 offen sc0 sc1
            s_mov_b64 exec, -1
            """)
            for x in r.l[c0:cut]: a(x)
            phi_write(a, 1 + i, PP[i], EE)
            a("s_waitcnt lgkmcnt(0)")
            a("s_barrier")
            a(f"""
            s_waitcnt vmcnt(0)
            s_mov_b64 exec, s[88:89]
            v_cmp_ne_u32 vcc, v{VPOL}, v{VSNAP}
            s_mov_b64 exec, -1
            s_nop 0
            s_cbranch_vccz L_p1_noearly
            s_mov_b32 s91, 1
            """)
            p2_c0_loads(a, lf)
            a.label("L_p1_noearly")
            a("s_branch L_p1_hdone")
        else:
            for x in r.l: a(x)
            phi_write(a, 1 + i, PP[i], EE)
            a("s_waitcnt lgkmcnt(0)")
            if i < 2: a("s_barrier")
    a.label("L_p1_hB")
    a("s_barrier")
    a.label("L_p1_hdone")

SLOT = 32768
KVF = 131072; ZF = KVF + 4096; WPH = KVF + 5120
SELL = 8; LACC = [12, 16]; QF = [24, 32]; KS = [40, 48]; VS = [56, 64]
NEGM = [72, 88]; SB = [104, 120]; OA = [136, 152]

def p2_ids(a):
    a(f"""
    s_lshl_b32 s34, s26, 1
    s_add_u32 s34, s34, 1
    s_sub_u32 s34, s34, s24
    s_and_b32 s31, s27, 3
    s_lshl_b32 s35, s25, 3
    s_lshl_b32 s29, s31, 1
    s_add_u32 s35, s35, s29
    s_lshl_b32 s40, s34, 18
    s_add_u32 s40, s40, {KVB_OFF}
    v_lshlrev_b32 v1, 4, v0
    """)

def p2_compute(a, opt):
    lf = opt.get("lf", " sc1")
    NT = 8
    stamp(a, opt, 3)
    p2_ids(a)
    a(f"""
    s_lshl_b32 s47, s35, 5
    s_add_u32 s47, s47, s34
    s_lshl_b32 s47, s47, 11
    s_add_u32 s47, s47, {O_OFF + (4<<20)}
    s_waitcnt lgkmcnt(0)
    v_mov_b32 v4, 0xdddd
    v_and_b32 v2, 4, v0
    v_cmp_eq_u32 vcc, 0, v2
    v_mov_b32 v2, 0
    v_mov_b32 v3, 0x3f803f80
    v_cndmask_b32 v{SELL}, v2, v3, vcc
    v_cndmask_b32 v{SELL+2}, v3, v2, vcc
    v_mov_b32 v{SELL+1}, v{SELL}
    v_mov_b32 v{SELL+3}, v{SELL+2}
    v_mov_b32 v2, v1
    """)
    if opt.get("m16", 1):
        a("""
        v_and_b32 v22, 0x23, v0
        v_and_b32 v20, 4, v0
        v_lshl_or_b32 v22, v20, 2, v22
        v_and_b32 v20, 0x18, v0
        v_lshrrev_b32 v20, 1, v20
        v_or_b32 v22, v22, v20
        v_lshlrev_b32 v22, 4, v22
        """)
    else: a("v_mov_b32 v22, v1")
    a(f"""
    v_mov_b32 v20, v22
    v_xor_b32 v23, v22, v1
    s_lshl_b32 s29, s31, 12
    s_add_u32 s29, s29, {QL0}
    v_add_u32 v5, s29, v1
    s_lshl_b32 s49, s26, 10
    s_lshl_b32 s29, s25, 7
    s_add_u32 s49, s49, s29
    s_lshl_b32 s29, s36, 3
    s_add_u32 s49, s49, s29
    s_add_u32 s49, s49, {F1C}
    s_lshl_b32 s48, s26, 7
    s_lshl_b32 s29, s25, 2
    s_add_u32 s48, s48, s29
    s_add_u32 s48, s48, {F1A}        ; F1A[ct][tt]
    s_cmp_eq_u32 s24, 0
    s_cselect_b32 s49, s48, s49
    s_cselect_b32 s90, 1, s91
    s_mov_b32 s91, 0
    s_barrier
    """)
    stamp(a, opt, 5)
    def kread(st, addr, j): return [f"ds_read_b128 {v(KS[st]+4*u,4)}, {dict(v2='v20', v3='v21')[addr]} offset:{j*4096+u*1024}" for u in range(2)]
    def vread(st, addr, j): return [f"ds_read_b128 {v(VS[st]+4*u,4)}, {addr} offset:{j*4096+2048+u*1024}" for u in range(2)]
    for b in range(2):
        for u in range(2):
            a(f"ds_read_b128 {v(QF[b]+4*u,4)}, v5 offset:{b*2048+u*1024}")
    for r in kread(0, "v2", 0) + vread(0, "v2", 0) + kread(1, "v2", 1): a(r)
    for b in range(2):
        for r in range(16): a(f"v_mov_b32 v{OA[b]+r}, 0")
        for r in range(4): a(f"v_mov_b32 v{LACC[b]+r}, 0")
    for r in range(4, 8): a(f"v_mov_b32 v{VS[1]+r}, 0")
    a("s_waitcnt lgkmcnt(4)")
    for b in range(2):
        a(f"v_mfma_f32_32x32x16_bf16 {v(SB[b],16)}, {v(KS[0],4)}, {v(QF[b],4)}, 0")
        a(f"v_mfma_f32_32x32x16_bf16 {v(SB[b],16)}, {v(KS[0]+4,4)}, {v(QF[b]+4,4)}, {v(SB[b],16)}")
    def rowmax(S, dst, init=True):
        if init:
            a(f"v_max3_f32 v{dst}, v{S}, v{S+1}, v{S+2}")
            for r in range(3, 15, 2): a(f"v_max3_f32 v{dst}, v{dst}, v{S+r}, v{S+r+1}")
            a(f"v_max_f32 v{dst}, v{dst}, v{S+15}")
        else:
            for r in range(0, 16, 2): a(f"v_max3_f32 v{dst}, v{dst}, v{S+r}, v{S+r+1}")
    def finish_max(dst, tmp, NM):
        a(f"v_mov_b32 v{tmp}, v{dst}")
        a(f"v_permlane32_swap_b32 v{dst}, v{tmp}")
        a(f"v_max_f32 v{dst}, v{dst}, v{tmp}")
        for r in range(16): a(f"v_sub_f32 v{NM+r}, 0, v{dst}")
    rowmax(SB[0], 6); finish_max(6, 7, NEGM[0])
    a(f"v_mfma_f32_32x32x16_bf16 {v(SB[0],16)}, {v(KS[0],4)}, {v(QF[0],4)}, {v(NEGM[0],16)}")
    a(f"v_mfma_f32_32x32x16_bf16 {v(SB[0],16)}, {v(KS[0]+4,4)}, {v(QF[0]+4,4)}, {v(SB[0],16)}")
    rowmax(SB[1], 6); finish_max(6, 7, NEGM[1])
    for r in range(8, 16): a(f"v_mov_b32 v{SB[1]+r}, 0")
    a("s_mov_b32 s28, 0\ns_mov_b64 vcc, s[90:91]")
    a.raw(".p2align 6")
    a.label("L_p2_loop", keep_hist=True)
    start = len(a.lines)
    pat = "ePeeelreMeeeNweeeVeeeeeLr"
    for n in range(2 * NT):
        j = n >> 1; b = n & 1
        A = SB[b]; B = SB[b ^ 1]
        jprev = j - 1 if b == 0 else j
        jnext = j if b == 0 else j + 1
        if b == 0: R = vread((j + 1) & 1, "v2" if j + 1 < NT else "v3", (j + 1) % NT)
        else: R = kread(j & 1, "v2" if j + 2 < NT else "v3", (j + 2) % NT)
        e = rr = 0
        for ch in pat:
            px = opt.get("p2x", "")
            if ch in px and ch != "e":
                a("s_nop 1" if ch in "MN" else "s_nop 2")
                if ch == "P" and n == 2 * NT - 3: a("s_barrier")
                if ch == "M" and n == 2 * NT - 1: a("v_mov_b32 v2, v3")
                if ch == "V":
                    if n == 2 * NT - 1: a("s_add_u32 s28, s28, 1")
                    if n == 0: a(f"v_add_u32 v3, {SLOT}, v2")
                    if n == 1: a(f"v_and_b32 v3, {4*SLOT-1}, v3")
                    if n == 2: a("v_xor_b32 v21, v23, v3")
                    if n == 2 * NT - 2: a("v_mov_b32 v20, v21")
                continue
            if ch == "e" and "e" in px: a("s_nop 1"); e += 1
            elif ch == "e" and "MN" in px: a(f"v_exp_f32 v{A+e}, v{KS[0]+e}"); e += 1
            elif ch == "e": a(f"v_exp_f32 v{A+e}, v{A+e}"); e += 1
            elif ch == "P":
                a(f"v_smfmac_f32_32x32x32_bf16 {v(OA[b^1],16)}, {v(VS[jprev&1]+4,4)}, {v(B+8,8)}, v4")
                if n == 2 * NT - 3: a("s_barrier")
            elif ch == "l": a(f"v_smfmac_f32_16x16x64_bf16 {v(LACC[b^1],4)}, {v(SELL,4)}, {v(B+8,8)}, v4")
            elif ch == "L": a(f"v_smfmac_f32_16x16x64_bf16 {v(LACC[b],4)}, {v(SELL,4)}, {v(A,8)}, v4")
            elif ch == "w":
                if b == 0: a("s_waitcnt lgkmcnt(1)")
                elif n == opt.get("pubn", 1):
                    a("s_cbranch_vccnz L_p2_pub")
                    a.label("L_p2_pubret", keep_hist=True)
                else: a("s_nop 0")
            elif ch == "M":
                a(f"v_mfma_f32_32x32x16_bf16 {v(B,16)}, {v(KS[jnext&1],4)}, {v(QF[b^1],4)}, {v(NEGM[b^1],16)}")
                if n == 2 * NT - 1: a("v_mov_b32 v2, v3")
            elif ch == "N": a(f"v_mfma_f32_32x32x16_bf16 {v(B,16)}, {v(KS[jnext&1]+4,4)}, {v(QF[b^1]+4,4)}, {v(B,16)}")
            elif ch == "V":
                a(f"v_smfmac_f32_32x32x32_bf16 {v(OA[b],16)}, {v(VS[j&1],4)}, {v(A,8)}, v4")
                if n == 2 * NT - 1: a("s_add_u32 s28, s28, 1")
                if n == 0: a(f"v_add_u32 v3, {SLOT}, v2")
                if n == 1: a(f"v_and_b32 v3, {4*SLOT-1}, v3")
                if n == 2: a("v_xor_b32 v21, v23, v3")
                if n == 2 * NT - 2: a("v_mov_b32 v20, v21")
            elif ch == "r": a(R[rr]); rr += 1
    a("s_cmp_lt_u32 s28, 8")
    a("s_cbranch_scc1 L_p2_loop")
    assert check_loop(a.lines[start:]) == (0, 0)
    a("s_nop 1")
    a(f"v_smfmac_f32_32x32x32_bf16 {v(OA[1],16)}, {v(VS[1]+4,4)}, {v(SB[1]+8,8)}, v4")
    a(f"v_smfmac_f32_16x16x64_bf16 {v(LACC[1],4)}, {v(SELL,4)}, {v(SB[1]+8,8)}, v4")
    stamp(a, opt, 6)
    O0 = OA[0]; O1 = OA[1]; L0r = LACC[0]
    a("s_mov_b32 s48, 0")
    a.label("L_p2_blk")
    a(f"""
    s_mov_b32 s36, 0x5d800000        ; 2^60
    v_cmp_nlt_f32 vcc, v{L0r}, s36
    s_cmp_lg_u64 vcc, 0
    {"s_nop 0" if opt.get("p2x") else "s_cbranch_scc1 L_p2_slow"}
    """)
    a.label("L_p2_fin", keep_hist=True)
    a(f"v_rcp_f32 v{L0r}, v{L0r}")
    for r in range(0, 16, 2):
        a(f"v_pk_mul_f32 {v(O0+r,2)}, {v(O0+r,2)}, {v(L0r,2)} op_sel_hi:[1,0]")
    cvt_inplace(a, O0)
    a(f"buffer_store_dwordx4 {v(O0,4)}, v1, s[16:19], s47 offen{SC}")
    a(f"buffer_store_dwordx4 {v(O0+4,4)}, v1, s[16:19], s47 offen offset:1024{SC}")
    a(f"""
    s_cmp_lg_u32 s48, 0
    s_cbranch_scc1 L_p2_out
    s_mov_b32 s48, 1
    s_add_u32 s47, s47, 65536
    """)
    for r in range(16): a(f"v_mov_b32 v{O0+r}, v{O1+r}")
    a(f"v_mov_b32 v{L0r}, v{LACC[1]}")
    for r in range(8): a(f"v_mov_b32 v{QF[0]+r}, v{QF[1]+r}")
    a("s_branch L_p2_blk")
    a.label("L_p2_pub")
    a(f"""
    s_waitcnt vmcnt(0)
    v_mov_b32 v6, 1
    v_lshlrev_b32 v7, 2, v0
    s_mov_b64 exec, vcc
    buffer_atomic_add v6, v7, s[16:19], s49 offen sc1
    s_mov_b64 exec, -1
    s_mov_b64 vcc, 0
    s_nop 4
    s_branch L_p2_pubret
    """)
    S0 = SB[0]; Q0 = QF[0]; NM = NEGM[0]
    a.label("L_p2_slow")
    a(f"""
    s_waitcnt lgkmcnt(0)
    s_mov_b32 s36, s40
    s_mov_b32 s28, 0
    v_mov_b32 v6, 0xff800000
    """)
    a.label("L_p2_slow1")
    a(f"""
    buffer_load_dwordx4 {v(KS[0],4)}, v22, s[16:19], s36 offen{lf}
    buffer_load_dwordx4 {v(KS[0]+4,4)}, v22, s[16:19], s36 offen offset:1024{lf}
    s_waitcnt vmcnt(0)
    v_mfma_f32_32x32x16_bf16 {v(S0,16)}, {v(KS[0],4)}, {v(Q0,4)}, 0
    v_mfma_f32_32x32x16_bf16 {v(S0,16)}, {v(KS[0]+4,4)}, {v(Q0+4,4)}, {v(S0,16)}
    """)
    rowmax(S0, 6, init=False)
    a(f"""
    s_add_u32 s36, s36, 4096
    s_add_u32 s28, s28, 1
    s_cmp_lt_u32 s28, 64
    s_cbranch_scc1 L_p2_slow1
    """)
    finish_max(6, 7, NM)
    for r in range(16): a(f"v_mov_b32 v{O0+r}, 0")
    for r in range(4): a(f"v_mov_b32 v{L0r+r}, 0")
    a("s_mov_b32 s36, s40\ns_mov_b32 s28, 0")
    a.label("L_p2_slow2")
    a(f"""
    buffer_load_dwordx4 {v(KS[0],4)}, v22, s[16:19], s36 offen{lf}
    buffer_load_dwordx4 {v(KS[0]+4,4)}, v22, s[16:19], s36 offen offset:1024{lf}
    buffer_load_dwordx4 {v(VS[0],4)}, v1, s[16:19], s36 offen offset:2048{lf}
    buffer_load_dwordx4 {v(VS[0]+4,4)}, v1, s[16:19], s36 offen offset:3072{lf}
    s_waitcnt vmcnt(0)
    v_mfma_f32_32x32x16_bf16 {v(S0,16)}, {v(KS[0],4)}, {v(Q0,4)}, {v(NM,16)}
    v_mfma_f32_32x32x16_bf16 {v(S0,16)}, {v(KS[0]+4,4)}, {v(Q0+4,4)}, {v(S0,16)}
    """)
    for r in range(16): a(f"v_exp_f32 v{S0+r}, v{S0+r}")
    a(f"""
    v_smfmac_f32_32x32x32_bf16 {v(O0,16)}, {v(VS[0],4)}, {v(S0,8)}, v4
    v_smfmac_f32_16x16x64_bf16 {v(L0r,4)}, {v(SELL,4)}, {v(S0,8)}, v4
    v_smfmac_f32_32x32x32_bf16 {v(O0,16)}, {v(VS[0]+4,4)}, {v(S0+8,8)}, v4
    v_smfmac_f32_16x16x64_bf16 {v(L0r,4)}, {v(SELL,4)}, {v(S0+8,8)}, v4
    s_nop 15
    s_add_u32 s36, s36, 4096
    s_add_u32 s28, s28, 1
    s_cmp_lt_u32 s28, 64
    s_cbranch_scc1 L_p2_slow2
    s_nop 15
    s_branch L_p2_fin
    """)
    a.label("L_p2_out")

def p2_helper_setup(a):
    p2_ids(a)
    a(f"""
    s_lshl_b32 s41, s31, 13          ; hw*8192
    s_add_u32 s40, s40, s41
    s_mov_b32 s43, s41
    s_mov_b32 s93, s25
    s_mov_b32 s44, {f2u(LOG2E)}
    s_mov_b32 s45, {f2u(LOG2E)}
    """)
    if MIX[0]:
        a("""
        s_lshr_b32 s50, s2, 4
        s_lshl_b32 s50, s50, 17
        s_lshl_b32 s37, s31, 15
        s_add_u32 s50, s50, s37
        s_and_b32 s37, s3, 4
        s_lshl_b32 s37, s37, 8
        s_add_u32 s50, s50, s37
        v_lshrrev_b32 v3, 3, v0
        v_and_b32 v2, 7, v0
        v_lshlrev_b32 v3, 11, v3
        v_lshl_add_u32 v3, v2, 7, v3
        """)
    else:
        a("""
        s_lshr_b32 s50, s2, 3
        s_lshl_b32 s50, s50, 16
        s_lshl_b32 s37, s31, 14
        s_add_u32 s50, s50, s37
        v_lshlrev_b32 v3, 7, v0
        """)
    a(f"""
    s_lshl_b32 s38, s26, 1
    s_add_u32 s38, s38, 1
    s_lshl_b32 s38, s38, 6
    s_add_u32 s38, s38, s35
    s_lshl_b32 s38, s38, 11
    s_add_u32 s38, s38, {QB_OFF}
    """)

def p2_c0_loads(a, lf):
    a("s_lshl_b32 s42, s93, 15\ns_add_u32 s42, s42, s40")
    for hf in range(2):
        a(f"s_add_u32 m0, s43, {hf*4096}")
        a(f"s_add_u32 s29, s42, {hf*4096}")
        for n in range(4):
            a(f"buffer_load_dwordx4 v1, s[16:19], s29 offen offset:{n*1024}{lf} lds")
    a(f"""
    s_lshl_b32 s29, s31, 12
    s_add_u32 m0, s29, {QL0}
    s_nop 0
    """)
    for n in range(4):
        a(f"buffer_load_dwordx4 v1, s[16:19], s38 offen offset:{n*1024}{lf} lds")

def p2_helper(a, opt):
    lf = opt.get("lf", " sc1")
    P0 = 8; QAF = 160; ZP0 = 88; JUNK = 96
    WP = 8; KVR = 16; ZR = 32; PQ = 48; EP = 104; T = 120; NUM = 136; DEN = 64
    def advance():
        a(f"""
        s_add_u32 s93, s93, 1
        s_and_b32 s93, s93, 7
        s_add_u32 s43, s43, {SLOT}
        s_and_b32 s43, s43, {4*SLOT-1}
        """)
    def chunk(single=False):
        need_chunk(a, single)
        a("s_lshl_b32 s42, s93, 15\ns_add_u32 s42, s42, s40")
        for hf in range(2):
            a(f"s_add_u32 m0, s43, {hf*4096}")
            a(f"s_add_u32 s29, s42, {hf*4096}")
            for n in range(4):
                a(f"buffer_load_dwordx4 v1, s[16:19], s29 offen offset:{n*1024}{lf} lds")
        advance()
    def PF():
        a(f"buffer_load_dword v{JUNK}, v247, s[52:55], s50 offen")
        a(f"s_add_u32 s50, s50, {16384 if MIX[0] else 8192}")
    def WB(n):
        a(f"s_waitcnt vmcnt({n})")
        a("s_barrier")
    a("s_cmp_lg_u32 s24, 0\ns_cbranch_scc1 L_p2_hB")
    stamp(a, opt, 3)
    a("s_cmp_lg_u32 s91, 0\ns_cbranch_scc1 L_p2_c0done")
    need_chunk(a, True)
    p2_c0_loads(a, lf)
    a.label("L_p2_c0done")
    advance()
    stamp(a, opt, 4)
    WB(0)
    chunk()
    WB(0)
    chunk(); chunk(); PF()
    WB(9)
    chunk(); PF()
    WB(10)
    chunk()
    WB(9)
    chunk()
    WB(8)
    chunk()
    a("s_waitcnt vmcnt(8)")
    a("s_branch L_p2_hjoin")
    a.label("L_p2_hB")
    a(f"""
    v_add_u32 v2, s41, v1
    s_lshl_b32 s42, s25, 15
    s_add_u32 s42, s42, s40
    s_add_u32 s46, s42, 4096
    s_barrier
    """)
    stamp(a, opt, 3)
    a("s_setprio 2")
    for q in range(8): a(f"ds_read_b128 {v(8+4*q,4)}, v2 offset:{q*1024}")
    hb = opt.get("hb", 8)
    for q in range(8):
        if q == hb: a("s_barrier")
        a(f"s_waitcnt lgkmcnt({7-q})")
        a(f"buffer_store_dwordx4 {v(8+4*q,4)}, v1, s[16:19], {'s42' if q < 4 else 's46'} offen offset:{(q&3)*1024}{SC}")
    advance()
    stamp(a, opt, 1)
    if hb >= 8: a("s_barrier")
    a("s_waitcnt vmcnt(0)")
    publish(a, 48, all_helpers=True)
    stamp(a, opt, 4)
    chunk(True)
    stamp(a, opt, 6)
    a("s_waitcnt vmcnt(0)")
    stamp(a, opt, 9)
    WB(0)
    stamp(a, opt, 5)
    chunk(); chunk(); PF()
    WB(9)
    poll(a, 8, 8, 4)
    chunk(); PF()
    WB(10)
    chunk()
    a(f"""
    s_lshl_b32 s34, s26, 1
    s_and_b32 s29, s25, 1
    s_add_u32 s34, s34, s29
    s_and_b32 s35, s25, 6
    s_lshl_b32 s35, s35, 3
    s_lshl_b32 s29, s31, 2
    s_add_u32 s35, s35, s29
    s_lshl_b32 s38, s34, 6
    s_add_u32 s38, s38, s35
    s_lshl_b32 s38, s38, 11
    s_add_u32 s38, s38, {QA_OFF}
    s_add_u32 s39, s38, 4096
    s_lshl_b32 s46, s35, 5
    s_add_u32 s46, s46, s34
    s_lshl_b32 s46, s46, 11
    s_add_u32 s46, s46, {O_OFF}
    s_lshl_b32 s36, s34, 16
    s_add_u32 s36, s36, {KVP_OFF}
    s_lshl_b32 s29, s31, 11
    s_add_u32 s36, s36, s29
    """)
    for t in range(8):
        a(f"buffer_load_dwordx4 {v(P0+8*t,4)}, v1, s[16:19], s36 offen{lf}")
        a(f"buffer_load_dwordx4 {v(P0+8*t+4,4)}, v1, s[16:19], s36 offen offset:1024{lf}")
        if t < 7: a("s_add_u32 s36, s36, 8192")
    a(f"""
    s_and_b32 s37, s31, 1
    s_lshl_b32 s37, s37, 10
    s_lshl_b32 s36, s34, 11
    s_add_u32 s36, s36, s37
    s_add_u32 m0, s37, {WPH}
    v_lshlrev_b32 v6, 2, v0
    buffer_load_dwordx4 v1, s[20:23], s36 offen lds
    s_lshl_b32 s36, s34, 11
    s_add_u32 s36, s36, {ZP_OFF}
    """)
    for t in range(8):
        a(f"buffer_load_dword v{ZP0+t}, v6, s[16:19], s36 offen offset:{t*256}{lf}")
    for q in range(8):
        a(f"buffer_load_dwordx4 {v(QAF+4*q,4)}, v1, s[16:19], {'s38' if q < 4 else 's39'} offen offset:{(q&3)*1024}{lf}")
    a("s_waitcnt vmcnt(8)")
    for t in range(1, 8):
        for r in range(0, 8, 2):
            a(f"v_pk_add_f32 {v(P0+r,2)}, {v(P0+r,2)}, {v(P0+8*t+r,2)}")
    for r in range(4): a(f"v_cvt_pk_bf16_f32 v{P0+r}, v{P0+2*r}, v{P0+2*r+1}")
    a(f"""
    s_lshl_b32 s36, s31, 10
    s_add_u32 s36, s36, {KVF}
    v_add_u32 v6, s36, v1
    ds_write_b128 v6, {v(P0,4)}
    """)
    for t in range(1, 8): a(f"v_add_f32 v{ZP0}, v{ZP0}, v{ZP0+t}")
    a(f"""
    v_cvt_pk_bf16_f32 v{ZP0}, v{ZP0}, v{ZP0}
    v_lshrrev_b32 v6, 4, v0
    v_lshlrev_b32 v6, 5, v6
    v_and_b32 v7, 4, v0
    v_lshl_add_u32 v6, v7, 2, v6
    v_and_b32 v7, 8, v0
    v_add_u32 v6, v6, v7
    v_and_b32 v7, 3, v0
    v_lshl_add_u32 v6, v7, 1, v6
    v_add_u32 v6, {ZF}, v6
    ds_write_b16 v6, v{ZP0}
    v_mov_b32 v7, 0
    ds_write_b16 v6, v7 offset:128
    v_lshrrev_b32 v5, 5, v0          ; h
    v_bfe_u32 v6, v0, 2, 2
    v_lshl_add_u32 v6, v5, 2, v6     ; 4h+r
    v_bfe_u32 v7, v0, 4, 1
    v_lshlrev_b32 v7, 5, v7
    v_lshl_add_u32 v6, v6, 6, v7
    v_and_b32 v7, 3, v0
    v_lshl_add_u32 v6, v7, 3, v6
    v_add_u32 v2, {WPH}, v6
    v_lshrrev_b32 v6, 2, v0
    v_lshrrev_b32 v7, 4, v0
    v_xor_b32 v6, v6, v7
    v_and_b32 v6, 1, v6
    v_cmp_eq_u32 vcc, 0, v6
    v_lshlrev_b32 v5, 4, v5
    v_add_u32 v5, {ZF}, v5
    v_mov_b32 v6, {ZF+128}
    v_cndmask_b32 v7, v6, v5, vcc
    v_add_u32 v6, {KVF}, v1
    """)
    a("s_waitcnt lgkmcnt(0)")
    a("s_barrier")
    chunk()
    for u in range(2):
        for b in range(2):
            a(f"ds_read_b64_tr_b16 {v(WP+4*u+2*b,2)}, v2 offset:{((8*u+16*b) if opt.get('m16', 1) else (16*u+8*b))*64}")
    for f in range(4): a(f"ds_read_b128 {v(KVR+4*f,4)}, v6 offset:{f*1024}")
    for f in range(4): a(f"ds_read_b128 {v(ZR+4*f,4)}, v7 offset:{f*32}")
    a("s_waitcnt vmcnt(8) lgkmcnt(0)")
    def oa_block(b):
        a(f"v_mfma_f32_32x32x16_bf16 {v(PQ,16)}, {v(WP,4)}, {v(QAF+8*b,4)}, 0")
        a(f"v_mfma_f32_32x32x16_bf16 {v(PQ,16)}, {v(WP+4,4)}, {v(QAF+8*b+4,4)}, {v(PQ,16)}")
        softmax_pm(a, PQ, EP, T)
        for f in range(4):
            F = (EP if f < 2 else PQ) + 4 * (f & 1)
            a(f"v_mfma_f32_32x32x16_bf16 {v(NUM,16)}, {v(KVR+4*f,4)}, {v(F,4)}, {'0' if f == 0 else v(NUM,16)}")
            a(f"v_mfma_f32_16x16x32_bf16 {v(DEN,4)}, {v(ZR+4*f,4)}, {v(F,4)}, {'0' if f == 0 else v(DEN,4)}")
        a(f"""
        v_add_f32 v{DEN}, {f2u(1e-6)}, v{DEN}
        v_rcp_f32 v{DEN}, v{DEN}
        """)
        for r in range(0, 16, 2):
            a(f"v_pk_mul_f32 {v(NUM+r,2)}, {v(NUM+r,2)}, {v(DEN,2)} op_sel_hi:[1,0]")
        cvt_inplace(a, NUM)
        a(f"buffer_store_dwordx4 {v(NUM,4)}, v1, s[16:19], s46 offen{SC}")
        a(f"buffer_store_dwordx4 {v(NUM+4,4)}, v1, s[16:19], s46 offen offset:1024{SC}")
        a(f"s_add_u32 s46, s46, 65536")
    a("s_mov_b32 s28, 0")
    a.label("L_p2_oa")
    oa_block(0)
    for r in range(0, 24, 2): a(f"v_pk_mov_b32 {v(QAF+r,2)}, {v(QAF+8+r,2)}, {v(QAF+8+r,2)} op_sel:[0,1]")
    a(f"""
    s_add_u32 s28, s28, 1
    s_cmp_eq_u32 s28, 2
    s_cbranch_scc0 L_p2_oa1
    s_barrier
    """)
    chunk()
    a.label("L_p2_oa1")
    a("s_cmp_lt_u32 s28, 4\ns_cbranch_scc1 L_p2_oa")
    a("s_waitcnt vmcnt(12)")
    a("s_setprio 0")
    a.label("L_p2_hjoin")
    a("s_barrier")
    dyn = opt.get("dyn", 0)
    if dyn:
        L = only_w4(a)
        a(f"""
        s_memrealtime s[88:89]
        s_lshl_b32 s29, s25, 7
        s_lshl_b32 s90, s26, 3
        s_add_u32 s29, s29, s90
        s_lshl_b32 s90, s24, 2
        s_sub_u32 s29, s29, s90
        s_add_u32 s29, s29, {TSF + 4}
        v_mov_b32 v13, 0
        s_waitcnt lgkmcnt(0)
        v_mov_b32 v12, s88
        s_mov_b64 exec, 1
        buffer_store_dword v12, v13, s[16:19], s29 offen sc0 sc1
        s_mov_b64 exec, -1
        """)
        a.label(L)
    a("s_mov_b32 s33, s24")
    p3_helper_setup(a, opt)
    nv = opt.get("nv", 0)
    n1 = p3_wv_loads(a, opt, 5, 5 + nv // 2)
    if opt.get("wearly", 1) and not dyn:
        p3_gw(a, 0); p3_gw(a, 4); n1 += 8
    WB(n1)
    a("s_cmp_eq_u32 s33, 0\ns_cbranch_scc1 L_p2_hdone")
    publish(a, 56, n=4, inc=2)
    a.label("L_p2_hdone")
    p3_wv_loads(a, opt, 5 + nv // 2, 5 + nv)

NS = 5
ACC3 = 72
OS = [8, 16, 24, 32]; WSR = [40, 48, 56, 64]
MIX = [1]
def p3_ids(a):
    if MIX[0]:
        a(f"""
        s_mov_b32 s24, s99               ; branch
        s_and_b32 s25, s3, 3
        s_lshl_b32 s25, s25, 2
        s_bfe_u32 s29, s2, 0x20004
        s_add_u32 s25, s25, s29
        s_and_b32 s26, s3, 4
        s_lshr_b32 s29, s2, 6
        s_add_u32 s26, s26, s29
        """)
        return
    a(f"""
    s_lshr_b32 s24, s3, 2            ; branch
    s_and_b32 s25, s3, 3
    s_lshl_b32 s25, s25, 2
    s_bfe_u32 s29, s2, 0x20003
    s_add_u32 s25, s25, s29
    s_lshr_b32 s26, s2, 5
    """)

def p3_compute(a, opt):
    a("s_waitcnt lgkmcnt(0)")
    p3_ids(a)
    a(f"""
    s_lshr_b32 s36, s27, 1           ; tw
    s_and_b32 s37, s27, 1            ; cw
    v_lshlrev_b32 v1, 4, v0
    s_lshl_b32 s29, s36, 13
    v_add_u32 v1, s29, v1
    v_lshrrev_b32 v2, 5, v0          ; h
    v_bfe_u32 v3, v0, 2, 2           ; r
    v_lshl_add_u32 v4, v2, 2, v3
    v_lshlrev_b32 v4, 8, v4
    s_lshl_b32 s29, s37, 1
    v_xor_b32 v3, s29, v3
    v_lshl_add_u32 v4, v3, 6, v4
    v_bfe_u32 v5, v0, 4, 1
    v_lshl_add_u32 v4, v5, 5, v4
    v_and_b32 v5, 3, v0
    v_lshl_add_u32 v4, v5, 3, v4
    v_add_u32 v2, 16384, v4
    v_xor_b32 v3, 64, v2
    s_mov_b32 s30, 0
    v_mov_b32 v4, v1
    v_mov_b32 v5, v2
    v_mov_b32 v6, v3
    s_mov_b32 s28, 16
    """)
    for r in range(ACC3, ACC3 + 64): a(f"v_mov_b32 v{r}, 0")
    def reads(st, c):
        O = OS[st]; W = WSR[st]
        o = [f"ds_read_b128 {v(O+4*i,4)}, v4 offset:{i*4096+c*1024}" for i in range(2)]
        w = [f"ds_read_b64_tr_b16 {v(W+4*cb+2*b,2)}, v{5+cb} offset:{(16*c+8*b)*256}" for cb in range(2) for b in range(2)]
        return [w[0], w[1], o[0], o[1], w[2], w[3]]
    def mf(st):
        O = OS[st]; W = WSR[st]
        return [f"v_mfma_f32_32x32x16_bf16 {v(ACC3+16*(2*i+cb),16)}, {v(W+4*cb,4)}, {v(O+4*i,4)}, {v(ACC3+16*(2*i+cb),16)}"
                for cb in range(2) for i in range(2)]
    a("s_waitcnt vmcnt(0)")
    stamp(a, opt, 7)
    a("s_barrier")
    stamp(a, opt, 8)
    a("s_barrier")
    stamp(a, opt, 9)
    for r in reads(0, 0) + reads(1, 1): a(r)
    a.raw(".p2align 6")
    a.label("L_p3_loop", keep_hist=True)
    start = len(a.lines)
    for c in range(4):
        M = mf(c); R = reads((c + 2) & 3, (c + 2) & 3)
        a("s_waitcnt lgkmcnt(6)")
        a(M[0])
        if c == 2: a("s_barrier")
        a(R[0]); a(R[1])
        a(M[1])
        a(R[2]); a(R[3])
        a(M[2])
        a(R[4]); a(R[5])
        if c == 1:
            a(f"""
            s_add_u32 s30, s30, {SLOT}
            s_cmp_eq_u32 s30, {SLOT*NS}
            s_cselect_b32 s30, 0, s30
            """)
        a(M[3])
        if c == 1:
            a("""
            v_add_u32 v4, s30, v1
            v_add_u32 v5, s30, v2
            v_add_u32 v6, s30, v3
            """)
        if c == 3:
            a("s_sub_u32 s28, s28, 1")
            a("s_cmp_lg_u32 s28, 0")
    a("s_cbranch_scc1 L_p3_loop")
    assert check_loop(a.lines[start:]) == (0, 0)
    a("s_waitcnt lgkmcnt(0)")
    stamp(a, opt, 10)
    RS = 144
    a(f"""
    s_lshl_b32 s38, s25, 7
    s_lshl_b32 s29, s36, 6
    s_add_u32 s38, s38, s29          ; token0
    s_lshl_b32 s38, s38, 12
    s_lshl_b32 s29, s24, 11
    s_add_u32 s38, s38, s29
    s_lshl_b32 s29, s26, 8
    s_add_u32 s38, s38, s29
    s_lshl_b32 s29, s37, 7
    s_add_u32 s38, s38, s29
    s_mul_i32 s29, s27, {64*RS}
    s_add_u32 s29, s29, {2*SLOT}
    v_and_b32 v1, 31, v0
    v_mul_u32_u24 v1, {RS}, v1
    v_lshrrev_b32 v2, 5, v0
    v_lshl_add_u32 v1, v2, 3, v1
    v_add_u32 v1, s29, v1
    v_lshrrev_b32 v2, 3, v0
    v_and_b32 v3, 7, v0
    v_mul_u32_u24 v4, {RS}, v2
    v_lshl_add_u32 v4, v3, 4, v4
    v_add_u32 v4, s29, v4
    v_lshlrev_b32 v2, 12, v2
    v_lshl_add_u32 v2, v3, 4, v2
    """)
    for i in range(2):
        for cb in range(2):
            D = ACC3 + 16 * (2 * i + cb)
            for r in range(8): a(f"v_cvt_pk_bf16_f32 v{D+r}, v{D+2*r}, v{D+2*r+1}")
            for g in range(4):
                a(f"ds_write_b64 v1, {v(D+2*g,2)} offset:{i*32*RS + cb*64 + g*16}")
        for q in range(4):
            a(f"ds_read_b128 {v(8+16*i+4*q,4)}, v4 offset:{(i*32+q*8)*RS}")
    for i in range(2):
        for q in range(4):
            a(f"s_waitcnt lgkmcnt({(3-q) + (12 if i == 0 else 0)})")
            a(f"buffer_store_dwordx4 {v(8+16*i+4*q,4)}, v2, s[56:59], s38 offen{SC}")
            a(f"s_add_u32 s38, s38, {8*4096}")

def p3_compute16(a, opt):
    OSET = [8, 24]; WSET = [40, 56]
    a(f"""
    s_lshl_b32 s49, s25, 1
    s_lshr_b32 s29, s27, 1
    s_add_u32 s49, s49, s29
    s_lshl_b32 s49, s49, 7
    s_lshl_b32 s29, s34, 2
    s_add_u32 s49, s49, s29
    s_add_u32 s49, s49, {F2H}
    s_waitcnt lgkmcnt(0)
    """)
    p3_ids(a)
    a(f"""
    s_lshr_b32 s36, s27, 1           ; tw
    s_and_b32 s37, s27, 1            ; cw
    v_and_b32 v7, 15, v0             ; t
    v_lshrrev_b32 v6, 4, v0          ; g
    v_lshlrev_b32 v1, 4, v7
    v_lshl_add_u32 v1, v6, 9, v1
    s_lshl_b32 s29, s36, 13
    v_add_u32 v1, s29, v1
    v_bfe_u32 v3, v0, 2, 3           ; 4(g&1) + r
    v_lshrrev_b32 v2, 5, v0
    v_lshl_add_u32 v2, v2, 4, v3     ; row = 16(g>>1) + 4(g&1) + r
    v_lshlrev_b32 v2, 8, v2
    s_lshl_b32 s29, s37, 2
    v_xor_b32 v3, s29, v3
    v_lshl_add_u32 v2, v3, 5, v2
    v_and_b32 v3, 3, v0
    v_lshl_add_u32 v2, v3, 3, v2
    v_add_u32 v2, 16384, v2
    s_mov_b32 s30, 0
    v_mov_b32 v3, v1
    v_mov_b32 v4, v2
    v_xor_b32 v5, 32, v2
    v_xor_b32 v6, 64, v2
    v_xor_b32 v7, 0x60, v2
    s_mov_b32 s28, 16
    """)
    for r in range(ACC3, ACC3 + 64): a(f"v_mov_b32 v{r}, 0")
    def reads(st, sp):
        O = OSET[st]; W = WSET[st]
        o = [f"ds_read_b128 {v(O+4*i,4)}, v3 offset:{(i>>1)*4096 + sp*2048 + (i&1)*256}" for i in range(4)]
        w = [[f"ds_read_b64_tr_b16 {v(W+4*cb+2*b,2)}, v{4+cb} offset:{(32*sp+8*b)*256}" for b in range(2)] for cb in range(4)]
        return w[0] + [o[0], o[1]] + [o[2], o[3]] + w[1] + w[2] + w[3]
    def mf(st):
        O = OSET[st]; W = WSET[st]
        return [f"v_mfma_f32_16x16x32_bf16 {v(ACC3+16*i+4*cb,4)}, {v(W+4*cb,4)}, {v(O+4*i,4)}, {v(ACC3+16*i+4*cb,4)}"
                for cb in range(4) for i in range(4)]
    a(f"""
    v_mov_b32 v8, 1
    v_lshlrev_b32 v9, 11, v0
    s_waitcnt vmcnt(0)
    s_mov_b64 exec, 15
    buffer_atomic_add v8, v9, s[16:19], s49 offen sc1
    s_mov_b64 exec, -1
    """)
    stamp(a, opt, 7)
    a("s_barrier")
    stamp(a, opt, 8)
    a("s_barrier")
    stamp(a, opt, 9)
    for r in reads(0, 0): a(r)
    a.raw(".p2align 6")
    a.label("L_p3_loop", keep_hist=True)
    start = len(a.lines)
    for sp in range(2):
        M = mf(sp); R = reads(sp ^ 1, sp ^ 1)
        if opt.get("p3x") == 1: M = ["s_nop 0"] * 16
        extra = {n: [] for n in range(16)}
        for k, r in enumerate(R): extra[1 + k].append(r)
        if sp == 1: extra[0].append("s_barrier")
        if sp == 0:
            extra[0] += [f"s_add_u32 s30, s30, {SLOT}", f"s_cmp_eq_u32 s30, {SLOT*NS}"]
            extra[1].append("s_cselect_b32 s30, 0, s30")
            extra[13] += ["v_add_u32 v3, s30, v1", "v_add_u32 v4, s30, v2"]
            extra[14] += ["v_xor_b32 v5, 32, v4", "v_xor_b32 v6, 64, v4"]
            extra[15] += ["v_xor_b32 v7, 0x60, v4"]
        else:
            extra[14] += ["s_sub_u32 s28, s28, 1", "s_cmp_lg_u32 s28, 0"]
        waits = {0: 6, 4: 4 + 3, 8: 2 + 7, 12: 0 + 11}
        for n in range(16):
            if n in waits: a(f"s_waitcnt lgkmcnt({waits[n]})")
            a(M[n])
            for x in extra[n]: a(x)
    a("s_cbranch_scc1 L_p3_loop")
    assert check_loop(a.lines[start:]) == (0, 0)
    a("s_waitcnt lgkmcnt(0)")
    stamp(a, opt, 10)
    RS = 144
    a(f"""
    s_lshl_b32 s38, s25, 7
    s_lshl_b32 s29, s36, 6
    s_add_u32 s38, s38, s29          ; token0
    s_lshl_b32 s38, s38, 12
    s_lshl_b32 s29, s24, 11
    s_add_u32 s38, s38, s29
    s_lshl_b32 s29, s26, 8
    s_add_u32 s38, s38, s29
    s_lshl_b32 s29, s37, 7
    s_add_u32 s38, s38, s29
    s_mul_i32 s29, s27, {64*RS}
    s_add_u32 s29, s29, {2*SLOT}
    v_and_b32 v1, 15, v0
    v_mul_u32_u24 v1, {RS}, v1
    v_lshrrev_b32 v2, 4, v0
    v_lshl_add_u32 v1, v2, 3, v1
    v_add_u32 v1, s29, v1
    v_lshrrev_b32 v2, 3, v0
    v_and_b32 v3, 7, v0
    v_mul_u32_u24 v4, {RS}, v2
    v_lshl_add_u32 v4, v3, 4, v4
    v_add_u32 v4, s29, v4
    v_lshlrev_b32 v2, 12, v2
    v_lshl_add_u32 v2, v3, 4, v2
    """)
    for i in range(4):
        D = ACC3 + 16 * i
        for r in range(8): a(f"v_cvt_pk_bf16_f32 v{D+r}, v{D+2*r}, v{D+2*r+1}")
        for cb in range(4):
            a(f"ds_write_b64 v1, {v(D+2*cb,2)} offset:{i*16*RS + cb*32}")
        for q in range(2):
            a(f"ds_read_b128 {v(8+8*i+4*q,4)}, v4 offset:{(i*16+q*8)*RS}")
        if i >= 1:
            for q in range(2):
                a(f"s_waitcnt lgkmcnt({7-q})")
                a(f"buffer_store_dwordx4 {v(8+8*(i-1)+4*q,4)}, v2, s[56:59], s38 offen{SC}")
                a(f"s_add_u32 s38, s38, {8*4096}")
    for q in range(2):
        a(f"s_waitcnt lgkmcnt({1-q})")
        a(f"buffer_store_dwordx4 {v(8+24+4*q,4)}, v2, s[56:59], s38 offen{SC}")
        a(f"s_add_u32 s38, s38, {8*4096}")

def p3_helper_setup(a, opt):
    lf = opt.get("lf", " sc1")
    p3_ids(a)
    a(f"""
    s_sub_u32 s36, s27, 4            ; lw
    v_lshlrev_b32 v1, 4, v0
    v_lshrrev_b32 v2, 4, v0          ; r
    v_and_b32 v3, 15, v0             ; p
    v_lshlrev_b32 v4, {1 if opt.get("m16p3", 1) else 2}, v2
    v_xor_b32 v3, v3, v4
    v_lshlrev_b32 v3, 4, v3
    v_lshl_add_u32 v8, v2, 11, v3
    s_lshl_b32 s29, s26, 8
    s_lshl_b32 s37, s36, 15
    s_add_u32 s29, s29, s37
    v_add_u32 v8, s29, v8
    v_xor_b32 v9, {128 if opt.get("m16p3", 1) else 0}, v8
    v_add_u32 v9, 8192, v9
    v_add_u32 v10, 16384, v8
    v_add_u32 v11, 16384, v9
    s_lshl_b32 s38, s25, 2
    s_add_u32 s38, s38, s36          ; tb
    s_lshl_b32 s38, s38, 16
    s_lshl_b32 s29, s24, 22
    s_add_u32 s38, s38, s29
    s_add_u32 s38, s38, {O_OFF}      ; O soffset
    s_lshl_b32 s37, s36, 12          ; lw*4096
    s_add_u32 s40, s37, {SLOT*NS}
    """)
    a(f"""
    {"s_lshr_b32 s42, s3, 1" if opt.get("rot", 1) == 1 else "s_lshr_b32 s42, s2, 6"}
    s_lshl_b32 s42, s42, {3 if opt.get("rot", 1) == 3 else 2}
    s_add_u32 s42, s42, 4
    s_and_b32 s42, s42, {15 if opt.get("rot", 1) else 0}
    s_mov_b32 s44, s42
    s_add_u32 s45, s42, 4
    s_and_b32 s45, s45, 15
    s_add_u32 s46, s42, 8
    s_and_b32 s46, s46, 15
    s_add_u32 s47, s42, 12
    s_and_b32 s47, s47, 15
    s_mov_b32 s30, s37
    s_mov_b32 s48, 0
    """)

def p3_gw(a, t):
    a(f"s_add_u32 s41, s{44 + (t >> 2)}, {t & 3}\ns_lshl_b32 s39, s41, 17")
    for n in range(4):
        a(f"s_add_u32 m0, s37, {t*SLOT+16384+n*1024}")
        a(f"buffer_load_dwordx4 v{8+n}, s[52:55], s39 offen lds")

WV0 = 16
def p3_wv_loads(a, opt, t0, t1):
    for t in range(t0, t1):
        a(f"s_add_u32 s41, s42, {t}\ns_and_b32 s41, s41, 15\ns_lshl_b32 s39, s41, 17")
        for n in range(4):
            a(f"buffer_load_dwordx4 {v(WV0+16*(t-5)+4*n,4)}, v{8+n}, s[52:55], s39 offen")
    return 4 * (t1 - t0)

def p3_helper(a, opt):
    lf = opt.get("lf", " sc1")
    def stg(t):
        a(f"s_add_u32 s41, s{44 + (t >> 2)}, {t & 3}")
    def GWs(t):
        stg(t)
        a("s_lshl_b32 s39, s41, 17")
        for n in range(4):
            a(f"s_add_u32 m0, s37, {t*SLOT+16384+n*1024}")
            a(f"buffer_load_dwordx4 v{8+n}, s[52:55], s39 offen lds")
    def GOs(t):
        stg(t)
        a(f"s_add_u32 m0, s37, {t*SLOT}\ns_lshl_b32 s29, s41, 12\ns_add_u32 s29, s29, s38")
        for n in range(4): a(f"buffer_load_dwordx4 v1, s[16:19], s29 offen offset:{n*1024}{lf} lds")
    def hm(t, n):
        a("s_mov_b32 s93, 0")
        for k in range(n):
            stg(t + k)
            a("s_lshl_b32 s29, s41, 1\ns_lshl_b32 s29, 3, s29\ns_or_b32 s93, s93, s29")
    def G():
        a(f"""
        s_and_b32 s41, s43, 15
        s_add_u32 s43, s43, 1
        s_lshl_b32 s39, s41, 17
        s_lshl_b32 s29, s41, 1
        s_lshl_b32 s93, 3, s29
        """)
        for n in range(4):
            a(f"s_add_u32 m0, s30, {16384+n*1024}")
            a(f"buffer_load_dwordx4 v{8+n}, s[52:55], s39 offen lds")
        need_mask(a)
        a(f"""
        s_lshl_b32 s29, s41, 12
        s_mov_b32 m0, s30
        s_add_u32 s29, s29, s38
        """)
        for n in range(4): a(f"buffer_load_dwordx4 v1, s[16:19], s29 offen offset:{n*1024}{lf} lds")
        a(f"""
        s_add_u32 s30, s30, {SLOT}
        s_cmp_eq_u32 s30, s40
        s_cselect_b32 s30, s37, s30
        """)
    code_pf(a, opt, 249)
    dyn = opt.get("dyn", 0)
    if dyn:
        L = only_w4(a)
        a(f"""
        s_lshr_b32 s29, s25, 1
        s_lshl_b32 s29, s29, 7
        s_add_u32 s29, s29, {TSF}
        v_lshlrev_b32 v13, 5, v0
        s_sleep {opt.get("dsl", 16)}
        s_mov_b64 exec, 15
        buffer_load_dword v12, v13, s[16:19], s29 offen sc0 sc1
        s_mov_b64 exec, -1
        s_waitcnt vmcnt(0)
        s_memrealtime s[88:89]
        v_lshlrev_b32 v13, 2, v0
        v_subrev_u32 v13, s42, v13
        v_and_b32 v13, 12, v13
        s_waitcnt lgkmcnt(0)
        v_sub_u32 v12, s88, v12          ; age
        v_cmp_gt_u32 vcc, 2000, v12
        v_sub_u32 v12, 2000, v12
        v_mov_b32 v14, 4000
        v_cndmask_b32 v12, v14, v12, vcc
        v_mul_u32_u24 v12, s24, v12
        v_lshrrev_b32 v12, {opt.get("dq", 3)}, v12
        v_lshl_or_b32 v12, v12, 4, v13
        v_lshl_or_b32 v12, v12, 2, v0
        v_readlane_b32 s44, v12, 0
        v_readlane_b32 s45, v12, 1
        v_readlane_b32 s46, v12, 2
        v_readlane_b32 s47, v12, 3
        """)
        for x, y in ((44, 45), (46, 47), (44, 46), (45, 47), (45, 46)):
            a(f"s_min_u32 s29, s{x}, s{y}\ns_max_u32 s{y}, s{x}, s{y}\ns_mov_b32 s{x}, s29")
        a("s_mov_b32 s29, 0")
        for k in range(4):
            a(f"s_and_b32 s{44+k}, s{44+k}, 3\ns_lshl_b32 s{44+k}, s{44+k}, {4*k+2}\ns_or_b32 s29, s29, s{44+k}")
        a(f"""
        v_mov_b32 v12, s29
        v_mov_b32 v13, {ORDW}
        ds_write_b32 v13, v12
        s_waitcnt lgkmcnt(0)
        """)
        a.label(L)
        a("s_barrier")
        a(f"""
        v_mov_b32 v13, {ORDW}
        ds_read_b32 v12, v13
        s_waitcnt lgkmcnt(0)
        v_readfirstlane_b32 s29, v12
        """)
        for k in range(4): a(f"s_bfe_u32 s{44+k}, s29, {0x40000 + 4*k}")
        GWs(0); GWs(1); GWs(2); GWs(4)
    elif opt.get("wearly", 1):
        GWs(1)
        a("s_barrier")
        GWs(2)
    else:
        GWs(4)
        a("s_barrier")
        GWs(0); GWs(1); GWs(2)
    look(a)
    n0 = opt.get("n0", 3)
    hm(0, n0)
    a(f"""
    s_andn2_b32 s88, s93, s92
    s_cbranch_scc1 L_p3_notyet
    s_mov_b32 s48, 1
    """)
    for t in range(n0): GOs(t)
    a.label("L_p3_notyet")
    a("s_barrier")
    stamp(a, opt, 7)
    GWs(3)
    a(f"""
    s_cmp_lg_u32 s48, 0
    s_cbranch_scc1 L_p3_have
    """)
    need_mask(a)
    stamp(a, opt, 8)
    for t in range(n0): GOs(t)
    a.label("L_p3_have")
    a(f"s_waitcnt vmcnt({4*(n0-1)})")
    a("s_barrier")
    if n0 == 2:
        hm(2, 1); need_mask(a); GOs(2)
        a("s_waitcnt vmcnt(4)")
        a("s_barrier")
        hm(3, 2); need_mask(a); GOs(3); GOs(4)
    else:
        hm(3, 1); need_mask(a); GOs(3)
        a("s_waitcnt vmcnt(8)")
        a("s_barrier")
        hm(4, 1); need_mask(a); GOs(4)
    nv = opt.get("nv", 0)
    a("v_add_u32 v12, s37, v1")
    cnt = {2: 4, 3: 4, 4: 4}
    for tau in range(2, 16):
        allowed = sum(cnt.get(k, 0) for k in (tau + 1, tau + 2))
        a(f"s_waitcnt vmcnt({allowed}) lgkmcnt(0)")
        a("s_barrier")
        t = tau + 3
        if t > 15: continue
        slot = (t % NS) * SLOT
        if t < 5 + nv:
            if slot + 16384 + 3072 > 65535:
                a(f"v_add_u32 v13, {slot + 16384}, v12")
                for n in range(4): a(f"ds_write_b128 v13, {v(WV0+16*(t-5)+4*n,4)} offset:{n*1024}")
            else:
                for n in range(4): a(f"ds_write_b128 v12, {v(WV0+16*(t-5)+4*n,4)} offset:{slot+16384+n*1024}")
            cnt[t] = 4
        else:
            stg(t)
            a("s_lshl_b32 s39, s41, 17")
            for n in range(4):
                a(f"s_add_u32 m0, s37, {slot+16384+n*1024}")
                a(f"buffer_load_dwordx4 v{8+n}, s[52:55], s39 offen lds")
            cnt[t] = 8
        hm(t, 1)
        need_mask(a)
        a(f"s_add_u32 m0, s37, {slot}\ns_lshl_b32 s29, s41, 12\ns_add_u32 s29, s29, s38")
        if opt.get("p3x") == 2: cnt[t] -= 4
        else:
            for n in range(4): a(f"buffer_load_dwordx4 v1, s[16:19], s29 offen offset:{n*1024}{lf} lds")

def gen(opt):
    mp = opt.get("map", 1)
    MIX[0] = opt.get("mix", 1)
    a = Asm()
    a.raw(khead(NAME))
    a(f"""
    s_getpc_b64 s[94:95]
    """)
    a.label("L_pc", keep_hist=True)
    if opt.get("fixe"): a("s_memrealtime s[60:61]")
    a(f"""
    s_cmp_ge_u32 s2, 256
    s_cbranch_scc1 L_end
    s_and_b32 s3, s2, 7
    s_bfe_u32 s24, s2, {0x10003 if mp == 1 else 0x10002}
    s_lshl_b32 s29, s24, 5
    s_load_dwordx4 s[4:7], s[0:1], s29
    s_load_dwordx2 s[32:33], s[0:1], 72
    s_load_dwordx2 s[34:35], s[0:1], 16
    {"s_lshr_b32 s99, s3, 2" if not MIX[0] else ("s_mov_b32 s99, s24" if MIX[0] == 1 else "s_xor_b32 s99, s24, 1")}
    s_mul_i32 s29, s99, 24
    s_add_u32 s29, s29, 24
    s_load_dwordx2 s[52:53], s[0:1], s29
    s_load_dwordx4 s[44:47], s[0:1], 56
    s_and_b32 s25, s3, 1
    s_lshl_b32 s25, s25, 2
    s_bfe_u32 s29, s2, {0x20004 if mp == 1 else 0x20003}
    s_add_u32 s25, s25, s29          ; tt
    s_bfe_u32 s26, s3, {0x20001 if mp == 1 else 0x10001}
    s_lshl_b32 s26, s26, {2 if mp == 1 else 3}
    s_lshr_b32 s29, s2, {6 if mp == 1 else 5}
    s_add_u32 s26, s26, s29          ; ct
    v_lshrrev_b32 v1, 6, v0
    v_and_b32 v0, 63, v0
    v_readfirstlane_b32 s27, v1
    s_lshl_b32 s29, s25, 19
    s_mov_b32 s10, 0x80000
    s_mov_b32 s11, 0x20000
    s_mov_b32 s14, 0x600000
    s_mov_b32 s15, 0x20000
    s_mov_b32 s18, 0x10000000
    s_mov_b32 s19, 0x20000
    s_mov_b32 s22, 0x10000
    s_mov_b32 s23, 0x20000
    s_mov_b32 s54, 0x200000
    s_mov_b32 s55, 0x20000
    s_mov_b32 s58, 0x800000
    s_mov_b32 s59, 0x20000
    s_mov_b32 s86, 256
    s_mov_b32 s87, 0x20000
    s_waitcnt lgkmcnt(0)
    s_add_u32 s8, s4, s29
    s_addc_u32 s9, s5, 0
    s_mov_b32 s12, s6
    s_mov_b32 s13, s7
    s_mov_b32 s16, s32
    s_mov_b32 s17, s33
    s_mov_b32 s20, s34
    s_mov_b32 s21, s35
    s_mov_b32 s56, s44
    s_mov_b32 s57, s45
    s_mov_b32 s84, s46
    s_mov_b32 s85, s47
    """)
    for i in range(12): stamp(a, opt, i)
    if opt.get("fixt") and not opt.get("fixe"): a("s_memrealtime s[60:61]\ns_waitcnt lgkmcnt(0)")
    a("s_cmp_lt_u32 s27, 4\ns_cbranch_scc1 L_compute")
    if opt.get("hp1"): a(f"s_setprio {opt['hp1']}")
    p1_helper(a, opt)
    p2_helper(a, opt)
    p3_helper(a, opt)
    a("s_branch L_fin")
    a.label("L_compute")
    p1_compute(a, opt)
    p2_compute(a, opt)
    (p3_compute16 if opt.get("m16p3", 1) else p3_compute)(a, opt)
    a.label("L_fin")
    if opt.get("fixt"):
        a("s_cmp_ge_u32 s27, 4\ns_cbranch_scc1 L_end")
        a.label("L_fixt")
        a(f"""
        s_memrealtime s[62:63]
        s_waitcnt lgkmcnt(0)
        s_sub_u32 s62, s62, s60
        s_cmp_lt_u32 s62, {opt["fixt"]}
        s_cbranch_scc1 L_fixt
        """)
    stamp_out(a, opt)
    a.label("L_end")
    a("s_endpgm")
    return a.text()

if __name__ == "__main__":
    import json, subprocess
    out = sys.argv[1]
    opt = json.loads(sys.argv[2]) if len(sys.argv) > 2 else {}
    HEADER = open("concat_heads__linear_kernel_hedgehog__mha_block__prompt.s.ref").read().split("; Override launch")[0]
    launch = f"; @launch kernel={NAME} grid=(256,1,1) block=(512,1,1) lds=163840" if opt.get("list", 1) else "; @launch grid=(256,1,1) block=(512,1,1) lds=163840"
    s = HEADER + launch + '\n.amdgcn_target "amdgcn-amd-amdhsa--gfx950"\n.text\n' + gen(opt) + '.section .rodata,"a"\n' + kdesc(NAME, 256, 102)
    open(out, "w").write(s)
    r = subprocess.run(["clang", "-x", "assembler", "-target", "amdgcn-amd-amdhsa", "-mcpu=gfx950", "-c", out, "-o", "_b.o"], capture_output=True, text=True)
    if r.returncode != 0:
        print(r.stderr[:1500]); raise SystemExit(1)
```

```python
from asmlib import *
import math, sys
import k1
from k1 import (QB_OFF, KVB_OFF, QA_OFF, KVP_OFF, ZP_OFF, O_OFF, LOG2E, f2u, softmax_pm, cvt_inplace,
                W_SLOT, NW, X_BASE, X_SLOT, NX, WPHI_LDS, ACCQ, ACCK, ACCV, reads as p1_reads, mfmas as p1_mfmas,
                epi_A, epi_B, epiA_setup, pk_mfma, phi_write, KH, TT, PH_BLK, Rec, epi_A16)
import p1v16

NAME = "concat_heads__linear_kernel_hedgehog__mha_block__prompt_kernel"
FLG = 29 << 20
F1A, F2B, F2A = FLG + 2048, FLG + 4096, FLG + 5120
F1B = FLG + 16384
F1C = F1B + 16384
F2H = FLG + 49152
TSF = FLG + 12288
ORDW = 138240
QL0 = 139264
STAMP_OFF = 30 << 20
VSNAP, VFA, VPOL = 250, 251, 252
SC = " sc0 sc1"

def stamp(a, opt, idx):
    if opt.get("fixp") is not None and opt["fixp"] == idx:
        a("s_memrealtime s[60:61]\ns_waitcnt lgkmcnt(0)")
    if not opt.get("stamp"): return
    a(f"{'s_memtime' if opt.get('cyc') else 's_memrealtime'} s[{60+2*idx}:{61+2*idx}]")
    a("s_waitcnt lgkmcnt(0)")
def stamp_out(a, opt):
    if not opt.get("stamp"): return
    a("s_waitcnt vmcnt(0)")
    stamp(a, opt, 11)
    if opt.get("stamp") == 2:
        a("s_cmp_lg_u32 s27, 0\ns_cbranch_scc1 L_end\nv_mov_b32 v9, 0\ns_mov_b64 exec, 1")
        for i in range(1, 12):
            a(f"s_sub_u32 s29, s{60+2*i}, s60")
            a("v_mov_b32 v8, s29")
            a(f"buffer_atomic_umax v8, v9, s[84:87], 0 offen offset:{4*i} sc1")
        a("s_not_b32 s29, s60\nv_mov_b32 v8, s29\nbuffer_atomic_umax v8, v9, s[84:87], 0 offen offset:48 sc1")
        a("v_mov_b32 v8, s82\nbuffer_atomic_umax v8, v9, s[84:87], 0 offen offset:52 sc1")
        a("v_mov_b32 v8, s60\nbuffer_atomic_umax v8, v9, s[84:87], 0 offen offset:56 sc1")
        return
    a(f"""
    s_lshl_b32 s29, s2, 3
    s_add_u32 s29, s29, s27
    s_lshl_b32 s29, s29, 6
    s_add_u32 s29, s29, {STAMP_OFF}
    v_mov_b32 v9, 0
    """)
    for i in range(12):
        a(f"v_mov_b32 v8, s{60+2*i}")
        a(f"buffer_store_dword v8, v9, s[16:19], s29 offen offset:{4*i}")

def code_pf(a, opt, junk):
    if not opt.get("cpf", 1): return 0
    a(f"""
    s_and_b32 s29, s27, 3
    s_lshl_b32 s29, s29, 13
    v_lshlrev_b32 v{junk}, 7, v0
    v_add_u32 v{junk}, s29, v{junk}
    v_min_u32 v{junk}, L_end-L_pc, v{junk}
    global_load_dword v{junk}, v{junk}, s[94:95]
    """)
    return 1

_uid = [0]
def only_w4(a):
    _uid[0] += 1
    L = f"L_w4_{_uid[0]}"
    a(f"s_cmp_lg_u32 s27, 4\ns_cbranch_scc1 {L}")
    return L
def poll(a, lo, n, cnt=None):
    L = only_w4(a)
    mask = ((1 << n) - 1) << lo
    a(f"""
    s_mov_b32 s88, {mask & 0xffffffff}
    s_mov_b32 s89, {mask >> 32}
    s_mov_b32 s90, 0x40000
    s_mov_b64 exec, s[88:89]
    """)
    a.label(L + "p")
    a(f"""
    buffer_load_dword v{VPOL}, v{VFA}, s[16:19], 0 offen sc0 sc1
    s_waitcnt vmcnt(0)
    v_sub_u32 v{VPOL}, v{VPOL}, v{VSNAP}
    v_cmp_ne_u32 vcc, {cnt}, v{VPOL}
    s_sub_u32 s90, s90, 1
    s_cbranch_scc1 {L}d
    s_cbranch_vccz {L}d
    s_sleep 1
    s_branch {L}p
    """)
    a.label(L + "d")
    a("s_mov_b64 exec, -1")
    a.label(L)
def need_chunk(a, single=False):
    _uid[0] += 1
    L = f"L_nc_{_uid[0]}"
    a(f"""
    s_bitcmp1_b32 s92, s93
    s_cbranch_scc1 {L}
    s_mov_b32 s90, 0x40000
    s_lshl_b64 s[88:89], 1, s93
    s_mov_b64 exec, {"s[88:89]" if single else "0xff"}
    """)
    a.label(L + "p")
    a(f"""
    buffer_load_dword v{VPOL}, v{VFA}, s[16:19], 0 offen sc0 sc1
    s_waitcnt vmcnt(0)
    v_cmp_ne_u32 vcc, v{VPOL}, v{VSNAP}
    s_sub_u32 s90, s90, 1
    s_cbranch_scc1 {L}d
    s_or_b32 s92, s92, vcc_lo
    s_mov_b64 exec, s[88:89]
    s_bitcmp1_b32 s92, s93
    s_cbranch_scc1 {L}d
    s_sleep 2
    s_branch {L}p
    """)
    a.label(L + "d")
    a("s_mov_b64 exec, -1")
    a.label(L)
def look(a):
    a(f"""
    s_mov_b32 exec_lo, 0xffff0000
    s_mov_b32 exec_hi, 0xffff
    buffer_load_dword v{VPOL}, v{VFA}, s[16:19], 0 offen sc0 sc1
    s_waitcnt vmcnt(0)
    v_sub_u32 v{VPOL}, v{VPOL}, v{VSNAP}
    v_cmp_eq_u32 vcc, 2, v{VPOL}
    s_mov_b64 exec, -1
    s_lshr_b64 s[88:89], vcc, 16
    s_mov_b32 s92, s88
    """)
def need_mask(a):
    _uid[0] += 1
    L = f"L_nm_{_uid[0]}"
    a("s_mov_b32 s90, 0x40000")
    a.label(L + "p")
    a(f"""
    s_andn2_b32 s88, s93, s92
    s_cbranch_scc0 {L}
    s_sub_u32 s90, s90, 1
    s_cbranch_scc1 {L}
    """)
    look(a)
    a(f"s_branch {L}p")
    a.label(L)

def publish(a, lane, all_helpers=False, n=1, inc=1):
    L = None if all_helpers else only_w4(a)
    a(f"""
    v_add_u32 v{VPOL}, {inc}, v{VSNAP}
    s_mov_b32 exec_lo, 0
    s_mov_b32 exec_hi, {((1 << n) - 1) << (lane - 32)}
    buffer_store_dword v{VPOL}, v{VFA}, s[16:19], 0 offen sc0 sc1
    s_mov_b64 exec, -1
    """)
    if L: a.label(L)

def p1_setup32(a):
    a(f"""
    s_lshr_b32 s36, s27, 1          ; tw
    s_and_b32 s37, s27, 1           ; hd
    v_and_b32 v8, 31, v0            ; n
    v_lshrrev_b32 v9, 5, v0         ; h
    v_bfe_u32 v10, v8, 1, 3         ; f
    v_xor_b32 v10, v10, v9
    v_lshlrev_b32 v10, 4, v10
    s_lshl_b32 s29, s36, 14
    v_lshlrev_b32 v11, 7, v8
    v_add3_u32 v1, v11, v10, s29
    v_xor_b32 v2, 32, v1
    v_xor_b32 v3, 64, v1
    v_xor_b32 v4, 0x60, v1
    v_bfe_u32 v10, v0, 2, 2         ; r
    v_lshl_add_u32 v11, v9, 3, v10
    v_lshlrev_b32 v11, 7, v11
    v_lshrrev_b32 v10, 1, v10
    v_xor_b32 v10, s37, v10
    v_lshl_add_u32 v11, v10, 6, v11
    v_bfe_u32 v10, v0, 4, 1
    v_lshl_add_u32 v11, v10, 5, v11
    v_and_b32 v10, 3, v0
    v_lshl_add_u32 v5, v10, 3, v11
    s_mov_b32 s30, {X_BASE}
    s_mov_b32 s31, 0
    v_add_u32 v6, s30, v1
    v_mov_b32 v7, v5
    s_mov_b32 s28, 16
    """)

def p1_loop32(a):
    for r in p1_reads(a, 0, 0, 0): a(r)
    a.raw(".p2align 6")
    a.label("L_p1_loop", keep_hist=True)
    start = len(a.lines)
    for c in range(4):
        st = c & 1
        M = p1_mfmas(st)
        c1 = (c + 1) & 3
        R = p1_reads(a, st ^ 1, c1, c1 & 1)
        pre = []
        if c & 1:
            pre += [f"s_add_u32 s31, s31, {W_SLOT}", f"s_cmp_eq_u32 s31, {W_SLOT*NW}", "s_cselect_b32 s31, 0, s31"]
        if c == 3:
            pre += [f"s_add_u32 s30, s30, {X_SLOT}", f"s_cmp_eq_u32 s30, {X_BASE+X_SLOT*NX}", f"s_cselect_b32 s30, {X_BASE}, s30"]
        a("s_waitcnt lgkmcnt(3)")
        a(M[0])
        for p in pre[:3]: a(p)
        a(M[1])
        for p in pre[3:]: a(p)
        if c & 1: a("v_add_u32 v7, s31, v5")
        a(f"v_add_u32 v6, s30, v{1+c1}")
        a(M[2])
        a("s_waitcnt lgkmcnt(0)")
        if c & 1: a("s_barrier")
        sched = [2, 2, 2, 2, 1, 1, 0, 0, 0]
        k = 0
        for g in range(9):
            for _ in range(sched[g]):
                a(R[k]); k += 1
            if c == 3 and g == 7:
                a("s_sub_u32 s28, s28, 1")
                a("s_cmp_lg_u32 s28, 0")
            a(M[3 + g])
    a("s_cbranch_scc1 L_p1_loop")
    assert check_loop(a.lines[start:]) == (0, 0)

def p1_compute(a, opt):
    m16 = opt.get("m16", 1)
    if m16: p1v16.setup(a)
    else: p1_setup32(a)
    code_pf(a, opt, 12)
    for r in range(64, 256): a(f"v_mov_b32 v{r}, 0")
    a("s_waitcnt vmcnt(0)")
    spf = opt.get("spf", 0)
    if spf:
        a(f"""
        s_lshr_b32 s41, s2, 4
        s_lshl_b32 s41, s41, 3
        s_add_u32 s41, s41, s3
        s_cmp_ge_u32 s27, 2
        s_cbranch_scc1 L_spf_done
        s_cmp_eq_u32 s27, 1
        s_cbranch_scc1 L_spf_x
        s_lshr_b32 s42, s41, 1
        s_lshl_b32 s42, s42, 17
        s_and_b32 s41, s41, 1
        s_lshl_b32 s41, s41, 10
        s_add_u32 s42, s42, s41
        v_lshlrev_b32 v0, 11, v0
        buffer_load_dword v0, v0, s[12:15], s42 offen offset:384
        s_branch L_spf_done
        """)
        a.label("L_spf_x")
        if spf == 1:
            a(f"""
            v_and_b32 v10, 15, v0
            v_lshlrev_b32 v10, 11, v10
            v_and_b32 v0, 16, v0
            v_lshl_add_u32 v0, v0, 6, v10
            s_lshl_b32 s42, s26, 15
            buffer_load_dword v0, v0, s[8:11], s42 offen offset:384
            """)
        a.label("L_spf_done")
    a("s_barrier")
    stamp(a, opt, 1)
    if m16: p1v16.emit_loop(a, opt)
    else: p1_loop32(a)
    a("s_waitcnt vmcnt(0) lgkmcnt(0)")
    a("v_mbcnt_lo_u32_b32 v0, -1, 0")
    a("v_mbcnt_hi_u32_b32 v0, -1, v0")
    stamp(a, opt, 2)
    a(f"""
    s_lshl_b32 s38, s26, 1
    s_add_u32 s38, s38, s37          ; head
    s_lshl_b32 s39, s25, 3
    s_lshl_b32 s29, s36, 2
    s_add_u32 s39, s39, s29          ; tb0
    s_lshl_b32 s40, s38, 6
    s_add_u32 s40, s40, s39          ; h*64+tb0
    v_lshlrev_b32 v1, 4, v0
    s_mov_b32 s91, 0
    v_and_b32 v60, 15, v0
    v_lshrrev_b32 v61, 4, v0
    v_lshlrev_b32 v60, 4, v60
    v_lshl_add_u32 v60, v61, 9, v60  ; g*512 + t*16
    s_cmp_eq_u32 s24, 0
    s_cbranch_scc1 L_p1_epiA
    """)
    epi_B_lds(a, m16)
    a("s_branch L_p1_done")
    a.label("L_p1_epiA")
    (epi_A16 if m16 else epi_A)(a, "p1", {"qlate": opt.get("qlate", 0)})
    a.label("L_p1_done")

def epi_B_lds(a, m16):
    qs = LOG2E / math.sqrt(32.0)
    a(f"""
    s_mov_b32 s44, {f2u(qs)}
    s_mov_b32 s45, {f2u(qs)}
    v_and_b32 v2, 0x33, v0
    v_and_b32 v3, 4, v0
    v_lshl_or_b32 v2, v3, 1, v2
    v_and_b32 v3, 8, v0
    v_lshrrev_b32 v3, 1, v3
    v_or_b32 v2, v2, v3
    v_lshlrev_b32 v2, 4, v2
    """)
    U = 256 if m16 else 1024
    if m16: a("v_mov_b32 v2, v60\nv_mov_b32 v1, v60")
    a(f"""
    s_cmp_lg_u32 s37, 0
    s_cbranch_scc1 L_p1_hd1
    s_lshl_b32 s41, s36, 14
    v_add_u32 v2, s41, v2
    v_add_u32 v3, s41, v1
    s_lshl_b32 s42, s36, 13
    s_add_u32 s42, s42, {QL0}
    v_add_u32 v4, s42, v1
    """)
    def conv(i):
        return ACCQ + 16 * i, ACCK + 16 * i, ACCV + 16 * i
    for i in range(4):
        Q, K, V = conv(i)
        cvt_inplace(a, K)
        a(f"ds_write_b128 v2, {v(K,4)} offset:{i*4096}")
        a(f"ds_write_b128 v2, {v(K+4,4)} offset:{i*4096+U}")
        cvt_inplace(a, V)
        a(f"ds_write_b128 v3, {v(V,4)} offset:{i*4096+2048}")
        a(f"ds_write_b128 v3, {v(V+4,4)} offset:{i*4096+2048+U}")
    a("s_waitcnt lgkmcnt(0)")
    a("s_barrier")
    for i in range(4):
        Q, K, V = conv(i)
        for r in range(0, 16, 2):
            a(f"v_pk_mul_f32 {v(Q+r,2)}, {v(Q+r,2)}, s[44:45]")
        cvt_inplace(a, Q)
        a(f"ds_write_b128 v4, {v(Q,4)} offset:{i*2048}")
        a(f"ds_write_b128 v4, {v(Q+4,4)} offset:{i*2048+U}")
    a("s_branch L_p1_done")
    a.label("L_p1_hd1")
    a(f"""
    s_lshl_b32 s41, s40, 11
    s_add_u32 s41, s41, {QB_OFF}
    s_add_u32 s42, s41, 4096
    s_lshl_b32 s43, s40, 12
    s_add_u32 s43, s43, {KVB_OFF}
    s_mov_b32 s91, 3
    """)
    for i in range(4):
        Q, K, V = conv(i)
        cvt_inplace(a, K)
        a(f"buffer_store_dwordx4 {v(K,4)}, v2, s[16:19], s43 offen{SC}")
        a(f"buffer_store_dwordx4 {v(K+4,4)}, v2, s[16:19], s43 offen offset:{U}{SC}")
        cvt_inplace(a, V)
        a(f"buffer_store_dwordx4 {v(V,4)}, v1, s[16:19], s43 offen offset:2048{SC}")
        a(f"buffer_store_dwordx4 {v(V+4,4)}, v1, s[16:19], s43 offen offset:{2048+U}{SC}")
        for r in range(0, 16, 2):
            a(f"v_pk_mul_f32 {v(Q+r,2)}, {v(Q+r,2)}, s[44:45]")
        cvt_inplace(a, Q)
        sq = "s41" if i < 2 else "s42"
        a(f"buffer_store_dwordx4 {v(Q,4)}, v1, s[16:19], {sq} offen offset:{(i&1)*2048}{SC}")
        a(f"buffer_store_dwordx4 {v(Q+4,4)}, v1, s[16:19], {sq} offen offset:{(i&1)*2048+U}{SC}")
        if i < 3: a("s_add_u32 s43, s43, 4096")
        if i == 1: a("s_barrier")

def p1_helper(a, opt):
    if opt.get("map", 1) == 1 and opt.get("koff", 2) == 1:
        a("""
        s_lshr_b32 s49, s3, 1
        s_lshl_b32 s49, s49, 2
        s_lshl_b32 s29, s3, 3
        s_add_u32 s49, s49, s29
        s_and_b32 s49, s49, 15
        """)
    else:
        a("""
        s_lshr_b32 s49, s3, 1
        s_xor_b32 s49, s49, s3
        s_and_b32 s49, s49, 1
        s_lshl_b32 s49, s49, 3
        """)
    a(f"""
    s_sub_u32 s36, s27, 4            ; lw
    v_lshrrev_b32 v1, 3, v0          ; r
    v_and_b32 v2, 7, v0              ; p
    v_lshrrev_b32 v3, 1, v1
    s_lshl_b32 s29, s36, 3
    v_add_u32 v5, s29, v1            ; 8lw + r
    v_and_b32 v6, 1, v3
    """)
    m16 = opt.get("m16", 1)
    if m16: a("s_and_b32 s29, s36, 1\ns_lshl_b32 s29, s29, 2\nv_lshl_add_u32 v6, v6, 1, s29")
    else: a("v_lshlrev_b32 v6, 2, v6")
    a(f"""
    v_xor_b32 v6, v6, v2
    v_lshlrev_b32 v6, 4, v6
    v_mul_u32_u24 v16, 6144, v5
    s_lshl_b32 s29, s26, 7
    v_add3_u32 v16, v16, v6, s29
    """)
    if opt.get("split"):
        a(f"""
        s_add_u32 s43, s26, {opt.get("split")}
        s_and_b32 s43, s43, 15
        s_sub_u32 s43, s43, s26
        s_lshl_b32 s43, s43, 1
        v_and_b32 v6, 64, v6
        v_mul_lo_u32 v6, v6, s43
        v_add_u32 v16, v16, v6
        """)
    a(f"""
    v_add_u32 v17, 2048, v16
    v_add_u32 v18, 4096, v16
    s_lshl_b32 s37, s36, 10          ; lw*1024
    s_add_u32 s30, s37, {X_BASE}
    s_mov_b32 s31, s37
    s_lshl_b32 s38, s49, 7           ; X soffset
    s_mul_i32 s39, s49, {64*6144}    ; W soffset
    s_add_u32 s40, s37, {X_BASE + NX*X_SLOT}
    s_add_u32 s41, s37, {W_SLOT*NW}
    s_add_u32 s42, s37, {X_BASE}
    """)
    def GX():
        for n in range(8):
            a(f"s_add_u32 m0, s30, {n*4096}")
            a(f"buffer_load_dwordx4 v{8+n}, s[8:11], s38 offen lds")
        a(f"""
        s_add_u32 s38, s38, 128
        s_and_b32 s38, s38, 2047
        s_add_u32 s30, s30, {X_SLOT}
        s_cmp_eq_u32 s30, s40
        s_cselect_b32 s30, s42, s30
        """)
    def GW():
        for sg in range(3):
            a(f"s_add_u32 m0, s31, {sg*4096}")
            a(f"buffer_load_dwordx4 v{16+sg}, s[12:15], s39 offen lds")
        a(f"""
        s_add_u32 s39, s39, {32*6144}
        s_cmp_eq_u32 s39, {1024*6144}
        s_cselect_b32 s39, 0, s39
        s_add_u32 s31, s31, {W_SLOT}
        s_cmp_eq_u32 s31, s41
        s_cselect_b32 s31, s37, s31
        """)
    def WB(n):
        a(f"s_waitcnt vmcnt({n})")
        a("s_barrier")
    GW()
    a(f"""
    s_and_b32 s29, s36, 1
    s_lshl_b32 s29, s29, 2
    v_add_u32 v4, s29, v3            ; f
    v_xor_b32 v4, v4, v2
    v_lshlrev_b32 v4, 4, v4
    v_lshl_add_u32 v8, v5, 11, v4
    """)
    for n in range(1, 8): a(f"v_add_u32 v{8+n}, {n*65536}, v8")
    GX(); GW()
    a(f"""
    v_lshlrev_b32 v19, 4, v0
    s_lshl_b32 s43, s26, 7
    s_add_u32 s43, s43, {FLG}        ; F1A[ct] - 2048
    s_lshl_b32 s46, s26, 10
    s_lshl_b32 s29, s36, 2
    s_add_u32 s46, s46, s29
    s_add_u32 s46, s46, {F1B}
    s_lshl_b32 s29, s24, 14
    s_sub_u32 s47, s46, s29
    s_add_u32 s47, s47, 16384
    v_lshl_add_u32 v20, v0, 7, s47
    s_add_u32 s47, s43, {2048-32}
    v_lshl_add_u32 v21, v0, 2, s47
    v_cmp_gt_u32 vcc, 8, v0
    s_and_b32 s47, s3, 3
    s_lshl_b32 s47, s47, 1
    s_bfe_u32 s29, s2, {0x10005 if MIX[0] else 0x10004}
    s_add_u32 s47, s47, s29
    v_cndmask_b32 v20, v21, v20, vcc
    s_lshl_b32 s48, s47, 1
    s_bfe_u32 s29, s2, {0x10004 if MIX[0] else 0x10003}
    s_add_u32 s48, s48, s29
    s_lshl_b32 s48, s48, 7
    s_add_u32 s48, s48, {F2H - 64}
    s_lshr_b32 s47, s47, 1
    s_lshl_b32 s47, s47, 7
    s_add_u32 s47, s47, {F2A - 64}
    s_cmp_eq_u32 s99, 0
    s_cselect_b32 s47, s47, s48
    s_lshl_b32 s29, s36, 11
    s_add_u32 s47, s47, s29
    v_lshl_add_u32 v21, v0, 2, s47   ; lanes 16..47
    v_cmp_gt_u32 vcc, 16, v0
    s_lshl_b32 s29, s25, 7
    s_add_u32 s46, s46, s29
    s_lshl_b32 s29, s25, 2
    s_add_u32 s47, s43, s29
    v_cndmask_b32 v20, v21, v20, vcc
    s_add_u32 s47, s47, 2048
    s_cmp_eq_u32 s24, 0
    s_cselect_b32 s46, s47, s46
    v_and_b32 v21, 1, v0
    v_lshl_add_u32 v21, v21, 14, s46
    v_cmp_gt_u32 vcc, 48, v0
    s_lshl_b32 s46, s26, 3
    s_lshl_b32 s29, s24, 2
    s_sub_u32 s47, s46, s29
    v_cndmask_b32 v20, v21, v20, vcc
    s_lshl_b32 s29, s25, 7
    s_add_u32 s47, s47, s29
    s_add_u32 s47, s47, {F2B + 4}
    v_and_b32 v22, 3, v0
    v_lshl_add_u32 v21, v22, 11, s47
    v_cmp_gt_u32 vcc, 52, v0
    s_and_b32 s29, s25, 1
    s_lshl_b32 s29, s29, 2
    s_add_u32 s46, s46, s29
    v_cndmask_b32 v20, v21, v20, vcc
    s_lshr_b32 s29, s25, 1
    s_lshl_b32 s29, s29, 7
    s_add_u32 s46, s46, s29
    s_add_u32 s46, s46, {F2A}
    v_lshl_add_u32 v21, v22, 11, s46
    v_cmp_gt_u32 vcc, 56, v0
    s_mov_b32 s92, 0
    s_nop 0
    v_cndmask_b32 v{VFA}, v21, v20, vcc
    """)
    gpf = opt.get("gpf", 3)
    if gpf:
        a(f"""
        s_lshr_b32 s46, s2, 4
        s_lshl_b32 s46, s46, 3
        s_add_u32 s46, s46, s3
        s_lshr_b32 s47, s46, 2
        s_mul_i32 s47, s47, {6*2048}
        s_and_b32 s29, s46, 1
        s_lshl_b32 s29, s29, 10
        s_add_u32 s47, s47, s29
        s_bfe_u32 s29, s46, 0x10001
        s_mul_i32 s29, s29, {8*192*2048}
        s_add_u32 s47, s47, s29
        s_add_u32 s51, s47, {gpf*192*2048 + 384}
        v_lshlrev_b32 v23, 11, v0
        """)
    spre = opt.get("spre", 0)
    if spre:
        a(f"""
        s_lshr_b32 s46, s2, 4
        s_lshl_b32 s46, s46, 3
        s_add_u32 s46, s46, s3
        s_lshl_b32 s47, s46, 2
        s_add_u32 s47, s47, s36
        s_lshl_b32 s47, s47, 13
        s_add_u32 s47, s47, {spre*128}
        s_add_u32 s4, s4, s47
        s_addc_u32 s5, s5, 0
        s_lshr_b32 s47, s46, 6
        s_lshl_b32 s47, s47, 9
        s_and_b32 s29, s46, 63
        s_add_u32 s47, s47, s29
        s_mul_i32 s47, s47, 6144
        s_mul_i32 s29, s36, 1536
        s_add_u32 s47, s47, s29
        s_add_u32 s47, s47, {spre*64*6144}
        s_add_u32 s6, s6, s47
        s_addc_u32 s7, s7, 0
        """)
    vpre = opt.get("vpre", 0)
    if vpre:
        a(f"""
        s_lshr_b32 s46, s2, 4
        s_lshl_b32 s46, s46, 3
        s_add_u32 s46, s46, s3
        s_lshr_b32 s47, s46, 6
        s_lshl_b32 s47, s47, 9
        s_and_b32 s29, s46, 63
        s_add_u32 s47, s47, s29
        s_add_u32 s29, s36, {vpre}
        s_lshl_b32 s96, s29, 6
        s_add_u32 s47, s47, s96
        s_mul_i32 s96, s47, 6144
        s_lshl_b32 s97, s29, 7
        s_lshl_b32 s29, s26, 15
        s_add_u32 s97, s97, s29
        v_lshlrev_b32 v24, 7, v0
        v_and_b32 v25, 15, v0
        v_lshlrev_b32 v25, 11, v25
        v_and_b32 v26, 16, v0
        v_lshl_add_u32 v25, v26, 6, v25
        """)
    def VP(k):
        if not vpre: return
        _uid[0] += 1
        L = f"L_vp_{_uid[0]}"
        a(f"""
        s_cmp_lg_u32 s36, {k}
        s_cbranch_scc1 {L}
        s_mov_b32 exec_lo, -1
        s_mov_b32 exec_hi, 0xffff
        buffer_load_dword v248, v24, s[12:15], s96 offen
        s_mov_b32 exec_hi, 0
        buffer_load_dword v248, v25, s[8:11], s97 offen
        s_mov_b64 exec, -1
        """)
        a.label(L)
    l2p = opt.get("l2p", 0)
    if l2p:
        a(f"""
        s_lshr_b32 s29, s2, 6
        s_lshl_b32 s29, s29, 17
        v_lshlrev_b32 v27, 11, v0
        v_add_u32 v27, s29, v27
        v_and_b32 v28, 15, v0
        v_lshlrev_b32 v28, 2, v28
        s_bfe_u32 s29, s2, 0x20004
        v_add_u32 v28, s29, v28
        v_mul_u32_u24 v28, 6144, v28
        v_lshrrev_b32 v29, 4, v0
        v_lshl_add_u32 v28, v29, 11, v28
        s_lshl_b32 s29, s26, 7
        v_add_u32 v28, s29, v28
        """)
    def L2P():
        if not l2p: return
        _uid[0] += 1
        L = f"L_l2_{_uid[0]}"
        a(f"""
        s_cmp_gt_u32 s28, {opt.get("l2hi", 12)}
        s_cbranch_scc1 {L}
        s_cmp_lt_u32 s28, {l2p}
        s_cbranch_scc1 {L}
        s_cmp_gt_u32 s36, 1
        s_cbranch_scc1 {L}
        s_cmp_eq_u32 s36, 1
        s_cbranch_scc1 {L}w
        s_add_u32 s29, s38, {128*(l2p-1)}
        s_and_b32 s29, s29, 2047
        buffer_load_dword v248, v27, s[8:11], s29 offen
        s_branch {L}
        """)
        a.label(L + "w")
        a(f"""
        s_add_u32 s29, s38, {128*(l2p-1)}
        s_and_b32 s29, s29, 2047
        s_mul_i32 s29, s29, {64*6144//128}
        s_mov_b32 exec_hi, 0xffff
        buffer_load_dword v248, v28, s[12:15], s29 offen
        s_mov_b64 exec, -1
        """)
        a.label(L)
    spn = [0]
    def SP():
        if not spre or spn[0] >= 2 * (8 - spre): return
        h = spn[0] & 1; spn[0] += 1
        for q in range(6): a(f"s_load_dword s98, s[6:7], {(6*h+q)*128}")
        for r in range(4): a(f"s_load_dword s98, s[4:5], {r*2048 + h*1024}")
        if h:
            a(f"""
            s_add_u32 s4, s4, 128
            s_addc_u32 s5, s5, 0
            s_add_u32 s6, s6, {64*6144}
            s_addc_u32 s7, s7, 0
            """)
    def SPF():
        if not gpf: return
        _uid[0] += 1
        L = f"L_g_{_uid[0]}"
        a(f"""
        s_cmp_lg_u32 s27, 5
        s_cbranch_scc1 {L}
        s_mov_b64 exec, 0x3f
        buffer_load_dword v248, v23, s[12:15], s51 offen
        s_mov_b64 exec, -1
        s_add_u32 s51, s51, {192*2048}
        """)
        a.label(L)
    SPF(); SP()
    a("s_waitcnt vmcnt(3)")
    a("s_barrier")
    a(f"buffer_load_dword v{VSNAP}, v{VFA}, s[16:19], 0 offen sc0 sc1")
    SPF(); GX(); GW(); SP(); VP(0); WB(11)
    SPF(); GW(); GX(); SP(); VP(1); WB(11)
    L = only_w4(a)
    a(f"""
    v_mov_b32 v20, 1
    v_mov_b32 v21, 0
    s_mov_b64 exec, 1
    buffer_atomic_add v20, v21, s[84:87], 0 offen sc1
    s_mov_b64 exec, -1
    """)
    a.label(L)
    if m16:
        SPF(); GW(); GW(); GW(); SP(); VP(2)
        npeel = (2 if gpf == 2 else 1) if gpf else 0
        if spre: npeel = max(npeel, 8 - spre - 2)
        for k in range(npeel):
            WB(17); GX(); GW(); SP(); WB(17)
            if k < ((2 if gpf == 2 else 1) if gpf else 0): SPF()
            GW(); SP()
            if k == 0: VP(3)
        a(f"s_mov_b32 s28, {12 - npeel}")
        a.label("L_p1_lloop")
        WB(17); GX(); GW(); WB(17); GW(); L2P()
        a(f"""
        s_sub_u32 s28, s28, 1
        s_cmp_lg_u32 s28, 0
        s_cbranch_scc1 L_p1_lloop
        """)
        WB(17); GX(); GW()
    else:
        SPF(); GW(); GX(); WB(19)
        GW(); GW(); GW(); WB(17)
        SPF(); GX(); GW(); WB(17)
        GW(); WB(17)
        tlb = opt.get("tlb", 0)
        if tlb:
            if tlb == 1: a("s_cmp_ge_u32 s2, 8\ns_cbranch_scc1 L_tlb_done")
            a(f"""
            s_cmp_lg_u32 s27, 4
            s_cbranch_scc1 L_tlb_1
            v_lshlrev_b32 v248, 19, v0
            buffer_load_dword v248, v248, s[16:19], 0 offen
            s_branch L_tlb_done
            """)
            a.label("L_tlb_1")
            a(f"""
            s_cmp_lg_u32 s27, 5
            s_cbranch_scc1 L_tlb_done
            v_lshlrev_b32 v248, 19, v0
            s_mov_b64 exec, 0xffff
            buffer_load_dword v248, v248, s[56:59], 0 offen
            s_mov_b64 exec, -1
            """)
            a.label("L_tlb_done")
        (SPF() if gpf == 2 else None); GX(); GW()
        a("s_mov_b32 s28, 10")
        a.label("L_p1_lloop")
        WB(25); GW(); WB(17); GX(); GW()
        a(f"""
        s_sub_u32 s28, s28, 1
        s_cmp_lg_u32 s28, 0
        s_cbranch_scc1 L_p1_lloop
        """)
        WB(25)
        GW()
    a(f"""
    s_lshl_b32 s29, s26, 12
    s_add_u32 s29, s29, s37
    s_add_u32 m0, s37, {WPHI_LDS}
    s_nop 0
    buffer_load_dwordx4 v19, s[20:23], s29 offen lds
    """)
    n = code_pf(a, opt, 249)
    WB(18 + n); WB(15 + n); WB(4 + n); WB(n)
    a("s_waitcnt lgkmcnt(0)")
    if opt.get("hp1"): a("s_setprio 0")
    L = only_w4(a)
    a("s_mov_b32 s90, 0x40000\nv_mov_b32 v21, 0")
    a.label(L + "p")
    a(f"""
    buffer_load_dword v20, v21, s[84:87], 0 offen sc0 sc1
    s_waitcnt vmcnt(0)
    v_cmp_gt_u32 vcc, 256, v20
    s_sub_u32 s90, s90, 1
    s_cbranch_scc1 {L}
    s_cbranch_vccz {L}
    s_sleep 1
    s_branch {L}p
    """)
    a.label(L)
    p2_helper_setup(a)
    a(f"""
    v_mov_b32 v247, v3
    s_mov_b32 s91, 0
    s_cmp_lg_u32 s24, 0
    s_cbranch_scc1 L_p1_hB
    s_and_b32 s37, s27, 1            ; hd
    s_and_b32 s29, s27, 3
    s_mul_i32 s29, s29, {8192 if m16 else 6144}
    v_add_u32 v5, s29, v1
    """)
    epiA_setup(a, m16)
    a("s_barrier")
    a("s_barrier")
    K = 64; PP = [96, 112, 128]; EE = 144
    for q in range(6): a(f"ds_read_b128 {v(K+4*q,4)}, v5 offset:{KH + q*1024 + (2048 if m16 else 0)}")
    for i in range(3):
        a(f"s_waitcnt lgkmcnt({4-2*i})")
        pk_mfma(a, PP[i], K + 8 * i)
    lf = opt.get("lf", " sc1")
    for i in range(3):
        r = Rec(); softmax_pm(r, PP[i], EE, TT)
        cut = opt.get("cut", 70)
        if i == 2 and opt.get("early", 1):
            c0 = opt.get("c0", 30); cut = opt.get("cut", len(r.l))
            for x in r.l[:c0]: a(x)
            a(f"""
            s_lshl_b64 s[88:89], 1, s93
            s_mov_b64 exec, s[88:89]
            buffer_load_dword v{VPOL}, v{VFA}, s[16:19], 0 offen sc0 sc1
            s_mov_b64 exec, -1
            """)
            for x in r.l[c0:cut]: a(x)
            phi_write(a, 1 + i, PP[i], EE)
            a("s_waitcnt lgkmcnt(0)")
            a("s_barrier")
            a(f"""
            s_waitcnt vmcnt(0)
            s_mov_b64 exec, s[88:89]
            v_cmp_ne_u32 vcc, v{VPOL}, v{VSNAP}
            s_mov_b64 exec, -1
            s_nop 0
            s_cbranch_vccz L_p1_noearly
            s_mov_b32 s91, 1
            """)
            p2_c0_loads(a, lf)
            a.label("L_p1_noearly")
            a("s_branch L_p1_hdone")
        else:
            for x in r.l: a(x)
            phi_write(a, 1 + i, PP[i], EE)
            a("s_waitcnt lgkmcnt(0)")
            if i < 2: a("s_barrier")
    a.label("L_p1_hB")
    a("s_barrier")
    a.label("L_p1_hdone")

SLOT = 32768
KVF = 131072; ZF = KVF + 4096; WPH = KVF + 5120
SELL = 8; LACC = [12, 16]; QF = [24, 32]; KS = [40, 48]; VS = [56, 64]
NEGM = [72, 88]; SB = [104, 120]; OA = [136, 152]

def p2_ids(a):
    a(f"""
    s_lshl_b32 s34, s26, 1
    s_add_u32 s34, s34, 1
    s_sub_u32 s34, s34, s24
    s_and_b32 s31, s27, 3
    s_lshl_b32 s35, s25, 3
    s_lshl_b32 s29, s31, 1
    s_add_u32 s35, s35, s29
    s_lshl_b32 s40, s34, 18
    s_add_u32 s40, s40, {KVB_OFF}
    v_lshlrev_b32 v1, 4, v0
    """)

def p2_compute(a, opt):
    lf = opt.get("lf", " sc1")
    NT = 8
    stamp(a, opt, 3)
    p2_ids(a)
    a(f"""
    s_lshl_b32 s47, s35, 5
    s_add_u32 s47, s47, s34
    s_lshl_b32 s47, s47, 11
    s_add_u32 s47, s47, {O_OFF + (4<<20)}
    s_waitcnt lgkmcnt(0)
    v_mov_b32 v4, 0xdddd
    v_and_b32 v2, 4, v0
    v_cmp_eq_u32 vcc, 0, v2
    v_mov_b32 v2, 0
    v_mov_b32 v3, 0x3f803f80
    v_cndmask_b32 v{SELL}, v2, v3, vcc
    v_cndmask_b32 v{SELL+2}, v3, v2, vcc
    v_mov_b32 v{SELL+1}, v{SELL}
    v_mov_b32 v{SELL+3}, v{SELL+2}
    v_mov_b32 v2, v1
    """)
    if opt.get("m16", 1):
        a("""
        v_and_b32 v22, 0x23, v0
        v_and_b32 v20, 4, v0
        v_lshl_or_b32 v22, v20, 2, v22
        v_and_b32 v20, 0x18, v0
        v_lshrrev_b32 v20, 1, v20
        v_or_b32 v22, v22, v20
        v_lshlrev_b32 v22, 4, v22
        """)
    else: a("v_mov_b32 v22, v1")
    a(f"""
    v_mov_b32 v20, v22
    v_xor_b32 v23, v22, v1
    s_lshl_b32 s29, s31, 12
    s_add_u32 s29, s29, {QL0}
    v_add_u32 v5, s29, v1
    s_lshl_b32 s49, s26, 10
    s_lshl_b32 s29, s25, 7
    s_add_u32 s49, s49, s29
    s_lshl_b32 s29, s36, 3
    s_add_u32 s49, s49, s29
    s_add_u32 s49, s49, {F1C}
    s_lshl_b32 s48, s26, 7
    s_lshl_b32 s29, s25, 2
    s_add_u32 s48, s48, s29
    s_add_u32 s48, s48, {F1A}        ; F1A[ct][tt]
    s_cmp_eq_u32 s24, 0
    s_cselect_b32 s49, s48, s49
    s_cselect_b32 s90, 1, s91
    s_mov_b32 s91, 0
    s_barrier
    """)
    stamp(a, opt, 5)
    def kread(st, addr, j): return [f"ds_read_b128 {v(KS[st]+4*u,4)}, {dict(v2='v20', v3='v21')[addr]} offset:{j*4096+u*1024}" for u in range(2)]
    def vread(st, addr, j): return [f"ds_read_b128 {v(VS[st]+4*u,4)}, {addr} offset:{j*4096+2048+u*1024}" for u in range(2)]
    for b in range(2):
        for u in range(2):
            a(f"ds_read_b128 {v(QF[b]+4*u,4)}, v5 offset:{b*2048+u*1024}")
    for r in kread(0, "v2", 0) + vread(0, "v2", 0) + kread(1, "v2", 1): a(r)
    for b in range(2):
        for r in range(16): a(f"v_mov_b32 v{OA[b]+r}, 0")
        for r in range(4): a(f"v_mov_b32 v{LACC[b]+r}, 0")
    for r in range(4, 8): a(f"v_mov_b32 v{VS[1]+r}, 0")
    a("s_waitcnt lgkmcnt(4)")
    for b in range(2):
        a(f"v_mfma_f32_32x32x16_bf16 {v(SB[b],16)}, {v(KS[0],4)}, {v(QF[b],4)}, 0")
        a(f"v_mfma_f32_32x32x16_bf16 {v(SB[b],16)}, {v(KS[0]+4,4)}, {v(QF[b]+4,4)}, {v(SB[b],16)}")
    def rowmax(S, dst, init=True):
        if init:
            a(f"v_max3_f32 v{dst}, v{S}, v{S+1}, v{S+2}")
            for r in range(3, 15, 2): a(f"v_max3_f32 v{dst}, v{dst}, v{S+r}, v{S+r+1}")
            a(f"v_max_f32 v{dst}, v{dst}, v{S+15}")
        else:
            for r in range(0, 16, 2): a(f"v_max3_f32 v{dst}, v{dst}, v{S+r}, v{S+r+1}")
    def finish_max(dst, tmp, NM):
        a(f"v_mov_b32 v{tmp}, v{dst}")
        a(f"v_permlane32_swap_b32 v{dst}, v{tmp}")
        a(f"v_max_f32 v{dst}, v{dst}, v{tmp}")
        for r in range(16): a(f"v_sub_f32 v{NM+r}, 0, v{dst}")
    rowmax(SB[0], 6); finish_max(6, 7, NEGM[0])
    a(f"v_mfma_f32_32x32x16_bf16 {v(SB[0],16)}, {v(KS[0],4)}, {v(QF[0],4)}, {v(NEGM[0],16)}")
    a(f"v_mfma_f32_32x32x16_bf16 {v(SB[0],16)}, {v(KS[0]+4,4)}, {v(QF[0]+4,4)}, {v(SB[0],16)}")
    rowmax(SB[1], 6); finish_max(6, 7, NEGM[1])
    for r in range(8, 16): a(f"v_mov_b32 v{SB[1]+r}, 0")
    a("s_mov_b32 s28, 0\ns_mov_b64 vcc, s[90:91]")
    a.raw(".p2align 6")
    a.label("L_p2_loop", keep_hist=True)
    start = len(a.lines)
    pat = "ePeeelreMeeeNweeeVeeeeeLr"
    for n in range(2 * NT):
        j = n >> 1; b = n & 1
        A = SB[b]; B = SB[b ^ 1]
        jprev = j - 1 if b == 0 else j
        jnext = j if b == 0 else j + 1
        if b == 0: R = vread((j + 1) & 1, "v2" if j + 1 < NT else "v3", (j + 1) % NT)
        else: R = kread(j & 1, "v2" if j + 2 < NT else "v3", (j + 2) % NT)
        e = rr = 0
        for ch in pat:
            px = opt.get("p2x", "")
            if ch in px and ch != "e":
                a("s_nop 1" if ch in "MN" else "s_nop 2")
                if ch == "P" and n == 2 * NT - 3: a("s_barrier")
                if ch == "M" and n == 2 * NT - 1: a("v_mov_b32 v2, v3")
                if ch == "V":
                    if n == 2 * NT - 1: a("s_add_u32 s28, s28, 1")
                    if n == 0: a(f"v_add_u32 v3, {SLOT}, v2")
                    if n == 1: a(f"v_and_b32 v3, {4*SLOT-1}, v3")
                    if n == 2: a("v_xor_b32 v21, v23, v3")
                    if n == 2 * NT - 2: a("v_mov_b32 v20, v21")
                continue
            if ch == "e" and "e" in px: a("s_nop 1"); e += 1
            elif ch == "e" and "MN" in px: a(f"v_exp_f32 v{A+e}, v{KS[0]+e}"); e += 1
            elif ch == "e": a(f"v_exp_f32 v{A+e}, v{A+e}"); e += 1
            elif ch == "P":
                a(f"v_smfmac_f32_32x32x32_bf16 {v(OA[b^1],16)}, {v(VS[jprev&1]+4,4)}, {v(B+8,8)}, v4")
                if n == 2 * NT - 3: a("s_barrier")
            elif ch == "l": a(f"v_smfmac_f32_16x16x64_bf16 {v(LACC[b^1],4)}, {v(SELL,4)}, {v(B+8,8)}, v4")
            elif ch == "L": a(f"v_smfmac_f32_16x16x64_bf16 {v(LACC[b],4)}, {v(SELL,4)}, {v(A,8)}, v4")
            elif ch == "w":
                if b == 0: a("s_waitcnt lgkmcnt(1)")
                elif n == opt.get("pubn", 1):
                    a("s_cbranch_vccnz L_p2_pub")
                    a.label("L_p2_pubret", keep_hist=True)
                else: a("s_nop 0")
            elif ch == "M":
                a(f"v_mfma_f32_32x32x16_bf16 {v(B,16)}, {v(KS[jnext&1],4)}, {v(QF[b^1],4)}, {v(NEGM[b^1],16)}")
                if n == 2 * NT - 1: a("v_mov_b32 v2, v3")
            elif ch == "N": a(f"v_mfma_f32_32x32x16_bf16 {v(B,16)}, {v(KS[jnext&1]+4,4)}, {v(QF[b^1]+4,4)}, {v(B,16)}")
            elif ch == "V":
                a(f"v_smfmac_f32_32x32x32_bf16 {v(OA[b],16)}, {v(VS[j&1],4)}, {v(A,8)}, v4")
                if n == 2 * NT - 1: a("s_add_u32 s28, s28, 1")
                if n == 0: a(f"v_add_u32 v3, {SLOT}, v2")
                if n == 1: a(f"v_and_b32 v3, {4*SLOT-1}, v3")
                if n == 2: a("v_xor_b32 v21, v23, v3")
                if n == 2 * NT - 2: a("v_mov_b32 v20, v21")
            elif ch == "r": a(R[rr]); rr += 1
    a("s_cmp_lt_u32 s28, 8")
    a("s_cbranch_scc1 L_p2_loop")
    assert check_loop(a.lines[start:]) == (0, 0)
    a("s_nop 1")
    a(f"v_smfmac_f32_32x32x32_bf16 {v(OA[1],16)}, {v(VS[1]+4,4)}, {v(SB[1]+8,8)}, v4")
    a(f"v_smfmac_f32_16x16x64_bf16 {v(LACC[1],4)}, {v(SELL,4)}, {v(SB[1]+8,8)}, v4")
    stamp(a, opt, 6)
    O0 = OA[0]; O1 = OA[1]; L0r = LACC[0]
    a("s_mov_b32 s48, 0")
    a.label("L_p2_blk")
    a(f"""
    s_mov_b32 s36, 0x5d800000        ; 2^60
    v_cmp_nlt_f32 vcc, v{L0r}, s36
    s_cmp_lg_u64 vcc, 0
    {"s_nop 0" if opt.get("p2x") else "s_cbranch_scc1 L_p2_slow"}
    """)
    a.label("L_p2_fin", keep_hist=True)
    a(f"v_rcp_f32 v{L0r}, v{L0r}")
    for r in range(0, 16, 2):
        a(f"v_pk_mul_f32 {v(O0+r,2)}, {v(O0+r,2)}, {v(L0r,2)} op_sel_hi:[1,0]")
    cvt_inplace(a, O0)
    a(f"buffer_store_dwordx4 {v(O0,4)}, v1, s[16:19], s47 offen{SC}")
    a(f"buffer_store_dwordx4 {v(O0+4,4)}, v1, s[16:19], s47 offen offset:1024{SC}")
    a(f"""
    s_cmp_lg_u32 s48, 0
    s_cbranch_scc1 L_p2_out
    s_mov_b32 s48, 1
    s_add_u32 s47, s47, 65536
    """)
    for r in range(16): a(f"v_mov_b32 v{O0+r}, v{O1+r}")
    a(f"v_mov_b32 v{L0r}, v{LACC[1]}")
    for r in range(8): a(f"v_mov_b32 v{QF[0]+r}, v{QF[1]+r}")
    a("s_branch L_p2_blk")
    a.label("L_p2_pub")
    a(f"""
    s_waitcnt vmcnt(0)
    v_mov_b32 v6, 1
    v_lshlrev_b32 v7, 2, v0
    s_mov_b64 exec, vcc
    buffer_atomic_add v6, v7, s[16:19], s49 offen sc1
    s_mov_b64 exec, -1
    s_mov_b64 vcc, 0
    s_nop 4
    s_branch L_p2_pubret
    """)
    S0 = SB[0]; Q0 = QF[0]; NM = NEGM[0]
    a.label("L_p2_slow")
    a(f"""
    s_waitcnt lgkmcnt(0)
    s_mov_b32 s36, s40
    s_mov_b32 s28, 0
    v_mov_b32 v6, 0xff800000
    """)
    a.label("L_p2_slow1")
    a(f"""
    buffer_load_dwordx4 {v(KS[0],4)}, v22, s[16:19], s36 offen{lf}
    buffer_load_dwordx4 {v(KS[0]+4,4)}, v22, s[16:19], s36 offen offset:1024{lf}
    s_waitcnt vmcnt(0)
    v_mfma_f32_32x32x16_bf16 {v(S0,16)}, {v(KS[0],4)}, {v(Q0,4)}, 0
    v_mfma_f32_32x32x16_bf16 {v(S0,16)}, {v(KS[0]+4,4)}, {v(Q0+4,4)}, {v(S0,16)}
    """)
    rowmax(S0, 6, init=False)
    a(f"""
    s_add_u32 s36, s36, 4096
    s_add_u32 s28, s28, 1
    s_cmp_lt_u32 s28, 64
    s_cbranch_scc1 L_p2_slow1
    """)
    finish_max(6, 7, NM)
    for r in range(16): a(f"v_mov_b32 v{O0+r}, 0")
    for r in range(4): a(f"v_mov_b32 v{L0r+r}, 0")
    a("s_mov_b32 s36, s40\ns_mov_b32 s28, 0")
    a.label("L_p2_slow2")
    a(f"""
    buffer_load_dwordx4 {v(KS[0],4)}, v22, s[16:19], s36 offen{lf}
    buffer_load_dwordx4 {v(KS[0]+4,4)}, v22, s[16:19], s36 offen offset:1024{lf}
    buffer_load_dwordx4 {v(VS[0],4)}, v1, s[16:19], s36 offen offset:2048{lf}
    buffer_load_dwordx4 {v(VS[0]+4,4)}, v1, s[16:19], s36 offen offset:3072{lf}
    s_waitcnt vmcnt(0)
    v_mfma_f32_32x32x16_bf16 {v(S0,16)}, {v(KS[0],4)}, {v(Q0,4)}, {v(NM,16)}
    v_mfma_f32_32x32x16_bf16 {v(S0,16)}, {v(KS[0]+4,4)}, {v(Q0+4,4)}, {v(S0,16)}
    """)
    for r in range(16): a(f"v_exp_f32 v{S0+r}, v{S0+r}")
    a(f"""
    v_smfmac_f32_32x32x32_bf16 {v(O0,16)}, {v(VS[0],4)}, {v(S0,8)}, v4
    v_smfmac_f32_16x16x64_bf16 {v(L0r,4)}, {v(SELL,4)}, {v(S0,8)}, v4
    v_smfmac_f32_32x32x32_bf16 {v(O0,16)}, {v(VS[0]+4,4)}, {v(S0+8,8)}, v4
    v_smfmac_f32_16x16x64_bf16 {v(L0r,4)}, {v(SELL,4)}, {v(S0+8,8)}, v4
    s_nop 15
    s_add_u32 s36, s36, 4096
    s_add_u32 s28, s28, 1
    s_cmp_lt_u32 s28, 64
    s_cbranch_scc1 L_p2_slow2
    s_nop 15
    s_branch L_p2_fin
    """)
    a.label("L_p2_out")

def p2_helper_setup(a):
    p2_ids(a)
    a(f"""
    s_lshl_b32 s41, s31, 13          ; hw*8192
    s_add_u32 s40, s40, s41
    s_mov_b32 s43, s41
    s_mov_b32 s93, s25
    s_mov_b32 s44, {f2u(LOG2E)}
    s_mov_b32 s45, {f2u(LOG2E)}
    """)
    if MIX[0]:
        a("""
        s_lshr_b32 s50, s2, 4
        s_lshl_b32 s50, s50, 17
        s_lshl_b32 s37, s31, 15
        s_add_u32 s50, s50, s37
        s_and_b32 s37, s3, 4
        s_lshl_b32 s37, s37, 8
        s_add_u32 s50, s50, s37
        v_lshrrev_b32 v3, 3, v0
        v_and_b32 v2, 7, v0
        v_lshlrev_b32 v3, 11, v3
        v_lshl_add_u32 v3, v2, 7, v3
        """)
    else:
        a("""
        s_lshr_b32 s50, s2, 3
        s_lshl_b32 s50, s50, 16
        s_lshl_b32 s37, s31, 14
        s_add_u32 s50, s50, s37
        v_lshlrev_b32 v3, 7, v0
        """)
    a(f"""
    s_lshl_b32 s38, s26, 1
    s_add_u32 s38, s38, 1
    s_lshl_b32 s38, s38, 6
    s_add_u32 s38, s38, s35
    s_lshl_b32 s38, s38, 11
    s_add_u32 s38, s38, {QB_OFF}
    """)

def p2_c0_loads(a, lf):
    a("s_lshl_b32 s42, s93, 15\ns_add_u32 s42, s42, s40")
    for hf in range(2):
        a(f"s_add_u32 m0, s43, {hf*4096}")
        a(f"s_add_u32 s29, s42, {hf*4096}")
        for n in range(4):
            a(f"buffer_load_dwordx4 v1, s[16:19], s29 offen offset:{n*1024}{lf} lds")
    a(f"""
    s_lshl_b32 s29, s31, 12
    s_add_u32 m0, s29, {QL0}
    s_nop 0
    """)
    for n in range(4):
        a(f"buffer_load_dwordx4 v1, s[16:19], s38 offen offset:{n*1024}{lf} lds")

def p2_helper(a, opt):
    lf = opt.get("lf", " sc1")
    P0 = 8; QAF = 160; ZP0 = 88; JUNK = 96
    WP = 8; KVR = 16; ZR = 32; PQ = 48; EP = 104; T = 120; NUM = 136; DEN = 64
    def advance():
        a(f"""
        s_add_u32 s93, s93, 1
        s_and_b32 s93, s93, 7
        s_add_u32 s43, s43, {SLOT}
        s_and_b32 s43, s43, {4*SLOT-1}
        """)
    def chunk(single=False):
        need_chunk(a, single)
        a("s_lshl_b32 s42, s93, 15\ns_add_u32 s42, s42, s40")
        for hf in range(2):
            a(f"s_add_u32 m0, s43, {hf*4096}")
            a(f"s_add_u32 s29, s42, {hf*4096}")
            for n in range(4):
                a(f"buffer_load_dwordx4 v1, s[16:19], s29 offen offset:{n*1024}{lf} lds")
        advance()
    def PF():
        a(f"buffer_load_dword v{JUNK}, v247, s[52:55], s50 offen")
        a(f"s_add_u32 s50, s50, {16384 if MIX[0] else 8192}")
    def WB(n):
        a(f"s_waitcnt vmcnt({n})")
        a("s_barrier")
    a("s_cmp_lg_u32 s24, 0\ns_cbranch_scc1 L_p2_hB")
    stamp(a, opt, 3)
    a("s_cmp_lg_u32 s91, 0\ns_cbranch_scc1 L_p2_c0done")
    need_chunk(a, True)
    p2_c0_loads(a, lf)
    a.label("L_p2_c0done")
    advance()
    stamp(a, opt, 4)
    WB(0)
    chunk()
    WB(0)
    chunk(); chunk(); PF()
    WB(9)
    chunk(); PF()
    WB(10)
    chunk()
    WB(9)
    chunk()
    WB(8)
    chunk()
    a("s_waitcnt vmcnt(8)")
    a("s_branch L_p2_hjoin")
    a.label("L_p2_hB")
    a(f"""
    v_add_u32 v2, s41, v1
    s_lshl_b32 s42, s25, 15
    s_add_u32 s42, s42, s40
    s_add_u32 s46, s42, 4096
    s_barrier
    """)
    stamp(a, opt, 3)
    a("s_setprio 2")
    for q in range(8): a(f"ds_read_b128 {v(8+4*q,4)}, v2 offset:{q*1024}")
    hb = opt.get("hb", 8)
    for q in range(8):
        if q == hb: a("s_barrier")
        a(f"s_waitcnt lgkmcnt({7-q})")
        a(f"buffer_store_dwordx4 {v(8+4*q,4)}, v1, s[16:19], {'s42' if q < 4 else 's46'} offen offset:{(q&3)*1024}{SC}")
    advance()
    stamp(a, opt, 1)
    if hb >= 8: a("s_barrier")
    a("s_waitcnt vmcnt(0)")
    publish(a, 48, all_helpers=True)
    stamp(a, opt, 4)
    chunk(True)
    stamp(a, opt, 6)
    a("s_waitcnt vmcnt(0)")
    stamp(a, opt, 9)
    WB(0)
    stamp(a, opt, 5)
    chunk(); chunk(); PF()
    WB(9)
    poll(a, 8, 8, 4)
    chunk(); PF()
    WB(10)
    chunk()
    a(f"""
    s_lshl_b32 s34, s26, 1
    s_and_b32 s29, s25, 1
    s_add_u32 s34, s34, s29
    s_and_b32 s35, s25, 6
    s_lshl_b32 s35, s35, 3
    s_lshl_b32 s29, s31, 2
    s_add_u32 s35, s35, s29
    s_lshl_b32 s38, s34, 6
    s_add_u32 s38, s38, s35
    s_lshl_b32 s38, s38, 11
    s_add_u32 s38, s38, {QA_OFF}
    s_add_u32 s39, s38, 4096
    s_lshl_b32 s46, s35, 5
    s_add_u32 s46, s46, s34
    s_lshl_b32 s46, s46, 11
    s_add_u32 s46, s46, {O_OFF}
    s_lshl_b32 s36, s34, 16
    s_add_u32 s36, s36, {KVP_OFF}
    s_lshl_b32 s29, s31, 11
    s_add_u32 s36, s36, s29
    """)
    for t in range(8):
        a(f"buffer_load_dwordx4 {v(P0+8*t,4)}, v1, s[16:19], s36 offen{lf}")
        a(f"buffer_load_dwordx4 {v(P0+8*t+4,4)}, v1, s[16:19], s36 offen offset:1024{lf}")
        if t < 7: a("s_add_u32 s36, s36, 8192")
    a(f"""
    s_and_b32 s37, s31, 1
    s_lshl_b32 s37, s37, 10
    s_lshl_b32 s36, s34, 11
    s_add_u32 s36, s36, s37
    s_add_u32 m0, s37, {WPH}
    v_lshlrev_b32 v6, 2, v0
    buffer_load_dwordx4 v1, s[20:23], s36 offen lds
    s_lshl_b32 s36, s34, 11
    s_add_u32 s36, s36, {ZP_OFF}
    """)
    for t in range(8):
        a(f"buffer_load_dword v{ZP0+t}, v6, s[16:19], s36 offen offset:{t*256}{lf}")
    for q in range(8):
        a(f"buffer_load_dwordx4 {v(QAF+4*q,4)}, v1, s[16:19], {'s38' if q < 4 else 's39'} offen offset:{(q&3)*1024}{lf}")
    a("s_waitcnt vmcnt(8)")
    for t in range(1, 8):
        for r in range(0, 8, 2):
            a(f"v_pk_add_f32 {v(P0+r,2)}, {v(P0+r,2)}, {v(P0+8*t+r,2)}")
    for r in range(4): a(f"v_cvt_pk_bf16_f32 v{P0+r}, v{P0+2*r}, v{P0+2*r+1}")
    a(f"""
    s_lshl_b32 s36, s31, 10
    s_add_u32 s36, s36, {KVF}
    v_add_u32 v6, s36, v1
    ds_write_b128 v6, {v(P0,4)}
    """)
    for t in range(1, 8): a(f"v_add_f32 v{ZP0}, v{ZP0}, v{ZP0+t}")
    a(f"""
    v_cvt_pk_bf16_f32 v{ZP0}, v{ZP0}, v{ZP0}
    v_lshrrev_b32 v6, 4, v0
    v_lshlrev_b32 v6, 5, v6
    v_and_b32 v7, 4, v0
    v_lshl_add_u32 v6, v7, 2, v6
    v_and_b32 v7, 8, v0
    v_add_u32 v6, v6, v7
    v_and_b32 v7, 3, v0
    v_lshl_add_u32 v6, v7, 1, v6
    v_add_u32 v6, {ZF}, v6
    ds_write_b16 v6, v{ZP0}
    v_mov_b32 v7, 0
    ds_write_b16 v6, v7 offset:128
    v_lshrrev_b32 v5, 5, v0          ; h
    v_bfe_u32 v6, v0, 2, 2
    v_lshl_add_u32 v6, v5, 2, v6     ; 4h+r
    v_bfe_u32 v7, v0, 4, 1
    v_lshlrev_b32 v7, 5, v7
    v_lshl_add_u32 v6, v6, 6, v7
    v_and_b32 v7, 3, v0
    v_lshl_add_u32 v6, v7, 3, v6
    v_add_u32 v2, {WPH}, v6
    v_lshrrev_b32 v6, 2, v0
    v_lshrrev_b32 v7, 4, v0
    v_xor_b32 v6, v6, v7
    v_and_b32 v6, 1, v6
    v_cmp_eq_u32 vcc, 0, v6
    v_lshlrev_b32 v5, 4, v5
    v_add_u32 v5, {ZF}, v5
    v_mov_b32 v6, {ZF+128}
    v_cndmask_b32 v7, v6, v5, vcc
    v_add_u32 v6, {KVF}, v1
    """)
    a("s_waitcnt lgkmcnt(0)")
    a("s_barrier")
    chunk()
    for u in range(2):
        for b in range(2):
            a(f"ds_read_b64_tr_b16 {v(WP+4*u+2*b,2)}, v2 offset:{((8*u+16*b) if opt.get('m16', 1) else (16*u+8*b))*64}")
    for f in range(4): a(f"ds_read_b128 {v(KVR+4*f,4)}, v6 offset:{f*1024}")
    for f in range(4): a(f"ds_read_b128 {v(ZR+4*f,4)}, v7 offset:{f*32}")
    a("s_waitcnt vmcnt(8) lgkmcnt(0)")
    def oa_block(b):
        a(f"v_mfma_f32_32x32x16_bf16 {v(PQ,16)}, {v(WP,4)}, {v(QAF+8*b,4)}, 0")
        a(f"v_mfma_f32_32x32x16_bf16 {v(PQ,16)}, {v(WP+4,4)}, {v(QAF+8*b+4,4)}, {v(PQ,16)}")
        softmax_pm(a, PQ, EP, T)
        for f in range(4):
            F = (EP if f < 2 else PQ) + 4 * (f & 1)
            a(f"v_mfma_f32_32x32x16_bf16 {v(NUM,16)}, {v(KVR+4*f,4)}, {v(F,4)}, {'0' if f == 0 else v(NUM,16)}")
            a(f"v_mfma_f32_16x16x32_bf16 {v(DEN,4)}, {v(ZR+4*f,4)}, {v(F,4)}, {'0' if f == 0 else v(DEN,4)}")
        a(f"""
        v_add_f32 v{DEN}, {f2u(1e-6)}, v{DEN}
        v_rcp_f32 v{DEN}, v{DEN}
        """)
        for r in range(0, 16, 2):
            a(f"v_pk_mul_f32 {v(NUM+r,2)}, {v(NUM+r,2)}, {v(DEN,2)} op_sel_hi:[1,0]")
        cvt_inplace(a, NUM)
        a(f"buffer_store_dwordx4 {v(NUM,4)}, v1, s[16:19], s46 offen{SC}")
        a(f"buffer_store_dwordx4 {v(NUM+4,4)}, v1, s[16:19], s46 offen offset:1024{SC}")
        a(f"s_add_u32 s46, s46, 65536")
    a("s_mov_b32 s28, 0")
    a.label("L_p2_oa")
    oa_block(0)
    for r in range(0, 24, 2): a(f"v_pk_mov_b32 {v(QAF+r,2)}, {v(QAF+8+r,2)}, {v(QAF+8+r,2)} op_sel:[0,1]")
    a(f"""
    s_add_u32 s28, s28, 1
    s_cmp_eq_u32 s28, 2
    s_cbranch_scc0 L_p2_oa1
    s_barrier
    """)
    chunk()
    a.label("L_p2_oa1")
    a("s_cmp_lt_u32 s28, 4\ns_cbranch_scc1 L_p2_oa")
    a("s_waitcnt vmcnt(12)")
    a("s_setprio 0")
    a.label("L_p2_hjoin")
    a("s_barrier")
    dyn = opt.get("dyn", 0)
    if dyn:
        L = only_w4(a)
        a(f"""
        s_memrealtime s[88:89]
        s_lshl_b32 s29, s25, 7
        s_lshl_b32 s90, s26, 3
        s_add_u32 s29, s29, s90
        s_lshl_b32 s90, s24, 2
        s_sub_u32 s29, s29, s90
        s_add_u32 s29, s29, {TSF + 4}
        v_mov_b32 v13, 0
        s_waitcnt lgkmcnt(0)
        v_mov_b32 v12, s88
        s_mov_b64 exec, 1
        buffer_store_dword v12, v13, s[16:19], s29 offen sc0 sc1
        s_mov_b64 exec, -1
        """)
        a.label(L)
    a("s_mov_b32 s33, s24")
    p3_helper_setup(a, opt)
    nv = opt.get("nv", 0)
    n1 = p3_wv_loads(a, opt, 5, 5 + nv // 2)
    if opt.get("otouch"):
        a(f"""
        s_lshl_b32 s29, s25, 19
        s_lshl_b32 s41, s36, 17
        s_add_u32 s29, s29, s41
        s_lshl_b32 s41, s24, 11
        s_add_u32 s29, s29, s41
        s_lshl_b32 s41, s26, 8
        s_add_u32 s29, s29, s41
        v_lshrrev_b32 v12, 1, v0
        v_lshlrev_b32 v12, 12, v12
        v_and_b32 v13, 1, v0
        v_lshl_add_u32 v12, v13, 7, v12
        {"s_mov_b64 exec, 1" if opt["otouch"] == 1 else ""}
        buffer_load_dword v248, v12, s[56:59], s29 offen
        s_mov_b64 exec, -1
        """)
        n1 += 1
    if opt.get("wearly", 1) and not dyn:
        p3_gw(a, 0); p3_gw(a, 4); n1 += 8
    WB(n1)
    a("s_cmp_eq_u32 s33, 0\ns_cbranch_scc1 L_p2_hdone")
    publish(a, 56, n=4, inc=2)
    a.label("L_p2_hdone")
    p3_wv_loads(a, opt, 5 + nv // 2, 5 + nv)

NS = 5
ACC3 = 72
OS = [8, 16, 24, 32]; WSR = [40, 48, 56, 64]
MIX = [1]
def p3_ids(a):
    if MIX[0]:
        a(f"""
        s_mov_b32 s24, s99               ; branch
        s_and_b32 s25, s3, 3
        s_lshl_b32 s25, s25, 2
        s_bfe_u32 s29, s2, 0x20004
        s_add_u32 s25, s25, s29
        s_and_b32 s26, s3, 4
        s_lshr_b32 s29, s2, 6
        s_add_u32 s26, s26, s29
        """)
        return
    a(f"""
    s_lshr_b32 s24, s3, 2            ; branch
    s_and_b32 s25, s3, 3
    s_lshl_b32 s25, s25, 2
    s_bfe_u32 s29, s2, 0x20003
    s_add_u32 s25, s25, s29
    s_lshr_b32 s26, s2, 5
    """)

def p3_compute(a, opt):
    a("s_waitcnt lgkmcnt(0)")
    p3_ids(a)
    a(f"""
    s_lshr_b32 s36, s27, 1           ; tw
    s_and_b32 s37, s27, 1            ; cw
    v_lshlrev_b32 v1, 4, v0
    s_lshl_b32 s29, s36, 13
    v_add_u32 v1, s29, v1
    v_lshrrev_b32 v2, 5, v0          ; h
    v_bfe_u32 v3, v0, 2, 2           ; r
    v_lshl_add_u32 v4, v2, 2, v3
    v_lshlrev_b32 v4, 8, v4
    s_lshl_b32 s29, s37, 1
    v_xor_b32 v3, s29, v3
    v_lshl_add_u32 v4, v3, 6, v4
    v_bfe_u32 v5, v0, 4, 1
    v_lshl_add_u32 v4, v5, 5, v4
    v_and_b32 v5, 3, v0
    v_lshl_add_u32 v4, v5, 3, v4
    v_add_u32 v2, 16384, v4
    v_xor_b32 v3, 64, v2
    s_mov_b32 s30, 0
    v_mov_b32 v4, v1
    v_mov_b32 v5, v2
    v_mov_b32 v6, v3
    s_mov_b32 s28, 16
    """)
    for r in range(ACC3, ACC3 + 64): a(f"v_mov_b32 v{r}, 0")
    def reads(st, c):
        O = OS[st]; W = WSR[st]
        o = [f"ds_read_b128 {v(O+4*i,4)}, v4 offset:{i*4096+c*1024}" for i in range(2)]
        w = [f"ds_read_b64_tr_b16 {v(W+4*cb+2*b,2)}, v{5+cb} offset:{(16*c+8*b)*256}" for cb in range(2) for b in range(2)]
        return [w[0], w[1], o[0], o[1], w[2], w[3]]
    def mf(st):
        O = OS[st]; W = WSR[st]
        return [f"v_mfma_f32_32x32x16_bf16 {v(ACC3+16*(2*i+cb),16)}, {v(W+4*cb,4)}, {v(O+4*i,4)}, {v(ACC3+16*(2*i+cb),16)}"
                for cb in range(2) for i in range(2)]
    a("s_waitcnt vmcnt(0)")
    stamp(a, opt, 7)
    a("s_barrier")
    stamp(a, opt, 8)
    a("s_barrier")
    stamp(a, opt, 9)
    for r in reads(0, 0) + reads(1, 1): a(r)
    a.raw(".p2align 6")
    a.label("L_p3_loop", keep_hist=True)
    start = len(a.lines)
    for c in range(4):
        M = mf(c); R = reads((c + 2) & 3, (c + 2) & 3)
        a("s_waitcnt lgkmcnt(6)")
        a(M[0])
        if c == 2: a("s_barrier")
        a(R[0]); a(R[1])
        a(M[1])
        a(R[2]); a(R[3])
        a(M[2])
        a(R[4]); a(R[5])
        if c == 1:
            a(f"""
            s_add_u32 s30, s30, {SLOT}
            s_cmp_eq_u32 s30, {SLOT*NS}
            s_cselect_b32 s30, 0, s30
            """)
        a(M[3])
        if c == 1:
            a("""
            v_add_u32 v4, s30, v1
            v_add_u32 v5, s30, v2
            v_add_u32 v6, s30, v3
            """)
        if c == 3:
            a("s_sub_u32 s28, s28, 1")
            a("s_cmp_lg_u32 s28, 0")
    a("s_cbranch_scc1 L_p3_loop")
    assert check_loop(a.lines[start:]) == (0, 0)
    a("s_waitcnt lgkmcnt(0)")
    stamp(a, opt, 10)
    RS = 144
    a(f"""
    s_lshl_b32 s38, s25, 7
    s_lshl_b32 s29, s36, 6
    s_add_u32 s38, s38, s29          ; token0
    s_lshl_b32 s38, s38, 12
    s_lshl_b32 s29, s24, 11
    s_add_u32 s38, s38, s29
    s_lshl_b32 s29, s26, 8
    s_add_u32 s38, s38, s29
    s_lshl_b32 s29, s37, 7
    s_add_u32 s38, s38, s29
    s_mul_i32 s29, s27, {64*RS}
    s_add_u32 s29, s29, {2*SLOT}
    v_and_b32 v1, 31, v0
    v_mul_u32_u24 v1, {RS}, v1
    v_lshrrev_b32 v2, 5, v0
    v_lshl_add_u32 v1, v2, 3, v1
    v_add_u32 v1, s29, v1
    v_lshrrev_b32 v2, 3, v0
    v_and_b32 v3, 7, v0
    v_mul_u32_u24 v4, {RS}, v2
    v_lshl_add_u32 v4, v3, 4, v4
    v_add_u32 v4, s29, v4
    v_lshlrev_b32 v2, 12, v2
    v_lshl_add_u32 v2, v3, 4, v2
    """)
    for i in range(2):
        for cb in range(2):
            D = ACC3 + 16 * (2 * i + cb)
            for r in range(8): a(f"v_cvt_pk_bf16_f32 v{D+r}, v{D+2*r}, v{D+2*r+1}")
            for g in range(4):
                a(f"ds_write_b64 v1, {v(D+2*g,2)} offset:{i*32*RS + cb*64 + g*16}")
        for q in range(4):
            a(f"ds_read_b128 {v(8+16*i+4*q,4)}, v4 offset:{(i*32+q*8)*RS}")
    for i in range(2):
        for q in range(4):
            a(f"s_waitcnt lgkmcnt({(3-q) + (12 if i == 0 else 0)})")
            a(f"buffer_store_dwordx4 {v(8+16*i+4*q,4)}, v2, s[56:59], s38 offen{SC}")
            a(f"s_add_u32 s38, s38, {8*4096}")

def p3_compute16(a, opt):
    OSET = [8, 24]; WSET = [40, 56]
    a(f"""
    s_lshl_b32 s49, s25, 1
    s_lshr_b32 s29, s27, 1
    s_add_u32 s49, s49, s29
    s_lshl_b32 s49, s49, 7
    s_lshl_b32 s29, s34, 2
    s_add_u32 s49, s49, s29
    s_add_u32 s49, s49, {F2H}
    s_waitcnt lgkmcnt(0)
    """)
    p3_ids(a)
    a(f"""
    s_lshr_b32 s36, s27, 1           ; tw
    s_and_b32 s37, s27, 1            ; cw
    v_and_b32 v7, 15, v0             ; t
    v_lshrrev_b32 v6, 4, v0          ; g
    v_lshlrev_b32 v1, 4, v7
    v_lshl_add_u32 v1, v6, 9, v1
    s_lshl_b32 s29, s36, 13
    v_add_u32 v1, s29, v1
    v_bfe_u32 v3, v0, 2, 3           ; 4(g&1) + r
    v_lshrrev_b32 v2, 5, v0
    v_lshl_add_u32 v2, v2, 4, v3     ; row = 16(g>>1) + 4(g&1) + r
    v_lshlrev_b32 v2, 8, v2
    s_lshl_b32 s29, s37, 2
    v_xor_b32 v3, s29, v3
    v_lshl_add_u32 v2, v3, 5, v2
    v_and_b32 v3, 3, v0
    v_lshl_add_u32 v2, v3, 3, v2
    v_add_u32 v2, 16384, v2
    s_mov_b32 s30, 0
    v_mov_b32 v3, v1
    v_mov_b32 v4, v2
    v_xor_b32 v5, 32, v2
    v_xor_b32 v6, 64, v2
    v_xor_b32 v7, 0x60, v2
    s_mov_b32 s28, 16
    """)
    for r in range(ACC3, ACC3 + 64): a(f"v_mov_b32 v{r}, 0")
    def reads(st, sp):
        O = OSET[st]; W = WSET[st]
        o = [f"ds_read_b128 {v(O+4*i,4)}, v3 offset:{(i>>1)*4096 + sp*2048 + (i&1)*256}" for i in range(4)]
        w = [[f"ds_read_b64_tr_b16 {v(W+4*cb+2*b,2)}, v{4+cb} offset:{(32*sp+8*b)*256}" for b in range(2)] for cb in range(4)]
        return w[0] + [o[0], o[1]] + [o[2], o[3]] + w[1] + w[2] + w[3]
    def mf(st):
        O = OSET[st]; W = WSET[st]
        return [f"v_mfma_f32_16x16x32_bf16 {v(ACC3+16*i+4*cb,4)}, {v(W+4*cb,4)}, {v(O+4*i,4)}, {v(ACC3+16*i+4*cb,4)}"
                for cb in range(4) for i in range(4)]
    a(f"""
    v_mov_b32 v8, 1
    v_lshlrev_b32 v9, 11, v0
    s_waitcnt vmcnt(0)
    s_mov_b64 exec, 15
    buffer_atomic_add v8, v9, s[16:19], s49 offen sc1
    s_mov_b64 exec, -1
    """)
    stamp(a, opt, 7)
    a("s_barrier")
    stamp(a, opt, 8)
    a("s_barrier")
    stamp(a, opt, 9)
    for r in reads(0, 0): a(r)
    a.raw(".p2align 6")
    a.label("L_p3_loop", keep_hist=True)
    start = len(a.lines)
    for sp in range(2):
        M = mf(sp); R = reads(sp ^ 1, sp ^ 1)
        if opt.get("p3x") == 1: M = ["s_nop 0"] * 16
        extra = {n: [] for n in range(16)}
        for k, r in enumerate(R): extra[1 + k].append(r)
        if sp == 1: extra[0].append("s_barrier")
        if sp == 0:
            extra[0] += [f"s_add_u32 s30, s30, {SLOT}", f"s_cmp_eq_u32 s30, {SLOT*NS}"]
            extra[1].append("s_cselect_b32 s30, 0, s30")
            extra[13] += ["v_add_u32 v3, s30, v1", "v_add_u32 v4, s30, v2"]
            extra[14] += ["v_xor_b32 v5, 32, v4", "v_xor_b32 v6, 64, v4"]
            extra[15] += ["v_xor_b32 v7, 0x60, v4"]
        else:
            extra[14] += ["s_sub_u32 s28, s28, 1", "s_cmp_lg_u32 s28, 0"]
        waits = {0: 6, 4: 4 + 3, 8: 2 + 7, 12: 0 + 11}
        for n in range(16):
            if n in waits: a(f"s_waitcnt lgkmcnt({waits[n]})")
            a(M[n])
            for x in extra[n]: a(x)
    a("s_cbranch_scc1 L_p3_loop")
    assert check_loop(a.lines[start:]) == (0, 0)
    a("s_waitcnt lgkmcnt(0)")
    stamp(a, opt, 10)
    RS = 144
    a(f"""
    s_lshl_b32 s38, s25, 7
    s_lshl_b32 s29, s36, 6
    s_add_u32 s38, s38, s29          ; token0
    s_lshl_b32 s38, s38, 12
    s_lshl_b32 s29, s24, 11
    s_add_u32 s38, s38, s29
    s_lshl_b32 s29, s26, 8
    s_add_u32 s38, s38, s29
    s_lshl_b32 s29, s37, 7
    s_add_u32 s38, s38, s29
    s_mul_i32 s29, s27, {64*RS}
    s_add_u32 s29, s29, {2*SLOT}
    v_and_b32 v1, 15, v0
    v_mul_u32_u24 v1, {RS}, v1
    v_lshrrev_b32 v2, 4, v0
    v_lshl_add_u32 v1, v2, 3, v1
    v_add_u32 v1, s29, v1
    v_lshrrev_b32 v2, 3, v0
    v_and_b32 v3, 7, v0
    v_mul_u32_u24 v4, {RS}, v2
    v_lshl_add_u32 v4, v3, 4, v4
    v_add_u32 v4, s29, v4
    v_lshlrev_b32 v2, 12, v2
    v_lshl_add_u32 v2, v3, 4, v2
    """)
    for i in range(4):
        D = ACC3 + 16 * i
        for r in range(8): a(f"v_cvt_pk_bf16_f32 v{D+r}, v{D+2*r}, v{D+2*r+1}")
        for cb in range(4):
            a(f"ds_write_b64 v1, {v(D+2*cb,2)} offset:{i*16*RS + cb*32}")
        for q in range(2):
            a(f"ds_read_b128 {v(8+8*i+4*q,4)}, v4 offset:{(i*16+q*8)*RS}")
        if i >= 1:
            for q in range(2):
                a(f"s_waitcnt lgkmcnt({7-q})")
                a(f"buffer_store_dwordx4 {v(8+8*(i-1)+4*q,4)}, v2, s[56:59], s38 offen{opt.get('osc', SC)}")
                a(f"s_add_u32 s38, s38, {8*4096}")
    for q in range(2):
        a(f"s_waitcnt lgkmcnt({1-q})")
        a(f"buffer_store_dwordx4 {v(8+24+4*q,4)}, v2, s[56:59], s38 offen{opt.get('osc', SC)}")
        a(f"s_add_u32 s38, s38, {8*4096}")

def p3_helper_setup(a, opt):
    lf = opt.get("lf", " sc1")
    p3_ids(a)
    a(f"""
    s_sub_u32 s36, s27, 4            ; lw
    v_lshlrev_b32 v1, 4, v0
    v_lshrrev_b32 v2, 4, v0          ; r
    v_and_b32 v3, 15, v0             ; p
    v_lshlrev_b32 v4, {1 if opt.get("m16p3", 1) else 2}, v2
    v_xor_b32 v3, v3, v4
    v_lshlrev_b32 v3, 4, v3
    v_lshl_add_u32 v8, v2, 11, v3
    s_lshl_b32 s29, s26, 8
    s_lshl_b32 s37, s36, 15
    s_add_u32 s29, s29, s37
    v_add_u32 v8, s29, v8
    v_xor_b32 v9, {128 if opt.get("m16p3", 1) else 0}, v8
    v_add_u32 v9, 8192, v9
    v_add_u32 v10, 16384, v8
    v_add_u32 v11, 16384, v9
    s_lshl_b32 s38, s25, 2
    s_add_u32 s38, s38, s36          ; tb
    s_lshl_b32 s38, s38, 16
    s_lshl_b32 s29, s24, 22
    s_add_u32 s38, s38, s29
    s_add_u32 s38, s38, {O_OFF}      ; O soffset
    s_lshl_b32 s37, s36, 12          ; lw*4096
    s_add_u32 s40, s37, {SLOT*NS}
    """)
    a(f"""
    {"s_lshr_b32 s42, s3, 1" if opt.get("rot", 1) == 1 else "s_lshr_b32 s42, s2, 6"}
    s_lshl_b32 s42, s42, {3 if opt.get("rot", 1) == 3 else 2}
    s_add_u32 s42, s42, 4
    s_and_b32 s42, s42, {15 if opt.get("rot", 1) else 0}
    s_mov_b32 s44, s42
    s_add_u32 s45, s42, 4
    s_and_b32 s45, s45, 15
    s_add_u32 s46, s42, 8
    s_and_b32 s46, s46, 15
    s_add_u32 s47, s42, 12
    s_and_b32 s47, s47, 15
    s_mov_b32 s30, s37
    s_mov_b32 s48, 0
    """)

def p3_gw(a, t):
    a(f"s_add_u32 s41, s{44 + (t >> 2)}, {t & 3}\ns_lshl_b32 s39, s41, 17")
    for n in range(4):
        a(f"s_add_u32 m0, s37, {t*SLOT+16384+n*1024}")
        a(f"buffer_load_dwordx4 v{8+n}, s[52:55], s39 offen lds")

WV0 = 16
def p3_wv_loads(a, opt, t0, t1):
    for t in range(t0, t1):
        a(f"s_add_u32 s41, s42, {t}\ns_and_b32 s41, s41, 15\ns_lshl_b32 s39, s41, 17")
        for n in range(4):
            a(f"buffer_load_dwordx4 {v(WV0+16*(t-5)+4*n,4)}, v{8+n}, s[52:55], s39 offen")
    return 4 * (t1 - t0)

def p3_helper(a, opt):
    lf = opt.get("lf", " sc1")
    def stg(t):
        a(f"s_add_u32 s41, s{44 + (t >> 2)}, {t & 3}")
    def GWs(t):
        stg(t)
        a("s_lshl_b32 s39, s41, 17")
        for n in range(4):
            a(f"s_add_u32 m0, s37, {t*SLOT+16384+n*1024}")
            a(f"buffer_load_dwordx4 v{8+n}, s[52:55], s39 offen lds")
    def GOs(t):
        stg(t)
        a(f"s_add_u32 m0, s37, {t*SLOT}\ns_lshl_b32 s29, s41, 12\ns_add_u32 s29, s29, s38")
        for n in range(4): a(f"buffer_load_dwordx4 v1, s[16:19], s29 offen offset:{n*1024}{lf} lds")
    def hm(t, n):
        a("s_mov_b32 s93, 0")
        for k in range(n):
            stg(t + k)
            a("s_lshl_b32 s29, s41, 1\ns_lshl_b32 s29, 3, s29\ns_or_b32 s93, s93, s29")
    def G():
        a(f"""
        s_and_b32 s41, s43, 15
        s_add_u32 s43, s43, 1
        s_lshl_b32 s39, s41, 17
        s_lshl_b32 s29, s41, 1
        s_lshl_b32 s93, 3, s29
        """)
        for n in range(4):
            a(f"s_add_u32 m0, s30, {16384+n*1024}")
            a(f"buffer_load_dwordx4 v{8+n}, s[52:55], s39 offen lds")
        need_mask(a)
        a(f"""
        s_lshl_b32 s29, s41, 12
        s_mov_b32 m0, s30
        s_add_u32 s29, s29, s38
        """)
        for n in range(4): a(f"buffer_load_dwordx4 v1, s[16:19], s29 offen offset:{n*1024}{lf} lds")
        a(f"""
        s_add_u32 s30, s30, {SLOT}
        s_cmp_eq_u32 s30, s40
        s_cselect_b32 s30, s37, s30
        """)
    code_pf(a, opt, 249)
    dyn = opt.get("dyn", 0)
    if dyn:
        L = only_w4(a)
        a(f"""
        s_lshr_b32 s29, s25, 1
        s_lshl_b32 s29, s29, 7
        s_add_u32 s29, s29, {TSF}
        v_lshlrev_b32 v13, 5, v0
        s_sleep {opt.get("dsl", 16)}
        s_mov_b64 exec, 15
        buffer_load_dword v12, v13, s[16:19], s29 offen sc0 sc1
        s_mov_b64 exec, -1
        s_waitcnt vmcnt(0)
        s_memrealtime s[88:89]
        v_lshlrev_b32 v13, 2, v0
        v_subrev_u32 v13, s42, v13
        v_and_b32 v13, 12, v13
        s_waitcnt lgkmcnt(0)
        v_sub_u32 v12, s88, v12          ; age
        v_cmp_gt_u32 vcc, 2000, v12
        v_sub_u32 v12, 2000, v12
        v_mov_b32 v14, 4000
        v_cndmask_b32 v12, v14, v12, vcc
        v_mul_u32_u24 v12, s24, v12
        v_lshrrev_b32 v12, {opt.get("dq", 3)}, v12
        v_lshl_or_b32 v12, v12, 4, v13
        v_lshl_or_b32 v12, v12, 2, v0
        v_readlane_b32 s44, v12, 0
        v_readlane_b32 s45, v12, 1
        v_readlane_b32 s46, v12, 2
        v_readlane_b32 s47, v12, 3
        """)
        for x, y in ((44, 45), (46, 47), (44, 46), (45, 47), (45, 46)):
            a(f"s_min_u32 s29, s{x}, s{y}\ns_max_u32 s{y}, s{x}, s{y}\ns_mov_b32 s{x}, s29")
        a("s_mov_b32 s29, 0")
        for k in range(4):
            a(f"s_and_b32 s{44+k}, s{44+k}, 3\ns_lshl_b32 s{44+k}, s{44+k}, {4*k+2}\ns_or_b32 s29, s29, s{44+k}")
        a(f"""
        v_mov_b32 v12, s29
        v_mov_b32 v13, {ORDW}
        ds_write_b32 v13, v12
        s_waitcnt lgkmcnt(0)
        """)
        a.label(L)
        a("s_barrier")
        a(f"""
        v_mov_b32 v13, {ORDW}
        ds_read_b32 v12, v13
        s_waitcnt lgkmcnt(0)
        v_readfirstlane_b32 s29, v12
        """)
        for k in range(4): a(f"s_bfe_u32 s{44+k}, s29, {0x40000 + 4*k}")
        GWs(0); GWs(1); GWs(2); GWs(4)
    elif opt.get("wearly", 1):
        GWs(1)
        a("s_barrier")
        GWs(2)
    else:
        GWs(4)
        a("s_barrier")
        GWs(0); GWs(1); GWs(2)
    look(a)
    n0 = opt.get("n0", 3)
    hm(0, n0)
    a(f"""
    s_andn2_b32 s88, s93, s92
    s_cbranch_scc1 L_p3_notyet
    s_mov_b32 s48, 1
    """)
    for t in range(n0): GOs(t)
    a.label("L_p3_notyet")
    a("s_barrier")
    stamp(a, opt, 7)
    GWs(3)
    a(f"""
    s_cmp_lg_u32 s48, 0
    s_cbranch_scc1 L_p3_have
    """)
    need_mask(a)
    stamp(a, opt, 8)
    for t in range(n0): GOs(t)
    a.label("L_p3_have")
    a(f"s_waitcnt vmcnt({4*(n0-1)})")
    a("s_barrier")
    if n0 == 2:
        hm(2, 1); need_mask(a); GOs(2)
        a("s_waitcnt vmcnt(4)")
        a("s_barrier")
        hm(3, 2); need_mask(a); GOs(3); GOs(4)
    else:
        hm(3, 1); need_mask(a); GOs(3)
        a("s_waitcnt vmcnt(8)")
        a("s_barrier")
        hm(4, 1); need_mask(a); GOs(4)
    nv = opt.get("nv", 0)
    a("v_add_u32 v12, s37, v1")
    cnt = {2: 4, 3: 4, 4: 4}
    for tau in range(2, 16):
        allowed = sum(cnt.get(k, 0) for k in (tau + 1, tau + 2))
        a(f"s_waitcnt vmcnt({allowed}) lgkmcnt(0)")
        a("s_barrier")
        t = tau + 3
        if t > 15: continue
        slot = (t % NS) * SLOT
        if t < 5 + nv:
            if slot + 16384 + 3072 > 65535:
                a(f"v_add_u32 v13, {slot + 16384}, v12")
                for n in range(4): a(f"ds_write_b128 v13, {v(WV0+16*(t-5)+4*n,4)} offset:{n*1024}")
            else:
                for n in range(4): a(f"ds_write_b128 v12, {v(WV0+16*(t-5)+4*n,4)} offset:{slot+16384+n*1024}")
            cnt[t] = 4
        else:
            stg(t)
            a("s_lshl_b32 s39, s41, 17")
            for n in range(4):
                a(f"s_add_u32 m0, s37, {slot+16384+n*1024}")
                a(f"buffer_load_dwordx4 v{8+n}, s[52:55], s39 offen lds")
            cnt[t] = 8
        hm(t, 1)
        need_mask(a)
        a(f"s_add_u32 m0, s37, {slot}\ns_lshl_b32 s29, s41, 12\ns_add_u32 s29, s29, s38")
        if opt.get("p3x") == 2: cnt[t] -= 4
        else:
            for n in range(4): a(f"buffer_load_dwordx4 v1, s[16:19], s29 offen offset:{n*1024}{lf} lds")

def gen(opt):
    mp = opt.get("map", 1)
    MIX[0] = opt.get("mix", 1)
    a = Asm()
    a.raw(khead(NAME))
    a(f"""
    s_getpc_b64 s[94:95]
    """)
    a.label("L_pc", keep_hist=True)
    if opt.get("fixe"): a("s_memrealtime s[60:61]")
    a(f"""
    s_cmp_ge_u32 s2, 256
    s_cbranch_scc1 L_end
    s_and_b32 s3, s2, 7
    s_bfe_u32 s24, s2, {0x10003 if mp == 1 else 0x10002}
    s_lshl_b32 s29, s24, 5
    s_load_dwordx4 s[4:7], s[0:1], s29
    s_load_dwordx2 s[32:33], s[0:1], 72
    s_load_dwordx2 s[34:35], s[0:1], 16
    {"s_lshr_b32 s99, s3, 2" if not MIX[0] else ("s_mov_b32 s99, s24" if MIX[0] == 1 else "s_xor_b32 s99, s24, 1")}
    s_mul_i32 s29, s99, 24
    s_add_u32 s29, s29, 24
    s_load_dwordx2 s[52:53], s[0:1], s29
    s_load_dwordx4 s[44:47], s[0:1], 56
    s_and_b32 s25, s3, 1
    s_lshl_b32 s25, s25, 2
    s_bfe_u32 s29, s2, {0x20004 if mp == 1 else 0x20003}
    s_add_u32 s25, s25, s29          ; tt
    s_bfe_u32 s26, s3, {0x20001 if mp == 1 else 0x10001}
    s_lshl_b32 s26, s26, {2 if mp == 1 else 3}
    s_lshr_b32 s29, s2, {6 if mp == 1 else 5}
    s_add_u32 s26, s26, s29          ; ct
    v_lshrrev_b32 v1, 6, v0
    v_and_b32 v0, 63, v0
    v_readfirstlane_b32 s27, v1
    s_lshl_b32 s29, s25, 19
    s_mov_b32 s10, 0x80000
    s_mov_b32 s11, 0x20000
    s_mov_b32 s14, 0x600000
    s_mov_b32 s15, 0x20000
    s_mov_b32 s18, 0x10000000
    s_mov_b32 s19, 0x20000
    s_mov_b32 s22, 0x10000
    s_mov_b32 s23, 0x20000
    s_mov_b32 s54, 0x200000
    s_mov_b32 s55, 0x20000
    s_mov_b32 s58, 0x800000
    s_mov_b32 s59, 0x20000
    s_mov_b32 s86, 256
    s_mov_b32 s87, 0x20000
    s_waitcnt lgkmcnt(0)
    s_add_u32 s8, s4, s29
    s_addc_u32 s9, s5, 0
    s_mov_b32 s12, s6
    s_mov_b32 s13, s7
    s_mov_b32 s16, s32
    s_mov_b32 s17, s33
    s_mov_b32 s20, s34
    s_mov_b32 s21, s35
    s_mov_b32 s56, s44
    s_mov_b32 s57, s45
    s_mov_b32 s84, s46
    s_mov_b32 s85, s47
    """)
    for i in range(12): stamp(a, opt, i)
    if opt.get("fixt") and not opt.get("fixe") and opt.get("fixp") is None: a("s_memrealtime s[60:61]\ns_waitcnt lgkmcnt(0)")
    a("s_cmp_lt_u32 s27, 4\ns_cbranch_scc1 L_compute")
    if opt.get("hp1"): a(f"s_setprio {opt['hp1']}")
    p1_helper(a, opt)
    p2_helper(a, opt)
    p3_helper(a, opt)
    a("s_branch L_fin")
    a.label("L_compute")
    p1_compute(a, opt)
    p2_compute(a, opt)
    (p3_compute16 if opt.get("m16p3", 1) else p3_compute)(a, opt)
    a.label("L_fin")
    if opt.get("fixt"):
        a("s_cmp_ge_u32 s27, 4\ns_cbranch_scc1 L_end")
        if opt.get("fixw") is not None: a(f"s_cmp_lg_u32 s2, {opt['fixw']}\ns_cbranch_scc1 L_end")
        a.label("L_fixt")
        a(f"""
        s_memrealtime s[62:63]
        s_waitcnt lgkmcnt(0)
        s_sub_u32 s62, s62, s60
        s_cmp_lt_u32 s62, {opt["fixt"]}
        s_cbranch_scc1 L_fixt
        """)
    stamp_out(a, opt)
    a.label("L_end")
    a("s_endpgm")
    return a.text()

if __name__ == "__main__":
    import json, subprocess
    out = sys.argv[1]
    opt = json.loads(sys.argv[2]) if len(sys.argv) > 2 else {}
    HEADER = open("concat_heads__linear_kernel_hedgehog__mha_block__prompt.s.ref").read().split("; Override launch")[0]
    launch = f"; @launch kernel={NAME} grid=(256,1,1) block=(512,1,1) lds=163840" if opt.get("list", 1) else "; @launch grid=(256,1,1) block=(512,1,1) lds=163840"
    s = HEADER + launch + '\n.amdgcn_target "amdgcn-amd-amdhsa--gfx950"\n.text\n' + gen(opt) + '.section .rodata,"a"\n' + kdesc(NAME, 256, 102)
    open(out, "w").write(s)
    r = subprocess.run(["clang", "-x", "assembler", "-target", "amdgcn-amd-amdhsa", "-mcpu=gfx950", "-c", out, "-o", "_b.o"], capture_output=True, text=True)
    if r.returncode != 0:
        print(r.stderr[:1500]); raise SystemExit(1)
```

```python
from asmlib import *
import math, sys
import k1
from k1 import (QB_OFF, KVB_OFF, QA_OFF, KVP_OFF, ZP_OFF, O_OFF, LOG2E, f2u, softmax_pm, cvt_inplace,
                W_SLOT, NW, X_BASE, X_SLOT, NX, WPHI_LDS, ACCQ, ACCK, ACCV, reads as p1_reads, mfmas as p1_mfmas,
                epi_A, epi_B, epiA_setup, pk_mfma, phi_write, KH, TT, PH_BLK, Rec, epi_A16)
import p1v16

NAME = "concat_heads__linear_kernel_hedgehog__mha_block__prompt_kernel"
FLG = 29 << 20
F1A, F2B, F2A = FLG + 2048, FLG + 4096, FLG + 5120
F1B = FLG + 16384
F1C = F1B + 16384
F2H = FLG + 49152
TSF = FLG + 12288
ORDW = 138240
SNAPW = 138304
QL0 = 139264
STAMP_OFF = 30 << 20
VSNAP, VFA, VPOL = 250, 251, 252
SC = " sc0 sc1"

def stamp(a, opt, idx):
    if opt.get("fixp") is not None and opt["fixp"] == idx:
        a("s_memrealtime s[60:61]\ns_waitcnt lgkmcnt(0)")
    if not opt.get("stamp"): return
    if opt["stamp"] == 3 and idx not in (0, 11): return
    a(f"{'s_memtime' if opt.get('cyc') else 's_memrealtime'} s[{60+2*idx}:{61+2*idx}]")
    a("s_waitcnt lgkmcnt(0)")
def stamp_out(a, opt):
    if not opt.get("stamp"): return
    a("s_waitcnt vmcnt(0)")
    stamp(a, opt, 11)
    if opt.get("stamp") == 2:
        a("s_cmp_lg_u32 s27, 0\ns_cbranch_scc1 L_end\nv_mov_b32 v9, 0\ns_mov_b64 exec, 1")
        for i in range(1, 12):
            a(f"s_sub_u32 s29, s{60+2*i}, s60")
            a("v_mov_b32 v8, s29")
            a(f"buffer_atomic_umax v8, v9, s[84:87], 0 offen offset:{4*i} sc1")
        a("s_not_b32 s29, s60\nv_mov_b32 v8, s29\nbuffer_atomic_umax v8, v9, s[84:87], 0 offen offset:48 sc1")
        a("v_mov_b32 v8, s82\nbuffer_atomic_umax v8, v9, s[84:87], 0 offen offset:52 sc1")
        a("v_mov_b32 v8, s60\nbuffer_atomic_umax v8, v9, s[84:87], 0 offen offset:56 sc1")
        return
    a(f"""
    s_lshl_b32 s29, s2, 3
    s_add_u32 s29, s29, s27
    s_lshl_b32 s29, s29, 6
    s_add_u32 s29, s29, {STAMP_OFF}
    v_mov_b32 v9, 0
    """)
    for i in ((0, 11) if opt["stamp"] == 3 else range(12)):
        a(f"v_mov_b32 v8, s{60+2*i}")
        a(f"buffer_store_dword v8, v9, s[16:19], s29 offen offset:{4*i}")

def code_pf(a, opt, junk):
    if not opt.get("cpf", 1): return 0
    a(f"""
    s_and_b32 s29, s27, 3
    s_lshl_b32 s29, s29, 13
    v_lshlrev_b32 v{junk}, 7, v0
    v_add_u32 v{junk}, s29, v{junk}
    v_min_u32 v{junk}, L_end-L_pc, v{junk}
    global_load_dword v{junk}, v{junk}, s[94:95]
    """)
    return 1

_uid = [0]
def only_w4(a):
    _uid[0] += 1
    L = f"L_w4_{_uid[0]}"
    a(f"s_cmp_lg_u32 s27, 4\ns_cbranch_scc1 {L}")
    return L
def poll(a, lo, n, cnt=None):
    _uid[0] += 1
    L = f"L_pl_{_uid[0]}"
    mask = ((1 << n) - 1) << lo
    a(f"""
    s_mov_b32 s88, {mask & 0xffffffff}
    s_mov_b32 s89, {mask >> 32}
    s_mov_b32 s90, 0x40000
    s_mov_b64 exec, s[88:89]
    """)
    a.label(L + "p")
    a(f"""
    buffer_load_dword v{VPOL}, v{VFA}, s[16:19], 0 offen sc0 sc1
    s_waitcnt vmcnt(0)
    v_sub_u32 v{VPOL}, v{VPOL}, v{VSNAP}
    v_cmp_ne_u32 vcc, {cnt}, v{VPOL}
    s_sub_u32 s90, s90, 1
    s_cbranch_scc1 {L}d
    s_cbranch_vccz {L}d
    s_sleep 1
    s_branch {L}p
    """)
    a.label(L + "d")
    a("s_mov_b64 exec, -1")
    a.label(L)
def need_chunk(a, single=False):
    _uid[0] += 1
    L = f"L_nc_{_uid[0]}"
    a(f"""
    s_bitcmp1_b32 s92, s93
    s_cbranch_scc1 {L}
    s_mov_b32 s90, 0x40000
    s_lshl_b64 s[88:89], 1, s93
    s_mov_b64 exec, {"s[88:89]" if single else "0xff"}
    """)
    a.label(L + "p")
    a(f"""
    buffer_load_dword v{VPOL}, v{VFA}, s[16:19], 0 offen sc0 sc1
    s_waitcnt vmcnt(0)
    v_cmp_ne_u32 vcc, v{VPOL}, v{VSNAP}
    s_sub_u32 s90, s90, 1
    s_cbranch_scc1 {L}d
    s_or_b32 s92, s92, vcc_lo
    s_mov_b64 exec, s[88:89]
    s_bitcmp1_b32 s92, s93
    s_cbranch_scc1 {L}d
    s_sleep 2
    s_branch {L}p
    """)
    a.label(L + "d")
    a("s_mov_b64 exec, -1")
    a.label(L)
def look(a):
    a(f"""
    s_mov_b32 exec_lo, 0xffff0000
    s_mov_b32 exec_hi, 0xffff
    buffer_load_dword v{VPOL}, v{VFA}, s[16:19], 0 offen sc0 sc1
    s_waitcnt vmcnt(0)
    v_sub_u32 v{VPOL}, v{VPOL}, v{VSNAP}
    v_cmp_eq_u32 vcc, 2, v{VPOL}
    s_mov_b64 exec, -1
    s_lshr_b64 s[88:89], vcc, 16
    s_mov_b32 s92, s88
    """)
def need_mask(a):
    _uid[0] += 1
    L = f"L_nm_{_uid[0]}"
    a("s_mov_b32 s90, 0x40000")
    a.label(L + "p")
    a(f"""
    s_andn2_b32 s88, s93, s92
    s_cbranch_scc0 {L}
    s_sub_u32 s90, s90, 1
    s_cbranch_scc1 {L}
    """)
    look(a)
    a(f"s_branch {L}p")
    a.label(L)

def publish(a, lane, all_helpers=False, n=1, inc=1):
    L = None if all_helpers else only_w4(a)
    a(f"""
    v_add_u32 v{VPOL}, {inc}, v{VSNAP}
    s_mov_b32 exec_lo, 0
    s_mov_b32 exec_hi, {((1 << n) - 1) << (lane - 32)}
    buffer_store_dword v{VPOL}, v{VFA}, s[16:19], 0 offen sc0 sc1
    s_mov_b64 exec, -1
    """)
    if L: a.label(L)

def p1_setup32(a):
    a(f"""
    s_lshr_b32 s36, s27, 1          ; tw
    s_and_b32 s37, s27, 1           ; hd
    v_and_b32 v8, 31, v0            ; n
    v_lshrrev_b32 v9, 5, v0         ; h
    v_bfe_u32 v10, v8, 1, 3         ; f
    v_xor_b32 v10, v10, v9
    v_lshlrev_b32 v10, 4, v10
    s_lshl_b32 s29, s36, 14
    v_lshlrev_b32 v11, 7, v8
    v_add3_u32 v1, v11, v10, s29
    v_xor_b32 v2, 32, v1
    v_xor_b32 v3, 64, v1
    v_xor_b32 v4, 0x60, v1
    v_bfe_u32 v10, v0, 2, 2         ; r
    v_lshl_add_u32 v11, v9, 3, v10
    v_lshlrev_b32 v11, 7, v11
    v_lshrrev_b32 v10, 1, v10
    v_xor_b32 v10, s37, v10
    v_lshl_add_u32 v11, v10, 6, v11
    v_bfe_u32 v10, v0, 4, 1
    v_lshl_add_u32 v11, v10, 5, v11
    v_and_b32 v10, 3, v0
    v_lshl_add_u32 v5, v10, 3, v11
    s_mov_b32 s30, {X_BASE}
    s_mov_b32 s31, 0
    v_add_u32 v6, s30, v1
    v_mov_b32 v7, v5
    s_mov_b32 s28, 16
    """)

def p1_loop32(a):
    for r in p1_reads(a, 0, 0, 0): a(r)
    a.raw(".p2align 6")
    a.label("L_p1_loop", keep_hist=True)
    start = len(a.lines)
    for c in range(4):
        st = c & 1
        M = p1_mfmas(st)
        c1 = (c + 1) & 3
        R = p1_reads(a, st ^ 1, c1, c1 & 1)
        pre = []
        if c & 1:
            pre += [f"s_add_u32 s31, s31, {W_SLOT}", f"s_cmp_eq_u32 s31, {W_SLOT*NW}", "s_cselect_b32 s31, 0, s31"]
        if c == 3:
            pre += [f"s_add_u32 s30, s30, {X_SLOT}", f"s_cmp_eq_u32 s30, {X_BASE+X_SLOT*NX}", f"s_cselect_b32 s30, {X_BASE}, s30"]
        a("s_waitcnt lgkmcnt(3)")
        a(M[0])
        for p in pre[:3]: a(p)
        a(M[1])
        for p in pre[3:]: a(p)
        if c & 1: a("v_add_u32 v7, s31, v5")
        a(f"v_add_u32 v6, s30, v{1+c1}")
        a(M[2])
        a("s_waitcnt lgkmcnt(0)")
        if c & 1: a("s_barrier")
        sched = [2, 2, 2, 2, 1, 1, 0, 0, 0]
        k = 0
        for g in range(9):
            for _ in range(sched[g]):
                a(R[k]); k += 1
            if c == 3 and g == 7:
                a("s_sub_u32 s28, s28, 1")
                a("s_cmp_lg_u32 s28, 0")
            a(M[3 + g])
    a("s_cbranch_scc1 L_p1_loop")
    assert check_loop(a.lines[start:]) == (0, 0)

def p1_compute(a, opt):
    m16 = opt.get("m16", 1)
    if m16: p1v16.setup(a)
    else: p1_setup32(a)
    code_pf(a, opt, 12)
    for r in range(64, 256): a(f"v_mov_b32 v{r}, 0")
    a("s_waitcnt vmcnt(0)")
    spf = opt.get("spf", 0)
    if spf:
        a(f"""
        s_lshr_b32 s41, s2, 4
        s_lshl_b32 s41, s41, 3
        s_add_u32 s41, s41, s3
        s_cmp_ge_u32 s27, 2
        s_cbranch_scc1 L_spf_done
        s_cmp_eq_u32 s27, 1
        s_cbranch_scc1 L_spf_x
        s_lshr_b32 s42, s41, 1
        s_lshl_b32 s42, s42, 17
        s_and_b32 s41, s41, 1
        s_lshl_b32 s41, s41, 10
        s_add_u32 s42, s42, s41
        v_lshlrev_b32 v0, 11, v0
        buffer_load_dword v0, v0, s[12:15], s42 offen offset:384
        s_branch L_spf_done
        """)
        a.label("L_spf_x")
        if spf == 1:
            a(f"""
            v_and_b32 v10, 15, v0
            v_lshlrev_b32 v10, 11, v10
            v_and_b32 v0, 16, v0
            v_lshl_add_u32 v0, v0, 6, v10
            s_lshl_b32 s42, s26, 15
            buffer_load_dword v0, v0, s[8:11], s42 offen offset:384
            """)
        a.label("L_spf_done")
    a("s_barrier")
    stamp(a, opt, 1)
    if m16: p1v16.emit_loop(a, opt)
    else: p1_loop32(a)
    a("s_waitcnt vmcnt(0) lgkmcnt(0)")
    a("v_mbcnt_lo_u32_b32 v0, -1, 0")
    a("v_mbcnt_hi_u32_b32 v0, -1, v0")
    stamp(a, opt, 2)
    a(f"""
    s_lshl_b32 s38, s26, 1
    s_add_u32 s38, s38, s37          ; head
    s_lshl_b32 s39, s25, 3
    s_lshl_b32 s29, s36, 2
    s_add_u32 s39, s39, s29          ; tb0
    s_lshl_b32 s40, s38, 6
    s_add_u32 s40, s40, s39          ; h*64+tb0
    v_lshlrev_b32 v1, 4, v0
    s_mov_b32 s91, 0
    v_and_b32 v60, 15, v0
    v_lshrrev_b32 v61, 4, v0
    v_lshlrev_b32 v60, 4, v60
    v_lshl_add_u32 v60, v61, 9, v60  ; g*512 + t*16
    s_cmp_eq_u32 s24, 0
    s_cbranch_scc1 L_p1_epiA
    """)
    epi_B_lds(a, m16)
    a("s_branch L_p1_done")
    a.label("L_p1_epiA")
    def hook(a):
        lf = opt.get("lf", " sc1")
        a(f"""
        s_lshl_b32 s29, s27, 2
        s_add_u32 s88, s29, {SNAPW}
        v_mov_b32 v56, s88
        ds_read_b32 v57, v56
        s_lshl_b32 s88, s26, 10
        s_add_u32 s88, s88, s29
        s_lshl_b32 s29, s25, 7
        s_add_u32 s88, s88, s29
        s_add_u32 s88, s88, {F1C}
        v_mov_b32 v56, 0
        s_mov_b32 s90, 0x40000
        s_mov_b64 exec, 1
        """)
        a.label("L_hk_p")
        a(f"""
        buffer_load_dword v58, v56, s[16:19], s88 offen sc0 sc1
        s_waitcnt vmcnt(0) lgkmcnt(0)
        v_cmp_eq_u32 vcc, v57, v58
        s_sub_u32 s90, s90, 1
        s_cbranch_scc1 L_hk_d
        s_cbranch_vccnz L_hk_p
        """)
        a.label("L_hk_d")
        a(f"""
        s_mov_b64 exec, -1
        s_lshl_b32 s88, s26, 1
        s_add_u32 s88, s88, 1
        s_lshl_b32 s88, s88, 6
        s_lshl_b32 s29, s25, 3
        s_add_u32 s88, s88, s29
        s_lshl_b32 s29, s27, 1
        s_add_u32 s88, s88, s29
        s_lshl_b32 s89, s88, 11
        s_add_u32 s89, s89, {QB_OFF}
        s_lshl_b32 s88, s88, 12
        s_add_u32 s88, s88, {KVB_OFF}
        s_lshl_b32 s29, s27, 12
        s_add_u32 m0, s29, {QL0}
        s_lshl_b32 s29, s27, 13
        """)
        for n in range(4): a(f"buffer_load_dwordx4 v1, s[16:19], s89 offen offset:{n*1024}{lf} lds")
        for hf in range(2):
            a(f"s_add_u32 m0, s29, {hf*4096}")
            a(f"s_add_u32 s89, s88, {hf*4096}")
            for n in range(4): a(f"buffer_load_dwordx4 v1, s[16:19], s89 offen offset:{n*1024}{lf} lds")
    cf = opt.get("cfetch", 1)
    (epi_A16 if m16 else epi_A)(a, "p1", {"qlate": opt.get("qlate", 0), "hook": hook if cf else None})
    if cf: a(f"s_waitcnt vmcnt({13 if opt.get('qlate', 0) == 2 else 5})")
    a.label("L_p1_done")

def epi_B_lds(a, m16):
    qs = LOG2E / math.sqrt(32.0)
    a(f"""
    s_mov_b32 s44, {f2u(qs)}
    s_mov_b32 s45, {f2u(qs)}
    v_and_b32 v2, 0x33, v0
    v_and_b32 v3, 4, v0
    v_lshl_or_b32 v2, v3, 1, v2
    v_and_b32 v3, 8, v0
    v_lshrrev_b32 v3, 1, v3
    v_or_b32 v2, v2, v3
    v_lshlrev_b32 v2, 4, v2
    """)
    U = 256 if m16 else 1024
    if m16: a("v_mov_b32 v2, v60\nv_mov_b32 v1, v60")
    a(f"""
    s_cmp_lg_u32 s37, 0
    s_cbranch_scc1 L_p1_hd1
    s_lshl_b32 s41, s36, 14
    v_add_u32 v2, s41, v2
    v_add_u32 v3, s41, v1
    s_lshl_b32 s42, s36, 13
    s_add_u32 s42, s42, {QL0}
    v_add_u32 v4, s42, v1
    """)
    def conv(i):
        return ACCQ + 16 * i, ACCK + 16 * i, ACCV + 16 * i
    for i in range(4):
        Q, K, V = conv(i)
        cvt_inplace(a, K)
        a(f"ds_write_b128 v2, {v(K,4)} offset:{i*4096}")
        a(f"ds_write_b128 v2, {v(K+4,4)} offset:{i*4096+U}")
        cvt_inplace(a, V)
        a(f"ds_write_b128 v3, {v(V,4)} offset:{i*4096+2048}")
        a(f"ds_write_b128 v3, {v(V+4,4)} offset:{i*4096+2048+U}")
    a("s_waitcnt lgkmcnt(0)")
    a("s_barrier")
    for i in range(4):
        Q, K, V = conv(i)
        for r in range(0, 16, 2):
            a(f"v_pk_mul_f32 {v(Q+r,2)}, {v(Q+r,2)}, s[44:45]")
        cvt_inplace(a, Q)
        a(f"ds_write_b128 v4, {v(Q,4)} offset:{i*2048}")
        a(f"ds_write_b128 v4, {v(Q+4,4)} offset:{i*2048+U}")
    a("s_branch L_p1_done")
    a.label("L_p1_hd1")
    a(f"""
    s_lshl_b32 s41, s40, 11
    s_add_u32 s41, s41, {QB_OFF}
    s_add_u32 s42, s41, 4096
    s_lshl_b32 s43, s40, 12
    s_add_u32 s43, s43, {KVB_OFF}
    s_mov_b32 s91, 3
    """)
    for i in range(4):
        Q, K, V = conv(i)
        cvt_inplace(a, K)
        a(f"buffer_store_dwordx4 {v(K,4)}, v2, s[16:19], s43 offen{SC}")
        a(f"buffer_store_dwordx4 {v(K+4,4)}, v2, s[16:19], s43 offen offset:{U}{SC}")
        cvt_inplace(a, V)
        a(f"buffer_store_dwordx4 {v(V,4)}, v1, s[16:19], s43 offen offset:2048{SC}")
        a(f"buffer_store_dwordx4 {v(V+4,4)}, v1, s[16:19], s43 offen offset:{2048+U}{SC}")
        for r in range(0, 16, 2):
            a(f"v_pk_mul_f32 {v(Q+r,2)}, {v(Q+r,2)}, s[44:45]")
        cvt_inplace(a, Q)
        sq = "s41" if i < 2 else "s42"
        a(f"buffer_store_dwordx4 {v(Q,4)}, v1, s[16:19], {sq} offen offset:{(i&1)*2048}{SC}")
        a(f"buffer_store_dwordx4 {v(Q+4,4)}, v1, s[16:19], {sq} offen offset:{(i&1)*2048+U}{SC}")
        if i < 3: a("s_add_u32 s43, s43, 4096")
        if i == 1: a("s_barrier")

def p1_helper(a, opt):
    if opt.get("map", 1) == 1 and opt.get("koff", 2) == 1:
        a("""
        s_lshr_b32 s49, s3, 1
        s_lshl_b32 s49, s49, 2
        s_lshl_b32 s29, s3, 3
        s_add_u32 s49, s49, s29
        s_and_b32 s49, s49, 15
        """)
    else:
        a("""
        s_lshr_b32 s49, s3, 1
        s_xor_b32 s49, s49, s3
        s_and_b32 s49, s49, 1
        s_lshl_b32 s49, s49, 3
        """)
    a(f"""
    s_sub_u32 s36, s27, 4            ; lw
    v_lshrrev_b32 v1, 3, v0          ; r
    v_and_b32 v2, 7, v0              ; p
    v_lshrrev_b32 v3, 1, v1
    s_lshl_b32 s29, s36, 3
    v_add_u32 v5, s29, v1            ; 8lw + r
    v_and_b32 v6, 1, v3
    """)
    m16 = opt.get("m16", 1)
    if m16: a("s_and_b32 s29, s36, 1\ns_lshl_b32 s29, s29, 2\nv_lshl_add_u32 v6, v6, 1, s29")
    else: a("v_lshlrev_b32 v6, 2, v6")
    a(f"""
    v_xor_b32 v6, v6, v2
    v_lshlrev_b32 v6, 4, v6
    v_mul_u32_u24 v16, 6144, v5
    s_lshl_b32 s29, s26, 7
    v_add3_u32 v16, v16, v6, s29
    """)
    if opt.get("split"):
        a(f"""
        s_add_u32 s43, s26, {opt.get("split")}
        s_and_b32 s43, s43, 15
        s_sub_u32 s43, s43, s26
        s_lshl_b32 s43, s43, 1
        v_and_b32 v6, 64, v6
        v_mul_lo_u32 v6, v6, s43
        v_add_u32 v16, v16, v6
        """)
    a(f"""
    v_add_u32 v17, 2048, v16
    v_add_u32 v18, 4096, v16
    s_lshl_b32 s37, s36, 10          ; lw*1024
    s_add_u32 s30, s37, {X_BASE}
    s_mov_b32 s31, s37
    s_lshl_b32 s38, s49, 7           ; X soffset
    s_mul_i32 s39, s49, {64*6144}    ; W soffset
    s_add_u32 s40, s37, {X_BASE + NX*X_SLOT}
    s_add_u32 s41, s37, {W_SLOT*NW}
    s_add_u32 s42, s37, {X_BASE}
    """)
    def GX():
        for n in range(8):
            a(f"s_add_u32 m0, s30, {n*4096}")
            a(f"buffer_load_dwordx4 v{8+n}, s[8:11], s38 offen lds")
        a(f"""
        s_add_u32 s38, s38, 128
        s_and_b32 s38, s38, 2047
        s_add_u32 s30, s30, {X_SLOT}
        s_cmp_eq_u32 s30, s40
        s_cselect_b32 s30, s42, s30
        """)
    def GW():
        for sg in range(3):
            a(f"s_add_u32 m0, s31, {sg*4096}")
            a(f"buffer_load_dwordx4 v{16+sg}, s[12:15], s39 offen lds")
        a(f"""
        s_add_u32 s39, s39, {32*6144}
        s_cmp_eq_u32 s39, {1024*6144}
        s_cselect_b32 s39, 0, s39
        s_add_u32 s31, s31, {W_SLOT}
        s_cmp_eq_u32 s31, s41
        s_cselect_b32 s31, s37, s31
        """)
    def WB(n):
        a(f"s_waitcnt vmcnt({n})")
        a("s_barrier")
    GW()
    a(f"""
    s_and_b32 s29, s36, 1
    s_lshl_b32 s29, s29, 2
    v_add_u32 v4, s29, v3            ; f
    v_xor_b32 v4, v4, v2
    v_lshlrev_b32 v4, 4, v4
    v_lshl_add_u32 v8, v5, 11, v4
    """)
    for n in range(1, 8): a(f"v_add_u32 v{8+n}, {n*65536}, v8")
    GX(); GW()
    a(f"""
    v_lshlrev_b32 v19, 4, v0
    s_lshl_b32 s43, s26, 7
    s_add_u32 s43, s43, {FLG}        ; F1A[ct] - 2048
    s_lshl_b32 s46, s26, 10
    s_lshl_b32 s29, s36, 2
    s_add_u32 s46, s46, s29
    s_add_u32 s46, s46, {F1B}
    s_lshl_b32 s29, s24, 14
    s_sub_u32 s47, s46, s29
    s_add_u32 s47, s47, 16384
    v_lshl_add_u32 v20, v0, 7, s47
    s_add_u32 s47, s43, {2048-32}
    v_lshl_add_u32 v21, v0, 2, s47
    v_cmp_gt_u32 vcc, 8, v0
    s_and_b32 s47, s3, 3
    s_lshl_b32 s47, s47, 1
    s_bfe_u32 s29, s2, {0x10005 if MIX[0] else 0x10004}
    s_add_u32 s47, s47, s29
    v_cndmask_b32 v20, v21, v20, vcc
    s_lshl_b32 s48, s47, 1
    s_bfe_u32 s29, s2, {0x10004 if MIX[0] else 0x10003}
    s_add_u32 s48, s48, s29
    s_lshl_b32 s48, s48, 7
    s_add_u32 s48, s48, {F2H - 64}
    s_lshr_b32 s47, s47, 1
    s_lshl_b32 s47, s47, 7
    s_add_u32 s47, s47, {F2A - 64}
    s_cmp_eq_u32 s99, 0
    s_cselect_b32 s47, s47, s48
    s_lshl_b32 s29, s36, 11
    s_add_u32 s47, s47, s29
    v_lshl_add_u32 v21, v0, 2, s47   ; lanes 16..47
    v_cmp_gt_u32 vcc, 16, v0
    s_lshl_b32 s29, s25, 7
    s_add_u32 s46, s46, s29
    s_lshl_b32 s29, s25, 2
    s_add_u32 s47, s43, s29
    v_cndmask_b32 v20, v21, v20, vcc
    s_add_u32 s47, s47, 2048
    s_cmp_eq_u32 s24, 0
    s_cselect_b32 s46, s47, s46
    v_and_b32 v21, 1, v0
    v_lshl_add_u32 v21, v21, 14, s46
    v_cmp_gt_u32 vcc, 48, v0
    s_lshl_b32 s46, s26, 3
    s_lshl_b32 s29, s24, 2
    s_sub_u32 s47, s46, s29
    v_cndmask_b32 v20, v21, v20, vcc
    s_lshl_b32 s29, s25, 7
    s_add_u32 s47, s47, s29
    s_add_u32 s47, s47, {F2B + 4}
    v_and_b32 v22, 3, v0
    v_lshl_add_u32 v21, v22, 11, s47
    v_cmp_gt_u32 vcc, 52, v0
    s_and_b32 s29, s25, 1
    s_lshl_b32 s29, s29, 2
    s_add_u32 s46, s46, s29
    v_cndmask_b32 v20, v21, v20, vcc
    s_lshr_b32 s29, s25, 1
    s_lshl_b32 s29, s29, 7
    s_add_u32 s46, s46, s29
    s_add_u32 s46, s46, {F2A}
    v_lshl_add_u32 v21, v22, 11, s46
    v_cmp_gt_u32 vcc, 56, v0
    s_mov_b32 s92, 0
    s_nop 0
    v_cndmask_b32 v{VFA}, v21, v20, vcc
    """)
    gpf = opt.get("gpf", 3)
    if gpf:
        a(f"""
        s_lshr_b32 s46, s2, 4
        s_lshl_b32 s46, s46, 3
        s_add_u32 s46, s46, s3
        s_lshr_b32 s47, s46, 2
        s_mul_i32 s47, s47, {6*2048}
        s_and_b32 s29, s46, 1
        s_lshl_b32 s29, s29, 10
        s_add_u32 s47, s47, s29
        s_bfe_u32 s29, s46, 0x10001
        s_mul_i32 s29, s29, {8*192*2048}
        s_add_u32 s47, s47, s29
        s_add_u32 s51, s47, {gpf*192*2048 + 384}
        v_lshlrev_b32 v23, 11, v0
        """)
    spre = opt.get("spre", 0)
    if spre:
        a(f"""
        s_lshr_b32 s46, s2, 4
        s_lshl_b32 s46, s46, 3
        s_add_u32 s46, s46, s3
        s_lshl_b32 s47, s46, 2
        s_add_u32 s47, s47, s36
        s_lshl_b32 s47, s47, 13
        s_add_u32 s47, s47, {spre*128}
        s_add_u32 s4, s4, s47
        s_addc_u32 s5, s5, 0
        s_lshr_b32 s47, s46, 6
        s_lshl_b32 s47, s47, 9
        s_and_b32 s29, s46, 63
        s_add_u32 s47, s47, s29
        s_mul_i32 s47, s47, 6144
        s_mul_i32 s29, s36, 1536
        s_add_u32 s47, s47, s29
        s_add_u32 s47, s47, {spre*64*6144}
        s_add_u32 s6, s6, s47
        s_addc_u32 s7, s7, 0
        """)
    vpre = opt.get("vpre", 0)
    if vpre:
        a(f"""
        s_lshr_b32 s46, s2, 4
        s_lshl_b32 s46, s46, 3
        s_add_u32 s46, s46, s3
        s_lshr_b32 s47, s46, 6
        s_lshl_b32 s47, s47, 9
        s_and_b32 s29, s46, 63
        s_add_u32 s47, s47, s29
        s_add_u32 s29, s36, {vpre}
        s_lshl_b32 s96, s29, 6
        s_add_u32 s47, s47, s96
        s_mul_i32 s96, s47, 6144
        s_lshl_b32 s97, s29, 7
        s_lshl_b32 s29, s26, 15
        s_add_u32 s97, s97, s29
        v_lshlrev_b32 v24, 7, v0
        v_and_b32 v25, 15, v0
        v_lshlrev_b32 v25, 11, v25
        v_and_b32 v26, 16, v0
        v_lshl_add_u32 v25, v26, 6, v25
        """)
    def VP(k):
        if not vpre: return
        _uid[0] += 1
        L = f"L_vp_{_uid[0]}"
        a(f"""
        s_cmp_lg_u32 s36, {k}
        s_cbranch_scc1 {L}
        s_mov_b32 exec_lo, -1
        s_mov_b32 exec_hi, 0xffff
        buffer_load_dword v248, v24, s[12:15], s96 offen
        s_mov_b32 exec_hi, 0
        buffer_load_dword v248, v25, s[8:11], s97 offen
        s_mov_b64 exec, -1
        """)
        a.label(L)
    l2p = opt.get("l2p", 0)
    if l2p:
        a(f"""
        s_lshr_b32 s29, s2, 6
        s_lshl_b32 s29, s29, 17
        v_lshlrev_b32 v27, 11, v0
        v_add_u32 v27, s29, v27
        v_and_b32 v28, 15, v0
        v_lshlrev_b32 v28, 2, v28
        s_bfe_u32 s29, s2, 0x20004
        v_add_u32 v28, s29, v28
        v_mul_u32_u24 v28, 6144, v28
        v_lshrrev_b32 v29, 4, v0
        v_lshl_add_u32 v28, v29, 11, v28
        s_lshl_b32 s29, s26, 7
        v_add_u32 v28, s29, v28
        """)
    def L2P():
        if not l2p: return
        _uid[0] += 1
        L = f"L_l2_{_uid[0]}"
        a(f"""
        s_cmp_gt_u32 s28, {opt.get("l2hi", 12)}
        s_cbranch_scc1 {L}
        s_cmp_lt_u32 s28, {l2p}
        s_cbranch_scc1 {L}
        s_cmp_gt_u32 s36, 1
        s_cbranch_scc1 {L}
        s_cmp_eq_u32 s36, 1
        s_cbranch_scc1 {L}w
        s_add_u32 s29, s38, {128*(l2p-1)}
        s_and_b32 s29, s29, 2047
        buffer_load_dword v248, v27, s[8:11], s29 offen
        s_branch {L}
        """)
        a.label(L + "w")
        a(f"""
        s_add_u32 s29, s38, {128*(l2p-1)}
        s_and_b32 s29, s29, 2047
        s_mul_i32 s29, s29, {64*6144//128}
        s_mov_b32 exec_hi, 0xffff
        buffer_load_dword v248, v28, s[12:15], s29 offen
        s_mov_b64 exec, -1
        """)
        a.label(L)
    spn = [0]
    def SP():
        if not spre or spn[0] >= 2 * (8 - spre): return
        h = spn[0] & 1; spn[0] += 1
        for q in range(6): a(f"s_load_dword s98, s[6:7], {(6*h+q)*128}")
        for r in range(4): a(f"s_load_dword s98, s[4:5], {r*2048 + h*1024}")
        if h:
            a(f"""
            s_add_u32 s4, s4, 128
            s_addc_u32 s5, s5, 0
            s_add_u32 s6, s6, {64*6144}
            s_addc_u32 s7, s7, 0
            """)
    def SPF():
        if not gpf: return
        _uid[0] += 1
        L = f"L_g_{_uid[0]}"
        a(f"""
        s_cmp_lg_u32 s27, 5
        s_cbranch_scc1 {L}
        s_mov_b64 exec, 0x3f
        buffer_load_dword v248, v23, s[12:15], s51 offen
        s_mov_b64 exec, -1
        s_add_u32 s51, s51, {192*2048}
        """)
        a.label(L)
    SPF(); SP()
    a("s_waitcnt vmcnt(3)")
    a("s_barrier")
    a(f"buffer_load_dword v{VSNAP}, v{VFA}, s[16:19], 0 offen sc0 sc1")
    SPF(); GX(); GW(); SP(); VP(0); WB(11)
    SPF(); GW(); GX(); SP(); VP(1); WB(11)
    L = only_w4(a)
    a(f"""
    v_mov_b32 v20, 1
    v_mov_b32 v21, 0
    s_mov_b64 exec, 1
    buffer_atomic_add v20, v21, s[84:87], 0 offen sc1
    s_mov_b64 exec, -1
    """)
    a.label(L)
    if m16:
        SPF(); GW(); GW(); GW(); SP(); VP(2)
        npeel = (2 if gpf == 2 else 1) if gpf else 0
        if spre: npeel = max(npeel, 8 - spre - 2)
        for k in range(npeel):
            WB(17); GX(); GW(); SP(); WB(17)
            if k < ((2 if gpf == 2 else 1) if gpf else 0): SPF()
            GW(); SP()
            if k == 0: VP(3)
        a(f"s_mov_b32 s28, {12 - npeel}")
        a.label("L_p1_lloop")
        WB(17); GX(); GW(); WB(17); GW(); L2P()
        a(f"""
        s_sub_u32 s28, s28, 1
        s_cmp_lg_u32 s28, 0
        s_cbranch_scc1 L_p1_lloop
        """)
        WB(17); GX(); GW()
    else:
        SPF(); GW(); GX(); WB(19)
        GW(); GW(); GW(); WB(17)
        SPF(); GX(); GW(); WB(17)
        GW(); WB(17)
        tlb = opt.get("tlb", 0)
        if tlb:
            if tlb == 1: a("s_cmp_ge_u32 s2, 8\ns_cbranch_scc1 L_tlb_done")
            a(f"""
            s_cmp_lg_u32 s27, 4
            s_cbranch_scc1 L_tlb_1
            v_lshlrev_b32 v248, 19, v0
            buffer_load_dword v248, v248, s[16:19], 0 offen
            s_branch L_tlb_done
            """)
            a.label("L_tlb_1")
            a(f"""
            s_cmp_lg_u32 s27, 5
            s_cbranch_scc1 L_tlb_done
            v_lshlrev_b32 v248, 19, v0
            s_mov_b64 exec, 0xffff
            buffer_load_dword v248, v248, s[56:59], 0 offen
            s_mov_b64 exec, -1
            """)
            a.label("L_tlb_done")
        (SPF() if gpf == 2 else None); GX(); GW()
        a("s_mov_b32 s28, 10")
        a.label("L_p1_lloop")
        WB(25); GW(); WB(17); GX(); GW()
        a(f"""
        s_sub_u32 s28, s28, 1
        s_cmp_lg_u32 s28, 0
        s_cbranch_scc1 L_p1_lloop
        """)
        WB(25)
        GW()
    a(f"""
    s_lshl_b32 s29, s26, 12
    s_add_u32 s29, s29, s37
    s_add_u32 m0, s37, {WPHI_LDS}
    s_nop 0
    buffer_load_dwordx4 v19, s[20:23], s29 offen lds
    """)
    n = code_pf(a, opt, 249)
    WB(18 + n); WB(15 + n); WB(4 + n); WB(n)
    a("s_waitcnt lgkmcnt(0)")
    if opt.get("hp1"): a("s_setprio 0")
    L = only_w4(a)
    a("s_mov_b32 s90, 0x40000\nv_mov_b32 v21, 0")
    a.label(L + "p")
    a(f"""
    buffer_load_dword v20, v21, s[84:87], 0 offen sc0 sc1
    s_waitcnt vmcnt(0)
    v_cmp_gt_u32 vcc, 256, v20
    s_sub_u32 s90, s90, 1
    s_cbranch_scc1 {L}
    s_cbranch_vccz {L}
    s_sleep 1
    s_branch {L}p
    """)
    a.label(L)
    p2_helper_setup(a)
    a(f"""
    v_mov_b32 v247, v3
    s_mov_b32 s91, 0
    s_cmp_lg_u32 s24, 0
    s_cbranch_scc1 L_p1_hB
    s_and_b32 s37, s27, 1            ; hd
    s_and_b32 s29, s27, 3
    s_mul_i32 s29, s29, {8192 if m16 else 6144}
    v_add_u32 v5, s29, v1
    """)
    cf = opt.get("cfetch", 1)
    if cf:
        a(f"""
        v_readlane_b32 s29, v{VSNAP}, s25
        s_lshl_b32 s46, s31, 2
        s_add_u32 s46, s46, {SNAPW}
        v_mov_b32 v62, s46
        v_mov_b32 v63, s29
        s_mov_b32 s91, 1
        """)
    epiA_setup(a, m16)
    a("s_barrier")
    if cf: a("ds_write_b32 v62, v63")
    a("s_barrier")
    K = 64; PP = [96, 112, 128]; EE = 144
    for q in range(6): a(f"ds_read_b128 {v(K+4*q,4)}, v5 offset:{KH + q*1024 + (2048 if m16 else 0)}")
    for i in range(3):
        a(f"s_waitcnt lgkmcnt({4-2*i})")
        pk_mfma(a, PP[i], K + 8 * i)
    lf = opt.get("lf", " sc1")
    for i in range(3):
        r = Rec(); softmax_pm(r, PP[i], EE, TT)
        cut = opt.get("cut", 70)
        if i == 2 and opt.get("early", 1) and not cf:
            c0 = opt.get("c0", 30); cut = opt.get("cut", len(r.l))
            for x in r.l[:c0]: a(x)
            a(f"""
            s_lshl_b64 s[88:89], 1, s93
            s_mov_b64 exec, s[88:89]
            buffer_load_dword v{VPOL}, v{VFA}, s[16:19], 0 offen sc0 sc1
            s_mov_b64 exec, -1
            """)
            for x in r.l[c0:cut]: a(x)
            phi_write(a, 1 + i, PP[i], EE)
            a("s_waitcnt lgkmcnt(0)")
            a("s_barrier")
            a(f"""
            s_waitcnt vmcnt(0)
            s_mov_b64 exec, s[88:89]
            v_cmp_ne_u32 vcc, v{VPOL}, v{VSNAP}
            s_mov_b64 exec, -1
            s_nop 0
            s_cbranch_vccz L_p1_noearly
            s_mov_b32 s91, 1
            """)
            p2_c0_loads(a, lf)
            a.label("L_p1_noearly")
            a("s_branch L_p1_hdone")
        else:
            for x in r.l: a(x)
            phi_write(a, 1 + i, PP[i], EE)
            a("s_waitcnt lgkmcnt(0)")
            if i < 2: a("s_barrier")
    a.label("L_p1_hB")
    a("s_barrier")
    a.label("L_p1_hdone")

SLOT = 32768
KVF = 131072; ZF = KVF + 4096; WPH = KVF + 5120
SELL = 8; LACC = [12, 16]; QF = [24, 32]; KS = [40, 48]; VS = [56, 64]
NEGM = [72, 88]; SB = [104, 120]; OA = [136, 152]

def p2_ids(a):
    a(f"""
    s_lshl_b32 s34, s26, 1
    s_add_u32 s34, s34, 1
    s_sub_u32 s34, s34, s24
    s_and_b32 s31, s27, 3
    s_lshl_b32 s35, s25, 3
    s_lshl_b32 s29, s31, 1
    s_add_u32 s35, s35, s29
    s_lshl_b32 s40, s34, 18
    s_add_u32 s40, s40, {KVB_OFF}
    v_lshlrev_b32 v1, 4, v0
    """)

def p2_compute(a, opt):
    lf = opt.get("lf", " sc1")
    NT = 8
    stamp(a, opt, 3)
    p2_ids(a)
    a(f"""
    s_lshl_b32 s47, s35, 5
    s_add_u32 s47, s47, s34
    s_lshl_b32 s47, s47, 11
    s_add_u32 s47, s47, {O_OFF + (4<<20)}
    s_waitcnt lgkmcnt(0)
    v_mov_b32 v4, 0xdddd
    v_and_b32 v2, 4, v0
    v_cmp_eq_u32 vcc, 0, v2
    v_mov_b32 v2, 0
    v_mov_b32 v3, 0x3f803f80
    v_cndmask_b32 v{SELL}, v2, v3, vcc
    v_cndmask_b32 v{SELL+2}, v3, v2, vcc
    v_mov_b32 v{SELL+1}, v{SELL}
    v_mov_b32 v{SELL+3}, v{SELL+2}
    v_mov_b32 v2, v1
    """)
    if opt.get("m16", 1):
        a("""
        v_and_b32 v22, 0x23, v0
        v_and_b32 v20, 4, v0
        v_lshl_or_b32 v22, v20, 2, v22
        v_and_b32 v20, 0x18, v0
        v_lshrrev_b32 v20, 1, v20
        v_or_b32 v22, v22, v20
        v_lshlrev_b32 v22, 4, v22
        """)
    else: a("v_mov_b32 v22, v1")
    a(f"""
    v_mov_b32 v20, v22
    v_xor_b32 v23, v22, v1
    s_lshl_b32 s29, s31, 12
    s_add_u32 s29, s29, {QL0}
    v_add_u32 v5, s29, v1
    s_lshl_b32 s49, s26, 10
    s_lshl_b32 s29, s25, 7
    s_add_u32 s49, s49, s29
    s_lshl_b32 s29, s36, 3
    s_add_u32 s49, s49, s29
    s_add_u32 s49, s49, {F1C}
    s_lshl_b32 s48, s26, 7
    s_lshl_b32 s29, s25, 2
    s_add_u32 s48, s48, s29
    s_add_u32 s48, s48, {F1A}        ; F1A[ct][tt]
    s_cmp_eq_u32 s24, 0
    s_cselect_b32 s49, s48, s49
    s_cselect_b32 s90, 1, s91
    s_mov_b32 s91, 0
    s_barrier
    """)
    stamp(a, opt, 5)
    def kread(st, addr, j): return [f"ds_read_b128 {v(KS[st]+4*u,4)}, {dict(v2='v20', v3='v21')[addr]} offset:{j*4096+u*1024}" for u in range(2)]
    def vread(st, addr, j): return [f"ds_read_b128 {v(VS[st]+4*u,4)}, {addr} offset:{j*4096+2048+u*1024}" for u in range(2)]
    for b in range(2):
        for u in range(2):
            a(f"ds_read_b128 {v(QF[b]+4*u,4)}, v5 offset:{b*2048+u*1024}")
    for r in kread(0, "v2", 0) + vread(0, "v2", 0) + kread(1, "v2", 1): a(r)
    for b in range(2):
        for r in range(16): a(f"v_mov_b32 v{OA[b]+r}, 0")
        for r in range(4): a(f"v_mov_b32 v{LACC[b]+r}, 0")
    for r in range(4, 8): a(f"v_mov_b32 v{VS[1]+r}, 0")
    if opt.get("pubn", -2) == -2:
        a("s_mov_b64 vcc, s[90:91]\ns_cbranch_vccnz L_p2_pub")
        a.label("L_p2_pubret", keep_hist=True)
    a("s_waitcnt lgkmcnt(4)")
    for b in range(2):
        a(f"v_mfma_f32_32x32x16_bf16 {v(SB[b],16)}, {v(KS[0],4)}, {v(QF[b],4)}, 0")
        a(f"v_mfma_f32_32x32x16_bf16 {v(SB[b],16)}, {v(KS[0]+4,4)}, {v(QF[b]+4,4)}, {v(SB[b],16)}")
    def rowmax(S, dst, init=True):
        if init:
            a(f"v_max3_f32 v{dst}, v{S}, v{S+1}, v{S+2}")
            for r in range(3, 15, 2): a(f"v_max3_f32 v{dst}, v{dst}, v{S+r}, v{S+r+1}")
            a(f"v_max_f32 v{dst}, v{dst}, v{S+15}")
        else:
            for r in range(0, 16, 2): a(f"v_max3_f32 v{dst}, v{dst}, v{S+r}, v{S+r+1}")
    def finish_max(dst, tmp, NM):
        a(f"v_mov_b32 v{tmp}, v{dst}")
        a(f"v_permlane32_swap_b32 v{dst}, v{tmp}")
        a(f"v_max_f32 v{dst}, v{dst}, v{tmp}")
        for r in range(16): a(f"v_sub_f32 v{NM+r}, 0, v{dst}")
    rowmax(SB[0], 6); finish_max(6, 7, NEGM[0])
    a(f"v_mfma_f32_32x32x16_bf16 {v(SB[0],16)}, {v(KS[0],4)}, {v(QF[0],4)}, {v(NEGM[0],16)}")
    a(f"v_mfma_f32_32x32x16_bf16 {v(SB[0],16)}, {v(KS[0]+4,4)}, {v(QF[0]+4,4)}, {v(SB[0],16)}")
    rowmax(SB[1], 6); finish_max(6, 7, NEGM[1])
    for r in range(8, 16): a(f"v_mov_b32 v{SB[1]+r}, 0")
    a("s_mov_b32 s28, 0")
    if opt.get("pubn", -2) != -2: a("s_mov_b64 vcc, s[90:91]")
    if opt.get("pubn", -2) == -1:
        a("s_cbranch_vccnz L_p2_pub")
        a.label("L_p2_pubret", keep_hist=True)
    a.raw(".p2align 6")
    for _ in range(opt.get("p2pad", 0)): a("s_nop 0")
    a.label("L_p2_loop", keep_hist=True)
    start = len(a.lines)
    pat = opt.get("pat", "ePeeelreMeeeNweeeVeeeeeLr")
    for n in range(2 * NT):
        j = n >> 1; b = n & 1
        A = SB[b]; B = SB[b ^ 1]
        jprev = j - 1 if b == 0 else j
        jnext = j if b == 0 else j + 1
        if b == 0: R = vread((j + 1) & 1, "v2" if j + 1 < NT else "v3", (j + 1) % NT)
        else: R = kread(j & 1, "v2" if j + 2 < NT else "v3", (j + 2) % NT)
        e = rr = 0
        for ch in pat:
            px = opt.get("p2x", "")
            if ch in px and ch != "e":
                a("s_nop 1" if ch in "MN" else "s_nop 2")
                if ch == "P" and n == 2 * NT - 3: a("s_barrier")
                if ch == "M" and n == 2 * NT - 1: a("v_mov_b32 v2, v3")
                if ch == "V":
                    if n == 2 * NT - 1: a("s_add_u32 s28, s28, 1")
                    if n == 0: a(f"v_add_u32 v3, {SLOT}, v2")
                    if n == 1: a(f"v_and_b32 v3, {4*SLOT-1}, v3")
                    if n == 2: a("v_xor_b32 v21, v23, v3")
                    if n == 2 * NT - 2: a("v_mov_b32 v20, v21")
                continue
            if ch == "e" and "e" in px: a("s_nop 1"); e += 1
            elif ch == "e" and "MN" in px: a(f"v_exp_f32 v{A+e}, v{KS[0]+e}"); e += 1
            elif ch == "e": a(f"v_exp_f32 v{A+e}, v{A+e}"); e += 1
            elif ch == "P":
                a(f"v_smfmac_f32_32x32x32_bf16 {v(OA[b^1],16)}, {v(VS[jprev&1]+4,4)}, {v(B+8,8)}, v4")
                if n == 2 * NT - 3: a("s_barrier")
            elif ch == "l": a(f"v_smfmac_f32_16x16x64_bf16 {v(LACC[b^1],4)}, {v(SELL,4)}, {v(B+8,8)}, v4")
            elif ch == "L": a(f"v_smfmac_f32_16x16x64_bf16 {v(LACC[b],4)}, {v(SELL,4)}, {v(A,8)}, v4")
            elif ch == "w":
                if b == 0: a("s_waitcnt lgkmcnt(1)")
                elif n == opt.get("pubn", -2):
                    a("s_cbranch_vccnz L_p2_pub")
                    a.label("L_p2_pubret", keep_hist=True)
                else: a("s_nop 0")
            elif ch == "M":
                a(f"v_mfma_f32_32x32x16_bf16 {v(B,16)}, {v(KS[jnext&1],4)}, {v(QF[b^1],4)}, {v(NEGM[b^1],16)}")
                if n == 2 * NT - 1: a("v_mov_b32 v2, v3")
            elif ch == "N": a(f"v_mfma_f32_32x32x16_bf16 {v(B,16)}, {v(KS[jnext&1]+4,4)}, {v(QF[b^1]+4,4)}, {v(B,16)}")
            elif ch == "V":
                a(f"v_smfmac_f32_32x32x32_bf16 {v(OA[b],16)}, {v(VS[j&1],4)}, {v(A,8)}, v4")
                if opt.get("lc", 1):
                    if n == 2 * NT - 2: a("s_add_u32 s28, s28, 1")
                    if n == 2 * NT - 1: a("s_cmp_lt_u32 s28, 8")
                    if n == 2 * NT - 3: a("v_mov_b32 v20, v21")
                else:
                    if n == 2 * NT - 1: a("s_add_u32 s28, s28, 1")
                    if n == 2 * NT - 2: a("v_mov_b32 v20, v21")
                if n == 0: a(f"v_add_u32 v3, {SLOT}, v2")
                if n == 1: a(f"v_and_b32 v3, {4*SLOT-1}, v3")
                if n == 2: a("v_xor_b32 v21, v23, v3")
            elif ch == "r": a(R[rr]); rr += 1
    if not opt.get("lc", 1): a("s_cmp_lt_u32 s28, 8")
    a("s_cbranch_scc1 L_p2_loop")
    assert check_loop(a.lines[start:]) == (0, 0)
    a("s_nop 1")
    a(f"v_smfmac_f32_32x32x32_bf16 {v(OA[1],16)}, {v(VS[1]+4,4)}, {v(SB[1]+8,8)}, v4")
    a(f"v_smfmac_f32_16x16x64_bf16 {v(LACC[1],4)}, {v(SELL,4)}, {v(SB[1]+8,8)}, v4")
    stamp(a, opt, 6)
    O0 = OA[0]; O1 = OA[1]; L0r = LACC[0]
    a("s_mov_b32 s48, 0")
    a.label("L_p2_blk")
    a(f"""
    s_mov_b32 s36, 0x5d800000        ; 2^60
    v_cmp_nlt_f32 vcc, v{L0r}, s36
    s_cmp_lg_u64 vcc, 0
    {"s_nop 0" if opt.get("p2x") else "s_cbranch_scc1 L_p2_slow"}
    """)
    a.label("L_p2_fin", keep_hist=True)
    a(f"v_rcp_f32 v{L0r}, v{L0r}")
    for r in range(0, 16, 2):
        a(f"v_pk_mul_f32 {v(O0+r,2)}, {v(O0+r,2)}, {v(L0r,2)} op_sel_hi:[1,0]")
    cvt_inplace(a, O0)
    a(f"buffer_store_dwordx4 {v(O0,4)}, v1, s[16:19], s47 offen{SC}")
    a(f"buffer_store_dwordx4 {v(O0+4,4)}, v1, s[16:19], s47 offen offset:1024{SC}")
    a(f"""
    s_cmp_lg_u32 s48, 0
    s_cbranch_scc1 L_p2_out
    s_mov_b32 s48, 1
    s_add_u32 s47, s47, 65536
    """)
    for r in range(16): a(f"v_mov_b32 v{O0+r}, v{O1+r}")
    a(f"v_mov_b32 v{L0r}, v{LACC[1]}")
    for r in range(8): a(f"v_mov_b32 v{QF[0]+r}, v{QF[1]+r}")
    a("s_branch L_p2_blk")
    a.label("L_p2_pub")
    a(f"""
    s_waitcnt vmcnt(0)
    v_mov_b32 v6, 1
    v_lshlrev_b32 v7, 2, v0
    s_mov_b64 exec, vcc
    buffer_atomic_add v6, v7, s[16:19], s49 offen sc1
    s_mov_b64 exec, -1
    s_mov_b64 vcc, 0
    s_nop 4
    s_branch L_p2_pubret
    """)
    S0 = SB[0]; Q0 = QF[0]; NM = NEGM[0]
    a.label("L_p2_slow")
    a(f"""
    s_waitcnt lgkmcnt(0)
    s_mov_b32 s36, s40
    s_mov_b32 s28, 0
    v_mov_b32 v6, 0xff800000
    """)
    a.label("L_p2_slow1")
    a(f"""
    buffer_load_dwordx4 {v(KS[0],4)}, v22, s[16:19], s36 offen{lf}
    buffer_load_dwordx4 {v(KS[0]+4,4)}, v22, s[16:19], s36 offen offset:1024{lf}
    s_waitcnt vmcnt(0)
    v_mfma_f32_32x32x16_bf16 {v(S0,16)}, {v(KS[0],4)}, {v(Q0,4)}, 0
    v_mfma_f32_32x32x16_bf16 {v(S0,16)}, {v(KS[0]+4,4)}, {v(Q0+4,4)}, {v(S0,16)}
    """)
    rowmax(S0, 6, init=False)
    a(f"""
    s_add_u32 s36, s36, 4096
    s_add_u32 s28, s28, 1
    s_cmp_lt_u32 s28, 64
    s_cbranch_scc1 L_p2_slow1
    """)
    finish_max(6, 7, NM)
    for r in range(16): a(f"v_mov_b32 v{O0+r}, 0")
    for r in range(4): a(f"v_mov_b32 v{L0r+r}, 0")
    a("s_mov_b32 s36, s40\ns_mov_b32 s28, 0")
    a.label("L_p2_slow2")
    a(f"""
    buffer_load_dwordx4 {v(KS[0],4)}, v22, s[16:19], s36 offen{lf}
    buffer_load_dwordx4 {v(KS[0]+4,4)}, v22, s[16:19], s36 offen offset:1024{lf}
    buffer_load_dwordx4 {v(VS[0],4)}, v1, s[16:19], s36 offen offset:2048{lf}
    buffer_load_dwordx4 {v(VS[0]+4,4)}, v1, s[16:19], s36 offen offset:3072{lf}
    s_waitcnt vmcnt(0)
    v_mfma_f32_32x32x16_bf16 {v(S0,16)}, {v(KS[0],4)}, {v(Q0,4)}, {v(NM,16)}
    v_mfma_f32_32x32x16_bf16 {v(S0,16)}, {v(KS[0]+4,4)}, {v(Q0+4,4)}, {v(S0,16)}
    """)
    for r in range(16): a(f"v_exp_f32 v{S0+r}, v{S0+r}")
    a(f"""
    v_smfmac_f32_32x32x32_bf16 {v(O0,16)}, {v(VS[0],4)}, {v(S0,8)}, v4
    v_smfmac_f32_16x16x64_bf16 {v(L0r,4)}, {v(SELL,4)}, {v(S0,8)}, v4
    v_smfmac_f32_32x32x32_bf16 {v(O0,16)}, {v(VS[0]+4,4)}, {v(S0+8,8)}, v4
    v_smfmac_f32_16x16x64_bf16 {v(L0r,4)}, {v(SELL,4)}, {v(S0+8,8)}, v4
    s_nop 15
    s_add_u32 s36, s36, 4096
    s_add_u32 s28, s28, 1
    s_cmp_lt_u32 s28, 64
    s_cbranch_scc1 L_p2_slow2
    s_nop 15
    s_branch L_p2_fin
    """)
    a.label("L_p2_out")

def p2_helper_setup(a):
    p2_ids(a)
    a(f"""
    s_lshl_b32 s41, s31, 13          ; hw*8192
    s_add_u32 s40, s40, s41
    s_mov_b32 s43, s41
    s_mov_b32 s93, s25
    s_mov_b32 s44, {f2u(LOG2E)}
    s_mov_b32 s45, {f2u(LOG2E)}
    """)
    if MIX[0]:
        a("""
        s_lshr_b32 s50, s2, 4
        s_lshl_b32 s50, s50, 17
        s_lshl_b32 s37, s31, 15
        s_add_u32 s50, s50, s37
        s_and_b32 s37, s3, 4
        s_lshl_b32 s37, s37, 8
        s_add_u32 s50, s50, s37
        v_lshrrev_b32 v3, 3, v0
        v_and_b32 v2, 7, v0
        v_lshlrev_b32 v3, 11, v3
        v_lshl_add_u32 v3, v2, 7, v3
        """)
    else:
        a("""
        s_lshr_b32 s50, s2, 3
        s_lshl_b32 s50, s50, 16
        s_lshl_b32 s37, s31, 14
        s_add_u32 s50, s50, s37
        v_lshlrev_b32 v3, 7, v0
        """)
    a(f"""
    s_lshl_b32 s38, s26, 1
    s_add_u32 s38, s38, 1
    s_lshl_b32 s38, s38, 6
    s_add_u32 s38, s38, s35
    s_lshl_b32 s38, s38, 11
    s_add_u32 s38, s38, {QB_OFF}
    """)

def p2_c0_loads(a, lf):
    a("s_lshl_b32 s42, s93, 15\ns_add_u32 s42, s42, s40")
    for hf in range(2):
        a(f"s_add_u32 m0, s43, {hf*4096}")
        a(f"s_add_u32 s29, s42, {hf*4096}")
        for n in range(4):
            a(f"buffer_load_dwordx4 v1, s[16:19], s29 offen offset:{n*1024}{lf} lds")
    a(f"""
    s_lshl_b32 s29, s31, 12
    s_add_u32 m0, s29, {QL0}
    s_nop 0
    """)
    for n in range(4):
        a(f"buffer_load_dwordx4 v1, s[16:19], s38 offen offset:{n*1024}{lf} lds")

def p2_helper(a, opt):
    lf = opt.get("lf", " sc1")
    P0 = 8; QAF = 160; ZP0 = 88; JUNK = 96
    WP = 8; KVR = 16; ZR = 32; PQ = 48; EP = 104; T = 120; NUM = 136; DEN = 64
    def advance():
        a(f"""
        s_add_u32 s93, s93, 1
        s_and_b32 s93, s93, 7
        s_add_u32 s43, s43, {SLOT}
        s_and_b32 s43, s43, {4*SLOT-1}
        """)
    def chunk(single=False):
        need_chunk(a, single)
        a("s_lshl_b32 s42, s93, 15\ns_add_u32 s42, s42, s40")
        for hf in range(2):
            a(f"s_add_u32 m0, s43, {hf*4096}")
            a(f"s_add_u32 s29, s42, {hf*4096}")
            for n in range(4):
                a(f"buffer_load_dwordx4 v1, s[16:19], s29 offen offset:{n*1024}{lf} lds")
        advance()
    def PF():
        a(f"buffer_load_dword v{JUNK}, v247, s[52:55], s50 offen")
        a(f"s_add_u32 s50, s50, {16384 if MIX[0] else 8192}")
    def WB(n):
        a(f"s_waitcnt vmcnt({n})")
        a("s_barrier")
    a("s_cmp_lg_u32 s24, 0\ns_cbranch_scc1 L_p2_hB")
    stamp(a, opt, 3)
    a("s_cmp_lg_u32 s91, 0\ns_cbranch_scc1 L_p2_c0done")
    need_chunk(a, True)
    p2_c0_loads(a, lf)
    a.label("L_p2_c0done")
    advance()
    stamp(a, opt, 4)
    WB(0)
    chunk()
    WB(0)
    chunk(); chunk(); PF()
    WB(9)
    chunk(); PF()
    WB(10)
    chunk()
    WB(9)
    chunk()
    WB(8)
    chunk()
    a("s_waitcnt vmcnt(8)")
    a("s_branch L_p2_hjoin")
    a.label("L_p2_hB")
    a(f"""
    v_add_u32 v2, s41, v1
    s_lshl_b32 s42, s25, 15
    s_add_u32 s42, s42, s40
    s_add_u32 s46, s42, 4096
    s_barrier
    """)
    stamp(a, opt, 3)
    a(f"s_setprio {opt.get('hp2', 2)}")
    for q in range(8): a(f"ds_read_b128 {v(8+4*q,4)}, v2 offset:{q*1024}")
    hb = opt.get("hb", 8)
    for q in range(8):
        if q == hb: a("s_barrier")
        a(f"s_waitcnt lgkmcnt({7-q})")
        a(f"buffer_store_dwordx4 {v(8+4*q,4)}, v1, s[16:19], {'s42' if q < 4 else 's46'} offen offset:{(q&3)*1024}{SC}")
    advance()
    stamp(a, opt, 1)
    if hb >= 8: a("s_barrier")
    a("s_waitcnt vmcnt(0)")
    publish(a, 48, all_helpers=True)
    stamp(a, opt, 4)
    chunk(True)
    stamp(a, opt, 6)
    a("s_waitcnt vmcnt(0)")
    stamp(a, opt, 9)
    WB(0)
    stamp(a, opt, 5)
    chunk(); chunk(); PF()
    WB(9)
    if opt.get("bst"): stamp(a, opt, 1)
    chunk()
    poll(a, 8, 8, 4)
    if opt.get("bst"): stamp(a, opt, 2)
    a(f"""
    s_lshl_b32 s34, s26, 1
    s_and_b32 s29, s25, 1
    s_add_u32 s34, s34, s29
    s_and_b32 s35, s25, 6
    s_lshl_b32 s35, s35, 3
    s_lshl_b32 s29, s31, 2
    s_add_u32 s35, s35, s29
    s_lshl_b32 s38, s34, 6
    s_add_u32 s38, s38, s35
    s_lshl_b32 s38, s38, 11
    s_add_u32 s38, s38, {QA_OFF}
    s_add_u32 s39, s38, 4096
    s_lshl_b32 s46, s35, 5
    s_add_u32 s46, s46, s34
    s_lshl_b32 s46, s46, 11
    s_add_u32 s46, s46, {O_OFF}
    s_lshl_b32 s36, s34, 16
    s_add_u32 s36, s36, {KVP_OFF}
    s_lshl_b32 s29, s31, 11
    s_add_u32 s36, s36, s29
    """)
    for t in range(8):
        a(f"buffer_load_dwordx4 {v(P0+8*t,4)}, v1, s[16:19], s36 offen{lf}")
        a(f"buffer_load_dwordx4 {v(P0+8*t+4,4)}, v1, s[16:19], s36 offen offset:1024{lf}")
        if t < 7: a("s_add_u32 s36, s36, 8192")
    a(f"""
    s_and_b32 s37, s31, 1
    s_lshl_b32 s37, s37, 10
    s_lshl_b32 s36, s34, 11
    s_add_u32 s36, s36, s37
    s_add_u32 m0, s37, {WPH}
    v_lshlrev_b32 v6, 2, v0
    buffer_load_dwordx4 v1, s[20:23], s36 offen lds
    s_lshl_b32 s36, s34, 11
    s_add_u32 s36, s36, {ZP_OFF}
    """)
    for t in range(8):
        a(f"buffer_load_dword v{ZP0+t}, v6, s[16:19], s36 offen offset:{t*256}{lf}")
    a("s_barrier")
    if opt.get("bst"): stamp(a, opt, 3)
    a("s_waitcnt vmcnt(0)")
    for t in range(1, 8):
        for r in range(0, 8, 2):
            a(f"v_pk_add_f32 {v(P0+r,2)}, {v(P0+r,2)}, {v(P0+8*t+r,2)}")
    for r in range(4): a(f"v_cvt_pk_bf16_f32 v{P0+r}, v{P0+2*r}, v{P0+2*r+1}")
    a(f"""
    s_lshl_b32 s36, s31, 10
    s_add_u32 s36, s36, {KVF}
    v_add_u32 v6, s36, v1
    ds_write_b128 v6, {v(P0,4)}
    """)
    for t in range(1, 8): a(f"v_add_f32 v{ZP0}, v{ZP0}, v{ZP0+t}")
    a(f"""
    v_cvt_pk_bf16_f32 v{ZP0}, v{ZP0}, v{ZP0}
    v_lshrrev_b32 v6, 4, v0
    v_lshlrev_b32 v6, 5, v6
    v_and_b32 v7, 4, v0
    v_lshl_add_u32 v6, v7, 2, v6
    v_and_b32 v7, 8, v0
    v_add_u32 v6, v6, v7
    v_and_b32 v7, 3, v0
    v_lshl_add_u32 v6, v7, 1, v6
    v_add_u32 v6, {ZF}, v6
    ds_write_b16 v6, v{ZP0}
    v_mov_b32 v7, 0
    ds_write_b16 v6, v7 offset:128
    v_lshrrev_b32 v5, 5, v0          ; h
    v_bfe_u32 v6, v0, 2, 2
    v_lshl_add_u32 v6, v5, 2, v6     ; 4h+r
    v_bfe_u32 v7, v0, 4, 1
    v_lshlrev_b32 v7, 5, v7
    v_lshl_add_u32 v6, v6, 6, v7
    v_and_b32 v7, 3, v0
    v_lshl_add_u32 v6, v7, 3, v6
    v_add_u32 v2, {WPH}, v6
    v_lshrrev_b32 v6, 2, v0
    v_lshrrev_b32 v7, 4, v0
    v_xor_b32 v6, v6, v7
    v_and_b32 v6, 1, v6
    v_cmp_eq_u32 vcc, 0, v6
    v_lshlrev_b32 v5, 4, v5
    v_add_u32 v5, {ZF}, v5
    v_mov_b32 v6, {ZF+128}
    v_cndmask_b32 v7, v6, v5, vcc
    v_add_u32 v6, {KVF}, v1
    """)
    for q in range(8):
        a(f"buffer_load_dwordx4 {v(QAF+4*q,4)}, v1, s[16:19], {'s38' if q < 4 else 's39'} offen offset:{(q&3)*1024}{lf}")
    chunk()
    a("s_waitcnt lgkmcnt(0)")
    if opt.get("bst"): stamp(a, opt, 4)
    a("s_barrier")
    if opt.get("bst"): stamp(a, opt, 6)
    dyn = opt.get("dyn", 0)
    if dyn:
        L = only_w4(a)
        a(f"""
        s_memrealtime s[88:89]
        s_lshl_b32 s29, s25, 7
        s_lshl_b32 s90, s26, 3
        s_add_u32 s29, s29, s90
        s_add_u32 s29, s29, {TSF}
        v_mov_b32 v101, 0
        s_waitcnt lgkmcnt(0)
        v_mov_b32 v100, s88
        s_mov_b64 exec, 1
        buffer_store_dword v100, v101, s[16:19], s29 offen sc0 sc1
        s_mov_b64 exec, -1
        """)
        a.label(L)
    chunk()
    for u in range(2):
        for b in range(2):
            a(f"ds_read_b64_tr_b16 {v(WP+4*u+2*b,2)}, v2 offset:{((8*u+16*b) if opt.get('m16', 1) else (16*u+8*b))*64}")
    for f in range(4): a(f"ds_read_b128 {v(KVR+4*f,4)}, v6 offset:{f*1024}")
    for f in range(4): a(f"ds_read_b128 {v(ZR+4*f,4)}, v7 offset:{f*32}")
    a("s_waitcnt vmcnt(8) lgkmcnt(0)")
    PF()
    def oa_block(b):
        a(f"v_mfma_f32_32x32x16_bf16 {v(PQ,16)}, {v(WP,4)}, {v(QAF+8*b,4)}, 0")
        a(f"v_mfma_f32_32x32x16_bf16 {v(PQ,16)}, {v(WP+4,4)}, {v(QAF+8*b+4,4)}, {v(PQ,16)}")
        softmax_pm(a, PQ, EP, T)
        for f in range(4):
            F = (EP if f < 2 else PQ) + 4 * (f & 1)
            a(f"v_mfma_f32_32x32x16_bf16 {v(NUM,16)}, {v(KVR+4*f,4)}, {v(F,4)}, {'0' if f == 0 else v(NUM,16)}")
            a(f"v_mfma_f32_16x16x32_bf16 {v(DEN,4)}, {v(ZR+4*f,4)}, {v(F,4)}, {'0' if f == 0 else v(DEN,4)}")
        a(f"""
        v_add_f32 v{DEN}, {f2u(1e-6)}, v{DEN}
        v_rcp_f32 v{DEN}, v{DEN}
        """)
        for r in range(0, 16, 2):
            a(f"v_pk_mul_f32 {v(NUM+r,2)}, {v(NUM+r,2)}, {v(DEN,2)} op_sel_hi:[1,0]")
        cvt_inplace(a, NUM)
        a(f"buffer_store_dwordx4 {v(NUM,4)}, v1, s[16:19], s46 offen{SC}")
        a(f"buffer_store_dwordx4 {v(NUM+4,4)}, v1, s[16:19], s46 offen offset:1024{SC}")
        a(f"s_add_u32 s46, s46, 65536")
    a("s_mov_b32 s28, 0")
    a.label("L_p2_oa")
    oa_block(0)
    for r in range(0, 24, 2): a(f"v_pk_mov_b32 {v(QAF+r,2)}, {v(QAF+8+r,2)}, {v(QAF+8+r,2)} op_sel:[0,1]")
    a(f"""
    s_add_u32 s28, s28, 1
    s_cmp_eq_u32 s28, 2
    s_cbranch_scc0 L_p2_oa1
    """)
    if opt.get("bst"): stamp(a, opt, 9)
    a("s_barrier")
    if opt.get("bst"): stamp(a, opt, 10)
    if dyn:
        a(f"""
        s_and_b32 s29, s3, 3
        s_lshl_b32 s29, s29, 1
        s_bfe_u32 s90, s2, 0x10005
        s_add_u32 s29, s29, s90
        s_lshl_b32 s29, s29, 7
        s_add_u32 s29, s29, {TSF}
        v_lshlrev_b32 v101, 5, v0
        s_mov_b64 exec, 15
        buffer_load_dword v100, v101, s[16:19], s29 offen sc0 sc1
        s_mov_b64 exec, -1
        """)
    chunk()
    a.label("L_p2_oa1")
    a("s_cmp_lt_u32 s28, 4\ns_cbranch_scc1 L_p2_oa")
    a("s_waitcnt vmcnt(12)")
    if dyn:
        L = only_w4(a)
        a(f"""
        s_memrealtime s[88:89]
        s_lshr_b32 s42, s3, 1
        s_lshl_b32 s42, s42, 2
        s_add_u32 s42, s42, 4
        v_lshlrev_b32 v101, 2, v0
        v_subrev_u32 v101, s42, v101
        v_and_b32 v101, 12, v101
        s_waitcnt lgkmcnt(0)
        v_sub_u32 v100, s88, v100        ; age
        v_cmp_gt_u32 vcc, 2000, v100
        v_sub_u32 v100, 2000, v100
        v_mov_b32 v102, 4000
        v_cndmask_b32 v100, v102, v100, vcc
        v_lshrrev_b32 v100, {opt.get("dq", 3)}, v100
        v_lshl_or_b32 v100, v100, 4, v101
        v_lshl_or_b32 v100, v100, 2, v0
        v_readlane_b32 s44, v100, 0
        v_readlane_b32 s45, v100, 1
        v_readlane_b32 s46, v100, 2
        v_readlane_b32 s47, v100, 3
        """)
        for x, y in ((44, 45), (46, 47), (44, 46), (45, 47), (45, 46)):
            a(f"s_min_u32 s29, s{x}, s{y}\ns_max_u32 s{y}, s{x}, s{y}\ns_mov_b32 s{x}, s29")
        a("s_mov_b32 s29, 0")
        for k in range(4):
            a(f"s_and_b32 s{44+k}, s{44+k}, 3\ns_lshl_b32 s{44+k}, s{44+k}, {4*k+2}\ns_or_b32 s29, s29, s{44+k}")
        a(f"""
        v_mov_b32 v100, s29
        v_mov_b32 v101, {ORDW}
        ds_write_b32 v101, v100
        s_waitcnt lgkmcnt(0)
        """)
        a.label(L)
    a("s_setprio 0")
    a.label("L_p2_hjoin")
    a("s_barrier")
    a("s_mov_b32 s33, s24")
    p3_helper_setup(a, opt)
    if dyn:
        a(f"""
        s_cmp_eq_u32 s33, 0
        s_cbranch_scc1 L_p3_static
        v_mov_b32 v101, {ORDW}
        ds_read_b32 v100, v101
        s_waitcnt lgkmcnt(0)
        v_readfirstlane_b32 s29, v100
        """)
        for k in range(4): a(f"s_bfe_u32 s{44+k}, s29, {0x40000 + 4*k}")
        a.label("L_p3_static")
    nv = opt.get("nv", 0)
    n1 = p3_wv_loads(a, opt, 5, 5 + nv // 2)
    if opt.get("otouch"):
        a(f"""
        s_lshl_b32 s29, s25, 19
        s_lshl_b32 s41, s36, 17
        s_add_u32 s29, s29, s41
        s_lshl_b32 s41, s24, 11
        s_add_u32 s29, s29, s41
        s_lshl_b32 s41, s26, 8
        s_add_u32 s29, s29, s41
        v_lshrrev_b32 v12, 1, v0
        v_lshlrev_b32 v12, 12, v12
        v_and_b32 v13, 1, v0
        v_lshl_add_u32 v12, v13, 7, v12
        {"s_mov_b64 exec, 1" if opt["otouch"] == 1 else ""}
        buffer_load_dword v248, v12, s[56:59], s29 offen
        s_mov_b64 exec, -1
        """)
        n1 += 1
    if opt.get("wearly", 1):
        p3_gw(a, 0); p3_gw(a, 4); n1 += 8
    WB(n1)
    a("s_cmp_eq_u32 s33, 0\ns_cbranch_scc1 L_p2_hdone")
    publish(a, 56, n=4, inc=2)
    a.label("L_p2_hdone")
    p3_wv_loads(a, opt, 5 + nv // 2, 5 + nv)

NS = 5
ACC3 = 72
OS = [8, 16, 24, 32]; WSR = [40, 48, 56, 64]
MIX = [1]
def p3_ids(a):
    if MIX[0]:
        a(f"""
        s_mov_b32 s24, s99               ; branch
        s_and_b32 s25, s3, 3
        s_lshl_b32 s25, s25, 2
        s_bfe_u32 s29, s2, 0x20004
        s_add_u32 s25, s25, s29
        s_and_b32 s26, s3, 4
        s_lshr_b32 s29, s2, 6
        s_add_u32 s26, s26, s29
        """)
        return
    a(f"""
    s_lshr_b32 s24, s3, 2            ; branch
    s_and_b32 s25, s3, 3
    s_lshl_b32 s25, s25, 2
    s_bfe_u32 s29, s2, 0x20003
    s_add_u32 s25, s25, s29
    s_lshr_b32 s26, s2, 5
    """)

def p3_compute(a, opt):
    a("s_waitcnt lgkmcnt(0)")
    p3_ids(a)
    a(f"""
    s_lshr_b32 s36, s27, 1           ; tw
    s_and_b32 s37, s27, 1            ; cw
    v_lshlrev_b32 v1, 4, v0
    s_lshl_b32 s29, s36, 13
    v_add_u32 v1, s29, v1
    v_lshrrev_b32 v2, 5, v0          ; h
    v_bfe_u32 v3, v0, 2, 2           ; r
    v_lshl_add_u32 v4, v2, 2, v3
    v_lshlrev_b32 v4, 8, v4
    s_lshl_b32 s29, s37, 1
    v_xor_b32 v3, s29, v3
    v_lshl_add_u32 v4, v3, 6, v4
    v_bfe_u32 v5, v0, 4, 1
    v_lshl_add_u32 v4, v5, 5, v4
    v_and_b32 v5, 3, v0
    v_lshl_add_u32 v4, v5, 3, v4
    v_add_u32 v2, 16384, v4
    v_xor_b32 v3, 64, v2
    s_mov_b32 s30, 0
    v_mov_b32 v4, v1
    v_mov_b32 v5, v2
    v_mov_b32 v6, v3
    s_mov_b32 s28, 16
    """)
    for r in range(ACC3, ACC3 + 64): a(f"v_mov_b32 v{r}, 0")
    def reads(st, c):
        O = OS[st]; W = WSR[st]
        o = [f"ds_read_b128 {v(O+4*i,4)}, v4 offset:{i*4096+c*1024}" for i in range(2)]
        w = [f"ds_read_b64_tr_b16 {v(W+4*cb+2*b,2)}, v{5+cb} offset:{(16*c+8*b)*256}" for cb in range(2) for b in range(2)]
        return [w[0], w[1], o[0], o[1], w[2], w[3]]
    def mf(st):
        O = OS[st]; W = WSR[st]
        return [f"v_mfma_f32_32x32x16_bf16 {v(ACC3+16*(2*i+cb),16)}, {v(W+4*cb,4)}, {v(O+4*i,4)}, {v(ACC3+16*(2*i+cb),16)}"
                for cb in range(2) for i in range(2)]
    a("s_waitcnt vmcnt(0)")
    stamp(a, opt, 7)
    a("s_barrier")
    stamp(a, opt, 8)
    a("s_barrier")
    stamp(a, opt, 9)
    for r in reads(0, 0) + reads(1, 1): a(r)
    a.raw(".p2align 6")
    a.label("L_p3_loop", keep_hist=True)
    start = len(a.lines)
    for c in range(4):
        M = mf(c); R = reads((c + 2) & 3, (c + 2) & 3)
        a("s_waitcnt lgkmcnt(6)")
        a(M[0])
        if c == 2: a("s_barrier")
        a(R[0]); a(R[1])
        a(M[1])
        a(R[2]); a(R[3])
        a(M[2])
        a(R[4]); a(R[5])
        if c == 1:
            a(f"""
            s_add_u32 s30, s30, {SLOT}
            s_cmp_eq_u32 s30, {SLOT*NS}
            s_cselect_b32 s30, 0, s30
            """)
        a(M[3])
        if c == 1:
            a("""
            v_add_u32 v4, s30, v1
            v_add_u32 v5, s30, v2
            v_add_u32 v6, s30, v3
            """)
        if c == 3:
            a("s_sub_u32 s28, s28, 1")
            a("s_cmp_lg_u32 s28, 0")
    a("s_cbranch_scc1 L_p3_loop")
    assert check_loop(a.lines[start:]) == (0, 0)
    a("s_waitcnt lgkmcnt(0)")
    stamp(a, opt, 10)
    RS = 144
    a(f"""
    s_lshl_b32 s38, s25, 7
    s_lshl_b32 s29, s36, 6
    s_add_u32 s38, s38, s29          ; token0
    s_lshl_b32 s38, s38, 12
    s_lshl_b32 s29, s24, 11
    s_add_u32 s38, s38, s29
    s_lshl_b32 s29, s26, 8
    s_add_u32 s38, s38, s29
    s_lshl_b32 s29, s37, 7
    s_add_u32 s38, s38, s29
    s_mul_i32 s29, s27, {64*RS}
    s_add_u32 s29, s29, {2*SLOT}
    v_and_b32 v1, 31, v0
    v_mul_u32_u24 v1, {RS}, v1
    v_lshrrev_b32 v2, 5, v0
    v_lshl_add_u32 v1, v2, 3, v1
    v_add_u32 v1, s29, v1
    v_lshrrev_b32 v2, 3, v0
    v_and_b32 v3, 7, v0
    v_mul_u32_u24 v4, {RS}, v2
    v_lshl_add_u32 v4, v3, 4, v4
    v_add_u32 v4, s29, v4
    v_lshlrev_b32 v2, 12, v2
    v_lshl_add_u32 v2, v3, 4, v2
    """)
    for i in range(2):
        for cb in range(2):
            D = ACC3 + 16 * (2 * i + cb)
            for r in range(8): a(f"v_cvt_pk_bf16_f32 v{D+r}, v{D+2*r}, v{D+2*r+1}")
            for g in range(4):
                a(f"ds_write_b64 v1, {v(D+2*g,2)} offset:{i*32*RS + cb*64 + g*16}")
        for q in range(4):
            a(f"ds_read_b128 {v(8+16*i+4*q,4)}, v4 offset:{(i*32+q*8)*RS}")
    for i in range(2):
        for q in range(4):
            a(f"s_waitcnt lgkmcnt({(3-q) + (12 if i == 0 else 0)})")
            a(f"buffer_store_dwordx4 {v(8+16*i+4*q,4)}, v2, s[56:59], s38 offen{SC}")
            a(f"s_add_u32 s38, s38, {8*4096}")

def p3_compute16(a, opt):
    OSET = [8, 24]; WSET = [40, 56]
    a(f"""
    s_lshl_b32 s49, s25, 1
    s_lshr_b32 s29, s27, 1
    s_add_u32 s49, s49, s29
    s_lshl_b32 s49, s49, 7
    s_lshl_b32 s29, s34, 2
    s_add_u32 s49, s49, s29
    s_add_u32 s49, s49, {F2H}
    s_waitcnt lgkmcnt(0)
    """)
    p3_ids(a)
    a(f"""
    s_lshr_b32 s36, s27, 1           ; tw
    s_and_b32 s37, s27, 1            ; cw
    v_and_b32 v7, 15, v0             ; t
    v_lshrrev_b32 v6, 4, v0          ; g
    v_lshlrev_b32 v1, 4, v7
    v_lshl_add_u32 v1, v6, 9, v1
    s_lshl_b32 s29, s36, 13
    v_add_u32 v1, s29, v1
    v_bfe_u32 v3, v0, 2, 3           ; 4(g&1) + r
    v_lshrrev_b32 v2, 5, v0
    v_lshl_add_u32 v2, v2, 4, v3     ; row = 16(g>>1) + 4(g&1) + r
    v_lshlrev_b32 v2, 8, v2
    s_lshl_b32 s29, s37, 2
    v_xor_b32 v3, s29, v3
    v_lshl_add_u32 v2, v3, 5, v2
    v_and_b32 v3, 3, v0
    v_lshl_add_u32 v2, v3, 3, v2
    v_add_u32 v2, 16384, v2
    s_mov_b32 s30, 0
    v_mov_b32 v3, v1
    v_mov_b32 v4, v2
    v_xor_b32 v5, 32, v2
    v_xor_b32 v6, 64, v2
    v_xor_b32 v7, 0x60, v2
    s_mov_b32 s28, 16
    """)
    for r in range(ACC3, ACC3 + 64): a(f"v_mov_b32 v{r}, 0")
    def reads(st, sp):
        O = OSET[st]; W = WSET[st]
        o = [f"ds_read_b128 {v(O+4*i,4)}, v3 offset:{(i>>1)*4096 + sp*2048 + (i&1)*256}" for i in range(4)]
        w = [[f"ds_read_b64_tr_b16 {v(W+4*cb+2*b,2)}, v{4+cb} offset:{(32*sp+8*b)*256}" for b in range(2)] for cb in range(4)]
        return w[0] + [o[0], o[1]] + [o[2], o[3]] + w[1] + w[2] + w[3]
    def mf(st):
        O = OSET[st]; W = WSET[st]
        return [f"v_mfma_f32_16x16x32_bf16 {v(ACC3+16*i+4*cb,4)}, {v(W+4*cb,4)}, {v(O+4*i,4)}, {v(ACC3+16*i+4*cb,4)}"
                for cb in range(4) for i in range(4)]
    a(f"""
    v_mov_b32 v8, 1
    v_lshlrev_b32 v9, 11, v0
    s_waitcnt vmcnt(0)
    s_mov_b64 exec, 15
    buffer_atomic_add v8, v9, s[16:19], s49 offen sc1
    s_mov_b64 exec, -1
    """)
    stamp(a, opt, 7)
    a("s_barrier")
    stamp(a, opt, 8)
    a("s_barrier")
    stamp(a, opt, 9)
    for r in reads(0, 0): a(r)
    a.raw(".p2align 6")
    a.label("L_p3_loop", keep_hist=True)
    start = len(a.lines)
    for sp in range(2):
        M = mf(sp); R = reads(sp ^ 1, sp ^ 1)
        if opt.get("p3x") == 1: M = ["s_nop 0"] * 16
        extra = {n: [] for n in range(16)}
        for k, r in enumerate(R): extra[1 + k].append(r)
        if sp == 1: extra[0].append("s_barrier")
        if sp == 0:
            extra[0] += [f"s_add_u32 s30, s30, {SLOT}", f"s_cmp_eq_u32 s30, {SLOT*NS}"]
            extra[1].append("s_cselect_b32 s30, 0, s30")
            extra[13] += ["v_add_u32 v3, s30, v1", "v_add_u32 v4, s30, v2"]
            extra[14] += ["v_xor_b32 v5, 32, v4", "v_xor_b32 v6, 64, v4"]
            extra[15] += ["v_xor_b32 v7, 0x60, v4"]
        else:
            extra[14] += ["s_sub_u32 s28, s28, 1", "s_cmp_lg_u32 s28, 0"]
        waits = {0: 6, 4: 4 + 3, 8: 2 + 7, 12: 0 + 11}
        for n in range(16):
            if n in waits: a(f"s_waitcnt lgkmcnt({waits[n]})")
            a(M[n])
            for x in extra[n]: a(x)
    a("s_cbranch_scc1 L_p3_loop")
    assert check_loop(a.lines[start:]) == (0, 0)
    a("s_waitcnt lgkmcnt(0)")
    stamp(a, opt, 10)
    RS = 144
    a(f"""
    s_lshl_b32 s38, s25, 7
    s_lshl_b32 s29, s36, 6
    s_add_u32 s38, s38, s29          ; token0
    s_lshl_b32 s38, s38, 12
    s_lshl_b32 s29, s24, 11
    s_add_u32 s38, s38, s29
    s_lshl_b32 s29, s26, 8
    s_add_u32 s38, s38, s29
    s_lshl_b32 s29, s37, 7
    s_add_u32 s38, s38, s29
    s_mul_i32 s29, s27, {64*RS}
    s_add_u32 s29, s29, {2*SLOT}
    v_and_b32 v1, 15, v0
    v_mul_u32_u24 v1, {RS}, v1
    v_lshrrev_b32 v2, 4, v0
    v_lshl_add_u32 v1, v2, 3, v1
    v_add_u32 v1, s29, v1
    v_lshrrev_b32 v2, 3, v0
    v_and_b32 v3, 7, v0
    v_mul_u32_u24 v4, {RS}, v2
    v_lshl_add_u32 v4, v3, 4, v4
    v_add_u32 v4, s29, v4
    v_lshlrev_b32 v2, 12, v2
    v_lshl_add_u32 v2, v3, 4, v2
    """)
    for i in range(4):
        D = ACC3 + 16 * i
        for r in range(8): a(f"v_cvt_pk_bf16_f32 v{D+r}, v{D+2*r}, v{D+2*r+1}")
        for cb in range(4):
            a(f"ds_write_b64 v1, {v(D+2*cb,2)} offset:{i*16*RS + cb*32}")
        for q in range(2):
            a(f"ds_read_b128 {v(8+8*i+4*q,4)}, v4 offset:{(i*16+q*8)*RS}")
        if i >= 1:
            for q in range(2):
                a(f"s_waitcnt lgkmcnt({7-q})")
                a(f"buffer_store_dwordx4 {v(8+8*(i-1)+4*q,4)}, v2, s[56:59], s38 offen{opt.get('osc', ' sc0 sc1 nt')}")
                a(f"s_add_u32 s38, s38, {8*4096}")
    for q in range(2):
        a(f"s_waitcnt lgkmcnt({1-q})")
        a(f"buffer_store_dwordx4 {v(8+24+4*q,4)}, v2, s[56:59], s38 offen{opt.get('osc', ' sc0 sc1 nt')}")
        a(f"s_add_u32 s38, s38, {8*4096}")

def p3_helper_setup(a, opt):
    lf = opt.get("lf", " sc1")
    p3_ids(a)
    a(f"""
    s_sub_u32 s36, s27, 4            ; lw
    v_lshlrev_b32 v1, 4, v0
    v_lshrrev_b32 v2, 4, v0          ; r
    v_and_b32 v3, 15, v0             ; p
    v_lshlrev_b32 v4, {1 if opt.get("m16p3", 1) else 2}, v2
    v_xor_b32 v3, v3, v4
    v_lshlrev_b32 v3, 4, v3
    v_lshl_add_u32 v8, v2, 11, v3
    s_lshl_b32 s29, s26, 8
    s_lshl_b32 s37, s36, 15
    s_add_u32 s29, s29, s37
    v_add_u32 v8, s29, v8
    v_xor_b32 v9, {128 if opt.get("m16p3", 1) else 0}, v8
    v_add_u32 v9, 8192, v9
    v_add_u32 v10, 16384, v8
    v_add_u32 v11, 16384, v9
    s_lshl_b32 s38, s25, 2
    s_add_u32 s38, s38, s36          ; tb
    s_lshl_b32 s38, s38, 16
    s_lshl_b32 s29, s24, 22
    s_add_u32 s38, s38, s29
    s_add_u32 s38, s38, {O_OFF}      ; O soffset
    s_lshl_b32 s37, s36, 12          ; lw*4096
    s_add_u32 s40, s37, {SLOT*NS}
    """)
    a(f"""
    {"s_lshr_b32 s42, s3, 1" if opt.get("rot", 1) == 1 else "s_lshr_b32 s42, s2, 6"}
    s_lshl_b32 s42, s42, {3 if opt.get("rot", 1) == 3 else 2}
    s_add_u32 s42, s42, 4
    s_and_b32 s42, s42, {15 if opt.get("rot", 1) else 0}
    s_mov_b32 s44, s42
    s_add_u32 s45, s42, 4
    s_and_b32 s45, s45, 15
    s_add_u32 s46, s42, 8
    s_and_b32 s46, s46, 15
    s_add_u32 s47, s42, 12
    s_and_b32 s47, s47, 15
    s_mov_b32 s30, s37
    s_mov_b32 s48, 0
    """)

def p3_gw(a, t):
    a(f"s_add_u32 s41, s{44 + (t >> 2)}, {t & 3}\ns_lshl_b32 s39, s41, 17")
    for n in range(4):
        a(f"s_add_u32 m0, s37, {t*SLOT+16384+n*1024}")
        a(f"buffer_load_dwordx4 v{8+n}, s[52:55], s39 offen lds")

WV0 = 16
def p3_wv_loads(a, opt, t0, t1):
    for t in range(t0, t1):
        a(f"s_add_u32 s41, s42, {t}\ns_and_b32 s41, s41, 15\ns_lshl_b32 s39, s41, 17")
        for n in range(4):
            a(f"buffer_load_dwordx4 {v(WV0+16*(t-5)+4*n,4)}, v{8+n}, s[52:55], s39 offen")
    return 4 * (t1 - t0)

def p3_helper(a, opt):
    lf = opt.get("lf", " sc1")
    def stg(t):
        a(f"s_add_u32 s41, s{44 + (t >> 2)}, {t & 3}")
    def GWs(t):
        stg(t)
        a("s_lshl_b32 s39, s41, 17")
        for n in range(4):
            a(f"s_add_u32 m0, s37, {t*SLOT+16384+n*1024}")
            a(f"buffer_load_dwordx4 v{8+n}, s[52:55], s39 offen lds")
    def GOs(t):
        stg(t)
        a(f"s_add_u32 m0, s37, {t*SLOT}\ns_lshl_b32 s29, s41, 12\ns_add_u32 s29, s29, s38")
        for n in range(4): a(f"buffer_load_dwordx4 v1, s[16:19], s29 offen offset:{n*1024}{lf} lds")
    def hm(t, n):
        a("s_mov_b32 s93, 0")
        for k in range(n):
            stg(t + k)
            a("s_lshl_b32 s29, s41, 1\ns_lshl_b32 s29, 3, s29\ns_or_b32 s93, s93, s29")
    def G():
        a(f"""
        s_and_b32 s41, s43, 15
        s_add_u32 s43, s43, 1
        s_lshl_b32 s39, s41, 17
        s_lshl_b32 s29, s41, 1
        s_lshl_b32 s93, 3, s29
        """)
        for n in range(4):
            a(f"s_add_u32 m0, s30, {16384+n*1024}")
            a(f"buffer_load_dwordx4 v{8+n}, s[52:55], s39 offen lds")
        need_mask(a)
        a(f"""
        s_lshl_b32 s29, s41, 12
        s_mov_b32 m0, s30
        s_add_u32 s29, s29, s38
        """)
        for n in range(4): a(f"buffer_load_dwordx4 v1, s[16:19], s29 offen offset:{n*1024}{lf} lds")
        a(f"""
        s_add_u32 s30, s30, {SLOT}
        s_cmp_eq_u32 s30, s40
        s_cselect_b32 s30, s37, s30
        """)
    code_pf(a, opt, 249)
    if False: pass
    elif opt.get("wearly", 1):
        GWs(1)
        a("s_barrier")
        GWs(2)
    else:
        GWs(4)
        a("s_barrier")
        GWs(0); GWs(1); GWs(2)
    look(a)
    n0 = opt.get("n0", 3)
    hm(0, n0)
    a(f"""
    s_andn2_b32 s88, s93, s92
    s_cbranch_scc1 L_p3_notyet
    s_mov_b32 s48, 1
    """)
    for t in range(n0): GOs(t)
    a.label("L_p3_notyet")
    a("s_barrier")
    stamp(a, opt, 7)
    GWs(3)
    a(f"""
    s_cmp_lg_u32 s48, 0
    s_cbranch_scc1 L_p3_have
    """)
    need_mask(a)
    stamp(a, opt, 8)
    for t in range(n0): GOs(t)
    a.label("L_p3_have")
    a(f"s_waitcnt vmcnt({4*(n0-1)})")
    a("s_barrier")
    if n0 == 2:
        hm(2, 1); need_mask(a); GOs(2)
        a("s_waitcnt vmcnt(4)")
        a("s_barrier")
        hm(3, 2); need_mask(a); GOs(3); GOs(4)
    else:
        hm(3, 1); need_mask(a); GOs(3)
        a("s_waitcnt vmcnt(8)")
        a("s_barrier")
        hm(4, 1); need_mask(a); GOs(4)
    if opt.get("p3loop", 0):
        a("s_add_u32 s43, s42, 5")
        a("s_mov_b32 s28, 11\ns_mov_b32 s49, 0")
        a("s_waitcnt vmcnt(8)")
        a.raw(".p2align 6")
        a.label("L_p3_lloop")
        a("s_barrier")
        G()
        a(f"""
        s_cmp_lg_u32 s49, 0
        s_cbranch_scc1 L_p3_w16
        s_mov_b32 s49, 1
        s_waitcnt vmcnt(12)
        """)
        a.label("L_p3_w16")
        a(f"""
        s_waitcnt vmcnt(16)
        s_sub_u32 s28, s28, 1
        s_cmp_lg_u32 s28, 0
        s_cbranch_scc1 L_p3_lloop
        s_barrier
        s_waitcnt vmcnt(8)
        s_barrier
        s_waitcnt vmcnt(0)
        s_barrier
        """)
        return
    nv = opt.get("nv", 0)
    a("v_add_u32 v12, s37, v1")
    cnt = {2: 4, 3: 4, 4: 4}
    for tau in range(2, 16):
        allowed = sum(cnt.get(k, 0) for k in (tau + 1, tau + 2))
        a(f"s_waitcnt vmcnt({allowed}) lgkmcnt(0)")
        a("s_barrier")
        t = tau + 3
        if t > 15: continue
        slot = (t % NS) * SLOT
        if t < 5 + nv:
            if slot + 16384 + 3072 > 65535:
                a(f"v_add_u32 v13, {slot + 16384}, v12")
                for n in range(4): a(f"ds_write_b128 v13, {v(WV0+16*(t-5)+4*n,4)} offset:{n*1024}")
            else:
                for n in range(4): a(f"ds_write_b128 v12, {v(WV0+16*(t-5)+4*n,4)} offset:{slot+16384+n*1024}")
            cnt[t] = 4
        elif opt.get("p3x") in (3, 4): cnt[t] = 4
        else:
            stg(t)
            a("s_lshl_b32 s39, s41, 17")
            for n in range(4):
                a(f"s_add_u32 m0, s37, {slot+16384+n*1024}")
                a(f"buffer_load_dwordx4 v{8+n}, s[52:55], s39 offen lds")
            cnt[t] = 8
        hm(t, 1)
        need_mask(a)
        a(f"s_add_u32 m0, s37, {slot}\ns_lshl_b32 s29, s41, 12\ns_add_u32 s29, s29, s38")
        if opt.get("p3x") in (2, 3): cnt[t] -= 4
        else:
            for n in range(4): a(f"buffer_load_dwordx4 v1, s[16:19], s29 offen offset:{n*1024}{lf} lds")

def gen(opt):
    mp = opt.get("map", 1)
    MIX[0] = opt.get("mix", 1)
    a = Asm()
    a.raw(khead(NAME))
    a(f"""
    s_getpc_b64 s[94:95]
    """)
    a.label("L_pc", keep_hist=True)
    if opt.get("fixe"): a("s_memrealtime s[60:61]")
    a(f"""
    s_cmp_ge_u32 s2, 256
    s_cbranch_scc1 L_end
    s_and_b32 s3, s2, 7
    s_bfe_u32 s24, s2, {0x10003 if mp == 1 else 0x10002}
    s_lshl_b32 s29, s24, 5
    s_load_dwordx4 s[4:7], s[0:1], s29
    s_load_dwordx2 s[32:33], s[0:1], 72
    s_load_dwordx2 s[34:35], s[0:1], 16
    {"s_lshr_b32 s99, s3, 2" if not MIX[0] else ("s_mov_b32 s99, s24" if MIX[0] == 1 else "s_xor_b32 s99, s24, 1")}
    s_mul_i32 s29, s99, 24
    s_add_u32 s29, s29, 24
    s_load_dwordx2 s[52:53], s[0:1], s29
    s_load_dwordx4 s[44:47], s[0:1], 56
    s_and_b32 s25, s3, 1
    s_lshl_b32 s25, s25, 2
    s_bfe_u32 s29, s2, {0x20004 if mp == 1 else 0x20003}
    s_add_u32 s25, s25, s29          ; tt
    s_bfe_u32 s26, s3, {0x20001 if mp == 1 else 0x10001}
    s_lshl_b32 s26, s26, {2 if mp == 1 else 3}
    s_lshr_b32 s29, s2, {6 if mp == 1 else 5}
    s_add_u32 s26, s26, s29          ; ct
    v_lshrrev_b32 v1, 6, v0
    v_and_b32 v0, 63, v0
    v_readfirstlane_b32 s27, v1
    s_lshl_b32 s29, s25, 19
    s_mov_b32 s10, 0x80000
    s_mov_b32 s11, 0x20000
    s_mov_b32 s14, 0x600000
    s_mov_b32 s15, 0x20000
    s_mov_b32 s18, 0x10000000
    s_mov_b32 s19, 0x20000
    s_mov_b32 s22, 0x10000
    s_mov_b32 s23, 0x20000
    s_mov_b32 s54, 0x200000
    s_mov_b32 s55, 0x20000
    s_mov_b32 s58, 0x800000
    s_mov_b32 s59, 0x20000
    s_mov_b32 s86, 256
    s_mov_b32 s87, 0x20000
    s_waitcnt lgkmcnt(0)
    s_add_u32 s8, s4, s29
    s_addc_u32 s9, s5, 0
    s_mov_b32 s12, s6
    s_mov_b32 s13, s7
    s_mov_b32 s16, s32
    s_mov_b32 s17, s33
    s_mov_b32 s20, s34
    s_mov_b32 s21, s35
    s_mov_b32 s56, s44
    s_mov_b32 s57, s45
    s_mov_b32 s84, s46
    s_mov_b32 s85, s47
    """)
    for i in range(12): stamp(a, opt, i)
    if opt.get("fixt") and not opt.get("fixe") and opt.get("fixp") is None: a("s_memrealtime s[60:61]\ns_waitcnt lgkmcnt(0)")
    a("s_cmp_lt_u32 s27, 4\ns_cbranch_scc1 L_compute")
    if opt.get("hp1"): a(f"s_setprio {opt['hp1']}")
    p1_helper(a, opt)
    p2_helper(a, opt)
    p3_helper(a, opt)
    a("s_branch L_fin")
    a.label("L_compute")
    p1_compute(a, opt)
    p2_compute(a, opt)
    (p3_compute16 if opt.get("m16p3", 1) else p3_compute)(a, opt)
    a.label("L_fin")
    if opt.get("fixt"):
        a("s_cmp_ge_u32 s27, 4\ns_cbranch_scc1 L_end")
        if opt.get("fixw") is not None: a(f"s_cmp_lg_u32 s2, {opt['fixw']}\ns_cbranch_scc1 L_end")
        a.label("L_fixt")
        a(f"""
        s_memrealtime s[62:63]
        s_waitcnt lgkmcnt(0)
        s_sub_u32 s62, s62, s60
        s_cmp_lt_u32 s62, {opt["fixt"]}
        s_cbranch_scc1 L_fixt
        """)
    stamp_out(a, opt)
    a.label("L_end")
    a("s_endpgm")
    return a.text()

if __name__ == "__main__":
    import json, subprocess
    out = sys.argv[1]
    opt = json.loads(sys.argv[2]) if len(sys.argv) > 2 else {}
    HEADER = open("concat_heads__linear_kernel_hedgehog__mha_block__prompt.s.ref").read().split("; Override launch")[0]
    launch = f"; @launch kernel={NAME} grid=(256,1,1) block=(512,1,1) lds=163840" if opt.get("list", 1) else "; @launch grid=(256,1,1) block=(512,1,1) lds=163840"
    s = HEADER + launch + '\n.amdgcn_target "amdgcn-amd-amdhsa--gfx950"\n.text\n' + gen(opt) + '.section .rodata,"a"\n' + kdesc(NAME, 256, 102)
    open(out, "w").write(s)
    r = subprocess.run(["clang", "-x", "assembler", "-target", "amdgcn-amd-amdhsa", "-mcpu=gfx950", "-c", out, "-o", "_b.o"], capture_output=True, text=True)
    if r.returncode != 0:
        print(r.stderr[:1500]); raise SystemExit(1)
```
